```python
import torch

def _softmax(x, axis=-1):
    return torch.softmax(x, dim=axis)
def _gelu(x):
    return torch.nn.functional.gelu(x, approximate="tanh")
def _silu(x):
    return torch.nn.functional.silu(x)
def _sigmoid(x):
    return torch.sigmoid(x)
def _layernorm(x, axis=-1, eps=1e-5):
    m = x.mean(dim=axis, keepdim=True)
    v = x.var(dim=axis, keepdim=True, unbiased=False)
    return (x - m) / torch.sqrt(v + eps)
def _scatter_add(tgt, idx, src, axis=0):
    return tgt.clone().index_add_(axis, idx, src)
def _segment_sum(src, seg, n):
    out = torch.zeros((n,) + src.shape[1:], dtype=src.dtype)
    return out.index_add_(0, seg, src)
def _pad(x, pw):
    flat = tuple(v for pair in reversed(pw) for v in pair)
    return torch.nn.functional.pad(x, flat)

kernel_name = 'gated_mix__spectral_fnet__dense_activation_relu__prompt'

def setup_inputs():

    _w = (lambda a: (lambda t: t.to(torch.bfloat16) if t.is_floating_point() else t)(torch.as_tensor(a)))
    def _A_setup():
        B, S, D = 1, 2048, 576
        ns = torch.arange(S)[:, None] * torch.arange(S)[None, :]
        nd = torch.arange(D)[:, None] * torch.arange(D)[None, :]
        Ws_re = torch.cos(-2.0 * torch.pi * ns / S).to(float)
        Ws_im = torch.sin(-2.0 * torch.pi * ns / S).to(float)
        Wd_re = torch.cos(-2.0 * torch.pi * nd / D).to(float)
        Wd_im = torch.sin(-2.0 * torch.pi * nd / D).to(float)
        return {
            "x": _w((lambda *s: torch.randn(*s, dtype=torch.bfloat16) * 0.05)(B, S, D)),
            "dft_seq_re": _w(Ws_re),
            "dft_seq_im": _w(Ws_im),
            "dft_hid_re": _w(Wd_re),
            "dft_hid_im": _w(Wd_im),
        }
    _A_in = _A_setup()

    def _B_setup():
        B, S, D, Dff = 1, 2048, 576, 4608
        return {
            "x": _w((lambda *s: torch.randn(*s, dtype=torch.bfloat16) * 0.05)(B, S, D)),
            "w1": _w((lambda *s: torch.randn(*s, dtype=torch.bfloat16) * 0.4)(D, Dff)),
            "w2": _w((lambda *s: torch.randn(*s, dtype=torch.bfloat16) * 0.4)(Dff, D)),
        }
    _B_in = _B_setup()

    return {
        "A_x": _A_in["x"],
        "A_dft_seq_re": _A_in["dft_seq_re"],
        "A_dft_seq_im": _A_in["dft_seq_im"],
        "A_dft_hid_re": _A_in["dft_hid_re"],
        "A_dft_hid_im": _A_in["dft_hid_im"],
        "B_x": _B_in["x"],
        "B_w1": _B_in["w1"],
        "B_w2": _B_in["w2"],
        "gate_w": _w((lambda *s: torch.randn(*s, dtype=torch.bfloat16) * 0.05)(576) * 16.0),
    }

def reference(A_x, A_dft_seq_re, A_dft_seq_im, A_dft_hid_re, A_dft_hid_im, B_x, B_w1, B_w2, gate_w):
    def _A_ref(x, dft_seq_re, dft_seq_im, dft_hid_re, dft_hid_im):
        a = torch.einsum("bsd,ed->bse", x, dft_hid_re)
        b = torch.einsum("bsd,ed->bse", x, dft_hid_im)
        y = torch.einsum("ts,bse->bte", dft_seq_re, a) - torch.einsum("ts,bse->bte", dft_seq_im, b)
        return y

    def _B_ref(x, w1, w2):
        h = torch.einsum("bsd,df->bsf", x, w1)
        zero = torch.zeros_like(h)
        h = torch.maximum(h, zero)
        return torch.einsum("bsf,fd->bsd", h, w2)

    x = A_x
    g = _sigmoid((x * gate_w).sum(-1, keepdims=True))
    a = _A_ref(x, A_dft_seq_re, A_dft_seq_im, A_dft_hid_re, A_dft_hid_im)
    b = _B_ref(x, B_w1, B_w2)
    return g * a + (1 - g) * b
```

```python
import sys
STAMP = '--stamp' in sys.argv
out=[]
def e(s=''): out.append('    '+s if s and not s.endswith(':') else s)
def v(n,c=1): return 'v%d'%n if c==1 else 'v[%d:%d]'%(n,n+c-1)
def s(n,c=1): return 's%d'%n if c==1 else 's[%d:%d]'%(n,n+c-1)

SLOT=36864; XW0=110592; XWS=18432; HB=73728
P_OFF=0; U_OFF=0x1400000; G_OFF=0x1800000; ST_OFF=0x1900000; WS_BYTES=0x1A00000
sX,sWR,sWI,sW1,sW2,sGW,sWS,sOUT,sWH=8,12,16,20,24,28,32,36,40
sJ,sC,sWV=3,4,5

def srd(d,base,nbytes):
    e('s_mov_b32 %s, %s'%(s(d),s(base))); e('s_mov_b32 %s, %s'%(s(d+1),s(base+1)))
    e('s_mov_b32 %s, %d'%(s(d+2),nbytes)); e('s_mov_b32 %s, 0x20000'%s(d+3))

def stamp(idx, sreg=90):
    pass

class LG:
    def __init__(s_): s_.ops=[]; s_.done=0
    def issue(s_,tag): s_.ops.append(tag)
    def need(s_,tags):
        idx=max([s_.ops.index(t) for t in tags if t in s_.ops],default=-1)
        if idx+1>s_.done:
            n=len(s_.ops)-1-idx
            n=min(n,15)
            e('s_waitcnt lgkmcnt(%d)'%n); s_.done=len(s_.ops)-n

def mfma(d,a,b,c=None):
    e('v_mfma_f32_16x16x32_bf16 %s, %s, %s, %s'%(v(d,4),v(a,4),v(b,4), v(d,4) if c is None else (c if isinstance(c,str) else v(c,4))))

def st_rt(slot):
    if STAMP: e('s_memrealtime %s'%s(70+2*slot,2))
def st_flush(n, row_sreg_expr_emit):
    if not STAMP: return
    e('s_waitcnt lgkmcnt(0)')
    row_sreg_expr_emit()
    e('s_lshl_b32 s68, s68, 6'); e('s_add_u32 s68, s68, %d'%ST_OFF)
    e('v_mov_b32 v2, 0')
    for i in range(n):
        e('v_mov_b32 v4, %s'%s(70+2*i)); e('v_mov_b32 v5, %s'%s(71+2*i))
        e('buffer_store_dwordx2 v[4:5], v2, %s, s68 offen offset:%d'%(s(sWS,4),8*i))
        e('s_nop 1')

def k1():
    e('.p2align 8'); e('.type k1_kernel,@function'); e('k1_kernel:')
    e('s_cmp_ge_u32 s2, 256'); e('s_cbranch_scc1 K1_END')
    st_rt(0)
    e('s_load_dwordx2 s[44:45], s[0:1], 0')
    e('s_load_dwordx4 s[48:51], s[0:1], 24')
    e('s_load_dwordx4 s[52:55], s[0:1], 48')
    e('s_load_dwordx2 s[56:57], s[0:1], 64')
    e('s_load_dwordx2 s[58:59], s[0:1], 88')
    e('v_lshrrev_b32 v1, 6, v0')
    e('s_and_b32 %s, s2, 7'%s(sJ)); e('s_lshr_b32 %s, s2, 3'%s(sC))
    e('v_readfirstlane_b32 %s, v1'%s(sWV))
    e('v_and_b32 v0, 63, v0')
    e('s_mul_i32 s6, %s, 57'%s(sC)); e('s_lshr_b32 s6, s6, 9'); e('s_mul_i32 s6, s6, 9'); e('s_sub_u32 s6, %s, s6'%s(sC))
    e('s_waitcnt lgkmcnt(0)')
    srd(sX,44,2359296); srd(sWR,48,663552); srd(sWI,50,663552); srd(sW1,52,5308416); srd(sW2,54,5308416); srd(sGW,56,1152); srd(sWS,58,WS_BYTES)
    e('s_cmp_eq_u32 %s, 7'%s(sWV))
    e('s_cselect_b32 %s, s50, s48'%s(sWH)); e('s_cselect_b32 %s, s51, s49'%s(sWH+1))
    e('s_mov_b32 %s, 663552'%s(sWH+2)); e('s_mov_b32 %s, 0x20000'%s(sWH+3))
    e('s_cmp_ge_u32 %s, 6'%s(sWV)); e('s_cbranch_scc1 K1_DFT')
    e('s_cmp_ge_u32 %s, 4'%s(sWV)); e('s_cbranch_scc0 K1_MAIN')
    loader()
    dft()
    main()
    e('K1_END:'); e('s_endpgm')

def loader():
    e('K1_LOAD:')
    e('s_sub_u32 s7, %s, 4'%s(sWV))
    e('v_lshrrev_b32 v1, 3, v0'); e('v_and_b32 v2, 7, v0')
    e('s_mul_i32 s60, s7, 144')
    e('v_add_u32 v3, s60, v1')
    e('v_lshrrev_b32 v4, 1, v2')
    e('v_and_b32 v5, 1, v2'); e('v_lshlrev_b32 v5, 4, v5')
    e('s_movk_i32 s61, 9216')
    e('s_mul_i32 s62, %s, 1152'%s(sJ))
    e('s_lshl_b32 s63, s6, 1')
    e('s_mul_i32 s64, s7, 18432')
    e('s_mov_b32 s65, 0')
    for p in range(18):
        e('v_add_u32 v6, %d, v3'%(8*p))
        e('v_mul_u32_u24 v7, 57, v6'); e('v_lshrrev_b32 v7, 9, v7')
        e('v_mul_u32_u24 v8, 9, v7'); e('v_sub_u32 v8, v6, v8')
        e('v_bfe_u32 v9, v7, 1, 1'); e('v_bfe_u32 v10, v7, 3, 1'); e('v_lshl_add_u32 v9, v10, 1, v9')
        e('v_xor_b32 v9, v9, v4')
        e('v_mul_u32_u24 v7, s61, v7')
        e('v_lshl_add_u32 v7, v8, 7, v7'); e('v_lshl_add_u32 v7, v9, 5, v7')
        if p%4: e('v_add3_u32 %s, v7, v5, %s'%(v(16+p), 's%d'%(96+p%4))) if False else None
        e('v_add_u32 %s, v7, v5'%v(16+p))
        if p%4: e('v_subrev_u32 %s, %d, %s'%(v(16+p),(p%4)*1024,v(16+p)))
    def issue1():
        e('s_mul_i32 s66, s63, %d'%(32*9216)); e('s_add_u32 s66, s66, s62')
        e('s_add_u32 s67, s65, s64')
        for p in range(18):
            if p%4==0:
                e('s_add_u32 m0, s67, %d'%(p*1024)); e('s_nop 0')
            e('buffer_load_dwordx4 %s, %s, s66 offen offset:%d lds'%(v(16+p),s(sW1,4),(p%4)*1024))
        e('s_add_u32 s63, s63, 1'); e('s_cmp_eq_u32 s63, 18'); e('s_cselect_b32 s63, 0, s63')
        e('s_add_u32 s65, s65, %d'%SLOT); e('s_cmp_eq_u32 s65, %d'%(3*SLOT)); e('s_cselect_b32 s65, 0, s65')
    e('s_mov_b32 s68, 0')
    e('LD_P:')
    issue1()
    e('s_add_u32 s68, s68, 1')
    e('s_cmp_lt_u32 s68, 3'); e('s_cbranch_scc1 LD_P')
    e('s_cmp_gt_u32 s68, 3'); e('s_cbranch_scc1 LD_N')
    e('s_waitcnt vmcnt(36)'); e('s_barrier')
    e('LD_N:')
    e('s_waitcnt vmcnt(18)'); e('s_barrier')
    e('s_cmp_lt_u32 s68, 18'); e('s_cbranch_scc1 LD_P')
    e('s_mul_i32 s62, %s, 576'%s(sJ)); e('s_mul_i32 s66, s7, 144'); e('s_add_u32 s62, s62, s66'); e('s_mul_i32 s62, s62, 1152')
    e('v_lshrrev_b32 v6, 1, v1'); e('v_and_b32 v6, 3, v6'); e('v_lshlrev_b32 v6, 1, v6'); e('v_xor_b32 v6, v6, v2')
    e('s_movk_i32 s69, 1152'); e('v_mul_u32_u24 v7, s69, v1'); e('v_lshl_add_u32 v36, v6, 4, v7')
    for i in range(1,4): e('v_add_u32 %s, %d, v36'%(v(36+i),i*8192))
    e('s_mov_b32 s63, 0')
    def issue2():
        e('s_lshr_b32 s66, s63, 1'); e('s_add_u32 s67, s66, %s'%s(sJ)); e('s_and_b32 s67, s67, 7')
        e('s_cmp_eq_u32 s66, 0'); e('s_cselect_b32 s67, 8, s67'); e('s_lshl_b32 s67, s67, 7')
        e('s_and_b32 s66, s63, 1'); e('s_mul_i32 s66, s66, %d'%(288*1152)); e('s_add_u32 s66, s66, s67'); e('s_add_u32 s66, s66, s62')
        e('s_add_u32 s67, s65, s64')
        for p in range(18):
            if p%4==0:
                e('s_add_u32 m0, s67, %d'%(p*1024))
                if p: e('s_add_u32 s66, s66, %d'%(32*1152))
                else: e('s_nop 0')
            e('buffer_load_dwordx4 %s, %s, s66 offen offset:%d lds'%(v(36+p%4),s(sW2,4),(p%4)*1024))
        e('s_add_u32 s63, s63, 1')
        e('s_add_u32 s65, s65, %d'%SLOT); e('s_cmp_eq_u32 s65, %d'%(4*SLOT)); e('s_cselect_b32 s65, 0, s65')
    e('LD_Q:')
    issue2()
    e('s_cmp_gt_u32 s63, 3'); e('s_cbranch_scc1 LD_M')
    e('s_cmp_eq_u32 s63, 3'); e('s_cbranch_scc1 LD_Q')
    e('s_cmp_eq_u32 s63, 2'); e('s_cbranch_scc1 LD_E')
    e('s_waitcnt vmcnt(18)'); e('s_barrier'); e('s_branch LD_Q')
    e('LD_E:')
    e('s_barrier'); e('s_barrier')
    e('s_waitcnt vmcnt(18)'); e('s_barrier')
    e('s_branch LD_Q')
    e('LD_M:')
    e('s_waitcnt vmcnt(36)'); e('s_barrier')
    e('s_cmp_lt_u32 s63, 18'); e('s_cbranch_scc1 LD_Q')
    e('s_waitcnt vmcnt(18)'); e('s_barrier')
    e('s_waitcnt vmcnt(0)'); e('s_barrier')
    e('s_endpgm')

def dft():
    e('K1_DFT:')
    e('s_sub_u32 s7, %s, 6'%s(sWV))
    e('v_lshrrev_b32 v1, 3, v0'); e('v_and_b32 v2, 7, v0'); e('v_lshrrev_b32 v3, 1, v1')
    e('v_xor_b32 v4, v2, v3'); e('v_lshlrev_b32 v4, 4, v4')
    e('v_xor_b32 v5, 64, v4')
    e('s_mov_b32 s60, 73728'); e('v_mul_lo_u32 v6, s60, v1')
    e('s_movk_i32 s61, 1152'); e('v_mul_u32_u24 v7, s61, v1')
    for p in range(4):
        e('v_add_u32 %s, v6, %s'%(v(16+p),'v5' if p%2 else 'v4'))
        if p: e('v_add_u32 %s, %d, %s'%(v(16+p),p*(8*73728-1024),v(16+p)))
        e('v_add_u32 %s, v7, %s'%(v(20+p),'v5' if p%2 else 'v4'))
        if p: e('v_add_u32 %s, %d, %s'%(v(20+p),p*(8*1152-1024),v(20+p)))
    e('s_lshl_b32 s62, s7, 6'); e('v_xor_b32 v8, s62, v4'); e('v_add_u32 v24, v7, v8'); e('v_add_u32 v24, %d, v24'%(32*1152))
    e('v_xor_b32 v25, 2, v2'); e('v_lshlrev_b32 v25, 4, v25')
    e('s_lshl_b32 s62, s7, 5'); e('s_add_u32 s62, s62, %s'%s(sC)); e('s_mul_i32 s62, s62, 1152')
    e('s_mul_i32 s63, %s, %d'%(s(sJ),36*1152))
    e('s_mov_b32 s64, s6')
    e('s_mov_b32 s65, %d'%XW0)
    e('s_lshl_b32 s69, s7, 12')
    e('s_lshl_b32 s44, s7, 10')
    def issue():
        e('s_lshl_b32 s66, s64, 7')
        e('s_add_u32 s67, s66, s62'); e('s_add_u32 s68, s66, s63')
        e('s_add_u32 m0, s65, s69'); e('s_nop 0')
        for p in range(4): e('buffer_load_dwordx4 %s, %s, s67 offen offset:%d lds'%(v(16+p),s(sX,4),p*1024))
        e('s_add_u32 m0, m0, 8192'); e('s_nop 0')
        for p in range(4): e('buffer_load_dwordx4 %s, %s, s68 offen offset:%d lds'%(v(20+p),s(sWH,4),p*1024))
        e('s_add_u32 s45, s65, 16384')
        e('s_add_u32 m0, s45, s44'); e('s_mov_b32 exec_hi, 0xff')
        e('buffer_load_dwordx4 v24, %s, s68 offen lds'%s(sWH,4))
        e('s_mov_b32 m0, s45'); e('s_mov_b32 exec_lo, 0'); e('s_mov_b32 exec_hi, 0xff00')
        e('buffer_load_dwordx4 v25, %s, s66 offen lds'%s(sGW,4))
        e('s_mov_b64 exec, -1')
        e('s_add_u32 s64, s64, 1'); e('s_cmp_eq_u32 s64, 9'); e('s_cselect_b32 s64, 0, s64')
        e('s_xor_b32 s65, s65, %d'%(XW0^(XW0+XWS)))
    issue(); issue()
    e('v_and_b32 v8, 15, v0'); e('v_lshrrev_b32 v9, 4, v0')
    e('v_lshrrev_b32 v10, 1, v8'); e('v_xor_b32 v10, v10, v9'); e('v_lshlrev_b32 v10, 4, v10')
    e('v_lshl_add_u32 v26, v8, 7, v10'); e('v_add_u32 v26, %d, v26'%XW0); e('v_xor_b32 v27, 64, v26')
    e('v_add_u32 v28, s69, v26'); e('v_add_u32 v29, s69, v27')
    ACC=64
    for i in range(40): e('v_mov_b32 %s, 0'%v(ACC+i))
    e('v_lshlrev_b32 v11, 2, v9')
    e('v_cvt_f32_u32 v11, v11')
    for b in range(2):
        e('v_add_u32 v12, %d, v8'%(16*b)); e('v_cvt_f32_u32 v12, v12'); e('v_mul_f32 v12, 0x3d000000, v12')
        for jp in range(4):
            o=[(2*jp+u)%4+16*((2*jp+u)//4) for u in range(2)]
            for u in range(2):
                e('v_add_f32 %s, %s, v11'%(v(30+u), repr(float(o[u])) if o[u] in (0,1,2,4) else '0x%08x'%f2u(o[u])))
                e('v_mul_f32 %s, %s, v12'%(v(30+u),v(30+u))); e('v_fract_f32 %s, %s'%(v(30+u),v(30+u)))
            e('v_cos_f32 v32, v30'); e('v_cos_f32 v33, v31'); e('v_sin_f32 v34, v30'); e('v_sin_f32 v35, v31'); e('s_nop 0')
            e('v_cvt_pk_bf16_f32 %s, v32, v33'%v(128+4*b+jp)); e('v_cvt_pk_bf16_f32 %s, v34, v35'%v(136+4*b+jp))
            e('v_xor_b32 %s, 0x80008000, %s'%(v(144+4*b+jp),v(136+4*b+jp)))
    XF=36; WF=44
    e('s_mov_b32 s46, 0')
    e('s_mov_b32 s47, %d'%XWS)
    e('s_waitcnt vmcnt(10)')
    e('DF_L:')
    for kp in range(2):
        e('s_barrier')
        for sg in range(2): e('ds_read_b128 %s, %s offset:%d'%(v(XF+4*sg,4),v(28+kp),sg*2048))
        for ct in range(5): e('ds_read_b128 %s, %s offset:%d'%(v(WF+4*ct,4),v(26+kp),8192+ct*2048))
        if kp==0:
            e('s_cmp_eq_u32 s46, 0'); e('s_cbranch_scc1 DF_S'); e('s_cmp_eq_u32 s46, 8'); e('s_cbranch_scc1 DF_S')
            issue()
            e('DF_S:')
        for ct in range(5):
            e('s_waitcnt lgkmcnt(%d)'%(4-ct))
            for sg in range(2): mfma(ACC+8*ct+4*sg, XF+4*sg, WF+4*ct)
    for r in (26,27,28,29): e('v_add_u32 %s, s47, %s'%(v(r),v(r)))
    e('s_sub_u32 s47, 0, s47')
    e('s_add_u32 s46, s46, 1'); e('s_cmp_lt_u32 s46, 9')
    e('s_waitcnt vmcnt(0)')
    e('s_cbranch_scc1 DF_L')
    e('s_barrier')
    e('s_nop 7')
    FR=104
    for ct in range(5):
        for h in range(4): e('v_cvt_pk_bf16_f32 %s, %s, %s'%(v(FR+4*ct+h),v(ACC+8*ct+2*h),v(ACC+8*ct+2*h+1)))
    e('v_lshlrev_b32 v12, 6, v8'); e('v_lshl_add_u32 v12, v9, 4, v12')
    for h in range(4): e('v_mov_b32_dpp %s, %s row_ror:8 row_mask:0xf bank_mask:0xf'%(v(124+h),v(FR+16+h)))
    e('s_lshl_b32 s60, %s, 5'%s(sJ)); e('s_add_u32 s60, s60, %s'%s(sC)); e('s_mul_i32 s60, s60, 12288')
    e('s_mul_i32 s61, s7, 6144'); e('s_add_u32 s60, s60, s61'); e('s_add_u32 s60, s60, %d'%U_OFF)
    D=160
    prs=[(FR,FR+8),(FR+4,FR+12),(FR+16,124)]
    for t,(a,b) in enumerate(prs):
        for be in range(2):
            d=D+16*t+8*be
            mfma(d,a,128+4*be,'0'); mfma(d+4,b,128+4*be,'0'); mfma(d,b,136+4*be); mfma(d+4,a,144+4*be)
    e('s_cmp_eq_u32 %s, 0'%s(sJ)); e('s_cbranch_scc0 DF_NG')
    e('s_lshl_b32 s61, %s, 8'%s(sC)); e('s_lshl_b32 s62, s7, 7'); e('s_add_u32 s61, s61, s62'); e('s_add_u32 s61, s61, %d'%G_OFF)
    e('v_lshlrev_b32 v13, 4, v9')
    e('s_mov_b32 exec_lo, 0x00200020'); e('s_mov_b32 exec_hi, 0x00200020')
    for sg in range(2): e('buffer_store_dwordx4 %s, v13, %s, s61 offen offset:%d'%(v(ACC+32+4*sg,4),s(sWS,4),64*sg))
    e('s_mov_b64 exec, -1')
    e('DF_NG:')
    e('s_nop 7')
    for t in range(3):
        for be in range(2):
            d=D+16*t+8*be; o=208+8*t+4*be
            for r in range(4): e('v_cvt_pk_bf16_f32 %s, %s, %s'%(v(o+r),v(d+r),v(d+4+r)))
            off=t*2048+be*1024
            if off>=4096:
                if off==4096: e('s_add_u32 s60, s60, 4096')
                off-=4096
            e('buffer_store_dwordx4 %s, v12, %s, s60 offen offset:%d sc1'%(v(o,4),s(sWS,4),off))
    for i in range(4): e('s_barrier')
    e('s_endpgm')

import struct
def f2u(x): return struct.unpack('<I',struct.pack('<f',float(x)))[0]

def main():
    e('K1_MAIN:')
    ACC=112; AF=16; XB=52
    e('v_and_b32 v1, 15, v0'); e('v_lshrrev_b32 v2, 4, v0')
    e('s_lshl_b32 s60, %s, 4'%s(sWV)); e('v_add_u32 v3, s60, v1')
    e('v_and_b32 v4, 31, v3'); e('v_lshrrev_b32 v5, 5, v3')
    e('v_lshlrev_b32 v4, 6, v4'); e('v_lshl_add_u32 v4, v5, 5, v4'); e('v_add_u32 v4, %s, v4'%s(sC))
    e('s_movk_i32 s61, 1152'); e('v_mul_u32_u24 v4, s61, v4')
    for u in range(2):
        e('s_add_u32 s62, s6, %d'%(2+4*u)); e('v_add_u32 v5, s62, v2')
        e('v_subrev_u32 v6, 9, v5'); e('v_min_u32 v5, v5, v6')
        e('v_lshl_add_u32 v5, v5, 7, v4')
        e('buffer_load_dword v110, v5, %s, 0 offen'%s(sX,4))
    e('s_mul_i32 s62, %s, 576'%s(sJ)); e('s_mul_i32 s63, %s, 18'%s(sC)); e('s_add_u32 s62, s62, s63'); e('s_mul_i32 s62, s62, 1152')
    e('s_lshl_b32 s63, %s, 13'%s(sWV)); e('s_add_u32 s62, s62, s63')
    e('v_lshlrev_b32 v5, 7, v0')
    e('buffer_load_dword v110, v5, %s, s62 offen'%s(sW2,4))
    e('v_lshrrev_b32 v3, 2, v1'); e('v_and_b32 v4, 3, v0')
    e('v_lshl_add_u32 v5, v2, 3, v3')
    e('v_mul_u32_u24 v5, s61, v5'); e('v_lshl_add_u32 v5, v4, 3, v5')
    e('v_lshrrev_b32 v6, 1, v3'); e('v_and_b32 v7, 1, v2'); e('v_lshl_add_u32 v6, v7, 1, v6')
    e('s_mul_i32 s60, %s, 9'%s(sWV))
    for i in range(4):
        e('s_add_u32 s62, s60, %d'%i); e('s_and_b32 s63, s62, 3'); e('s_lshr_b32 s62, s62, 2'); e('s_lshl_b32 s62, s62, 7')
        e('v_xor_b32 v7, s63, v6'); e('v_lshl_add_u32 v7, v7, 5, v5'); e('v_add_u32 %s, s62, v7'%v(88+i)); e('v_mov_b32 %s, %s'%(v(92+i),v(88+i)))
    e('v_lshrrev_b32 v7, 1, v1'); e('v_xor_b32 v7, v7, v2'); e('v_lshlrev_b32 v7, 4, v7')
    e('v_lshl_add_u32 v96, v1, 7, v7'); e('v_add_u32 v96, %d, v96'%XW0); e('v_xor_b32 v97, 64, v96')
    e('v_lshlrev_b32 v7, 4, v0')
    for i in range(2):
        e('s_add_u32 s62, s60, %d'%i); e('s_and_b32 s63, s62, 1'); e('s_lshl_b32 s63, s63, 3'); e('s_lshr_b32 s62, s62, 1'); e('s_lshl_b32 s62, s62, 12')
        e('s_add_u32 s62, s62, s63'); e('s_add_u32 s62, s62, %d'%HB); e('v_add_u32 %s, s62, v7'%v(98+i))
    e('s_lshr_b32 s62, %s, 1'%s(sWV)); e('s_lshl_b32 s62, s62, 11'); e('s_add_u32 s62, s62, %d'%HB)
    e('v_add_u32 v100, s62, v7'); e('v_add_u32 v101, %d, v100'%36864)
    e('v_mov_b32 v106, v7')
    e('v_lshl_add_u32 v5, v2, 2, v3')
    e('v_bfe_u32 v6, v5, 1, 2')
    e('v_lshlrev_b32 v5, 7, v5'); e('v_lshl_add_u32 v5, v4, 3, v5')
    e('s_and_b32 s62, %s, 1'%s(sWV)); e('s_lshl_b32 s62, s62, 1')
    for tb in range(2):
        e('s_add_u32 s63, s62, %d'%tb); e('v_xor_b32 v7, s63, v6'); e('v_lshl_add_u32 %s, v7, 5, v5'%v(102+tb)); e('v_add_u32 %s, %d, %s'%(v(104+tb),SLOT,v(102+tb)))
    for i in range(144): e('v_mov_b32 %s, 0'%v(ACC+i))
    for i in range(12): e('v_mov_b32 %s, 0'%v(AF+24+i))
    for i in range(16): e('v_mov_b32 %s, 0'%v(XB+16+i))
    e('s_mov_b32 s64, 0')
    e('s_mov_b32 s65, %d'%XWS)
    e('s_mov_b32 s66, 9')
    e('M1_L:')
    for p in range(2):
        e('s_barrier')
        if p==0 and STAMP:
            e('s_cmp_eq_u32 s66, 9'); e('s_cbranch_scc0 M1_NS'); st_rt(1); e('s_waitcnt lgkmcnt(0)'); e('M1_NS:')
        lg=LG()
        R=[('A',0,0),('A',0,1)]+[('X',sg,0) for sg in range(4)]+[('A',t,r) for t in range(1,9) for r in range(2)]
        fill={}
        extra=['s_add_u32 s64, s64, %d'%SLOT,'s_cmp_eq_u32 s64, %d'%(3*SLOT),'s_cselect_b32 s64, 0, s64']+['v_add_u32 %s, s64, %s'%(v(92+i),v(88+i)) for i in range(4)]
        if p==1: extra+=['v_add_u32 v96, s65, v96','v_add_u32 v97, s65, v97','s_sub_u32 s65, 0, s65','s_sub_u32 s66, s66, 1','s_cmp_lg_u32 s66, 0']
        for g in range(36):
            i,sg=divmod(g,4)
            if g<len(R):
                k,a,b=R[g]
                if k=='A': e('ds_read_b64_tr_b16 %s, %s offset:%d'%(v(AF+4*a+2*b,2),v(92+a%4),128*(a//4)+4608*b))
                else: e('ds_read_b128 %s, %s offset:%d'%(v(XB+16*p+4*a,4),v(96+p),2048*a))
                lg.issue(R[g])
            elif extra: e(extra.pop(0))
            if i<3: t,xb=6+i,1-p
            else:
                t,xb=i-3,p
                lg.need([('A',t,0),('A',t,1),('X',sg,0)])
            mfma(ACC+16*t+4*sg, AF+4*t, XB+16*xb+4*sg)
        assert not extra
        e('s_waitcnt lgkmcnt(0)')
    e('s_cbranch_scc1 M1_L')
    e('s_barrier')
    st_rt(2)
    def conv(t,sg):
        a=ACC+16*t+4*sg
        return ['v_cvt_pk_bf16_f32 %s, %s, %s'%(v(a),v(a),v(a+1)),'v_cvt_pk_bf16_f32 %s, %s, %s'%(v(a+1),v(a+2),v(a+3)),
                'v_pk_max_i16 %s, %s, 0'%(v(a),v(a)),'v_pk_max_i16 %s, %s, 0'%(v(a+1),v(a+1)),
                'ds_write_b64 %s, %s offset:%d'%(v(98+t%2),v(a,2),(t//2)*4096+sg*1024)]
    cv=[x for t in range(9) for sg in range(4) for x in conv(t,sg)]
    for g in range(12):
        i,sg=divmod(g,4)
        mfma(ACC+16*(6+i)+4*sg, AF+4*(6+i), XB+16+4*sg)
        for _ in range(2): e(cv.pop(0))
    for x in cv: e(x)
    e('s_waitcnt lgkmcnt(0)'); e('s_barrier')
    H=ACC
    for k in range(18):
        for sg in range(2):
            e('ds_read_b128 %s, %s offset:%d'%(v(H+8*k+4*sg,4),v(100+k//9),(k%9)*4096+sg*1024))
    WR=16; PA=64; QA=80; PK=8
    e('s_mov_b32 s64, %d'%(2*SLOT))
    e('s_mov_b32 s66, 0')
    e('s_lshl_b32 s60, %s, 5'%s(sJ)); e('s_add_u32 s60, s60, %s'%s(sC)); e('s_mul_i32 s60, s60, 73728')
    e('s_lshl_b32 s61, %s, 11'%s(sWV)); e('s_add_u32 s60, s60, s61')
    e('s_mov_b32 s67, 0x40000000')
    e('s_waitcnt lgkmcnt(0)')
    st_rt(3)
    def mm2(kg,u):
        tb,sg=divmod(u,2)
        a=WR+8*(kg%6)+4*tb; b=H+8*kg+4*sg
        if kg<9: mfma(PA+8*tb+4*sg,a,b,'0' if kg==0 else None)
        else: mfma(QA+8*tb+4*sg,a,b,PA+8*tb+4*sg if kg==9 else None)
    def packq():
        L=[]
        for sg in range(2):
            for tb in range(2):
                for h in range(2):
                    q=QA+8*tb+4*sg+2*h
                    L.append('v_cvt_pk_bf16_f32 %s, %s, %s'%(v(PK+4*sg+2*tb+h),v(q),v(q+1)))
            L.append('buffer_store_dwordx4 %s, v106, %s, s67 offen offset:%d sc1'%(v(PK+4*sg,4),s(sWS,4),1024*sg))
        return L
    e('M2_L:')
    for hc in range(2):
        e('s_barrier')
        lg=LG()
        R=[(k,tb,r) for k in range(9) for tb in range(2) for r in range(2)]
        gaps={g:[] for g in range(36)}
        for i,x in enumerate(R): gaps[i*30//36].append(x)
        if hc==0: extra=packq()+['v_add_u32 v102, s64, v102','v_add_u32 v103, s64, v103']
        else: extra=['v_add_u32 v104, s64, v104','v_add_u32 v105, s64, v105','s_sub_u32 s64, 0, s64',
                     's_add_u32 s61, s66, %s'%s(sJ),'s_and_b32 s61, s61, 7','s_cmp_eq_u32 s66, 0','s_cselect_b32 s61, 8, s61',
                     's_lshl_b32 s61, s61, 13','s_add_u32 s67, s60, s61','s_add_u32 s66, s66, 1','s_cmp_lt_u32 s66, 9']
        for g in range(36):
            i,u=divmod(g,4)
            for (k,tb,r) in gaps[g]:
                e('ds_read_b64_tr_b16 %s, %s offset:%d'%(v(WR+8*((9*hc+k)%6)+4*tb+2*r,2),v(102+2*hc+tb),k*4096+r*2048))
                lg.issue((k,tb,r))
            if g>=30:
                for _ in range(2):
                    if extra: e(extra.pop(0))
            if i>=3: lg.need([(i-3,u//2,0),(i-3,u//2,1)])
            mm2((9*hc+i-3)%18,u)
        assert not extra
        e('s_waitcnt lgkmcnt(0)')
    e('s_cbranch_scc1 M2_L')
    for kg in (15,16,17):
        for u in range(4): mm2(kg,u)
    e('s_nop 7')
    for x in packq(): e(x)
    if STAMP:
        st_rt(4)
        e('s_waitcnt vmcnt(0)')
        st_rt(5)
        def row(): e('s_lshl_b32 s68, s2, 2'); e('s_add_u32 s68, s68, %s'%s(sWV))
        st_flush(6,row)

def k2():
    e('.p2align 8'); e('.type k2_kernel,@function'); e('k2_kernel:')
    e('s_cmp_ge_u32 s2, 576'); e('s_cbranch_scc1 K2_END')
    st_rt(0)
    e('s_load_dwordx2 s[44:45], s[0:1], 72'); e('s_load_dwordx2 s[58:59], s[0:1], 88')
    e('v_lshrrev_b32 v1, 6, v0'); e('v_and_b32 v0, 63, v0')
    e('s_mul_i32 s4, s2, 3641'); e('s_lshr_b32 s4, s4, 16')
    e('v_readfirstlane_b32 s7, v1')
    e('s_mul_i32 s5, s4, 18'); e('s_sub_u32 s5, s2, s5')
    e('v_and_b32 v1, 15, v0'); e('v_lshrrev_b32 v2, 4, v0'); e('v_lshlrev_b32 v3, 4, v0')
    e('s_mul_i32 s60, s4, 73728'); e('s_lshr_b32 s61, s5, 1'); e('s_lshl_b32 s61, s61, 13'); e('s_add_u32 s60, s60, s61')
    e('s_and_b32 s61, s5, 1'); e('s_lshl_b32 s62, s7, 1'); e('s_add_u32 s61, s61, s62'); e('s_lshl_b32 s61, s61, 11'); e('s_add_u32 s60, s60, s61')
    e('s_sub_u32 s63, 32, s4'); e('s_and_b32 s63, s63, 31')
    e('s_mov_b32 s64, %d'%(4*12288)); e('v_mul_u32_u24 v12, s64, v2')
    e('s_mov_b32 s65, %d'%(32*12288))
    for tb in range(2):
        e('s_lshl_b32 s61, s5, 5'); e('s_add_u32 s61, s61, %d'%(16*tb)); e('v_add_u32 v4, s61, v1')
        e('v_sub_u32 v5, 576, v4'); e('v_cmp_lt_u32 vcc, 288, v4'); e('v_mov_b32 v6, s4'); e('v_mov_b32 v7, s63')
        e('v_cndmask_b32 v4, v4, v5, vcc'); e('v_cndmask_b32 v6, v6, v7, vcc')
        e('v_mov_b32 v7, 0x80000000'); e('v_cndmask_b32 %s, 0, v7, vcc'%v(10+tb))
        e('v_mul_u32_u24 v5, 57, v4'); e('v_lshrrev_b32 v5, 11, v5'); e('v_min_u32 v5, 7, v5')
        e('v_mul_u32_u24 v7, 36, v5'); e('v_sub_u32 v4, v4, v7')
        e('v_mul_u32_u24 v5, s65, v5'); e('v_lshl_add_u32 v5, v6, 6, v5'); e('v_add_u32 v5, v5, v12')
        e('v_lshrrev_b32 v6, 4, v4'); e('v_lshl_add_u32 v5, v6, 11, v5'); e('v_and_b32 v4, 15, v4'); e('v_lshl_add_u32 %s, v4, 2, v5'%v(8+tb))
    e('s_waitcnt lgkmcnt(0)')
    srd(sOUT,44,2359296); srd(sWS,58,WS_BYTES)
    UF=16; PF=48; GF=112; YA=144
    for tb in range(2):
        for k in range(4):
            for i in range(4):
                e('s_mov_b32 s61, %d'%(U_OFF+((16*k)%32+i)*12288+(k//2)*6144))
                e('buffer_load_dword %s, %s, %s, s61 offen'%(v(UF+16*tb+4*k+i),v(8+tb),s(sWS,4)))
    e('s_lshl_b32 s61, s4, 8'); e('s_lshl_b32 s62, s7, 7'); e('s_add_u32 s61, s61, s62'); e('s_add_u32 s61, s61, %d'%G_OFF)
    e('v_lshlrev_b32 v4, 2, v1')
    for sg in range(2): e('buffer_load_dword %s, v4, %s, s61 offen offset:%d'%(v(14+sg),s(sWS,4),64*sg))
    for jj in range(8):
        for sg in range(2): e('buffer_load_dwordx4 %s, v3, %s, s60 offen offset:%d'%(v(PF+8*jj+4*sg,4),s(sWS,4),1024*sg))
        if jj<7: e('s_add_u32 s60, s60, %d'%(32*73728))
    e('s_lshl_b32 s61, s7, 5'); e('s_add_u32 s61, s61, s4')
    e('v_lshlrev_b32 v4, 2, v2'); e('v_cvt_f32_u32 v4, v4')
    for sg in range(2):
        e('v_add_u32 v5, %d, v1'%(16*sg)); e('v_lshlrev_b32 v5, 6, v5'); e('v_add_u32 %s, s61, v5'%v(160+sg))
        e('v_cvt_f32_u32 v5, %s'%v(160+sg)); e('v_mul_f32 v5, 0x3a000000, v5')
        for k in range(4):
            for i in range(4):
                o=16*k+i
                e('v_add_f32 v6, 0x%08x, v4'%f2u(o)); e('v_mul_f32 v6, v6, v5'); e('v_fract_f32 v6, v6')
                e('v_cos_f32 v7, v6'); e('v_sin_f32 v13, v6'); e('s_nop 0')
                e('v_cvt_pk_bf16_f32 %s, v7, v13'%v(GF+16*sg+4*k+i))
    e('s_waitcnt vmcnt(18)')
    for tb in range(2):
        for i in range(16): e('v_xor_b32 %s, %s, %s'%(v(UF+16*tb+i),v(10+tb),v(UF+16*tb+i)))
    e('s_nop 1')
    for k in range(4):
        for tb in range(2):
            for sg in range(2): mfma(YA+8*tb+4*sg, UF+16*tb+4*k, GF+16*sg+4*k, '0' if k==0 else None)
    e('s_waitcnt vmcnt(16)')
    for sg in range(2):
        e('v_mul_f32 %s, 0xbfb8aa3b, %s'%(v(14+sg),v(14+sg))); e('v_exp_f32 %s, %s'%(v(14+sg),v(14+sg))); e('s_nop 0')
        e('v_add_f32 %s, 1.0, %s'%(v(14+sg),v(14+sg))); e('v_rcp_f32 %s, %s'%(v(14+sg),v(14+sg)))
    e('s_movk_i32 s62, 1152'); e('v_and_b32 v4, 1, v2'); e('v_lshlrev_b32 v4, 5, v4'); e('v_lshrrev_b32 v5, 1, v2'); e('v_lshl_add_u32 v4, v5, 4, v4')
    for sg in range(2): e('v_mad_u32_u24 %s, %s, s62, v4'%(v(160+sg),v(160+sg)))
    e('s_lshl_b32 s63, s5, 6')
    SUM=16
    for jj in range(8):
        e('s_waitcnt vmcnt(%d)'%(14-2*jj))
        for sg in range(2):
            for d in range(4):
                src=PF+8*jj+4*sg+d; lo=SUM+8*sg+2*d
                if jj==0:
                    e('v_lshlrev_b32 %s, 16, %s'%(v(lo),v(src))); e('v_and_b32 %s, 0xffff0000, %s'%(v(lo+1),v(src)))
                else:
                    e('v_lshlrev_b32 v6, 16, %s'%v(src)); e('v_and_b32 v7, 0xffff0000, %s'%v(src))
                    e('v_add_f32 %s, %s, v6'%(v(lo),v(lo))); e('v_add_f32 %s, %s, v7'%(v(lo+1),v(lo+1)))
    for sg in range(2):
        for tb in range(2):
            for r in range(4):
                y=YA+8*tb+4*sg+r; p=SUM+8*sg+4*tb+r
                e('v_sub_f32 %s, %s, %s'%(v(y),v(y),v(p))); e('v_fma_f32 %s, %s, %s, %s'%(v(p),v(14+sg),v(y),v(p)))
        o=40+4*sg
        for d in range(4): e('v_cvt_pk_bf16_f32 %s, %s, %s'%(v(o+d),v(SUM+8*sg+2*d),v(SUM+8*sg+2*d+1)))
        e('s_nop 1')
        e('v_permlane16_swap_b32 %s, %s'%(v(o),v(o+2))); e('v_permlane16_swap_b32 %s, %s'%(v(o+1),v(o+3)))
        e('buffer_store_dwordx4 %s, %s, %s, s63 offen'%(v(o,4),v(160+sg),s(sOUT,4)))
    if STAMP:
        e('s_waitcnt vmcnt(0)')
        st_rt(1)
        e('s_cmp_eq_u32 s7, 0'); e('s_cbranch_scc0 K2_END')
        def row(): e('s_add_u32 s68, s2, 1024')
        st_flush(2,row)
    e('K2_END:'); e('s_endpgm')

def desc(name,vg):
    e('.amdhsa_kernel %s'%name)
    for l in ['next_free_vgpr %d'%vg,'next_free_sgpr 96','accum_offset %d'%vg,'group_segment_fixed_size 0','kernarg_size 96','user_sgpr_count 2','user_sgpr_kernarg_segment_ptr 1','system_sgpr_workgroup_id_x 1']:
        e('  .amdhsa_'+l)
    e('.end_amdhsa_kernel')

assert all((L*57)>>9==L//9 for L in range(288))
assert all((L*57)>>11==L//36 for L in range(289))
assert all((b*3641)>>16==b//18 for b in range(576))
out.append('; @launch kernel=k1_kernel grid=(256,1,1) block=(512,1,1) lds=163840')
out.append('; @launch kernel=k2_kernel grid=(576,1,1) block=(128,1,1) lds=0')
out.append('.amdgcn_target "amdgcn-amd-amdhsa--gfx950"')
out.append('.text')
k1(); k2()
out.append('.section .rodata,"a"'); out.append('.p2align 6')
desc('k1_kernel',256); out.append('.p2align 6'); desc('k2_kernel',168)
print('\n'.join(out))
```

```python
import sys, struct
A=sys.argv
STAMP='--stamp' in A; NODMA='--nodma' in A; NOMFMA='--nomfma' in A; NOREAD='--noread' in A; NOPRIO='--noprio' in A; NOTX='--notx' in A; NORED='--nored' in A; NOST='--nost' in A; NOU='--nou' in A; NOXW='--noxw' in A; TRACE='--trace' in A
NAME='gated_mix__spectral_fnet__dense_activation_relu__prompt_kernel'
out=[]; INMAIN=False
def e(s=''):
    if NODMA and s.endswith(' lds') and ('s[20:23]' in s or 's[24:27]' in s): return
    if NOPRIO and s.startswith('s_setprio'): return
    if INMAIN and NOST and s.startswith('buffer_store_dwordx4'): return
    if NOU and s.startswith('buffer_load_dword v') and 's17 offen sc1' in s: return
    if NOXW and s.endswith(' lds') and ('s[8:11]' in s or 's[12:15]' in s): return
    if INMAIN and NOMFMA and s.startswith('v_mfma'): return
    out.append('    '+s if s and not s.endswith(':') else s)
def v(n,c=1): return 'v%d'%n if c==1 else 'v[%d:%d]'%(n,n+c-1)
def s(n,c=1): return 's%d'%n if c==1 else 's[%d:%d]'%(n,n+c-1)
def f2u(x): return struct.unpack('<I',struct.pack('<f',float(x)))[0]

SLOT=36864; XW0=110592; XWS=18432; HB=73728
MISC=147456; QH=MISC; LND=MISC+8192; CNS=LND+4*256; GL=CNS+6*256
U_OFF=0x1400000; FLP=0x1800000; FLU=0x1810000; ST_OFF=0x1900000; WS_BYTES=0x1B00000
BIG=0x7fffffff; OOB=0x40000000
sX,sWH,sW1,sW2,sGW,sWS,sOUT,sDBG=8,12,20,24,28,32,36,40
sJ,sC,sWV,sROT=3,4,5,6
SPINMAX=0x8000

def srd(d,base,nbytes):
    e('s_mov_b32 %s, %s'%(s(d),s(base))); e('s_mov_b32 %s, %s'%(s(d+1),s(base+1)))
    e('s_mov_b32 %s, %d'%(s(d+2),nbytes)); e('s_mov_b32 %s, 0x20000'%s(d+3))
def mf(d,a,b,c=None):
    return 'v_mfma_f32_16x16x32_bf16 %s, %s, %s, %s'%(v(d,4),v(a,4),v(b,4), v(d,4) if c is None else (c if isinstance(c,str) else v(c,4)))
def mfma(*a): e(mf(*a))
def st(slot):
    if STAMP: e('s_memrealtime %s'%s(72+2*slot,2))
def stc(slot):
    if STAMP: e('s_memtime %s'%s(72+2*slot,2))
def st_flush(n,base_row):
    if not STAMP: return
    e('s_waitcnt lgkmcnt(0)')
    e('s_lshl_b32 s68, s2, 3'); e('s_add_u32 s68, s68, %s'%s(sWV)); e('s_lshl_b32 s68, s68, 7'); e('s_add_u32 s68, s68, %d'%ST_OFF)
    e('v_mov_b32 v2, 0')
    for i in range(n):
        e('v_mov_b32 v4, %s'%s(72+2*i)); e('v_mov_b32 v5, %s'%s(73+2*i))
        e('buffer_store_dwordx2 v[4:5], v2, %s, s68 offen offset:%d'%(s(sWS,4),8*i)); e('s_nop 1')
def trace_flush(a,b):
    e('s_lshl_b32 s68, s2, 3'); e('s_add_u32 s68, s68, %s'%s(sWV)); e('s_lshl_b32 s68, s68, 9'); e('s_add_u32 s68, s68, %d'%(ST_OFF+0x40000))
    e('v_lshlrev_b32 v2, 2, v0')
    e('buffer_store_dword %s, v2, %s, s68 offen'%(v(a),s(sWS,4))); e('buffer_store_dword %s, v2, %s, s68 offen offset:256'%(v(b),s(sWS,4)))
_lab=[0]
def lab(p): _lab[0]+=1; return '%s%d'%(p,_lab[0])
def lds_wait(vaddr,vtmp,thr):
    L=lab('W')
    e(L+':'); e('ds_read_b32 %s, %s'%(v(vtmp),v(vaddr)))
    e('s_add_u32 s99, s99, 1'); e('s_cmp_gt_u32 s99, 0x100000'); e('s_cbranch_scc1 K_END'); e('s_waitcnt lgkmcnt(0)')
    e('v_cmp_gt_u32 vcc, %s, %s'%(thr,v(vtmp))); e('s_cbranch_vccnz '+L)

def stream(seq, cyclic, pre=None):
    hist=[]; done=0
    def run(sq,emit):
        nonlocal done
        for it in sq:
            if it[0]=='lds':
                hist.append(it[1])
                if emit and not (NOREAD and it[2].startswith('ds_read_b64_tr')): e(it[2])
            elif it[0]=='need':
                idx=-1
                for t in it[1]:
                    k=[i for i,x in enumerate(hist) if x==t]
                    if k: idx=max(idx,k[-1])
                    else: assert not emit, t
                if idx+1>done:
                    n=min(len(hist)-1-idx,15)
                    if emit: e('s_waitcnt lgkmcnt(%d)'%(0 if NOREAD else n))
                    done=len(hist)-n
            elif emit: e(it[1])
    if cyclic: run(seq,False)
    if pre is not None: run(pre,False)
    run(seq,True)

def kernel():
    e('.p2align 8'); e('.type %s,@function'%NAME); e(NAME+':')
    e('s_cmp_ge_u32 s2, 256'); e('s_cbranch_scc1 K_END')
    st(0)
    e('s_load_dwordx2 s[44:45], s[0:1], 0')
    e('s_load_dwordx4 s[48:51], s[0:1], 24')
    e('s_load_dwordx4 s[52:55], s[0:1], 48')
    e('s_load_dwordx8 s[56:63], s[0:1], 64')
    e('s_mov_b32 s99, 0')
    e('v_lshrrev_b32 v1, 6, v0')
    e('s_and_b32 %s, s2, 7'%s(sJ)); e('s_lshr_b32 %s, s2, 3'%s(sC))
    e('v_readfirstlane_b32 %s, v1'%s(sWV))
    e('v_and_b32 v0, 63, v0')
    e('s_mul_i32 s6, %s, 57'%s(sC)); e('s_lshr_b32 s6, s6, 9'); e('s_mul_i32 s6, s6, 9'); e('s_sub_u32 s6, %s, s6'%s(sC))
    e('s_cmp_ge_u32 %s, 6'%s(sWV)); e('s_cbranch_scc1 K_AUX')
    e('s_cmp_ge_u32 %s, 4'%s(sWV)); e('s_cbranch_scc0 K_MAIN')
    loader(); aux(); main()
    e('K_END:'); e('s_endpgm')

def loader():
    e('s_setprio 3')
    e('s_sub_u32 s7, %s, 4'%s(sWV))
    e('v_lshrrev_b32 v1, 3, v0'); e('v_and_b32 v2, 7, v0')
    e('v_lshrrev_b32 v4, 1, v2')
    e('v_and_b32 v5, 1, v2'); e('v_lshlrev_b32 v5, 4, v5')
    e('s_movk_i32 s16, %d'%(9216-1152))
    for p in range(9):
        e('v_add_u32 v6, %d, v1'%(8*p))
        e('v_mul_u32_u24 v7, 57, v6'); e('v_lshrrev_b32 v7, 9, v7')
        e('v_bfe_u32 v9, v7, 1, 1'); e('v_xor_b32 v9, v9, v4')
        e('v_lshl_add_u32 v6, v6, 7, v5')
        e('v_mad_u32_u24 v6, v7, s16, v6')
        e('v_lshl_add_u32 v6, v9, 5, v6')
        e('v_xor_b32 v7, 64, v6')
        e('v_subrev_u32 %s, %d, v6'%(v(16+p),(p%4)*1024))
        e('v_add_u32 %s, %d, v7'%(v(25+p),8*9216-((p+9)%4)*1024))
    e('v_lshrrev_b32 v6, 1, v1'); e('v_and_b32 v6, 3, v6'); e('v_lshlrev_b32 v6, 1, v6'); e('v_xor_b32 v6, v6, v2')
    e('s_movk_i32 s69, 1152'); e('v_mul_u32_u24 v7, s69, v1'); e('v_lshl_add_u32 v36, v6, 4, v7')
    for i in range(1,4): e('v_add_u32 %s, %d, v36'%(v(36+i),i*8192))
    e('s_mul_i32 s64, s7, 18432')
    e('s_mul_i32 s17, %s, 1152'%s(sJ)); e('s_mul_i32 s18, s7, %d'%(16*9216)); e('s_add_u32 s17, s17, s18')
    e('s_lshl_b32 s18, s6, 1')
    e('s_mul_i32 s66, s18, %d'%(32*9216)); e('s_add_u32 s66, s66, s17')
    e('s_mov_b32 s67, s64')
    e('s_mov_b32 s68, 0'); e('s_mov_b32 s69, -2')
    e('s_mul_i32 s70, %s, 576'%s(sJ)); e('s_mul_i32 s71, s7, 144'); e('s_add_u32 s70, s70, s71'); e('s_mul_i32 s70, s70, 1152')
    e('s_lshl_b32 s19, s7, 8'); e('s_add_u32 s19, s19, %d'%LND)
    e('v_lshlrev_b32 v11, 2, v0'); e('v_add_u32 v11, s19, v11'); e('v_mov_b32 v10, 0'); e('v_mov_b32 v13, 0'); e('v_mov_b32 v40, 0'); e('v_mov_b32 v41, 0')
    e('v_and_b32 v12, 3, v0'); e('v_mul_u32_u24 v12, 260, v12'); e('v_add_u32 v12, %d, v12'%CNS)
    e('s_waitcnt lgkmcnt(0)')
    srd(sW1,52,5308416); srd(sW2,54,5308416)
    if STAMP: srd(sWS,62,WS_BYTES)
    e('s_barrier')
    PUB=int([x for x in A if x.startswith('--pub=')][0][6:]) if any(x.startswith('--pub=') for x in A) else 12
    def item(ph,nm):
        e(nm+':')
        if TRACE: e('s_memtime s[96:97]')
        e('s_waitcnt lgkmcnt(0)')
        if TRACE: e('s_mov_b32 m0, s68'); e('v_writelane_b32 v40, s96, m0')
        e('v_cmp_gt_i32 vcc, s69, v13'); e('s_mov_b32 m0, s67'); e('s_cbranch_vccnz %sS'%nm)
        e(nm+'R:')
        if ph==1:
            fill=['s_add_u32 s18, s18, 1','s_cmp_eq_u32 s18, 18','s_cselect_b32 s18, 0, s18','s_mul_i32 s44, s18, %d'%(32*9216),'s_add_u32 s44, s44, s17',
                  's_add_u32 s45, s67, %d'%SLOT,'s_cmp_ge_u32 s45, %d'%(3*SLOT),'s_cselect_b32 s45, s64, s45','s_add_u32 s69, s69, 1']
        else:
            fill=['s_sub_u32 s46, s68, 17','s_lshr_b32 s44, s46, 1','s_add_u32 s47, s44, %s'%s(sJ),'s_and_b32 s47, s47, 7','s_cmp_eq_u32 s44, 0','s_cselect_b32 s47, 8, s47',
                  's_lshl_b32 s47, s47, 7','s_and_b32 s44, s46, 1','s_mul_i32 s44, s44, %d'%(288*1152),'s_add_u32 s44, s44, s47','s_add_u32 s44, s44, s70',
                  's_add_u32 s45, s67, %d'%SLOT,'s_cmp_ge_u32 s45, %d'%(4*SLOT),'s_cselect_b32 s45, s64, s45',
                  's_max_u32 s69, s68, 20','s_cmp_eq_u32 s68, 18','s_cselect_b32 s69, 17, s69']
        groups=[]; i=0
        while i<len(fill):
            if fill[i].startswith('s_cmp'): groups.append(fill[i:i+2]); i+=2
            else: groups.append([fill[i]]); i+=1
        for p in range(18):
            if p%4==0 and p:
                e('s_add_u32 m0, s67, %d'%(p*1024))
                if ph==2: e('s_add_u32 s66, s66, %d'%(32*1152))
                else: e('s_nop 0')
            if p==PUB:
                e('v_mov_b32 v10, s68'); e('s_waitcnt vmcnt(%d)'%PUB); e('ds_write_b32 v11, v10')
            if p==14: e('ds_read_b32 v13, v12')
            if ph==1: e('buffer_load_dwordx4 %s, %s, s66 offen offset:%d lds'%(v(16+p),s(sW1,4),(p%4)*1024))
            else: e('buffer_load_dwordx4 %s, %s, s66 offen offset:%d lds'%(v(36+p%4),s(sW2,4),(p%4)*1024))
            if groups:
                for x in groups.pop(0): e(x)
        assert not groups
        e('s_mov_b32 s66, s44'); e('s_mov_b32 s67, s45')
        e('s_add_u32 s68, s68, 1'); e('s_cmp_lt_u32 s68, %d'%(18*ph)); e('s_cbranch_scc1 '+nm)
    def slow(nm):
        e(nm+'S:')
        e('v_mov_b32 v10, s68'); e('s_waitcnt vmcnt(0)'); e('ds_write_b32 v11, v10')
        lds_wait(12,13,'s69')
        if TRACE: e('s_memtime s[96:97]'); e('s_waitcnt lgkmcnt(0)'); e('s_mov_b32 m0, s68'); e('v_writelane_b32 v41, s96, m0'); e('s_mov_b32 m0, s67')
        e('s_branch %sR'%nm)
    item(1,'LD_P')
    e('s_add_u32 s66, s70, 1024')
    item(2,'LD_Q')
    e('v_mov_b32 v10, s68'); e('s_waitcnt vmcnt(0)'); e('ds_write_b32 v11, v10')
    if STAMP: st(1); st_flush(2,0)
    if TRACE: trace_flush(40,41)
    e('s_waitcnt lgkmcnt(0)')
    e('s_endpgm')
    slow('LD_P'); slow('LD_Q')

def aux():
    e('K_AUX:')
    e('s_setprio 2')
    e('s_sub_u32 s7, %s, 6'%s(sWV))
    e('v_lshrrev_b32 v1, 3, v0'); e('v_and_b32 v2, 7, v0'); e('v_lshrrev_b32 v3, 1, v1')
    e('v_xor_b32 v4, v2, v3'); e('v_lshlrev_b32 v4, 4, v4'); e('v_xor_b32 v5, 64, v4')
    e('s_mov_b32 s16, 73728'); e('v_mul_u32_u24 v6, s16, v1')
    e('s_movk_i32 s17, 1152'); e('v_mul_u32_u24 v7, s17, v1')
    for p in range(4):
        e('v_add_u32 %s, v6, %s'%(v(16+p),'v5' if p%2 else 'v4'))
        if p: e('v_add_u32 %s, %d, %s'%(v(16+p),p*(8*73728-1024),v(16+p)))
        e('v_add_u32 %s, v7, %s'%(v(20+p),'v5' if p%2 else 'v4'))
        if p: e('v_add_u32 %s, %d, %s'%(v(20+p),p*(8*1152-1024),v(20+p)))
    e('s_lshl_b32 s18, s7, 6'); e('v_xor_b32 v8, s18, v4'); e('v_add_u32 v24, v7, v8'); e('v_add_u32 v24, %d, v24'%(32*1152))
    e('v_xor_b32 v25, 2, v2'); e('v_lshlrev_b32 v25, 4, v25')
    e('v_and_b32 v8, 31, v0'); e('v_mul_u32_u24 v14, s16, v8')
    e('s_lshl_b32 s18, s7, 5'); e('s_add_u32 s18, s18, %s'%s(sC)); e('s_mul_i32 s18, s18, 1152')
    e('s_mul_i32 s19, %s, %d'%(s(sJ),36*1152))
    e('s_mov_b32 s64, s6'); e('s_mov_b32 s65, %d'%XW0)
    e('s_lshl_b32 s69, s7, 12'); e('s_lshl_b32 s70, s7, 10')
    e('s_waitcnt lgkmcnt(0)')
    srd(sX,44,2359296)
    e('s_cmp_eq_u32 s7, 1')
    e('s_cselect_b32 %s, s50, s48'%s(sWH)); e('s_cselect_b32 %s, s51, s49'%s(sWH+1))
    e('s_mov_b32 %s, 663552'%s(sWH+2)); e('s_mov_b32 %s, 0x20000'%s(sWH+3))
    srd(sGW,56,1152)
    e('s_barrier')
    def issue(touch):
        e('s_lshl_b32 s66, s64, 7')
        e('s_add_u32 s67, s66, s18'); e('s_add_u32 s68, s66, s19')
        e('s_add_u32 m0, s65, s69'); e('s_nop 0')
        for p in range(4): e('buffer_load_dwordx4 %s, %s, s67 offen offset:%d lds'%(v(16+p),s(sX,4),p*1024))
        e('s_add_u32 m0, m0, 8192'); e('s_nop 0')
        for p in range(4): e('buffer_load_dwordx4 %s, %s, s68 offen offset:%d lds'%(v(20+p),s(sWH,4),p*1024))
        e('s_add_u32 s45, s65, 16384')
        e('s_add_u32 m0, s45, s70'); e('s_mov_b32 exec_hi, 0xff')
        e('buffer_load_dwordx4 v24, %s, s68 offen lds'%s(sWH,4))
        e('s_mov_b32 m0, s45'); e('s_mov_b32 exec_lo, 0'); e('s_mov_b32 exec_hi, 0xff00')
        e('buffer_load_dwordx4 v25, %s, s66 offen lds'%s(sGW,4))
        e('s_mov_b64 exec, -1')
        e('s_add_u32 s64, s64, 1'); e('s_cmp_eq_u32 s64, 9'); e('s_cselect_b32 s64, 0, s64')
        e('s_xor_b32 s65, s65, %d'%(XW0^(XW0+XWS)))
        if touch:
            e('s_lshl_b32 s66, s64, 7'); e('s_add_u32 s67, s66, s18')
            e('buffer_load_dword v15, v14, %s, s67 offen'%s(sX,4)) if not NOTX else e('buffer_load_dword v15, v25, %s, 0 offen'%s(sGW,4))
    issue(False); issue(False)
    srd(sWS,62,WS_BYTES); srd(sOUT,58,2359296); srd(sDBG,60,256)
    e('v_and_b32 v8, 15, v0'); e('v_lshrrev_b32 v9, 4, v0')
    e('v_mov_b32 v10, 0'); e('v_mov_b32 v11, %d'%OOB)
    e('v_cmp_eq_u32 vcc, 0, v0'); e('v_lshlrev_b32 v12, 2, v0'); e('s_nop 0'); e('v_cndmask_b32 v252, v11, v10, vcc')
    e('s_lshl_b32 s71, s2, 1'); e('s_add_u32 s71, s71, s7'); e('s_lshl_b32 s71, s71, 2'); e('s_add_u32 s71, s71, %d'%FLU)
    e('v_lshlrev_b32 v12, 2, v0'); e('s_lshl_b32 s46, s7, 8')
    e('s_add_u32 s47, s46, %d'%(LND+512)); e('v_add_u32 v240, s47, v12')
    e('s_add_u32 s47, s46, %d'%(CNS+1024)); e('v_add_u32 v241, s47, v12')
    e('v_and_b32 v12, 7, v0'); e('v_min_u32 v12, 5, v12'); e('v_mul_u32_u24 v12, 260, v12'); e('v_add_u32 v242, %d, v12'%CNS)
    e('v_and_b32 v12, 1, v0'); e('v_mul_u32_u24 v12, 260, v12'); e('v_add_u32 v243, %d, v12'%(LND+512))
    e('v_lshrrev_b32 v10, 1, v8'); e('v_xor_b32 v10, v10, v9'); e('v_lshlrev_b32 v10, 4, v10')
    e('v_lshl_add_u32 v26, v8, 7, v10'); e('v_add_u32 v26, %d, v26'%XW0); e('v_xor_b32 v27, 64, v26')
    e('v_add_u32 v28, s69, v26'); e('v_add_u32 v29, s69, v27')
    ACC=64
    for i in range(40): e('v_mov_b32 %s, 0'%v(ACC+i))
    e('v_mov_b32 v244, 2'); e('v_mov_b32 v245, 0')
    e('s_waitcnt vmcnt(10)'); e('ds_write_b32 v240, v244')
    XF=36; WF=44
    e('s_mov_b32 s46, 0'); e('s_mov_b32 s47, %d'%XWS); e('s_mov_b32 s44, 2')
    e('AX_L:')
    lds_wait(243,13,'s44')
    for kp in range(2):
        for sg in range(2): e('ds_read_b128 %s, %s offset:%d'%(v(XF+4*sg,4),v(28+kp),sg*2048))
        for ct in range(5): e('ds_read_b128 %s, %s offset:%d'%(v(WF+4*ct,4),v(26+kp),8192+ct*2048))
        if kp==1:
            e('s_cmp_eq_u32 s46, 8'); e('s_cselect_b32 s66, %d, s44'%BIG); e('v_mov_b32 v245, s66'); e('ds_write_b32 v241, v245')
        for ct in range(5):
            e('s_waitcnt lgkmcnt(%d)'%(4-ct+kp))
            for sg in range(2): mfma(ACC+8*ct+4*sg, XF+4*sg, WF+4*ct)
    for r in (26,27,28,29): e('v_add_u32 %s, s47, %s'%(v(r),v(r)))
    e('s_sub_u32 s47, 0, s47')
    e('s_cmp_eq_u32 s46, 8'); e('s_cbranch_scc1 AX_D')
    e('s_add_u32 s66, s44, 2'); e('s_cmp_eq_u32 s46, 7'); e('s_cselect_b32 s66, %d, s66'%BIG); e('v_mov_b32 v244, s66')
    e('s_waitcnt vmcnt(0)'); e('ds_write_b32 v240, v244')
    e('s_cmp_eq_u32 s46, 7'); e('s_cbranch_scc1 AX_S')
    lds_wait(242,13,'s44')
    issue(False)
    e('AX_S:')
    e('s_add_u32 s44, s44, 2'); e('s_add_u32 s46, s46, 1'); e('s_branch AX_L')
    e('AX_D:')
    e('s_setprio 0')
    st(1)
    e('v_lshlrev_b32 v11, 2, v9'); e('v_cvt_f32_u32 v11, v11')
    for b in range(2):
        e('v_add_u32 v12, %d, v8'%(16*b)); e('v_cvt_f32_u32 v12, v12'); e('v_mul_f32 v12, 0x3d000000, v12')
        for jp in range(4):
            o=[(2*jp+u)%4+16*((2*jp+u)//4) for u in range(2)]
            for u in range(2):
                e('v_add_f32 %s, 0x%08x, v11'%(v(30+u),f2u(o[u])))
                e('v_mul_f32 %s, %s, v12'%(v(30+u),v(30+u))); e('v_fract_f32 %s, %s'%(v(30+u),v(30+u)))
            e('v_cos_f32 v32, v30'); e('v_cos_f32 v33, v31'); e('v_sin_f32 v34, v30'); e('v_sin_f32 v35, v31'); e('s_nop 0')
            e('v_cvt_pk_bf16_f32 %s, v32, v33'%v(128+4*b+jp)); e('v_cvt_pk_bf16_f32 %s, v34, v35'%v(136+4*b+jp))
            e('v_xor_b32 %s, 0x80008000, %s'%(v(144+4*b+jp),v(136+4*b+jp)))
    FR=104
    for ct in range(5):
        for h in range(4): e('v_cvt_pk_bf16_f32 %s, %s, %s'%(v(FR+4*ct+h),v(ACC+8*ct+2*h),v(ACC+8*ct+2*h+1)))
    e('v_lshlrev_b32 v12, 6, v8'); e('v_lshl_add_u32 v12, v9, 4, v12')
    for h in range(4): e('v_mov_b32_dpp %s, %s row_ror:8 row_mask:0xf bank_mask:0xf'%(v(124+h),v(FR+16+h)))
    e('s_lshl_b32 s16, %s, 5'%s(sJ)); e('s_add_u32 s16, s16, %s'%s(sC)); e('s_mul_i32 s16, s16, 12288')
    e('s_mul_i32 s17, s7, 6144'); e('s_add_u32 s16, s16, s17'); e('s_add_u32 s16, s16, %d'%U_OFF)
    D=160
    for t,(a,b) in enumerate([(FR,FR+8),(FR+4,FR+12),(FR+16,124)]):
        for be in range(2):
            d=D+16*t+8*be
            mfma(d,a,128+4*be,'0'); mfma(d+4,b,128+4*be,'0'); mfma(d,b,136+4*be); mfma(d+4,a,144+4*be)
    e('s_lshl_b32 s17, s7, 7'); e('s_add_u32 s17, s17, %d'%GL)
    e('v_lshlrev_b32 v13, 4, v9'); e('v_add_u32 v13, s17, v13')
    e('s_mov_b32 exec_lo, 0x00200020'); e('s_mov_b32 exec_hi, 0x00200020')
    for sg in range(2): e('ds_write_b128 v13, %s offset:%d'%(v(ACC+32+4*sg,4),64*sg))
    e('s_mov_b64 exec, -1')
    e('v_lshlrev_b32 v13, 2, v8'); e('v_add_u32 v13, s17, v13')
    for sg in range(2): e('ds_read_b32 %s, v13 offset:%d'%(v(246+sg),64*sg))
    for t in range(3):
        for be in range(2):
            d=D+16*t+8*be; o=208+8*t+4*be
            for r in range(4): e('v_cvt_pk_bf16_f32 %s, %s, %s'%(v(o+r),v(d+r),v(d+4+r)))
            off=t*2048+be*1024
            if off>=4096:
                if off==4096: e('s_add_u32 s16, s16, 4096')
                off-=4096
            e('buffer_store_dwordx4 %s, v12, %s, s16 offen offset:%d sc1'%(v(o,4),s(sWS,4),off))
    GF=16
    e('s_lshl_b32 s17, s7, 5'); e('s_add_u32 s17, s17, %s'%s(sC))
    for sg in range(2):
        e('v_add_u32 v5, %d, v8'%(16*sg)); e('v_lshlrev_b32 v5, 6, v5'); e('v_add_u32 %s, s17, v5'%v(248+sg))
        e('v_cvt_f32_u32 v5, %s'%v(248+sg)); e('v_mul_f32 v5, 0x3a000000, v5')
        for k in range(4):
            for i in range(0,4,2):
                for u in range(2):
                    e('v_add_f32 %s, 0x%08x, v11'%(v(52+u),f2u(16*k+i+u))); e('v_mul_f32 %s, %s, v5'%(v(52+u),v(52+u))); e('v_fract_f32 %s, %s'%(v(52+u),v(52+u)))
                e('v_cos_f32 v54, v52'); e('v_sin_f32 v55, v52'); e('v_cos_f32 v56, v53'); e('v_sin_f32 v57, v53')
                e('v_cvt_pk_bf16_f32 %s, v54, v55'%v(GF+16*sg+4*k+i)); e('v_cvt_pk_bf16_f32 %s, v56, v57'%v(GF+16*sg+4*k+i+1))
        if sg==0:
            e('s_waitcnt vmcnt(0)'); e('v_mov_b32 v10, 1')
            e('buffer_store_dword v10, v252, %s, s71 offen sc1'%s(sWS,4))
    e('s_waitcnt lgkmcnt(0)')
    for sg in range(2):
        g=246+sg
        e('v_mul_f32 %s, 0xbfb8aa3b, %s'%(v(g),v(g))); e('v_exp_f32 %s, %s'%(v(g),v(g))); e('s_nop 0')
        e('v_add_f32 %s, 1.0, %s'%(v(g),v(g))); e('v_rcp_f32 %s, %s'%(v(g),v(g)))
    e('v_lshrrev_b32 v4, 2, v8'); e('v_cmp_eq_u32 vcc, v4, v9'); e('v_and_b32 v5, 1, v8'); e('v_lshlrev_b32 v5, 4, v5')
    e('v_mov_b32 v6, 0x3f80'); e('v_lshlrev_b32 v6, v5, v6'); e('v_cndmask_b32 v6, 0, v6, vcc')
    e('v_and_b32 v5, 2, v8'); e('v_cmp_eq_u32 vcc, 0, v5'); e('v_mov_b32 v50, 0'); e('v_mov_b32 v51, 0')
    e('v_cndmask_b32 v48, 0, v6, vcc'); e('v_sub_u32 v49, v6, v48')
    e('v_mov_b32 v52, 0'); e('v_mov_b32 v53, 0'); e('v_mov_b32 v54, v48'); e('v_mov_b32 v55, v49')
    e('s_sub_u32 s16, 32, %s'%s(sC)); e('s_and_b32 s16, s16, 31')
    e('s_mov_b32 s17, %d'%(4*12288)); e('v_mul_u32_u24 v12, s17, v9')
    e('s_mov_b32 s18, %d'%(32*12288))
    e('s_lshl_b32 s19, %s, 6'%s(sJ))
    e('s_and_b32 s64, %s, 2'%s(sJ)); e('s_lshl_b32 s64, s64, 4'); e('s_add_u32 s64, s64, 512')
    for tb in range(6):
        e('s_add_u32 s17, %s, %d'%(('s19',16*tb) if tb<4 else ('s64',16*(tb-4)))); e('v_add_u32 v4, s17, v8')
        e('v_sub_u32 v5, 576, v4'); e('v_cmp_lt_u32 vcc, 288, v4'); e('v_mov_b32 v6, %s'%s(sC)); e('v_mov_b32 v7, s16')
        e('v_cndmask_b32 v4, v4, v5, vcc'); e('v_cndmask_b32 v6, v6, v7, vcc')
        e('v_mov_b32 v7, 0x80000000'); e('v_cndmask_b32 %s, 0, v7, vcc'%v(232+tb))
        e('v_mul_u32_u24 v5, 57, v4'); e('v_lshrrev_b32 v5, 11, v5'); e('v_min_u32 v5, 7, v5')
        e('v_mul_u32_u24 v7, 36, v5'); e('v_sub_u32 v4, v4, v7')
        e('v_mul_u32_u24 v5, s18, v5'); e('v_lshl_add_u32 v5, v6, 6, v5'); e('v_add_u32 v5, v5, v12')
        e('v_lshrrev_b32 v6, 4, v4'); e('v_lshl_add_u32 v5, v6, 11, v5'); e('v_and_b32 v4, 15, v4'); e('v_lshl_add_u32 %s, v4, 2, v5'%v(56+tb))
    e('s_movk_i32 s17, 1152'); e('v_and_b32 v4, 1, v9'); e('v_lshlrev_b32 v4, 5, v4'); e('v_lshrrev_b32 v5, 1, v9'); e('v_lshl_add_u32 v4, v5, 4, v4')
    for sg in range(2): e('v_mad_u32_u24 %s, %s, s17, v4'%(v(248+sg),v(248+sg)))
    e('v_bfe_u32 v4, v0, 2, 3'); e('v_and_b32 v5, 3, v0'); e('v_lshlrev_b32 v5, 2, v5'); e('v_lshl_add_u32 v250, v4, 7, v5')
    e('v_sub_u32 v4, %s, v4'%s(sJ)); e('v_and_b32 v4, 7, v4'); e('v_add_u32 v251, 1, v4')
    e('v_lshlrev_b32 v253, 4, v0')
    e('s_lshl_b32 s65, %s, 10'%s(sC)); e('s_add_u32 s65, s65, %d'%FLP)
    if NORED:
        for i in range(2,7): st(i)
        st_flush(7,0); e('s_endpgm')
    e('s_mov_b32 s47, 0')
    e('v_and_b32 v4, 7, v0'); e('v_lshlrev_b32 v4, 5, v4')
    e('AX_W1:')
    e('buffer_load_dword v5, v4, %s, 0 offen sc1'%s(sDBG,4)); e('s_add_u32 s47, s47, 1'); e('s_waitcnt vmcnt(0)')
    e('v_cmp_gt_u32 vcc, 32, v5'); e('s_cmp_gt_u32 s47, %d'%SPINMAX); e('s_cbranch_scc1 AX_W2'); e('s_cbranch_vccnz AX_W1')
    e('AX_W2:')
    e('s_mov_b32 s16, %d'%FLU)
    e('buffer_load_dwordx4 v[64:67], v253, %s, s16 offen sc1'%s(sWS,4)); e('buffer_load_dwordx4 v[68:71], v253, %s, s16 offen offset:1024 sc1'%s(sWS,4))
    e('s_add_u32 s47, s47, 1'); e('s_waitcnt vmcnt(0)')
    e('v_min3_u32 v5, v64, v65, v66'); e('v_min3_u32 v5, v5, v67, v68'); e('v_min3_u32 v5, v5, v69, v70'); e('v_min_u32 v5, v5, v71')
    e('v_cmp_eq_u32 vcc, 0, v5'); e('s_cmp_gt_u32 s47, %d'%SPINMAX); e('s_cbranch_scc1 AX_W3'); e('s_cbranch_vccnz AX_W2')
    e('AX_W3:')
    st(2)
    UF=64; YA=160; SP=192
    def uloads(tb,dst):
        for k in range(4):
            for i in range(4):
                e('s_mov_b32 s17, %d'%(U_OFF+((16*k)%32+i)*12288+(k//2)*6144))
                e('buffer_load_dword %s, %s, %s, s17 offen sc1'%(v(dst+4*k+i),v(56+tb),s(sWS,4)))
    for tb in range(3): uloads(tb,UF+16*tb)
    for tb in range(4):
        e('s_waitcnt vmcnt(%d)'%[32,32,16,0][tb])
        if tb==0: uloads(3,UF+48)
        for i in range(16): e('v_xor_b32 %s, %s, %s'%(v(UF+16*tb+i),v(232+tb),v(UF+16*tb+i)))
        e('s_nop 1')
        for k in range(4):
            for sg in range(2): mfma(YA+8*tb+4*sg, UF+16*tb+4*k, GF+16*sg+4*k, '0' if k==0 else None)
    def poll(L,Lout,thr):
        e(L+':')
        e('s_sleep 8')
        e('buffer_load_dword v5, v250, %s, s65 offen sc1'%s(sWS,4)); e('s_add_u32 s47, s47, 1'); e('s_waitcnt vmcnt(0)')
        e('v_cmp_le_u32 vcc, %s, v5'%thr); e('s_cmp_gt_u32 s47, %d'%SPINMAX); e('s_cbranch_scc1 '+Lout)
    def combine(y,p,g,o,vaddr,soff,imm):
        for tb in range(2):
            for r in range(4):
                e('v_sub_f32 %s, %s, %s'%(v(y[tb]+r),v(y[tb]+r),v(p[tb]+r))); e('v_fma_f32 %s, %s, %s, %s'%(v(p[tb]+r),v(g),v(y[tb]+r),v(p[tb]+r)))
        for tb in range(2):
            for h in range(2): e('v_cvt_pk_bf16_f32 %s, %s, %s'%(v(o+2*tb+h),v(p[tb]+2*h),v(p[tb]+2*h+1)))
        e('s_nop 1')
        e('v_permlane16_swap_b32 %s, %s'%(v(o),v(o+2))); e('v_permlane16_swap_b32 %s, %s'%(v(o+1),v(o+3)))
        e('buffer_store_dwordx4 %s, %s, %s, %s offen offset:%d'%(v(o,4),v(vaddr),s(sOUT,4),soff,imm))
    e('s_lshr_b32 s16, %s, 2'%s(sJ)); e('s_cmp_eq_u32 s16, s7'); e('s_cbranch_scc0 AX_P')
    for tb in range(2): uloads(4+tb,UF+16*tb)
    e('s_and_b32 s16, %s, 1'%s(sJ)); e('s_cmp_eq_u32 s16, 1'); e('s_cselect_b64 vcc, -1, 0')
    for i in range(16): e('v_cndmask_b32 %s, %s, %s, vcc'%(v(128+i),v(GF+i),v(GF+16+i)))
    e('v_cndmask_b32 v238, v246, v247, vcc'); e('v_cndmask_b32 v239, v248, v249, vcc')
    e('s_lshr_b32 s16, %s, 1'%s(sJ)); e('s_lshl_b32 s66, 0x11111111, s16')
    poll('AX_C1','AX_C2','1')
    e('s_and_b32 s17, vcc_lo, s66'); e('s_cmp_eq_u32 s17, s66'); e('s_cbranch_scc0 AX_C1')
    e('AX_C2:')
    e('s_mul_i32 s16, %s, 73728'%s(sC)); e('s_lshl_b32 s17, %s, 10'%s(sJ)); e('s_add_u32 s16, s16, s17'); e('s_add_u32 s16, s16, 65536')
    for jj in range(8):
        e('buffer_load_dwordx4 %s, v253, %s, s16 offen sc1'%(v(96+4*jj,4),s(sWS,4)))
        if jj<7: e('s_add_u32 s16, s16, %d'%(32*73728))
    for tb in range(2):
        for i in range(16): e('v_xor_b32 %s, %s, %s'%(v(UF+16*tb+i),v(236+tb),v(UF+16*tb+i)))
    e('s_nop 1')
    for k in range(4):
        for tb in range(2): mfma(144+4*tb, UF+16*tb+4*k, 128+4*k, '0' if k==0 else None)
    e('s_waitcnt vmcnt(0)')
    for jj in range(8):
        for tb in range(2): mfma(152+4*tb, 48+4*tb, 96+4*jj, '0' if jj==0 else None)
    e('s_lshl_b32 s16, s64, 1'); e('s_nop 7')
    combine((144,148),(152,156),238,224,239,'s16',0)
    e('AX_P:')
    st(3)
    e('s_mov_b32 s66, 0')
    e('s_mul_i32 s18, %s, 73728'%s(sC)); e('s_lshl_b32 s17, %s, 13'%s(sJ)); e('s_add_u32 s18, s18, s17'); e('s_add_u32 s18, s18, s69')
    def acc(buf,first):
        for ch in range(2):
            for sg in range(2):
                for tb in range(2): mfma(SP+8*(2*ch+tb)+4*sg, 48+4*tb, buf+8*ch+4*sg, '0' if first else None)
    for i in range(1,8):
        if i==7:
            e('s_waitcnt vmcnt(0)'); acc(64+16*(6%4),False)
            e('s_lshl_b32 s16, s7, 9'); e('s_add_u32 s16, s16, %d'%CNS)
            e('v_and_b32 v4, 1, v0'); e('v_mul_u32_u24 v4, 260, v4'); e('v_add_u32 v4, s16, v4')
            e('s_add_u32 s16, s69, %d'%QH); e('v_add_u32 v6, s16, v253')
            lds_wait(4,5,'39')
            for u in range(4): e('ds_read_b128 %s, v6 offset:%d'%(v(64+4*u,4),1024*u))
            e('s_waitcnt lgkmcnt(0)'); acc(64,False)
            st(4)
        e('s_sub_u32 s16, %s, %d'%(s(sJ),i)); e('s_and_b32 s16, s16, 7')
        e('s_lshl_b32 s17, s16, 2'); e('s_lshl_b32 s19, s7, 1'); e('s_add_u32 s17, s17, s19'); e('s_lshl_b32 s17, 3, s17')
        e('s_mul_i32 s16, s16, %d'%(32*73728)); e('s_add_u32 s16, s16, s18')
        e('s_branch AX_T%d'%i)
        poll('AX_R%d'%i,'AX_G%d'%i,'v251')
        e('s_mov_b32 s66, vcc_lo')
        e('AX_T%d:'%i)
        e('s_and_b32 s19, s66, s17'); e('s_cmp_eq_u32 s19, s17'); e('s_cbranch_scc0 AX_R%d'%i)
        e('AX_G%d:'%i)
        b=64+16*(i%4)
        for u in range(4): e('buffer_load_dwordx4 %s, v253, %s, s16 offen offset:%d sc1'%(v(b+4*u,4),s(sWS,4),1024*u))
        if 2<=i<=6:
            e('s_waitcnt vmcnt(4)'); acc(64+16*((i-1)%4), i==2)
    st(5)
    e('s_waitcnt vmcnt(0)'); acc(64+16*(7%4),False)
    e('s_lshl_b32 s16, %s, 7'%s(sJ)); e('s_nop 4')
    for ch in range(2):
        for sg in range(2):
            combine((YA+16*ch+4*sg,YA+16*ch+8+4*sg),(SP+16*ch+4*sg,SP+16*ch+8+4*sg),246+sg,128+8*ch+4*sg,248+sg,'s16',64*ch)
    if STAMP:
        e('s_waitcnt vmcnt(0)'); st(6); st_flush(7,0)
    e('s_endpgm')

def main():
    global INMAIN
    e('K_MAIN:')
    ACC=112; AF=16; XB=52
    e('v_lshlrev_b32 v7, 2, v0'); e('s_lshl_b32 s16, %s, 8'%s(sWV)); e('s_add_u32 s16, s16, %d'%LND); e('v_add_u32 v3, s16, v7'); e('v_mov_b32 v107, 0')
    for i in range(3): e('ds_write_b32 v3, v107 offset:%d'%(1024*i))
    e('v_add_u32 v108, 1024, v3')
    e('v_and_b32 v3, 3, v0'); e('v_mul_u32_u24 v3, 260, v3'); e('v_add_u32 v109, %d, v3'%LND)
    e('v_and_b32 v3, 7, v0'); e('v_min_u32 v3, 5, v3'); e('v_mul_u32_u24 v3, 260, v3'); e('v_add_u32 v111, %d, v3'%CNS)
    e('s_waitcnt lgkmcnt(0)'); e('s_barrier')
    srd(sW2,54,5308416); srd(sWS,62,WS_BYTES); srd(sDBG,60,256)
    e('v_cmp_eq_u32 vcc, 0, v0'); e('v_mov_b32 v7, %d'%OOB); e('v_mov_b32 v8, 0'); e('v_cndmask_b32 v85, v7, v107, vcc')
    e('s_cmp_eq_u32 %s, 0'%s(sWV)); e('s_cbranch_scc0 M_NZ')
    e('v_mov_b32 v9, 0'); e('v_mov_b32 v10, 0'); e('v_mov_b32 v11, 0')
    e('s_lshl_b32 s16, s2, 7'); e('s_add_u32 s16, s16, %d'%FLP)
    e('buffer_store_dwordx4 v[8:11], v85, %s, s16 offen sc1'%s(sWS,4))
    e('s_lshl_b32 s16, s2, 3'); e('s_add_u32 s16, s16, %d'%FLU)
    e('buffer_store_dwordx2 v[8:9], v85, %s, s16 offen sc1'%s(sWS,4))
    e('M_NZ:')
    e('v_and_b32 v1, 15, v0'); e('v_lshrrev_b32 v2, 4, v0')
    e('s_movk_i32 s61, 1152')
    e('v_lshrrev_b32 v3, 2, v1'); e('v_and_b32 v4, 3, v0')
    e('v_lshl_add_u32 v5, v2, 3, v3'); e('v_mul_u32_u24 v5, s61, v5'); e('v_lshl_add_u32 v5, v4, 3, v5')
    e('v_lshrrev_b32 v6, 1, v3'); e('v_and_b32 v7, 1, v2'); e('v_lshl_add_u32 v6, v7, 1, v6')
    e('s_mul_i32 s60, %s, 9'%s(sWV))
    for i in range(4):
        e('s_add_u32 s16, s60, %d'%i); e('s_and_b32 s17, s16, 3'); e('s_lshr_b32 s16, s16, 2'); e('s_lshl_b32 s16, s16, 7')
        e('v_xor_b32 v7, s17, v6'); e('v_lshl_add_u32 v7, v7, 5, v5'); e('v_add_u32 %s, s16, v7'%v(88+i)); e('v_mov_b32 %s, %s'%(v(92+i),v(88+i)))
    e('v_lshrrev_b32 v7, 1, v1'); e('v_xor_b32 v7, v7, v2'); e('v_lshlrev_b32 v7, 4, v7')
    e('v_lshl_add_u32 v96, v1, 7, v7'); e('v_add_u32 v96, %d, v96'%XW0); e('v_xor_b32 v97, 64, v96')
    e('v_lshlrev_b32 v106, 4, v0')
    for i in range(2):
        e('s_add_u32 s16, s60, %d'%i); e('s_and_b32 s17, s16, 1'); e('s_lshl_b32 s17, s17, 3'); e('s_lshr_b32 s16, s16, 1'); e('s_lshl_b32 s16, s16, 12')
        e('s_add_u32 s16, s16, s17'); e('s_add_u32 s16, s16, %d'%HB); e('v_add_u32 %s, s16, v106'%v(98+i))
    e('s_lshr_b32 s16, %s, 1'%s(sWV)); e('s_lshl_b32 s16, s16, 11'); e('s_add_u32 s16, s16, %d'%HB)
    e('v_add_u32 v100, s16, v106'); e('v_add_u32 v101, 36864, v100')
    e('v_lshl_add_u32 v5, v2, 2, v3'); e('v_bfe_u32 v6, v5, 1, 2'); e('v_lshlrev_b32 v5, 7, v5'); e('v_lshl_add_u32 v5, v4, 3, v5')
    e('s_and_b32 s16, %s, 1'%s(sWV)); e('s_lshl_b32 s16, s16, 1')
    for tb in range(2):
        e('s_add_u32 s17, s16, %d'%tb); e('v_xor_b32 v7, s17, v6'); e('v_lshl_add_u32 %s, v7, 5, v5'%v(102+tb)); e('v_add_u32 %s, %d, %s'%(v(104+tb),SLOT,v(102+tb)))
    e('s_mul_i32 s18, %s, 576'%s(sJ)); e('s_mul_i32 s17, %s, 18'%s(sC)); e('s_add_u32 s18, s18, s17'); e('s_mul_i32 s18, s18, 1152')
    e('s_mul_i32 s17, %s, %d'%(s(sWV),41*128)); e('s_add_u32 s18, s18, s17')
    e('v_min_u32 v84, 40, v0'); e('v_lshlrev_b32 v84, 7, v84')
    e('v_mov_b32 v5, v85')
    for i in range(144): e('v_mov_b32 %s, 0'%v(ACC+i))
    for i in range(12): e('v_mov_b32 %s, 0'%v(AF+24+i))
    for i in range(16): e('v_mov_b32 %s, 0'%v(XB+16+i))
    e('s_mov_b32 s64, 0'); e('s_mov_b32 s65, %d'%XWS); e('s_mov_b32 s66, 1')
    e('s_cmp_eq_u32 %s, 0'%s(sWV)); e('s_cbranch_scc0 M_NA')
    e('v_mov_b32 v12, 1'); e('s_lshl_b32 s16, %s, 5'%s(sJ)); e('s_waitcnt vmcnt(0)')
    e('buffer_atomic_add v12, v5, %s, s16 offen sc1'%s(sDBG,4))
    e('M_NA:')
    e('v_mov_b32 v1, 0'); e('v_mov_b32 v3, 0')
    e('v_mov_b32 v110, 0')
    INMAIN=True
    spins=[]
    def check(seq,thr,vaddr=109):
        L=lab('SP'); R=L+'R'
        seq.append(('need',['F'])); seq.append(('i','v_cmp_gt_u32 vcc, %s, v110'%thr)); seq.append(('i','s_cbranch_vccnz '+L)); seq.append(('i',R+':'))
        spins.append((L,R,thr,vaddr))
    def conv(t,sg):
        a=ACC+16*t+4*sg
        return ['v_cvt_pk_bf16_f32 %s, %s, %s'%(v(a),v(a),v(a+1)),'v_cvt_pk_bf16_f32 %s, %s, %s'%(v(a+1),v(a+2),v(a+3)),
                'v_pk_max_i16 %s, %s, 0'%(v(a),v(a)),'v_pk_max_i16 %s, %s, 0'%(v(a+1),v(a+1))]
    def hwr(t,sg): return 'ds_write_b64 %s, %s offset:%d'%(v(98+t%2),v(ACC+16*t+4*sg,2),(t//2)*4096+sg*1024)
    def step1(p,last=False):
        seq=[]; check(seq,'s66')
        R=[('A',0,0),('A',0,1)]+[('X',p,sg) for sg in range(4)]+[('A',t,r) for t in range(1,9) for r in range(2)]
        extra=[]
        if not last:
            extra=['s_add_u32 s64, s64, %d'%SLOT,'s_cmp_eq_u32 s64, %d'%(3*SLOT),'s_cselect_b32 s64, 0, s64','s_add_u32 s66, s66, 1']+['v_add_u32 %s, s64, %s'%(v(92+i),v(88+i)) for i in range(4)]
            if p==1: extra+=['v_add_u32 v96, s65, v96','v_add_u32 v97, s65, v97','s_sub_u32 s65, 0, s65']
            else: extra+=['s_cmp_eq_u32 s66, 18']
        cv=[]; wr=[]
        ng=48 if last else 36
        for g in range(ng):
            i,sg=divmod(g,4)
            if g<len(R):
                k,a,b=R[g]
                if k=='A': seq.append(('lds',R[g],'ds_read_b64_tr_b16 %s, %s offset:%d'%(v(AF+4*a+2*b,2),v(92+a%4),128*(a//4)+4608*b)))
                else: seq.append(('lds',R[g],'ds_read_b128 %s, %s offset:%d'%(v(XB+16*p+4*b,4),v(96+p),2048*b)))
            elif g==22:
                seq.append(('i','v_add_u32 v107, 1, v107')); seq.append(('lds','C','ds_write_b32 v108, v107'))
            elif extra: seq.append(('i',extra.pop(0)))
            if g==(26 if last else 30): seq.append(('lds','F','ds_read_b32 v110, %s'%v(111 if last else 109)))
            if last:
                if g==32: check(seq,'18',111)
                if g>=20 and sg==0:
                    cv+=[(x,(i-5,q)) for q in range(4) for x in conv(i-5,q)]
                if g>=20:
                    for _ in range(2):
                        if cv:
                            x,tag=cv.pop(0); seq.append(('i',x))
                            if x.startswith('v_pk_max') and (not cv or cv[0][1]!=tag): wr.append(tag)
                if g>=32 and wr: seq.append(('lds','H',hwr(*wr.pop(0))))
            if i<3: t,xb=6+i,1-p
            else: t,xb=i-3,p
            seq.append(('need',[('A',t,0),('A',t,1),('X',xb,sg)]))
            seq.append(('i',mf(ACC+16*t+4*sg, AF+4*t, XB+16*xb+4*sg)))
        assert not extra
        if last:
            for t in (7,8): cv+=[(x,(t,q)) for q in range(4) for x in conv(t,q)]
            while cv or wr:
                for _ in range(2):
                    if cv:
                        x,tag=cv.pop(0); seq.append(('i',x))
                        if x.startswith('v_pk_max') and (not cv or cv[0][1]!=tag): wr.append(tag)
                if wr: seq.append(('lds','H',hwr(*wr.pop(0))))
        return seq
    s0=step1(0); s1=step1(1)
    touch=[('i','s_cmp_eq_u32 s66, 5'),('i','s_cbranch_scc0 M1_L'),('i','buffer_load_dword v4, v84, %s, s18 offen'%s(sW2,4)),('i','s_branch M1_L')]
    body=s0+[('i','s_cbranch_scc1 M1_X')]+s1+touch
    if STAMP:
        lds_wait(109,110,'1'); st(1); stc(8); e('s_waitcnt lgkmcnt(0)')
    e('M1_L:')
    stream(body,True)
    e('M1_X:')
    stream(step1(1,True),False,pre=s1+s0)
    e('v_add_u32 v107, 1, v107'); e('ds_write_b32 v108, v107')
    st(2); stc(9)
    lds_wait(111,110,'19')
    H=ACC
    for k in range(18):
        for sg in range(2): e('ds_read_b128 %s, %s offset:%d'%(v(H+8*k+4*sg,4),v(100+k//9),(k%9)*4096+sg*1024))
    e('v_add_u32 v107, 1, v107'); e('ds_write_b32 v108, v107')
    e('ds_read_b32 v110, v109')
    WR=16; PA=64; QA=80; PK=8
    e('s_mov_b32 s64, %d'%(2*SLOT)); e('s_mov_b32 s65, 0'); e('s_mov_b32 s66, 19')
    e('s_lshl_b32 s60, %s, 5'%s(sJ)); e('s_add_u32 s60, s60, %s'%s(sC)); e('s_mul_i32 s60, s60, 73728')
    e('s_lshl_b32 s61, %s, 11'%s(sWV)); e('s_add_u32 s60, s60, s61')
    e('s_mov_b32 s67, %d'%OOB)
    e('s_lshl_b32 s19, s2, 7'); e('s_lshl_b32 s61, %s, 2'%s(sWV)); e('s_add_u32 s19, s19, s61'); e('s_add_u32 s19, s19, %d'%FLP)
    e('v_mov_b32 v6, 0')
    e('s_waitcnt lgkmcnt(0)')
    st(3); stc(10)
    def mm2(kg,u):
        tb,sg=divmod(u,2)
        a=WR+8*(kg%6)+4*tb; b=H+8*kg+4*sg
        if kg<9: return mf(PA+8*tb+4*sg,a,b,'0' if kg==0 else None)
        return mf(QA+8*tb+4*sg,a,b,PA+8*tb+4*sg if kg==9 else None)
    def packq(final=False):
        L=[]
        for sg in range(2):
            for tb in range(2):
                for h in range(2):
                    q=QA+8*tb+4*sg+2*h
                    L.append('v_cvt_pk_bf16_f32 %s, %s, %s'%(v(PK+4*sg+2*tb+h),v(q),v(q+1)))
            if final: L.append('ds_write_b128 v7, %s offset:%d'%(v(PK+4*sg,4),1024*sg))
            else: L.append('buffer_store_dwordx4 %s, v106, %s, s67 offen offset:%d sc1'%(v(PK+4*sg,4),s(sWS,4),1024*sg))
        return L
    body=[]
    for hc in range(2):
        check(body,'s66')
        R=[(9*hc+k,tb,r) for k in range(9) for tb in range(2) for r in range(2)]
        ex={}
        if hc==0:
            for i,x in enumerate(packq()): ex[16+i]=[x]
            ex[2]=['v_add_u32 v104, s64, v104']; ex[3]=['v_add_u32 v105, s64, v105']; ex[4]=['s_sub_u32 s64, 0, s64']; ex[5]=['s_add_u32 s66, s66, 1']
        else:
            L=['v_add_u32 v102, s64, v102','v_add_u32 v103, s64, v103','s_add_u32 s66, s66, 1',
               's_add_u32 s61, s65, %s'%s(sJ),'s_and_b32 s61, s61, 7','s_cmp_eq_u32 s65, 0','s_cselect_b32 s61, 8, s61',
               's_lshl_b32 s61, s61, 13','s_add_u32 s67, s60, s61']
            for i,x in enumerate(L): ex[2+i]=[x]
            ex[24]=['s_waitcnt vmcnt(3)','buffer_store_dword v6, v5, %s, s19 offen sc1'%s(sWS,4)]
            ex[27]=['v_mov_b32 v6, s65']; ex[28]=['s_add_u32 s65, s65, 1']; ex[33]=['s_cmp_lt_u32 s65, 9']
        for g in range(36):
            i,u=divmod(g,4)
            k,tb,r=R[g]
            body.append(('lds',R[g],'ds_read_b64_tr_b16 %s, %s offset:%d'%(v(WR+8*(k%6)+4*tb+2*r,2),v(102+2*hc+tb),(k%9)*4096+r*2048)))
            if g==30: body.append(('lds','F','ds_read_b32 v110, v109'))
            if g==34: body.append(('i','v_add_u32 v107, 1, v107'))
            if g==35: body.append(('lds','C','ds_write_b32 v108, v107'))
            for x in ex.get(g,[]): body.append(('i',x))
            kg=(9*hc+i-3)%18
            body.append(('need',[(kg,u//2,0),(kg,u//2,1)]))
            body.append(('i',mm2(kg,u)))
    e('v_add_u32 v104, s64, v104'); e('v_add_u32 v105, s64, v105'); e('s_sub_u32 s64, 0, s64')
    e('M2_L:')
    stream(body,True)
    e('s_cbranch_scc1 M2_L')
    e('s_lshl_b32 s61, %s, 11'%s(sWV)); e('s_add_u32 s61, s61, %d'%QH); e('v_add_u32 v7, s61, v106')
    e('s_waitcnt lgkmcnt(0)')
    for kg in (15,16,17):
        for u in range(4): e(mm2(kg,u))
    e('s_waitcnt vmcnt(1)'); e('buffer_store_dword v6, v5, %s, s19 offen sc1'%s(sWS,4))
    e('s_nop 5')
    for x in packq(True): e(x)
    e('v_add_u32 v107, 1, v107'); e('ds_write_b32 v108, v107')
    INMAIN=False
    if STAMP:
        st(4); stc(11); st_flush(12,0)
        if TRACE: trace_flush(1,3)
    e('s_waitcnt lgkmcnt(0)')
    e('s_endpgm')
    for (L,R,thr,va) in spins:
        e(L+':')
        tr=TRACE and thr=='s66'
        if tr:
            e('s_memtime s[96:97]'); e('s_waitcnt lgkmcnt(0)'); e('s_mov_b32 m0, s66'); e('v_writelane_b32 v1, s96, m0'); L=L+'b'; e(L+':')
        e('ds_read_b32 v110, %s'%v(va))
        e('s_add_u32 s99, s99, 1'); e('s_cmp_gt_u32 s99, 0x100000'); e('s_cbranch_scc1 K_END'); e('s_waitcnt lgkmcnt(0)')
        e('v_cmp_gt_u32 vcc, %s, v110'%thr); e('s_cbranch_vccnz '+L)
        if tr: e('s_memtime s[96:97]'); e('s_waitcnt lgkmcnt(0)'); e('v_writelane_b32 v3, s96, m0')
        e('s_branch '+R)

assert all((L*57)>>9==L//9 for L in range(288))
assert all((L*57)>>11==L//36 for L in range(289))
out.append('; @launch grid=(256,1,1) block=(512,1,1) lds=163840')
out.append('.amdgcn_target "amdgcn-amd-amdhsa--gfx950"')
out.append('.text'); out.append('.globl '+NAME)
kernel()
out.append('.section .rodata,"a"'); out.append('.p2align 6')
out.append('.amdhsa_kernel '+NAME)
for l in ['next_free_vgpr 256','next_free_sgpr 100','accum_offset 256','group_segment_fixed_size 0','kernarg_size 96','user_sgpr_count 2','user_sgpr_kernarg_segment_ptr 1','system_sgpr_workgroup_id_x 1']:
    out.append('  .amdhsa_'+l)
out.append('.end_amdhsa_kernel')
print('\n'.join(out))
```

```python
import sys, struct
A=sys.argv
STAMP='--stamp' in A; NODMA='--nodma' in A; NOMFMA='--nomfma' in A; NOREAD='--noread' in A; NOPRIO='--noprio' in A; NOTX='--notx' in A; NORED='--nored' in A; NOST='--nost' in A; NOU='--nou' in A; NOXW='--noxw' in A; TRACE='--trace' in A; MPRIO='--mprio' in A; SLP='--slp' in A; DBGT='--dbgt' in A; WSPLIT=0 if '--nowsplit' in A else 1
NAME='gated_mix__spectral_fnet__dense_activation_relu__prompt_kernel'
out=[]; INMAIN=False
def e(s=''):
    if NODMA and s.endswith(' lds') and ('s[20:23]' in s or 's[24:27]' in s): return
    if (NOPRIO or MPRIO) and s.startswith('s_setprio') and not INMAIN: return
    if INMAIN and NOST and s.startswith('buffer_store_dword'): return
    if NOU and s.startswith('buffer_load_dword v') and 's17 offen sc1' in s: return
    if NOXW and s.endswith(' lds') and ('s[8:11]' in s or 's[12:15]' in s): return
    if INMAIN and NOMFMA and s.startswith('v_mfma'): return
    out.append('    '+s if s and not s.endswith(':') else s)
def v(n,c=1): return 'v%d'%n if c==1 else 'v[%d:%d]'%(n,n+c-1)
def s(n,c=1): return 's%d'%n if c==1 else 's[%d:%d]'%(n,n+c-1)
def f2u(x): return struct.unpack('<I',struct.pack('<f',float(x)))[0]

SLOT=36864; XW0=110592; XWS=18432; HB=73728
MISC=147456; QH=MISC; LND=MISC+8192; CNS=LND+4*256; GL=CNS+6*256
U_OFF=0x1400000; FLP=0x1800000; FLU=0x1810000; ST_OFF=0x1900000; WS_BYTES=0x1B00000
BIG=0x7fffffff; OOB=0x40000000
sX,sWH,sW1,sW2,sGW,sWS,sOUT,sDBG=8,12,20,24,28,32,36,40
sJ,sC,sWV,sROT=3,4,5,6
SPINMAX=0x8000

def srd(d,base,nbytes):
    e('s_mov_b32 %s, %s'%(s(d),s(base))); e('s_mov_b32 %s, %s'%(s(d+1),s(base+1)))
    e('s_mov_b32 %s, %d'%(s(d+2),nbytes)); e('s_mov_b32 %s, 0x20000'%s(d+3))
def mf(d,a,b,c=None):
    return 'v_mfma_f32_16x16x32_bf16 %s, %s, %s, %s'%(v(d,4),v(a,4),v(b,4), v(d,4) if c is None else (c if isinstance(c,str) else v(c,4)))
def mfma(*a): e(mf(*a))
def st(slot):
    if STAMP: e('s_memrealtime %s'%s(72+2*slot,2))
def stc(slot):
    if STAMP: e('s_memtime %s'%s(72+2*slot,2))
def st_flush(n,base_row):
    if not STAMP: return
    e('s_waitcnt lgkmcnt(0)')
    e('s_lshl_b32 s68, s2, 3'); e('s_add_u32 s68, s68, %s'%s(sWV)); e('s_lshl_b32 s68, s68, 7'); e('s_add_u32 s68, s68, %d'%ST_OFF)
    e('v_mov_b32 v2, 0')
    for i in range(n):
        e('v_mov_b32 v4, %s'%s(72+2*i)); e('v_mov_b32 v5, %s'%s(73+2*i))
        e('buffer_store_dwordx2 v[4:5], v2, %s, s68 offen offset:%d'%(s(sWS,4),8*i)); e('s_nop 1')
def trace_flush(a,b):
    e('s_lshl_b32 s68, s2, 3'); e('s_add_u32 s68, s68, %s'%s(sWV)); e('s_lshl_b32 s68, s68, 9'); e('s_add_u32 s68, s68, %d'%(ST_OFF+0x40000))
    e('v_lshlrev_b32 v2, 2, v0')
    e('buffer_store_dword %s, v2, %s, s68 offen'%(v(a),s(sWS,4))); e('buffer_store_dword %s, v2, %s, s68 offen offset:256'%(v(b),s(sWS,4)))
_lab=[0]
def lab(p): _lab[0]+=1; return '%s%d'%(p,_lab[0])
def lds_wait(vaddr,vtmp,thr):
    L=lab('W')
    e(L+':')
    if SLP and not INMAIN: e('s_sleep 2')
    e('ds_read_b32 %s, %s'%(v(vtmp),v(vaddr)))
    e('s_add_u32 s99, s99, 1'); e('s_cmp_gt_u32 s99, 0x100000'); e('s_cbranch_scc1 K_END'); e('s_waitcnt lgkmcnt(0)')
    e('v_cmp_gt_u32 vcc, %s, %s'%(thr,v(vtmp))); e('s_cbranch_vccnz '+L)

def stream(seq, cyclic, pre=None):
    hist=[]; done=0
    def run(sq,emit):
        nonlocal done
        for it in sq:
            if it[0]=='lds':
                hist.append(it[1])
                if emit and not (NOREAD and it[2].startswith('ds_read_b64_tr')): e(it[2])
            elif it[0]=='need':
                idx=-1
                for t in it[1]:
                    k=[i for i,x in enumerate(hist) if x==t]
                    if k: idx=max(idx,k[-1])
                    else: assert not emit, t
                if idx+1>done:
                    n=min(len(hist)-1-idx,15)
                    if emit: e('s_waitcnt lgkmcnt(%d)'%(0 if NOREAD else n))
                    done=len(hist)-n
            elif emit: e(it[1])
    if cyclic: run(seq,False)
    if pre is not None: run(pre,False)
    run(seq,True)

def kernel():
    e('.p2align 8'); e('.type %s,@function'%NAME); e(NAME+':')
    e('s_cmp_ge_u32 s2, 256'); e('s_cbranch_scc1 K_END')
    st(0)
    if DBGT: e('s_memrealtime s[72:73]')
    e('s_load_dwordx2 s[44:45], s[0:1], 0')
    e('s_load_dwordx4 s[48:51], s[0:1], 24')
    e('s_load_dwordx4 s[52:55], s[0:1], 48')
    e('s_load_dwordx8 s[56:63], s[0:1], 64')
    e('s_mov_b32 s99, 0')
    e('v_lshrrev_b32 v1, 6, v0')
    e('s_and_b32 %s, s2, 7'%s(sJ)); e('s_lshr_b32 %s, s2, 3'%s(sC))
    e('v_readfirstlane_b32 %s, v1'%s(sWV))
    e('v_and_b32 v0, 63, v0')
    e('s_mul_i32 s6, %s, 57'%s(sC)); e('s_lshr_b32 s6, s6, 9'); e('s_mul_i32 s6, s6, 9'); e('s_sub_u32 s6, %s, s6'%s(sC))
    e('s_cmp_ge_u32 %s, 6'%s(sWV)); e('s_cbranch_scc1 K_AUX')
    e('s_cmp_ge_u32 %s, 4'%s(sWV)); e('s_cbranch_scc0 K_MAIN')
    loader(); aux(); main()
    e('K_END:'); e('s_endpgm')

def loader():
    e('s_setprio 3')
    e('s_sub_u32 s7, %s, 4'%s(sWV))
    e('v_lshrrev_b32 v1, 3, v0'); e('v_and_b32 v2, 7, v0')
    e('v_lshrrev_b32 v4, 1, v2')
    e('v_and_b32 v5, 1, v2'); e('v_lshlrev_b32 v5, 4, v5')
    e('s_movk_i32 s16, %d'%(9216-1152))
    for p in range(9):
        e('v_add_u32 v6, %d, v1'%(8*p))
        e('v_mul_u32_u24 v7, 57, v6'); e('v_lshrrev_b32 v7, 9, v7')
        e('v_bfe_u32 v9, v7, 1, 1'); e('v_xor_b32 v9, v9, v4')
        e('v_lshl_add_u32 v6, v6, 7, v5')
        e('v_mad_u32_u24 v6, v7, s16, v6')
        e('v_lshl_add_u32 v6, v9, 5, v6')
        e('v_xor_b32 v7, 64, v6')
        e('v_subrev_u32 %s, %d, v6'%(v(16+p),(p%4)*1024))
        e('v_add_u32 %s, %d, v7'%(v(25+p),8*9216-((p+9)%4)*1024))
    e('v_lshrrev_b32 v6, 1, v1'); e('v_and_b32 v6, 3, v6'); e('v_lshlrev_b32 v6, 1, v6'); e('v_xor_b32 v6, v6, v2')
    e('s_movk_i32 s69, 1152'); e('v_mul_u32_u24 v7, s69, v1'); e('v_lshl_add_u32 v36, v6, 4, v7')
    for i in range(1,4): e('v_add_u32 %s, %d, v36'%(v(36+i),i*8192))
    e('s_mul_i32 s64, s7, 18432')
    e('s_mul_i32 s17, %s, 1152'%s(sJ)); e('s_mul_i32 s18, s7, %d'%(16*9216)); e('s_add_u32 s17, s17, s18')
    e('s_lshl_b32 s18, s6, 1')
    e('s_mul_i32 s66, s18, %d'%(32*9216)); e('s_add_u32 s66, s66, s17')
    e('s_mov_b32 s67, s64')
    e('s_mov_b32 s68, 0'); e('s_mov_b32 s69, -2')
    e('s_mul_i32 s70, %s, 576'%s(sJ)); e('s_mul_i32 s71, s7, 144'); e('s_add_u32 s70, s70, s71'); e('s_mul_i32 s70, s70, 1152')
    e('s_lshl_b32 s19, s7, 8'); e('s_add_u32 s19, s19, %d'%LND)
    e('v_lshlrev_b32 v11, 2, v0'); e('v_add_u32 v11, s19, v11'); e('v_mov_b32 v10, 0'); e('v_mov_b32 v13, 0'); e('v_mov_b32 v40, 0'); e('v_mov_b32 v41, 0')
    e('v_and_b32 v12, 3, v0'); e('v_mul_u32_u24 v12, 260, v12'); e('v_add_u32 v12, %d, v12'%CNS)
    e('s_waitcnt lgkmcnt(0)')
    srd(sW1,52,5308416); srd(sW2,54,5308416)
    if STAMP: srd(sWS,62,WS_BYTES)
    PUB=12
    def dma(ph,p):
        if p%4==0 and p:
            e('s_add_u32 m0, s67, %d'%(p*1024))
            if ph==2: e('s_add_u32 s66, s66, %d'%(32*1152))
            else: e('s_nop 0')
        if ph==1: e('buffer_load_dwordx4 %s, %s, s66 offen offset:%d lds'%(v(16+p),s(sW1,4),(p%4)*1024))
        else: e('buffer_load_dwordx4 %s, %s, s66 offen offset:%d lds'%(v(36+p%4),s(sW2,4),(p%4)*1024))
    def grp(fill):
        groups=[]; i=0
        while i<len(fill):
            if fill[i].startswith('s_cmp'): groups.append(fill[i:i+2]); i+=2
            else: groups.append([fill[i]]); i+=1
        return groups
    def tr_top():
        if TRACE: e('s_memtime s[96:97]'); e('s_waitcnt lgkmcnt(0)'); e('s_mov_b32 m0, s68'); e('s_nop 3'); e('v_writelane_b32 v40, s96, m0'); e('v_writelane_b32 v42, s92, m0'); e('v_writelane_b32 v43, s94, m0')
    e('LD_P:'); tr_top()
    e('s_mov_b32 m0, s67'); e('s_nop 0')
    g=grp(['s_add_u32 s18, s18, 1','s_cmp_eq_u32 s18, 18','s_cselect_b32 s18, 0, s18','s_mul_i32 s44, s18, %d'%(32*9216),'s_add_u32 s44, s44, s17',
           's_add_u32 s45, s67, %d'%SLOT,'s_cmp_ge_u32 s45, %d'%(3*SLOT),'s_cselect_b32 s45, s64, s45'])
    for p in range(18):
        if p==PUB:
            e('s_cmp_eq_u32 s68, 0'); e('s_cbranch_scc1 LD_P0')
            if TRACE: e('s_memtime s[92:93]')
            e('s_waitcnt vmcnt(%d)'%PUB); e('s_barrier')
            if TRACE: e('s_memtime s[94:95]')
            e('LD_P0:')
        dma(1,p)
        if g:
            for x in g.pop(0): e(x)
    e('s_mov_b32 s66, s44'); e('s_mov_b32 s67, s45')
    e('s_add_u32 s68, s68, 1'); e('s_cmp_lt_u32 s68, 18'); e('s_cbranch_scc1 LD_P')
    e('s_add_u32 s66, s70, 1024'); e('s_mov_b32 s69, 0')
    e('LD_Q:'); tr_top()
    e('s_waitcnt lgkmcnt(1)'); e('v_cmp_gt_u32 vcc, s69, v13'); e('s_mov_b32 m0, s67'); e('s_cbranch_vccnz LD_QS')
    e('LD_QR:')
    g=grp(['s_sub_u32 s46, s68, 17','s_lshr_b32 s44, s46, 1','s_add_u32 s47, s44, %s'%s(sJ),'s_and_b32 s47, s47, 7','s_cmp_eq_u32 s44, 0','s_cselect_b32 s47, 8, s47',
           's_lshl_b32 s47, s47, 7','s_and_b32 s44, s46, 1','s_mul_i32 s44, s44, %d'%(288*1152),'s_add_u32 s44, s44, s47','s_add_u32 s44, s44, s70',
           's_add_u32 s45, s67, %d'%SLOT,'s_cmp_ge_u32 s45, %d'%(4*SLOT),'s_cselect_b32 s45, s64, s45',
           's_cmp_le_u32 s68, 20','s_cselect_b32 s69, 0, s68'])
    for p in range(18):
        if p==PUB:
            e('v_mov_b32 v10, s68')
            if TRACE: e('s_memtime s[92:93]')
            e('s_waitcnt vmcnt(%d)'%PUB)
            e('s_cmp_lt_u32 s68, 20'); e('s_cbranch_scc0 LD_Q0'); e('s_barrier'); e('LD_Q0:')
            if TRACE: e('s_memtime s[94:95]')
            e('ds_read_b32 v13, v12'); e('ds_write_b32 v11, v10')
        dma(2,p)
        if g:
            for x in g.pop(0): e(x)
    assert not g
    e('s_mov_b32 s66, s44'); e('s_mov_b32 s67, s45')
    e('s_add_u32 s68, s68, 1'); e('s_cmp_eq_u32 s68, 20'); e('s_cbranch_scc1 LD_E')
    e('s_cmp_lt_u32 s68, 36'); e('s_cbranch_scc1 LD_Q')
    e('v_mov_b32 v10, s68'); e('s_waitcnt vmcnt(0)'); e('ds_write_b32 v11, v10')
    if STAMP: st(1); st_flush(2,0)
    if TRACE:
        e('s_cmp_eq_u32 s7, 0'); e('s_cbranch_scc1 TRX'); e('v_mov_b32 v41, v43'); e('v_mov_b32 v40, v42'); e('TRX:')
        trace_flush(40,41)
    e('s_waitcnt lgkmcnt(0)')
    e('s_endpgm')
    e('LD_E:')
    e('v_mov_b32 v10, s68'); e('s_waitcnt vmcnt(0)'); e('ds_write_b32 v11, v10'); e('s_waitcnt lgkmcnt(0)')
    e('s_barrier'); e('s_barrier'); e('s_branch LD_Q')
    e('LD_QS:')
    e('ds_read_b32 v13, v12'); e('s_waitcnt lgkmcnt(0)'); e('v_cmp_gt_u32 vcc, s69, v13'); e('s_cbranch_vccz LD_QR')
    e('v_mov_b32 v10, s68'); e('s_waitcnt vmcnt(0)'); e('ds_write_b32 v11, v10')
    lds_wait(12,13,'s69')
    if TRACE: e('s_memtime s[96:97]'); e('s_waitcnt lgkmcnt(0)'); e('s_mov_b32 m0, s68'); e('s_nop 3'); e('v_writelane_b32 v41, s96, m0'); e('s_mov_b32 m0, s67')
    e('s_branch LD_QR')

def aux():
    e('K_AUX:')
    e('s_setprio 2')
    e('s_sub_u32 s7, %s, 6'%s(sWV))
    e('v_lshrrev_b32 v1, 3, v0'); e('v_and_b32 v2, 7, v0'); e('v_lshrrev_b32 v3, 1, v1')
    e('v_xor_b32 v4, v2, v3'); e('v_lshlrev_b32 v4, 4, v4'); e('v_xor_b32 v5, 64, v4')
    e('s_mov_b32 s16, 73728'); e('v_mul_u32_u24 v6, s16, v1')
    e('s_movk_i32 s17, 1152'); e('v_mul_u32_u24 v7, s17, v1')
    for p in range(4):
        e('v_add_u32 %s, v6, %s'%(v(16+p),'v5' if p%2 else 'v4'))
        if p: e('v_add_u32 %s, %d, %s'%(v(16+p),p*(8*73728-1024),v(16+p)))
        e('v_add_u32 %s, v7, %s'%(v(20+p),'v5' if p%2 else 'v4'))
        if p: e('v_add_u32 %s, %d, %s'%(v(20+p),p*(8*1152-1024),v(20+p)))
    e('s_lshl_b32 s18, s7, 6'); e('v_xor_b32 v8, s18, v4'); e('v_add_u32 v24, v7, v8'); e('v_add_u32 v24, %d, v24'%(32*1152))
    e('v_xor_b32 v25, 2, v2'); e('v_lshlrev_b32 v25, 4, v25')
    e('v_and_b32 v8, 31, v0'); e('v_mul_u32_u24 v14, s16, v8')
    e('s_lshl_b32 s18, s7, 5'); e('s_add_u32 s18, s18, %s'%s(sC)); e('s_mul_i32 s18, s18, 1152')
    e('s_mul_i32 s19, %s, %d'%(s(sJ),36*1152))
    e('s_mov_b32 s64, s6'); e('s_mov_b32 s65, %d'%XW0)
    e('s_lshl_b32 s69, s7, 12'); e('s_lshl_b32 s70, s7, 10')
    e('s_waitcnt lgkmcnt(0)')
    srd(sX,44,2359296)
    e('s_cmp_eq_u32 s7, 1')
    e('s_cselect_b32 %s, s50, s48'%s(sWH)); e('s_cselect_b32 %s, s51, s49'%s(sWH+1))
    e('s_mov_b32 %s, 663552'%s(sWH+2)); e('s_mov_b32 %s, 0x20000'%s(sWH+3))
    srd(sGW,56,1152)
    def issueX():
        e('s_lshl_b32 s66, s64, 7')
        e('s_add_u32 s67, s66, s18'); e('s_add_u32 s68, s66, s19')
        e('s_add_u32 m0, s65, s69'); e('s_add_u32 s45, s65, 16384')
        for p in range(4): e('buffer_load_dwordx4 %s, %s, s67 offen offset:%d lds'%(v(16+p),s(sX,4),p*1024))
        e('s_mov_b32 m0, s45'); e('s_mov_b32 exec_lo, 0'); e('s_mov_b32 exec_hi, 0xff00')
        e('buffer_load_dwordx4 v25, %s, s66 offen lds'%s(sGW,4))
        e('s_mov_b64 exec, -1')
    def issueW():
        e('s_add_u32 s67, s65, s69'); e('s_add_u32 m0, s67, 8192'); e('s_nop 0')
        for p in range(4): e('buffer_load_dwordx4 %s, %s, s68 offen offset:%d lds'%(v(20+p),s(sWH,4),p*1024))
        e('s_add_u32 m0, s45, s70'); e('s_mov_b32 exec_hi, 0xff')
        e('buffer_load_dwordx4 v24, %s, s68 offen lds'%s(sWH,4))
        e('s_mov_b64 exec, -1')
        e('s_add_u32 s64, s64, 1'); e('s_cmp_eq_u32 s64, 9'); e('s_cselect_b32 s64, 0, s64')
        e('s_xor_b32 s65, s65, %d'%(XW0^(XW0+XWS)))
    issueX(); issueW(); issueX(); issueW()
    srd(sWS,62,WS_BYTES); srd(sOUT,58,2359296); srd(sDBG,60,256)
    e('v_and_b32 v8, 15, v0'); e('v_lshrrev_b32 v9, 4, v0')
    e('v_mov_b32 v10, 0'); e('v_mov_b32 v11, %d'%OOB)
    e('v_cmp_eq_u32 vcc, 0, v0'); e('v_lshlrev_b32 v12, 2, v0'); e('s_nop 0'); e('v_cndmask_b32 v252, v11, v10, vcc')
    e('s_lshl_b32 s71, s2, 1'); e('s_add_u32 s71, s71, s7'); e('s_lshl_b32 s71, s71, 2'); e('s_add_u32 s71, s71, %d'%FLU)
    e('v_lshrrev_b32 v10, 1, v8'); e('v_xor_b32 v10, v10, v9'); e('v_lshlrev_b32 v10, 4, v10')
    e('v_lshl_add_u32 v26, v8, 7, v10'); e('v_add_u32 v26, %d, v26'%XW0); e('v_xor_b32 v27, 64, v26')
    e('v_add_u32 v28, s69, v26'); e('v_add_u32 v29, s69, v27')
    ACC=64
    for i in range(40): e('v_mov_b32 %s, 0'%v(ACC+i))
    e('v_lshlrev_b32 v11, 2, v9'); e('v_cvt_f32_u32 v11, v11')
    for b in range(2):
        e('v_add_u32 v12, %d, v8'%(16*b)); e('v_cvt_f32_u32 v12, v12'); e('v_mul_f32 v12, 0x3d000000, v12')
        for jp in range(4):
            o=[(2*jp+u)%4+16*((2*jp+u)//4) for u in range(2)]
            for u in range(2):
                e('v_add_f32 %s, 0x%08x, v11'%(v(30+u),f2u(o[u])))
                e('v_mul_f32 %s, %s, v12'%(v(30+u),v(30+u))); e('v_fract_f32 %s, %s'%(v(30+u),v(30+u)))
            e('v_cos_f32 v32, v30'); e('v_cos_f32 v33, v31'); e('v_sin_f32 v34, v30'); e('v_sin_f32 v35, v31'); e('s_nop 0')
            e('v_cvt_pk_bf16_f32 %s, v32, v33'%v(128+4*b+jp)); e('v_cvt_pk_bf16_f32 %s, v34, v35'%v(136+4*b+jp))
            e('v_xor_b32 %s, 0x80008000, %s'%(v(144+4*b+jp),v(136+4*b+jp)))
    XF=36; WF=44
    e('s_mov_b32 s46, 0'); e('s_mov_b32 s47, %d'%XWS)
    e('s_waitcnt vmcnt(10)')
    if DBGT: e('s_memrealtime s[78:79]'); e('s_waitcnt lgkmcnt(0)')
    e('AX_L:')
    for kp in range(2):
        e('s_barrier')
        for sg in range(2): e('ds_read_b128 %s, %s offset:%d'%(v(XF+4*sg,4),v(28+kp),sg*2048))
        for ct in range(5): e('ds_read_b128 %s, %s offset:%d'%(v(WF+4*ct,4),v(26+kp),8192+ct*2048))
        e('s_cmp_eq_u32 s46, 0'); e('s_cbranch_scc1 AX_S%d'%kp); e('s_cmp_eq_u32 s46, 8'); e('s_cbranch_scc1 AX_S%d'%kp)
        if kp==0:
            issueX()
            if WSPLIT==0: issueW()
        elif WSPLIT: issueW()
        e('AX_S%d:'%kp)
        for ct in range(5):
            e('s_waitcnt lgkmcnt(%d)'%(4-ct))
            for sg in range(2): mfma(ACC+8*ct+4*sg, XF+4*sg, WF+4*ct)
    for r in (26,27,28,29): e('v_add_u32 %s, s47, %s'%(v(r),v(r)))
    e('s_sub_u32 s47, 0, s47')
    e('s_add_u32 s46, s46, 1'); e('s_cmp_lt_u32 s46, 9')
    e('s_waitcnt vmcnt(0)')
    e('s_cbranch_scc1 AX_L')
    e('s_barrier')
    e('AX_D:')
    if DBGT: e('s_memrealtime s[76:77]')
    e('s_setprio 0')
    st(1)
    e('s_nop 7')
    FR=104
    for ct in range(5):
        for h in range(4): e('v_cvt_pk_bf16_f32 %s, %s, %s'%(v(FR+4*ct+h),v(ACC+8*ct+2*h),v(ACC+8*ct+2*h+1)))
    e('v_lshlrev_b32 v12, 6, v8'); e('v_lshl_add_u32 v12, v9, 4, v12')
    for h in range(4): e('v_mov_b32_dpp %s, %s row_ror:8 row_mask:0xf bank_mask:0xf'%(v(124+h),v(FR+16+h)))
    e('s_lshl_b32 s16, %s, 5'%s(sJ)); e('s_add_u32 s16, s16, %s'%s(sC)); e('s_mul_i32 s16, s16, 12288')
    e('s_mul_i32 s17, s7, 6144'); e('s_add_u32 s16, s16, s17'); e('s_add_u32 s16, s16, %d'%U_OFF)
    D=160
    for t,(a,b) in enumerate([(FR,FR+8),(FR+4,FR+12),(FR+16,124)]):
        for be in range(2):
            d=D+16*t+8*be
            mfma(d,a,128+4*be,'0'); mfma(d+4,b,128+4*be,'0'); mfma(d,b,136+4*be); mfma(d+4,a,144+4*be)
    e('s_lshl_b32 s17, s7, 7'); e('s_add_u32 s17, s17, %d'%GL)
    e('v_lshlrev_b32 v13, 4, v9'); e('v_add_u32 v13, s17, v13')
    e('s_mov_b32 exec_lo, 0x00200020'); e('s_mov_b32 exec_hi, 0x00200020')
    for sg in range(2): e('ds_write_b128 v13, %s offset:%d'%(v(ACC+32+4*sg,4),64*sg))
    e('s_mov_b64 exec, -1')
    e('v_lshlrev_b32 v13, 2, v8'); e('v_add_u32 v13, s17, v13')
    for sg in range(2): e('ds_read_b32 %s, v13 offset:%d'%(v(246+sg),64*sg))
    for t in range(3):
        for be in range(2):
            d=D+16*t+8*be; o=208+8*t+4*be
            for r in range(4): e('v_cvt_pk_bf16_f32 %s, %s, %s'%(v(o+r),v(d+r),v(d+4+r)))
            off=t*2048+be*1024
            if off>=4096:
                if off==4096: e('s_add_u32 s16, s16, 4096')
                off-=4096
            e('buffer_store_dwordx4 %s, v12, %s, s16 offen offset:%d sc1'%(v(o,4),s(sWS,4),off))
    e('s_barrier'); e('s_barrier')
    GF=16
    e('s_lshl_b32 s17, s7, 5'); e('s_add_u32 s17, s17, %s'%s(sC))
    for sg in range(2):
        e('v_add_u32 v5, %d, v8'%(16*sg)); e('v_lshlrev_b32 v5, 6, v5'); e('v_add_u32 %s, s17, v5'%v(248+sg))
        e('v_cvt_f32_u32 v5, %s'%v(248+sg)); e('v_mul_f32 v5, 0x3a000000, v5')
        for k in range(4):
            for i in range(0,4,2):
                for u in range(2):
                    e('v_add_f32 %s, 0x%08x, v11'%(v(52+u),f2u(16*k+i+u))); e('v_mul_f32 %s, %s, v5'%(v(52+u),v(52+u))); e('v_fract_f32 %s, %s'%(v(52+u),v(52+u)))
                e('v_cos_f32 v54, v52'); e('v_sin_f32 v55, v52'); e('v_cos_f32 v56, v53'); e('v_sin_f32 v57, v53')
                e('v_cvt_pk_bf16_f32 %s, v54, v55'%v(GF+16*sg+4*k+i)); e('v_cvt_pk_bf16_f32 %s, v56, v57'%v(GF+16*sg+4*k+i+1))
        if sg==0:
            e('s_waitcnt vmcnt(0)'); e('v_mov_b32 v10, 1')
            e('s_mov_b64 exec, 1'); e('buffer_store_dword v10, v252, %s, s71 offen sc1'%s(sWS,4)); e('s_mov_b64 exec, -1')
    e('s_waitcnt lgkmcnt(0)')
    for sg in range(2):
        g=246+sg
        e('v_mul_f32 %s, 0xbfb8aa3b, %s'%(v(g),v(g))); e('v_exp_f32 %s, %s'%(v(g),v(g))); e('s_nop 0')
        e('v_add_f32 %s, 1.0, %s'%(v(g),v(g))); e('v_rcp_f32 %s, %s'%(v(g),v(g)))
    e('v_lshrrev_b32 v4, 2, v8'); e('v_cmp_eq_u32 vcc, v4, v9'); e('v_and_b32 v5, 1, v8'); e('v_lshlrev_b32 v5, 4, v5')
    e('v_mov_b32 v6, 0x3f80'); e('v_lshlrev_b32 v6, v5, v6'); e('v_cndmask_b32 v6, 0, v6, vcc')
    e('v_and_b32 v5, 2, v8'); e('v_cmp_eq_u32 vcc, 0, v5'); e('v_mov_b32 v50, 0'); e('v_mov_b32 v51, 0')
    e('v_cndmask_b32 v48, 0, v6, vcc'); e('v_sub_u32 v49, v6, v48')
    e('v_mov_b32 v52, 0'); e('v_mov_b32 v53, 0'); e('v_mov_b32 v54, v48'); e('v_mov_b32 v55, v49')
    e('s_sub_u32 s16, 32, %s'%s(sC)); e('s_and_b32 s16, s16, 31')
    e('s_mov_b32 s17, %d'%(4*12288)); e('v_mul_u32_u24 v12, s17, v9')
    e('s_mov_b32 s18, %d'%(32*12288))
    e('s_lshl_b32 s19, %s, 6'%s(sJ))
    e('s_and_b32 s64, %s, 2'%s(sJ)); e('s_lshl_b32 s64, s64, 4'); e('s_add_u32 s64, s64, 512')
    for tb in range(6):
        e('s_add_u32 s17, %s, %d'%(('s19',16*tb) if tb<4 else ('s64',16*(tb-4)))); e('v_add_u32 v4, s17, v8')
        e('v_sub_u32 v5, 576, v4'); e('v_cmp_lt_u32 vcc, 288, v4'); e('v_mov_b32 v6, %s'%s(sC)); e('v_mov_b32 v7, s16')
        e('v_cndmask_b32 v4, v4, v5, vcc'); e('v_cndmask_b32 v6, v6, v7, vcc')
        e('v_mov_b32 v7, 0x80000000'); e('v_cndmask_b32 %s, 0, v7, vcc'%v(232+tb))
        e('v_mul_u32_u24 v5, 57, v4'); e('v_lshrrev_b32 v5, 11, v5'); e('v_min_u32 v5, 7, v5')
        e('v_mul_u32_u24 v7, 36, v5'); e('v_sub_u32 v4, v4, v7')
        e('v_mul_u32_u24 v5, s18, v5'); e('v_lshl_add_u32 v5, v6, 6, v5'); e('v_add_u32 v5, v5, v12')
        e('v_lshrrev_b32 v6, 4, v4'); e('v_lshl_add_u32 v5, v6, 11, v5'); e('v_and_b32 v4, 15, v4'); e('v_lshl_add_u32 %s, v4, 2, v5'%v(56+tb))
    e('s_movk_i32 s17, 1152'); e('v_and_b32 v4, 1, v9'); e('v_lshlrev_b32 v4, 5, v4'); e('v_lshrrev_b32 v5, 1, v9'); e('v_lshl_add_u32 v4, v5, 4, v4')
    for sg in range(2): e('v_mad_u32_u24 %s, %s, s17, v4'%(v(248+sg),v(248+sg)))
    e('v_bfe_u32 v4, v0, 2, 3'); e('v_and_b32 v5, 3, v0'); e('v_lshlrev_b32 v5, 2, v5'); e('v_lshl_add_u32 v250, v4, 7, v5')
    e('v_sub_u32 v4, %s, v4'%s(sJ)); e('v_and_b32 v4, 7, v4'); e('v_add_u32 v251, 1, v4')
    e('v_lshlrev_b32 v253, 4, v0')
    e('s_lshl_b32 s65, %s, 10'%s(sC)); e('s_add_u32 s65, s65, %d'%FLP)
    if NORED:
        for i in range(2,7): st(i)
        st_flush(7,0); e('s_endpgm')
    e('s_mov_b32 s47, 0')
    e('v_and_b32 v4, 7, v0'); e('v_lshlrev_b32 v4, 5, v4')
    e('AX_W1:')
    e('buffer_load_dword v5, v4, %s, 0 offen sc1'%s(sDBG,4)); e('s_add_u32 s47, s47, 1'); e('s_waitcnt vmcnt(0)')
    e('v_cmp_gt_u32 vcc, 32, v5'); e('s_cmp_gt_u32 s47, %d'%SPINMAX); e('s_cbranch_scc1 AX_W2'); e('s_cbranch_vccnz AX_W1')
    e('AX_W2:')
    e('s_mov_b32 s16, %d'%FLU)
    e('buffer_load_dwordx4 v[64:67], v253, %s, s16 offen sc1'%s(sWS,4)); e('buffer_load_dwordx4 v[68:71], v253, %s, s16 offen offset:1024 sc1'%s(sWS,4))
    e('s_add_u32 s47, s47, 1'); e('s_waitcnt vmcnt(0)')
    e('v_min3_u32 v5, v64, v65, v66'); e('v_min3_u32 v5, v5, v67, v68'); e('v_min3_u32 v5, v5, v69, v70'); e('v_min_u32 v5, v5, v71')
    e('v_cmp_eq_u32 vcc, 0, v5'); e('s_cmp_gt_u32 s47, %d'%SPINMAX); e('s_cbranch_scc1 AX_W3'); e('s_cbranch_vccnz AX_W2')
    e('AX_W3:')
    st(2)
    UF=64; YA=160; SP=192
    def uloads(tb,dst):
        for k in range(4):
            for i in range(4):
                e('s_mov_b32 s17, %d'%(U_OFF+((16*k)%32+i)*12288+(k//2)*6144))
                e('buffer_load_dword %s, %s, %s, s17 offen sc1'%(v(dst+4*k+i),v(56+tb),s(sWS,4)))
    for tb in range(3): uloads(tb,UF+16*tb)
    for tb in range(4):
        e('s_waitcnt vmcnt(%d)'%[32,32,16,0][tb])
        if tb==0: uloads(3,UF+48)
        for i in range(16): e('v_xor_b32 %s, %s, %s'%(v(UF+16*tb+i),v(232+tb),v(UF+16*tb+i)))
        e('s_nop 1')
        for k in range(4):
            for sg in range(2): mfma(YA+8*tb+4*sg, UF+16*tb+4*k, GF+16*sg+4*k, '0' if k==0 else None)
    def poll(L,Lout,thr):
        e(L+':')
        e('s_sleep 8')
        e('buffer_load_dword v5, v250, %s, s65 offen sc1'%s(sWS,4)); e('s_add_u32 s47, s47, 1'); e('s_waitcnt vmcnt(0)')
        e('v_cmp_le_u32 vcc, %s, v5'%thr); e('s_cmp_gt_u32 s47, %d'%SPINMAX); e('s_cbranch_scc1 '+Lout)
    def combine(y,p,g,o,vaddr,soff,imm):
        for tb in range(2):
            for r in range(4):
                e('v_sub_f32 %s, %s, %s'%(v(y[tb]+r),v(y[tb]+r),v(p[tb]+r))); e('v_fma_f32 %s, %s, %s, %s'%(v(p[tb]+r),v(g),v(y[tb]+r),v(p[tb]+r)))
        for tb in range(2):
            for h in range(2): e('v_cvt_pk_bf16_f32 %s, %s, %s'%(v(o+2*tb+h),v(p[tb]+2*h),v(p[tb]+2*h+1)))
        e('s_nop 1')
        e('v_permlane16_swap_b32 %s, %s'%(v(o),v(o+2))); e('v_permlane16_swap_b32 %s, %s'%(v(o+1),v(o+3)))
        e('buffer_store_dwordx4 %s, %s, %s, %s offen offset:%d'%(v(o,4),v(vaddr),s(sOUT,4),soff,imm))
    e('s_lshr_b32 s16, %s, 2'%s(sJ)); e('s_cmp_eq_u32 s16, s7'); e('s_cbranch_scc0 AX_P')
    for tb in range(2): uloads(4+tb,UF+16*tb)
    e('s_and_b32 s16, %s, 1'%s(sJ)); e('s_cmp_eq_u32 s16, 1'); e('s_cselect_b64 vcc, -1, 0')
    for i in range(16): e('v_cndmask_b32 %s, %s, %s, vcc'%(v(128+i),v(GF+i),v(GF+16+i)))
    e('v_cndmask_b32 v238, v246, v247, vcc'); e('v_cndmask_b32 v239, v248, v249, vcc')
    e('s_lshr_b32 s16, %s, 1'%s(sJ)); e('s_lshl_b32 s66, 0x11111111, s16')
    poll('AX_C1','AX_C2','1')
    e('s_and_b32 s17, vcc_lo, s66'); e('s_cmp_eq_u32 s17, s66'); e('s_cbranch_scc0 AX_C1')
    e('AX_C2:')
    e('s_mul_i32 s16, %s, 73728'%s(sC)); e('s_lshl_b32 s17, %s, 10'%s(sJ)); e('s_add_u32 s16, s16, s17'); e('s_add_u32 s16, s16, 65536')
    for jj in range(8):
        e('buffer_load_dwordx4 %s, v253, %s, s16 offen sc1'%(v(96+4*jj,4),s(sWS,4)))
        if jj<7: e('s_add_u32 s16, s16, %d'%(32*73728))
    for tb in range(2):
        for i in range(16): e('v_xor_b32 %s, %s, %s'%(v(UF+16*tb+i),v(236+tb),v(UF+16*tb+i)))
    e('s_nop 1')
    for k in range(4):
        for tb in range(2): mfma(144+4*tb, UF+16*tb+4*k, 128+4*k, '0' if k==0 else None)
    e('s_waitcnt vmcnt(0)')
    for jj in range(8):
        for tb in range(2): mfma(152+4*tb, 48+4*tb, 96+4*jj, '0' if jj==0 else None)
    e('s_lshl_b32 s16, s64, 1'); e('s_nop 7')
    combine((144,148),(152,156),238,224,239,'s16',0)
    e('AX_P:')
    st(3)
    e('s_mov_b32 s66, 0')
    e('s_mul_i32 s18, %s, 73728'%s(sC)); e('s_lshl_b32 s17, %s, 13'%s(sJ)); e('s_add_u32 s18, s18, s17'); e('s_add_u32 s18, s18, s69')
    def acc(buf,first):
        for ch in range(2):
            for sg in range(2):
                for tb in range(2): mfma(SP+8*(2*ch+tb)+4*sg, 48+4*tb, buf+8*ch+4*sg, '0' if first else None)
    for i in range(1,8):
        if i==7:
            e('s_waitcnt vmcnt(0)'); acc(64+16*(6%4),False)
            e('s_lshl_b32 s16, s7, 9'); e('s_add_u32 s16, s16, %d'%CNS)
            e('v_and_b32 v4, 1, v0'); e('v_mul_u32_u24 v4, 260, v4'); e('v_add_u32 v4, s16, v4')
            e('s_add_u32 s16, s69, %d'%QH); e('v_add_u32 v6, s16, v253')
            lds_wait(4,5,'39')
            for u in range(4): e('ds_read_b128 %s, v6 offset:%d'%(v(64+4*u,4),1024*u))
            e('s_waitcnt lgkmcnt(0)'); acc(64,False)
            st(4)
        e('s_sub_u32 s16, %s, %d'%(s(sJ),i)); e('s_and_b32 s16, s16, 7')
        e('s_lshl_b32 s17, s16, 2'); e('s_lshl_b32 s19, s7, 1'); e('s_add_u32 s17, s17, s19'); e('s_lshl_b32 s17, 3, s17')
        e('s_mul_i32 s16, s16, %d'%(32*73728)); e('s_add_u32 s16, s16, s18')
        e('s_branch AX_T%d'%i)
        poll('AX_R%d'%i,'AX_G%d'%i,'v251')
        e('s_mov_b32 s66, vcc_lo')
        e('AX_T%d:'%i)
        e('s_and_b32 s19, s66, s17'); e('s_cmp_eq_u32 s19, s17'); e('s_cbranch_scc0 AX_R%d'%i)
        e('AX_G%d:'%i)
        b=64+16*(i%4)
        for u in range(4): e('buffer_load_dwordx4 %s, v253, %s, s16 offen offset:%d sc1'%(v(b+4*u,4),s(sWS,4),1024*u))
        if 2<=i<=6:
            e('s_waitcnt vmcnt(4)'); acc(64+16*((i-1)%4), i==2)
    st(5)
    e('s_waitcnt vmcnt(0)'); acc(64+16*(7%4),False)
    e('s_lshl_b32 s16, %s, 7'%s(sJ)); e('s_nop 4')
    for ch in range(2):
        for sg in range(2):
            combine((YA+16*ch+4*sg,YA+16*ch+8+4*sg),(SP+16*ch+4*sg,SP+16*ch+8+4*sg),246+sg,128+8*ch+4*sg,248+sg,'s16',64*ch)
    if STAMP:
        e('s_waitcnt vmcnt(0)'); st(6); st_flush(7,0)
    if DBGT:
        e('s_waitcnt vmcnt(0)'); e('s_memrealtime s[74:75]'); e('s_waitcnt lgkmcnt(0)')
        e('s_not_b32 s16, s72'); e('s_mov_b64 exec, 1'); e('v_mov_b32 v2, 0')
        e('s_sub_u32 s17, s74, s72'); e('s_sub_u32 s18, s76, s72'); e('s_sub_u32 s19, s78, s72')
        for i,r in enumerate(['s16','s74','s72','s17','s18','s19']):
            e('v_mov_b32 v%d, %s'%(4+i,r)); e('buffer_atomic_umax v%d, v2, %s, 0 offen offset:%d'%(4+i,s(sDBG,4),4+4*i))
    e('s_endpgm')

def main():
    global INMAIN
    e('K_MAIN:')
    ACC=112; AF=16; XB=52
    e('v_lshlrev_b32 v7, 2, v0'); e('s_lshl_b32 s16, %s, 8'%s(sWV)); e('s_add_u32 s16, s16, %d'%LND); e('v_add_u32 v3, s16, v7'); e('v_mov_b32 v107, 0')
    for i in range(3): e('ds_write_b32 v3, v107 offset:%d'%(1024*i))
    e('v_add_u32 v108, 1024, v3')
    e('v_and_b32 v3, 1, v0'); e('v_mul_u32_u24 v3, 260, v3'); e('v_add_u32 v109, %d, v3'%LND)
    e('v_and_b32 v3, 7, v0'); e('v_min_u32 v3, 5, v3'); e('v_mul_u32_u24 v3, 260, v3'); e('v_add_u32 v111, %d, v3'%CNS)
    e('s_waitcnt lgkmcnt(0)')
    srd(sW2,54,5308416); srd(sWS,62,WS_BYTES); srd(sDBG,60,256)
    e('v_cmp_eq_u32 vcc, 0, v0'); e('v_mov_b32 v7, %d'%OOB); e('v_mov_b32 v8, 0'); e('v_cndmask_b32 v85, v7, v107, vcc')
    e('s_cmp_eq_u32 %s, 0'%s(sWV)); e('s_cbranch_scc0 M_NZ')
    e('v_mov_b32 v9, 0'); e('v_mov_b32 v10, 0'); e('v_mov_b32 v11, 0')
    e('s_lshl_b32 s16, s2, 7'); e('s_add_u32 s16, s16, %d'%FLP)
    e('buffer_store_dwordx4 v[8:11], v85, %s, s16 offen sc1'%s(sWS,4))
    e('s_lshl_b32 s16, s2, 3'); e('s_add_u32 s16, s16, %d'%FLU)
    e('buffer_store_dwordx2 v[8:9], v85, %s, s16 offen sc1'%s(sWS,4))
    e('M_NZ:')
    e('v_and_b32 v1, 15, v0'); e('v_lshrrev_b32 v2, 4, v0')
    e('s_movk_i32 s61, 1152')
    e('v_lshrrev_b32 v3, 2, v1'); e('v_and_b32 v4, 3, v0')
    e('v_lshl_add_u32 v5, v2, 3, v3'); e('v_mul_u32_u24 v5, s61, v5'); e('v_lshl_add_u32 v5, v4, 3, v5')
    e('v_lshrrev_b32 v6, 1, v3'); e('v_and_b32 v7, 1, v2'); e('v_lshl_add_u32 v6, v7, 1, v6')
    e('s_mul_i32 s60, %s, 9'%s(sWV))
    for i in range(4):
        e('s_add_u32 s16, s60, %d'%i); e('s_and_b32 s17, s16, 3'); e('s_lshr_b32 s16, s16, 2'); e('s_lshl_b32 s16, s16, 7')
        e('v_xor_b32 v7, s17, v6'); e('v_lshl_add_u32 v7, v7, 5, v5'); e('v_add_u32 %s, s16, v7'%v(88+i)); e('v_mov_b32 %s, %s'%(v(92+i),v(88+i)))
    e('v_lshrrev_b32 v7, 1, v1'); e('v_xor_b32 v7, v7, v2'); e('v_lshlrev_b32 v7, 4, v7')
    e('v_lshl_add_u32 v96, v1, 7, v7'); e('v_add_u32 v96, %d, v96'%XW0); e('v_xor_b32 v97, 64, v96')
    e('v_lshlrev_b32 v106, 4, v0')
    for i in range(2):
        e('s_add_u32 s16, s60, %d'%i); e('s_and_b32 s17, s16, 1'); e('s_lshl_b32 s17, s17, 3'); e('s_lshr_b32 s16, s16, 1'); e('s_lshl_b32 s16, s16, 12')
        e('s_add_u32 s16, s16, s17'); e('s_add_u32 s16, s16, %d'%HB); e('v_add_u32 %s, s16, v106'%v(98+i))
    e('s_lshr_b32 s16, %s, 1'%s(sWV)); e('s_lshl_b32 s16, s16, 11'); e('s_add_u32 s16, s16, %d'%HB)
    e('v_add_u32 v100, s16, v106'); e('v_add_u32 v101, 36864, v100')
    e('v_lshl_add_u32 v5, v2, 2, v3'); e('v_bfe_u32 v6, v5, 1, 2'); e('v_lshlrev_b32 v5, 7, v5'); e('v_lshl_add_u32 v5, v4, 3, v5')
    e('s_and_b32 s16, %s, 1'%s(sWV)); e('s_lshl_b32 s16, s16, 1')
    for tb in range(2):
        e('s_add_u32 s17, s16, %d'%tb); e('v_xor_b32 v7, s17, v6'); e('v_lshl_add_u32 %s, v7, 5, v5'%v(102+tb)); e('v_add_u32 %s, %d, %s'%(v(104+tb),SLOT,v(102+tb)))
    e('s_mul_i32 s18, %s, 576'%s(sJ)); e('s_mul_i32 s17, %s, 18'%s(sC)); e('s_add_u32 s18, s18, s17'); e('s_mul_i32 s18, s18, 1152')
    e('s_mul_i32 s17, %s, %d'%(s(sWV),41*128)); e('s_add_u32 s18, s18, s17')
    e('v_min_u32 v84, 40, v0'); e('v_lshlrev_b32 v84, 7, v84')
    e('v_mov_b32 v5, v85')
    for i in range(144): e('v_mov_b32 %s, 0'%v(ACC+i))
    for i in range(12): e('v_mov_b32 %s, 0'%v(AF+24+i))
    for i in range(16): e('v_mov_b32 %s, 0'%v(XB+16+i))
    e('s_mov_b32 s64, 0'); e('s_mov_b32 s65, %d'%XWS); e('s_mov_b32 s66, 1')
    e('s_cmp_eq_u32 %s, 0'%s(sWV)); e('s_cbranch_scc0 M_NA')
    e('v_mov_b32 v12, 1'); e('s_lshl_b32 s16, %s, 5'%s(sJ)); e('s_waitcnt vmcnt(0)')
    e('buffer_atomic_add v12, v5, %s, s16 offen sc1'%s(sDBG,4))
    e('M_NA:')
    e('v_mov_b32 v1, 0'); e('v_mov_b32 v3, 0')
    e('v_mov_b32 v110, 0')
    INMAIN=True
    if MPRIO: e('s_setprio 3')
    spins=[]
    def check(seq,thr,vaddr=109):
        L=lab('SP'); R=L+'R'
        seq.append(('need',['F'])); seq.append(('i','v_cmp_gt_u32 vcc, %s, v110'%thr)); seq.append(('i','s_cbranch_vccnz '+L)); seq.append(('i',R+':'))
        spins.append((L,R,thr,vaddr))
    def conv(t,sg):
        a=ACC+16*t+4*sg
        return ['v_cvt_pk_bf16_f32 %s, %s, %s'%(v(a),v(a),v(a+1)),'v_cvt_pk_bf16_f32 %s, %s, %s'%(v(a+1),v(a+2),v(a+3)),
                'v_pk_max_i16 %s, %s, 0'%(v(a),v(a)),'v_pk_max_i16 %s, %s, 0'%(v(a+1),v(a+1))]
    def hwr(t,sg): return 'ds_write_b64 %s, %s offset:%d'%(v(98+t%2),v(ACC+16*t+4*sg,2),(t//2)*4096+sg*1024)
    def step1(p,last=False):
        seq=[('i','s_barrier')]
        R=[('A',0,0),('A',0,1)]+[('X',p,sg) for sg in range(4)]+[('A',t,r) for t in range(1,9) for r in range(2)]
        extra=[]
        if not last:
            extra=['s_add_u32 s64, s64, %d'%SLOT,'s_cmp_eq_u32 s64, %d'%(3*SLOT),'s_cselect_b32 s64, 0, s64','s_add_u32 s66, s66, 1']+['v_add_u32 %s, s64, %s'%(v(92+i),v(88+i)) for i in range(4)]
            if p==1: extra+=['v_add_u32 v96, s65, v96','v_add_u32 v97, s65, v97','s_sub_u32 s65, 0, s65']
            else: extra+=['s_cmp_eq_u32 s66, 18']
        cv=[]; wr=[]
        ng=48 if last else 36
        for g in range(ng):
            i,sg=divmod(g,4)
            if g<len(R):
                k,a,b=R[g]
                if k=='A': seq.append(('lds',R[g],'ds_read_b64_tr_b16 %s, %s offset:%d'%(v(AF+4*a+2*b,2),v(92+a%4),128*(a//4)+4608*b)))
                else: seq.append(('lds',R[g],'ds_read_b128 %s, %s offset:%d'%(v(XB+16*p+4*b,4),v(96+p),2048*b)))
            elif extra: seq.append(('i',extra.pop(0)))
            if last:
                if g==28: seq.append(('need',[('A',8,1)])); seq.append(('i','s_barrier'))
                if g>=20 and sg==0:
                    cv+=[(x,(i-5,q)) for q in range(4) for x in conv(i-5,q)]
                if g>=20:
                    for _ in range(2):
                        if cv:
                            x,tag=cv.pop(0); seq.append(('i',x))
                            if x.startswith('v_pk_max') and (not cv or cv[0][1]!=tag): wr.append(tag)
                if g>=28 and wr: seq.append(('lds','H',hwr(*wr.pop(0))))
            if i<3: t,xb=6+i,1-p
            else: t,xb=i-3,p
            seq.append(('need',[('A',t,0),('A',t,1),('X',xb,sg)]))
            seq.append(('i',mf(ACC+16*t+4*sg, AF+4*t, XB+16*xb+4*sg)))
        assert not extra
        if not last: seq.append(('need',[('A',8,1)]))
        if last:
            for t in (7,8): cv+=[(x,(t,q)) for q in range(4) for x in conv(t,q)]
            while cv or wr:
                for _ in range(2):
                    if cv:
                        x,tag=cv.pop(0); seq.append(('i',x))
                        if x.startswith('v_pk_max') and (not cv or cv[0][1]!=tag): wr.append(tag)
                if wr: seq.append(('lds','H',hwr(*wr.pop(0))))
        return seq
    s0=step1(0); s1=step1(1)
    touch=[('i','s_cmp_eq_u32 s66, 5'),('i','s_cbranch_scc0 M1_L'),('i','buffer_load_dword v4, v84, %s, s18 offen'%s(sW2,4)),('i','s_branch M1_L')]
    body=s0+[('i','s_cbranch_scc1 M1_X')]+s1+touch
    if STAMP:
        s0=[s0[0],('i','s_cmp_eq_u32 s66, 1'),('i','s_cbranch_scc0 M_NS'),('i','s_memrealtime s[74:75]'),('i','s_memtime s[88:89]'),('i','s_waitcnt lgkmcnt(0)'),('i','M_NS:')]+s0[1:]
        body=s0+[('i','s_cbranch_scc1 M1_X')]+s1+touch
    e('M1_L:')
    stream(body,True)
    e('M1_X:')
    stream(step1(1,True),False,pre=s1+s0)
    e('s_waitcnt lgkmcnt(0)')
    st(2); stc(9)
    e('s_barrier')
    H=ACC
    for k in range(18):
        for sg in range(2): e('ds_read_b128 %s, %s offset:%d'%(v(H+8*k+4*sg,4),v(100+k//9),(k%9)*4096+sg*1024))
    e('v_mov_b32 v107, 20')
    e('ds_read_b32 v110, v109')
    WR=16; PA=64; QA=80; PK=8
    e('s_mov_b32 s64, %d'%(2*SLOT)); e('s_mov_b32 s65, 0'); e('s_mov_b32 s66, 19')
    e('s_lshl_b32 s60, %s, 5'%s(sJ)); e('s_add_u32 s60, s60, %s'%s(sC)); e('s_mul_i32 s60, s60, 73728')
    e('s_lshl_b32 s61, %s, 11'%s(sWV)); e('s_add_u32 s60, s60, s61')
    e('s_mov_b32 s67, %d'%OOB)
    e('s_lshl_b32 s19, s2, 7'); e('s_lshl_b32 s61, %s, 2'%s(sWV)); e('s_add_u32 s19, s19, s61'); e('s_add_u32 s19, s19, %d'%FLP)
    e('v_mov_b32 v6, 0')
    e('s_waitcnt lgkmcnt(0)'); e('s_barrier')
    st(3); stc(10)
    def mm2(kg,u):
        tb,sg=divmod(u,2)
        a=WR+8*(kg%6)+4*tb; b=H+8*kg+4*sg
        if kg<9: return mf(PA+8*tb+4*sg,a,b,'0' if kg==0 else None)
        return mf(QA+8*tb+4*sg,a,b,PA+8*tb+4*sg if kg==9 else None)
    def packq(final=False):
        L=[]
        for sg in range(2):
            for tb in range(2):
                for h in range(2):
                    q=QA+8*tb+4*sg+2*h
                    L.append('v_cvt_pk_bf16_f32 %s, %s, %s'%(v(PK+4*sg+2*tb+h),v(q),v(q+1)))
            if final: L.append('ds_write_b128 v7, %s offset:%d'%(v(PK+4*sg,4),1024*sg))
            else: L.append('buffer_store_dwordx4 %s, v106, %s, s67 offen offset:%d sc1'%(v(PK+4*sg,4),s(sWS,4),1024*sg))
        return L
    body=[]
    for hc in range(2):
        check(body,'s66')
        R=[(9*hc+k,tb,r) for k in range(9) for tb in range(2) for r in range(2)]
        ex={}
        if hc==0:
            for i,x in enumerate(packq()): ex[16+i]=[x]
            ex[2]=['v_add_u32 v104, s64, v104']; ex[3]=['v_add_u32 v105, s64, v105']; ex[4]=['s_sub_u32 s64, 0, s64']; ex[5]=['s_add_u32 s66, s66, 1']
        else:
            L=['v_add_u32 v102, s64, v102','v_add_u32 v103, s64, v103','s_add_u32 s66, s66, 1',
               's_add_u32 s61, s65, %s'%s(sJ),'s_and_b32 s61, s61, 7','s_cmp_eq_u32 s65, 0','s_cselect_b32 s61, 8, s61',
               's_lshl_b32 s61, s61, 13','s_add_u32 s67, s60, s61']
            for i,x in enumerate(L): ex[2+i]=[x]
            ex[24]=['s_waitcnt vmcnt(3)','s_mov_b64 exec, 1','buffer_store_dword v6, v5, %s, s19 offen sc1'%s(sWS,4),'s_mov_b64 exec, -1']
            ex[27]=['v_mov_b32 v6, s65']; ex[28]=['s_add_u32 s65, s65, 1']; ex[33]=['s_cmp_lt_u32 s65, 9']
        for g in range(36):
            i,u=divmod(g,4)
            k,tb,r=R[g]
            body.append(('lds',R[g],'ds_read_b64_tr_b16 %s, %s offset:%d'%(v(WR+8*(k%6)+4*tb+2*r,2),v(102+2*hc+tb),(k%9)*4096+r*2048)))
            if g==30: body.append(('lds','F','ds_read_b32 v110, v109'))
            if g==34: body.append(('i','v_add_u32 v107, 1, v107'))
            if g==35: body.append(('lds','C','ds_write_b32 v108, v107'))
            for x in ex.get(g,[]): body.append(('i',x))
            kg=(9*hc+i-3)%18
            body.append(('need',[(kg,u//2,0),(kg,u//2,1)]))
            body.append(('i',mm2(kg,u)))
    e('v_add_u32 v104, s64, v104'); e('v_add_u32 v105, s64, v105'); e('s_sub_u32 s64, 0, s64')
    e('M2_L:')
    stream(body,True)
    e('s_cbranch_scc1 M2_L')
    e('s_lshl_b32 s61, %s, 11'%s(sWV)); e('s_add_u32 s61, s61, %d'%QH); e('v_add_u32 v7, s61, v106')
    e('s_waitcnt lgkmcnt(0)')
    for kg in (15,16,17):
        for u in range(4): e(mm2(kg,u))
    e('s_waitcnt vmcnt(1)'); e('s_mov_b64 exec, 1'); e('buffer_store_dword v6, v5, %s, s19 offen sc1'%s(sWS,4)); e('s_mov_b64 exec, -1')
    e('s_nop 5')
    for x in packq(True): e(x)
    e('v_add_u32 v107, 1, v107'); e('ds_write_b32 v108, v107')
    INMAIN=False
    if STAMP:
        st(4); stc(11); st_flush(12,0)
        if TRACE: trace_flush(1,3)
    e('s_waitcnt lgkmcnt(0)')
    e('s_endpgm')
    for (L,R,thr,va) in spins:
        e(L+':')
        tr=TRACE and thr=='s66'
        if tr:
            e('s_memtime s[96:97]'); e('s_waitcnt lgkmcnt(0)'); e('s_mov_b32 m0, s66'); e('s_nop 3'); e('v_writelane_b32 v1, s96, m0'); L=L+'b'; e(L+':')
        e('ds_read_b32 v110, %s'%v(va))
        e('s_add_u32 s99, s99, 1'); e('s_cmp_gt_u32 s99, 0x100000'); e('s_cbranch_scc1 K_END'); e('s_waitcnt lgkmcnt(0)')
        e('v_cmp_gt_u32 vcc, %s, v110'%thr); e('s_cbranch_vccnz '+L)
        if tr: e('s_memtime s[96:97]'); e('s_waitcnt lgkmcnt(0)'); e('v_writelane_b32 v3, s96, m0')
        e('s_branch '+R)

assert all((L*57)>>9==L//9 for L in range(288))
assert all((L*57)>>11==L//36 for L in range(289))
out.append('; @launch grid=(256,1,1) block=(512,1,1) lds=163840')
out.append('.amdgcn_target "amdgcn-amd-amdhsa--gfx950"')
out.append('.text'); out.append('.globl '+NAME)
kernel()
out.append('.section .rodata,"a"'); out.append('.p2align 6')
out.append('.amdhsa_kernel '+NAME)
for l in ['next_free_vgpr 256','next_free_sgpr 100','accum_offset 256','group_segment_fixed_size 0','kernarg_size 96','user_sgpr_count 2','user_sgpr_kernarg_segment_ptr 1','system_sgpr_workgroup_id_x 1']:
    out.append('  .amdhsa_'+l)
out.append('.end_amdhsa_kernel')
print('\n'.join(out))
```

```python
import sys, struct
A=sys.argv
STAMP='--stamp' in A; NODMA='--nodma' in A; NOMFMA='--nomfma' in A; NOREAD='--noread' in A; NOPRIO='--noprio' in A; NOTX='--notx' in A; NORED='--nored' in A; NOST='--nost' in A; NOU='--nou' in A; NOXW='--noxw' in A; TRACE='--trace' in A; MPRIO='--mprio' in A; SLP='--slp' in A; opt=lambda n,d: int([x for x in A if x.startswith('--'+n+'=')][0].split('=')[1]) if any(x.startswith('--'+n+'=') for x in A) else d
PRE=opt('pre',2); AP2=opt('ap2',0); USLP=opt('uslp',10); PSLP=opt('pslp',6); UPACE=opt('upace',6); PPACE=opt('ppace',1); LP=opt('lp',0); AP=opt('ap',1); EARLY=opt('early',1); JROT=opt('jrot',1); PK=0; TAG=0; FEARLY=opt('fearly',1); T2=opt('t2',1); OSC=opt('osc',0); LATE=opt('late',35); USTG=opt('ustg',3); NSITE=opt('nsite',1); XSTG=opt('xstg',3)
DBGT='--dbgt' in A; NOSW='--nosw' in A; WSPLIT=0 if '--nowsplit' in A else 1
NAME='gated_mix__spectral_fnet__dense_activation_relu__prompt_kernel'
out=[]; INMAIN=False
def e(s=''):
    if NODMA and s.endswith(' lds') and ('s[20:23]' in s or 's[24:27]' in s): return
    if (NOPRIO or MPRIO) and s.startswith('s_setprio') and not INMAIN: return
    if INMAIN and NOST and s.startswith('buffer_store_dword'): return
    if NOU and s.startswith('buffer_load_dword v') and 's17 offen sc1' in s: return
    if NOXW and s.endswith(' lds') and ('s[8:11]' in s or 's[12:15]' in s): return
    if INMAIN and NOMFMA and s.startswith('v_mfma'): return
    out.append('    '+s if s and not s.endswith(':') else s)
def v(n,c=1): return 'v%d'%n if c==1 else 'v[%d:%d]'%(n,n+c-1)
def s(n,c=1): return 's%d'%n if c==1 else 's[%d:%d]'%(n,n+c-1)
def f2u(x): return struct.unpack('<I',struct.pack('<f',float(x)))[0]

SLOT=36864; XW0=110592; XWS=18432; HB=73728
MISC=147456; QH=MISC; LND=MISC+8192; CNS=LND+4*256; GL=CNS+6*256
GWL=LND+3072; MX=GWL+1152
U_OFF=0x1400000; FLP=0x1800000; FLU=0x1810000; ST_OFF=0x1900000; WS_BYTES=0x1B00000
BIG=0x7fffffff; OOB=0x40000000
sX,sWH,sW1,sW2,sGW,sWS,sOUT,sDBG=8,12,20,24,28,32,36,40
sJ,sC,sWV,sROT=3,4,5,6
SPINMAX=0x8000

def srd(d,base,nbytes):
    e('s_mov_b32 %s, %s'%(s(d),s(base))); e('s_mov_b32 %s, %s'%(s(d+1),s(base+1)))
    e('s_mov_b32 %s, %d'%(s(d+2),nbytes)); e('s_mov_b32 %s, 0x20000'%s(d+3))
def mf(d,a,b,c=None):
    return 'v_mfma_f32_16x16x32_bf16 %s, %s, %s, %s'%(v(d,4),v(a,4),v(b,4), v(d,4) if c is None else (c if isinstance(c,str) else v(c,4)))
def mfma(*a): e(mf(*a))
def st(slot):
    if STAMP: e('s_memrealtime %s'%s(72+2*slot,2))
def stc(slot):
    if STAMP: e('s_memtime %s'%s(72+2*slot,2))
def st_flush(n,base_row):
    if not STAMP: return
    e('s_waitcnt lgkmcnt(0)')
    e('s_lshl_b32 s68, s2, 3'); e('s_add_u32 s68, s68, %s'%s(sWV)); e('s_lshl_b32 s68, s68, 7'); e('s_add_u32 s68, s68, %d'%ST_OFF)
    e('v_mov_b32 v2, 0')
    for i in range(n):
        e('v_mov_b32 v4, %s'%s(72+2*i)); e('v_mov_b32 v5, %s'%s(73+2*i))
        e('buffer_store_dwordx2 v[4:5], v2, %s, s68 offen offset:%d'%(s(sWS,4),8*i)); e('s_nop 1')
def trace_flush(a,b):
    e('s_lshl_b32 s68, s2, 3'); e('s_add_u32 s68, s68, %s'%s(sWV)); e('s_lshl_b32 s68, s68, 9'); e('s_add_u32 s68, s68, %d'%(ST_OFF+0x40000))
    e('v_lshlrev_b32 v2, 2, v0')
    e('buffer_store_dword %s, v2, %s, s68 offen'%(v(a),s(sWS,4))); e('buffer_store_dword %s, v2, %s, s68 offen offset:256'%(v(b),s(sWS,4)))
_lab=[0]
def lab(p): _lab[0]+=1; return '%s%d'%(p,_lab[0])
def lds_wait(vaddr,vtmp,thr):
    L=lab('W')
    e(L+':')
    if SLP and not INMAIN: e('s_sleep 2')
    e('ds_read_b32 %s, %s'%(v(vtmp),v(vaddr)))
    e('s_add_u32 s99, s99, 1'); e('s_cmp_gt_u32 s99, 0x100000'); e('s_cbranch_scc1 K_END'); e('s_waitcnt lgkmcnt(0)')
    e('v_cmp_gt_u32 vcc, %s, %s'%(thr,v(vtmp))); e('s_cbranch_vccnz '+L)

def stream(seq, cyclic, pre=None):
    hist=[]; done=0
    def run(sq,emit):
        nonlocal done
        for it in sq:
            if it[0]=='lds':
                hist.append(it[1])
                if emit and not (NOREAD and it[2].startswith('ds_read_b64_tr')): e(it[2])
            elif it[0]=='need':
                idx=-1
                for t in it[1]:
                    k=[i for i,x in enumerate(hist) if x==t]
                    if k: idx=max(idx,k[-1])
                    else: assert not emit, t
                if idx+1>done:
                    n=min(len(hist)-1-idx,15)
                    if emit: e('s_waitcnt lgkmcnt(%d)'%(0 if NOREAD else n))
                    done=len(hist)-n
            elif emit: e(it[1])
    if cyclic: run(seq,False)
    if pre is not None: run(pre,False)
    run(seq,True)

def kernel():
    e('.p2align 8'); e('.type %s,@function'%NAME); e(NAME+':')
    e('s_cmp_ge_u32 s2, 256'); e('s_cbranch_scc1 K_END')
    st(0)
    if DBGT: e('s_memrealtime s[72:73]')
    e('s_load_dwordx2 s[44:45], s[0:1], 0')
    e('s_load_dwordx4 s[48:51], s[0:1], 24')
    e('s_load_dwordx4 s[52:55], s[0:1], 48')
    e('s_load_dwordx8 s[56:63], s[0:1], 64')
    e('s_mov_b32 s99, 0')
    e('v_lshrrev_b32 v1, 6, v0')
    e('s_and_b32 %s, s2, 7'%s(sJ)); e('s_lshr_b32 %s, s2, 3'%s(sC))
    e('v_readfirstlane_b32 %s, v1'%s(sWV))
    e('v_and_b32 v0, 63, v0')
    e('s_mul_i32 s6, %s, 57'%s(sC)); e('s_lshr_b32 s6, s6, 9'); e('s_and_b32 s98, s6, %d'%(0 if NOSW else 1)); e('s_mul_i32 s6, s6, 9'); e('s_sub_u32 s6, %s, s6'%s(sC))
    if JROT: e('s_add_u32 s6, s6, %s'%s(sJ)); e('s_sub_u32 s7, s6, 9'); e('s_cmp_ge_u32 s6, 9'); e('s_cselect_b32 s6, s7, s6')
    e('s_cmp_ge_u32 %s, 6'%s(sWV)); e('s_cbranch_scc1 K_AUX')
    e('s_cmp_ge_u32 %s, 4'%s(sWV)); e('s_cbranch_scc0 K_MAIN')
    loader(); aux(); main()
    e('K_END:'); e('s_endpgm')

def loader():
    e('s_setprio %d'%LP)
    e('s_sub_u32 s7, %s, 4'%s(sWV))
    e('v_lshrrev_b32 v1, 3, v0'); e('v_and_b32 v2, 7, v0')
    e('v_lshrrev_b32 v4, 1, v2')
    e('v_and_b32 v5, 1, v2'); e('v_lshlrev_b32 v5, 4, v5')
    e('s_movk_i32 s16, %d'%(9216-1152))
    for p in range(9):
        e('v_add_u32 v6, %d, v1'%(8*p))
        e('v_mul_u32_u24 v7, 57, v6'); e('v_lshrrev_b32 v7, 9, v7')
        e('v_bfe_u32 v9, v7, 1, 1'); e('v_xor_b32 v9, v9, v4')
        e('v_lshl_add_u32 v6, v6, 7, v5')
        e('v_mad_u32_u24 v6, v7, s16, v6')
        e('v_lshl_add_u32 v6, v9, 5, v6')
        e('v_xor_b32 v7, 64, v6')
        e('v_subrev_u32 %s, %d, v6'%(v(16+p),(p%4)*1024))
        e('v_add_u32 %s, %d, v7'%(v(25+p),8*9216-((p+9)%4)*1024))
    e('v_lshrrev_b32 v6, 1, v1'); e('v_and_b32 v6, 3, v6'); e('v_lshlrev_b32 v6, 1, v6'); e('v_xor_b32 v6, v6, v2')
    e('s_movk_i32 s69, 1152'); e('v_mul_u32_u24 v7, s69, v1'); e('v_lshl_add_u32 v36, v6, 4, v7')
    for i in range(1,4): e('v_add_u32 %s, %d, v36'%(v(36+i),i*8192))
    e('s_mul_i32 s64, s7, 18432')
    e('s_mul_i32 s17, %s, 1152'%s(sJ)); e('s_mul_i32 s18, s7, %d'%(16*9216)); e('s_add_u32 s17, s17, s18')
    e('s_lshl_b32 s18, s6, 1')
    e('s_xor_b32 s66, s18, s98'); e('s_mul_i32 s66, s66, %d'%(32*9216)); e('s_add_u32 s66, s66, s17')
    e('s_mov_b32 s67, s64')
    e('s_mov_b32 s68, 0'); e('s_mov_b32 s69, -2')
    e('s_mul_i32 s70, %s, 576'%s(sJ)); e('s_mul_i32 s71, s7, 144'); e('s_add_u32 s70, s70, s71'); e('s_mul_i32 s70, s70, 1152')
    e('s_lshl_b32 s19, s7, 8'); e('s_add_u32 s19, s19, %d'%LND)
    e('v_lshlrev_b32 v11, 2, v0'); e('v_add_u32 v11, s19, v11'); e('v_mov_b32 v10, 0'); e('v_mov_b32 v13, 0'); e('v_mov_b32 v40, 0'); e('v_mov_b32 v41, 0')
    e('v_and_b32 v12, 3, v0'); e('v_mul_u32_u24 v12, 260, v12'); e('v_add_u32 v12, %d, v12'%CNS)
    e('s_waitcnt lgkmcnt(0)')
    srd(sW1,52,5308416); srd(sW2,54,5308416)
    if STAMP: srd(sWS,62,WS_BYTES)
    PUB=12
    def dma(ph,p):
        if p%4==0 and p:
            e('s_add_u32 m0, s67, %d'%(p*1024))
            if ph==2: e('s_add_u32 s66, s66, %d'%(32*1152))
            else: e('s_nop 0')
        if ph==1: e('buffer_load_dwordx4 %s, %s, s66 offen offset:%d lds'%(v(16+p),s(sW1,4),(p%4)*1024))
        else: e('buffer_load_dwordx4 %s, %s, s66 offen offset:%d lds'%(v(36+p%4),s(sW2,4),(p%4)*1024))
    def grp(fill):
        groups=[]; i=0
        while i<len(fill):
            if fill[i].startswith('s_cmp'): groups.append(fill[i:i+2]); i+=2
            else: groups.append([fill[i]]); i+=1
        return groups
    def tr_top():
        if TRACE: e('s_memtime s[96:97]'); e('s_waitcnt lgkmcnt(0)'); e('s_mov_b32 m0, s68'); e('s_nop 3'); e('v_writelane_b32 v40, s96, m0'); e('v_writelane_b32 v42, s92, m0'); e('v_writelane_b32 v43, s94, m0')
    e('LD_P:'); tr_top()
    e('s_mov_b32 m0, s67'); e('s_nop 0')
    g=grp(['s_add_u32 s18, s18, 1','s_cmp_eq_u32 s18, 18','s_cselect_b32 s18, 0, s18','s_xor_b32 s44, s18, s98','s_mul_i32 s44, s44, %d'%(32*9216),'s_add_u32 s44, s44, s17',
           's_add_u32 s45, s67, %d'%SLOT,'s_cmp_ge_u32 s45, %d'%(3*SLOT),'s_cselect_b32 s45, s64, s45'])
    for p in range(18):
        if p==PUB:
            e('s_cmp_eq_u32 s68, 0'); e('s_cbranch_scc1 LD_P0')
            if TRACE: e('s_memtime s[92:93]')
            e('s_waitcnt vmcnt(%d)'%PUB)
            if TRACE: e('s_memtime s[94:95]')
            e('s_barrier')
            e('LD_P0:')
        dma(1,p)
        if g:
            for x in g.pop(0): e(x)
    e('s_mov_b32 s66, s44'); e('s_mov_b32 s67, s45')
    e('s_add_u32 s68, s68, 1'); e('s_cmp_lt_u32 s68, 18'); e('s_cbranch_scc1 LD_P')
    e('s_add_u32 s66, s70, 1024'); e('s_mov_b32 s69, 0')
    e('LD_Q:'); tr_top()
    e('s_waitcnt lgkmcnt(1)'); e('v_cmp_gt_u32 vcc, s69, v13'); e('s_mov_b32 m0, s67'); e('s_cbranch_vccnz LD_QS')
    e('LD_QR:')
    g=grp(['s_sub_u32 s46, s68, 17','s_lshr_b32 s44, s46, 1','s_add_u32 s47, s44, %s'%s(sJ),'s_and_b32 s47, s47, 7','s_cmp_eq_u32 s44, 0','s_cselect_b32 s47, 8, s47',
           's_lshl_b32 s47, s47, 7','s_and_b32 s44, s46, 1','s_mul_i32 s44, s44, %d'%(288*1152),'s_add_u32 s44, s44, s47','s_add_u32 s44, s44, s70',
           's_add_u32 s45, s67, %d'%SLOT,'s_cmp_ge_u32 s45, %d'%(4*SLOT),'s_cselect_b32 s45, s64, s45',
           's_cmp_le_u32 s68, 20','s_cselect_b32 s69, 0, s68'])
    for p in range(18):
        if p==PUB:
            e('v_mov_b32 v10, s68')
            if TRACE: e('s_memtime s[92:93]')
            e('s_waitcnt vmcnt(%d)'%PUB)
            e('s_cmp_le_u32 s68, %d'%(19 if EARLY else 18)); e('s_cbranch_scc0 LD_Q0'); e('s_barrier'); e('LD_Q0:')
            if TRACE: e('s_memtime s[94:95]')
            e('ds_read_b32 v13, v12'); e('ds_write_b32 v11, v10')
        dma(2,p)
        if g:
            for x in g.pop(0): e(x)
    assert not g
    e('s_mov_b32 s66, s44'); e('s_mov_b32 s67, s45')
    e('s_add_u32 s68, s68, 1'); e('s_cmp_%s_u32 s68, 20'%('eq' if EARLY else 'le')); e('s_cbranch_scc1 LD_E')
    e('s_cmp_lt_u32 s68, 36'); e('s_cbranch_scc1 LD_Q')
    e('v_mov_b32 v10, s68'); e('s_waitcnt vmcnt(0)'); e('ds_write_b32 v11, v10')
    if STAMP: st(1); st_flush(2,0)
    if TRACE:
        e('s_cmp_eq_u32 s7, 0'); e('s_cbranch_scc1 TRX'); e('v_mov_b32 v41, v43'); e('v_mov_b32 v40, v42'); e('TRX:')
        trace_flush(40,41)
    e('s_waitcnt lgkmcnt(0)')
    e('s_endpgm')
    e('LD_E:')
    if not EARLY:
        e('s_barrier')
        e('s_cmp_eq_u32 s68, 20'); e('s_cbranch_scc1 LD_Q')
    e('v_mov_b32 v10, s68'); e('s_waitcnt vmcnt(0)'); e('ds_write_b32 v11, v10'); e('s_waitcnt lgkmcnt(0)')
    if EARLY: e('s_barrier')
    e('s_barrier'); e('s_branch LD_Q')
    e('LD_QS:')
    e('ds_read_b32 v13, v12'); e('s_waitcnt lgkmcnt(0)'); e('v_cmp_gt_u32 vcc, s69, v13'); e('s_cbranch_vccz LD_QR')
    e('v_mov_b32 v10, s68'); e('s_waitcnt vmcnt(0)'); e('ds_write_b32 v11, v10')
    lds_wait(12,13,'s69')
    if TRACE: e('s_memtime s[96:97]'); e('s_waitcnt lgkmcnt(0)'); e('s_mov_b32 m0, s68'); e('s_nop 3'); e('v_writelane_b32 v41, s96, m0'); e('s_mov_b32 m0, s67')
    e('s_branch LD_QR')

def aux():
    e('K_AUX:')
    e('s_setprio %d'%AP)
    e('s_sub_u32 s7, %s, 6'%s(sWV))
    e('v_lshrrev_b32 v1, 3, v0'); e('v_and_b32 v2, 7, v0'); e('v_lshrrev_b32 v3, 1, v1')
    e('v_xor_b32 v4, v2, v3'); e('v_lshlrev_b32 v4, 4, v4'); e('v_xor_b32 v5, 64, v4')
    e('s_mov_b32 s16, 73728'); e('v_mul_u32_u24 v6, s16, v1')
    for p in range(4):
        e('v_add_u32 %s, v6, %s'%(v(16+p),'v5' if p%2 else 'v4'))
        if p: e('v_add_u32 %s, %d, %s'%(v(16+p),p*(8*73728-1024),v(16+p)))
    e('v_lshlrev_b32 v25, 4, v0')
    e('s_movk_i32 s17, 1152'); e('v_and_b32 v8, 31, v0'); e('v_mul_u32_u24 v7, 57, v8'); e('v_lshrrev_b32 v62, 9, v7'); e('v_mul_u32_u24 v7, 9, v62'); e('v_sub_u32 v7, v8, v7'); e('v_mul_u32_u24 v24, s17, v7'); e('v_lshrrev_b32 v7, 5, v0'); e('v_lshl_add_u32 v24, v7, 6, v24')
    e('s_lshl_b32 s18, s7, 5'); e('s_add_u32 s18, s18, %s'%s(sC)); e('s_mul_i32 s18, s18, 1152')
    e('s_mul_i32 s19, %s, 576'%s(sJ)); e('s_mul_i32 s64, %s, 18'%s(sC)); e('s_add_u32 s19, s19, s64')
    e('s_mul_i32 s64, s7, 9'); e('s_add_u32 s19, s19, s64'); e('s_mul_i32 s19, s19, 1152')
    e('s_mov_b32 s64, s6')
    e('s_lshl_b32 s69, s7, 12'); e('s_lshl_b32 s70, s7, 10'); e('s_add_u32 s65, s69, %d'%XW0)
    e('s_waitcnt lgkmcnt(0)')
    srd(sX,44,2359296); srd(sGW,56,1152)
    def issueX(h):
        if h==0: e('s_lshl_b32 s67, s64, 7'); e('s_add_u32 s67, s67, s18')
        e('s_mov_b32 m0, s65'); e('s_nop 0')
        for p in (2*h,2*h+1): e('buffer_load_dwordx4 %s, %s, s67 offen offset:%d lds'%(v(16+p),s(sX,4),p*1024))
        if h==1:
            e('s_add_u32 s64, s64, 1'); e('s_cmp_eq_u32 s64, 9'); e('s_cselect_b32 s64, 0, s64')
            e('s_add_u32 s65, s65, 8192'); e('s_sub_u32 s66, s65, 32768'); e('s_cmp_ge_u32 s65, %d'%(XW0+32768)); e('s_cselect_b32 s65, s66, s65')
    issueX(0); issueX(1)
    e('s_add_u32 m0, s70, %d'%GWL); e('s_cmp_eq_u32 s7, 0'); e('s_cselect_b32 exec_lo, -1, 0xff'); e('s_cselect_b32 exec_hi, -1, 0')
    e('buffer_load_dwordx4 v25, %s, s70 offen lds'%s(sGW,4))
    e('s_mov_b64 exec, -1')
    srd(sW2,54,5308416); srd(sWS,62,WS_BYTES); srd(sOUT,58,2359296); srd(sDBG,60,256)
    FC,FS,FN=112,120,128; GF=136; SEL=200; UO=208; MK=212; TR=216; PO=220; GG=224; L16=228; PL1=229; PL2=230; L0=231
    e('v_and_b32 v8, 15, v0'); e('v_lshrrev_b32 v9, 4, v0')
    e('v_mov_b32 %s, 0'%v(L0))
    e('s_lshl_b32 s71, s2, 1'); e('s_add_u32 s71, s71, s7'); e('s_lshl_b32 s71, s71, 2'); e('s_add_u32 s71, s71, %d'%FLU)
    e('v_lshrrev_b32 v10, 1, v8'); e('v_xor_b32 v10, v10, v9'); e('v_lshlrev_b32 v10, 4, v10')
    e('v_lshl_add_u32 v20, v8, 7, v10'); e('v_add_u32 v20, %d, v20'%XW0); e('v_xor_b32 v21, 64, v20')
    e('v_mov_b32 v26, v20'); e('v_mov_b32 v27, v21'); e('v_add_u32 v28, s69, v20'); e('v_add_u32 v29, s69, v21')
    e('v_lshlrev_b32 v22, 4, v9'); e('v_add_u32 v22, %d, v22'%GWL); e('s_lshl_b32 s68, s6, 7'); e('v_add_u32 v23, s68, v22')
    e('s_lshl_b32 s44, s7, 11')
    ACC=64; TM=136; WA=176; RC=232
    for i in list(range(8))+list(range(16,24))+list(range(32,40)): e('v_mov_b32 %s, 0'%v(TM+i))
    for i in list(range(8,16))+list(range(24,32)): e('v_mov_b32 %s, 0'%v(ACC+i))
    e('s_sub_u32 s48, s6, 1'); e('s_cmp_eq_u32 s6, 0'); e('s_cselect_b32 s48, 8, s48'); e('s_lshl_b32 s48, s48, 6')
    e('v_lshlrev_b32 v11, 3, v9'); e('v_add_u32 v11, s48, v11'); e('v_cvt_f32_u32 v11, v11')
    e('s_mul_i32 s49, %s, 36'%s(sJ)); e('s_lshl_b32 s50, s7, 4'); e('s_add_u32 s50, s50, s49'); e('s_add_u32 s49, s49, 32')
    for mix in range(2):
        if mix==0: e('v_add_u32 v12, s50, v8')
        else: e('v_and_b32 v12, 7, v8'); e('v_add_u32 v12, s49, v12')
        e('v_cvt_f32_u32 v12, v12'); e('v_mul_f32 v10, 0x%08x, v12'%f2u(1/9.)); e('v_mul_f32 v12, 0x%08x, v12'%f2u(1/576.)); e('v_mul_f32 v13, v12, v11')
        e('v_cos_f32 %s, v10'%v(RC+2*mix)); e('v_sin_f32 %s, v10'%v(RC+2*mix+1))
        if mix:
            e('v_cmp_gt_u32 vcc, 8, v8'); e('v_add_f32 v4, 0x3e800000, v13'); e('v_sub_f32 v5, 0, %s'%v(RC+3))
            e('v_cndmask_b32 v13, v4, v13, vcc'); e('v_cndmask_b32 %s, %s, v5, vcc'%(v(RC+3),v(RC+3)))
            e('v_cmp_eq_u32 vcc, 5, v8'); e('v_mov_b32 v4, 1.0'); e('v_mov_b32 v5, 0')
            e('v_cndmask_b32 %s, %s, v4, vcc'%(v(RC+2),v(RC+2))); e('v_cndmask_b32 %s, %s, v5, vcc'%(v(RC+3),v(RC+3)))
        for kp in range(2):
            for jp in range(4):
                for u in range(2):
                    e('v_fmamk_f32 %s, v12, 0x%08x, v13'%(v(30+u),f2u(32*kp+2*jp+u))); e('v_fract_f32 %s, %s'%(v(30+u),v(30+u)))
                e('v_cos_f32 v32, v30'); e('v_cos_f32 v33, v31')
                if mix==0:
                    e('v_sin_f32 v34, v30'); e('v_sin_f32 v35, v31')
                    e('v_cvt_pk_bf16_f32 %s, v32, v33'%v(WA+4*kp+jp)); e('v_cvt_pk_bf16_f32 %s, -v34, -v35'%v(WA+8+4*kp+jp))
                else:
                    e('s_nop 0'); e('v_cvt_pk_bf16_f32 %s, v32, v33'%v(WA+16+4*kp+jp))
    for _ in range(3): issueX(0); issueX(1)
    if PK:
        e('v_mov_b32 v60, %s'%v(RC+1)); e('v_mov_b32 v61, %s'%v(RC+1)); e('v_mov_b32 %s, %s'%(v(RC+1),v(RC)))
    global out
    save=out; parts=[]
    def begin():
        global out
        out=[]
    def end(): parts.append(out)
    begin()
    e('v_lshlrev_b32 v11, 2, v9'); e('v_cvt_f32_u32 v11, v11')
    for b in range(2):
        e('v_add_u32 v12, %d, v8'%(16*b)); e('v_cvt_f32_u32 v12, v12'); e('v_mul_f32 v12, 0x3d000000, v12'); e('v_mul_f32 v13, v12, v11')
        for jp in range(4):
            o=[(2*jp+u)%4+16*((2*jp+u)//4) for u in range(2)]
            for u in range(2): e('v_fmamk_f32 %s, v12, 0x%08x, v13'%(v(30+u),f2u(o[u])))
            e('v_cos_f32 v32, v30'); e('v_cos_f32 v33, v31'); e('v_sin_f32 v34, v30'); e('v_sin_f32 v35, v31')
            e('v_cvt_pk_bf16_f32 %s, v32, v33'%v(FC+4*b+jp)); e('v_cvt_pk_bf16_f32 %s, v34, v35'%v(FS+4*b+jp))
            e('v_xor_b32 %s, 0x80008000, %s'%(v(FN+4*b+jp),v(FS+4*b+jp)))
    end()
    for i in range(4):
        begin()
        e('s_lshr_b32 s48, %s, 2'%s(sJ)); e('s_lshl_b32 s48, s48, 1'); e('s_and_b32 s49, %s, 1'%s(sJ)); e('s_add_u32 s48, s48, s49')
        e('s_add_u32 s48, s48, %d'%i); e('s_and_b32 s48, s48, 3')
        e('v_lshlrev_b32 %s, 4, v0'%v(L16)); e('v_lshlrev_b32 v11, 1, v9'); e('v_cvt_f32_u32 v11, v11')
        e('s_lshl_b32 s49, s48, 6'); e('s_add_u32 s49, s49, %d'%GL); e('v_lshlrev_b32 v13, 2, v8'); e('v_add_u32 %s, s49, v13'%v(GG+i))
        e('s_lshr_b32 s49, s48, 1'); e('s_and_b32 s50, s48, 1')
        e('s_lshl_b32 s51, s49, 12'); e('s_lshl_b32 s52, s50, 10'); e('s_add_u32 s51, s51, s52'); e('v_add_u32 %s, s51, %s'%(v(PO+i),v(L16)))
        e('s_lshl_b32 s49, s49, 5'); e('s_add_u32 s49, s49, s52'); e('s_add_u32 s49, s49, %s'%s(sC))
        e('v_lshlrev_b32 v5, 6, v8'); e('v_add_u32 v6, s49, v5')
        e('v_cvt_f32_u32 v5, v6'); e('v_mul_f32 v5, 0x3a000000, v5'); e('v_mul_f32 v13, v5, v11')
        e('s_movk_i32 s49, 1152'); e('v_and_b32 v4, 1, v9'); e('v_lshlrev_b32 v4, 5, v4'); e('v_lshrrev_b32 v7, 1, v9'); e('v_lshl_add_u32 v4, v7, 4, v4')
        e('v_mad_u32_u24 %s, v6, s49, v4'%v(TR+i))
        for k in range(4):
            for u in range(2):
                for h in range(2): e('v_fmamk_f32 %s, v5, 0x%08x, v13'%(v(30+h),f2u(8*k+u+32*h)))
                e('v_cos_f32 v32, v30'); e('v_sin_f32 v33, v30'); e('v_cos_f32 v34, v31'); e('v_sin_f32 v35, v31')
                e('v_cvt_pk_bf16_f32 %s, v32, v33'%v(GF+16*i+4*k+2*u)); e('v_cvt_pk_bf16_f32 %s, v34, v35'%v(GF+16*i+4*k+2*u+1))
        end()
    begin()
    e('v_lshrrev_b32 v4, 2, v8'); e('v_cmp_eq_u32 vcc, v4, v9'); e('v_and_b32 v5, 1, v8'); e('v_lshlrev_b32 v5, 4, v5')
    e('v_mov_b32 v6, 0x3f80'); e('v_lshlrev_b32 v6, v5, v6'); e('v_cndmask_b32 v6, 0, v6, vcc')
    e('v_and_b32 v5, 2, v8'); e('v_cmp_eq_u32 vcc, 0, v5'); e('v_mov_b32 %s, 0'%v(SEL+2)); e('v_mov_b32 %s, 0'%v(SEL+3))
    e('v_cndmask_b32 %s, 0, v6, vcc'%v(SEL)); e('v_sub_u32 %s, v6, %s'%(v(SEL+1),v(SEL)))
    e('v_mov_b32 %s, 0'%v(SEL+4)); e('v_mov_b32 %s, 0'%v(SEL+5)); e('v_mov_b32 %s, %s'%(v(SEL+6),v(SEL))); e('v_mov_b32 %s, %s'%(v(SEL+7),v(SEL+1)))
    e('v_and_b32 v4, 1, v0'); e('v_lshlrev_b32 v4, 3, v4'); e('s_lshl_b32 s49, s7, 2'); e('v_add_u32 v4, s49, v4'); e('v_bfe_u32 v5, v0, 1, 3'); e('v_lshl_add_u32 %s, v5, 7, v4'%v(PL1))
    e('v_sub_u32 v5, %s, v5'%s(sJ)); e('v_and_b32 v5, 7, v5'); e('v_add_u32 v254, 1, v5')
    e('v_and_b32 v4, 7, v0'); e('v_lshlrev_b32 v4, 7, v4'); e('s_lshr_b32 s49, %s, 1'%s(sJ)); e('s_lshl_b32 s49, s49, 2'); e('v_add_u32 %s, s49, v4'%v(PL2))
    e('s_sub_u32 s48, 32, %s'%s(sC)); e('s_and_b32 s48, s48, 31')
    e('s_mov_b32 s49, %d'%(2*12288)); e('v_mul_u32_u24 v12, s49, v9')
    e('s_mov_b32 s50, %d'%(32*12288))
    e('s_lshl_b32 s54, %s, 6'%s(sJ)); e('s_lshl_b32 s49, s7, 5'); e('s_add_u32 s54, s54, s49')
    e('s_and_b32 s55, %s, 2'%s(sJ)); e('s_lshl_b32 s55, s55, 4'); e('s_add_u32 s55, s55, 512')
    for tb in range(4):
        e('s_add_u32 s49, %s, %d'%(('s54',16*tb) if tb<2 else ('s55',16*(tb-2)))); e('v_add_u32 v4, s49, v8')
        e('v_sub_u32 v5, 576, v4'); e('v_cmp_lt_u32 vcc, 288, v4'); e('v_mov_b32 v6, %s'%s(sC)); e('v_mov_b32 v7, s48')
        e('v_cndmask_b32 v4, v4, v5, vcc'); e('v_cndmask_b32 v6, v6, v7, vcc')
        e('v_mov_b32 v7, 0x80000000'); e('v_cndmask_b32 %s, 0, v7, vcc'%v(MK+tb))
        e('v_mul_u32_u24 v5, 57, v4'); e('v_lshrrev_b32 v5, 11, v5'); e('v_min_u32 v5, 7, v5')
        e('v_mul_u32_u24 v7, 36, v5'); e('v_sub_u32 v4, v4, v7')
        e('v_mul_u32_u24 v5, s50, v5'); e('v_lshl_add_u32 v5, v6, 7, v5'); e('v_add_u32 v5, v5, v12')
        e('v_lshrrev_b32 v6, 4, v4'); e('v_lshl_add_u32 v5, v6, 12, v5'); e('v_and_b32 v4, 15, v4'); e('v_lshl_add_u32 %s, v4, 3, v5'%v(UO+tb))
    end()
    out=save
    NPRE=PRE
    out.extend(parts[0])
    later=[]
    XF=36
    def rotate(lo,hi,mix):
        if PK:
            for i in range(lo,hi,2):
                e('v_pk_mul_f32 %s, %s, %s'%(v(TM+i,2),v(RC,2),v(ACC+i,2))); e('v_pk_mul_f32 %s, %s, %s'%(v(TM+16+i,2),v(RC,2),v(ACC+16+i,2)))
                e('v_pk_fma_f32 %s, %s, %s, %s neg_lo:[1,0,0] neg_hi:[1,0,0]'%(v(TM+i,2),v(60,2),v(ACC+16+i,2),v(TM+i,2))); e('v_pk_fma_f32 %s, %s, %s, %s'%(v(TM+16+i,2),v(60,2),v(ACC+i,2),v(TM+16+i,2)))
        else:
            for i in range(lo,hi):
                e('v_mul_f32 %s, %s, %s'%(v(TM+i),v(RC),v(ACC+i))); e('v_mul_f32 %s, %s, %s'%(v(TM+16+i),v(RC),v(ACC+16+i)))
                e('v_fma_f32 %s, -%s, %s, %s'%(v(TM+i),v(RC+1),v(ACC+16+i),v(TM+i))); e('v_fmac_f32 %s, %s, %s'%(v(TM+16+i),v(RC+1),v(ACC+i)))
        if mix:
            for i in range(8): e('v_mul_f32 %s, %s, %s'%(v(TM+32+i),v(RC+2),v(ACC+32+i)))
            for i in range(8): e('v_fmac_f32_dpp %s, %s, %s row_ror:8 row_mask:0xf bank_mask:0xf'%(v(TM+32+i),v(ACC+32+i),v(RC+3)))
    e('s_mov_b32 s46, 0'); e('s_mov_b32 s47, 0')
    e('s_and_b32 s45, %s, %d'%(s(sC),XSTG)); e('s_mov_b32 s53, 4'); e('s_add_u32 s51, s45, 4'); e('s_cmp_ge_u32 s45, 2'); e('s_cselect_b32 s51, s45, s51')
    e('s_waitcnt vmcnt(12)')
    e('AX_L:')
    for kp in range(2):
        if TRACE:
            e('s_memtime s[96:97]'); e('s_lshl_b32 s95, s46, 1'); e('s_add_u32 m0, s95, %d'%(kp+1)); e('s_waitcnt lgkmcnt(0)'); e('v_writelane_b32 v252, s96, m0'); e('v_writelane_b32 v253, s92, m0')
        e('s_barrier')
        for sg in range(4): e('ds_read_b128 %s, %s offset:%d'%(v(XF+4*sg,4),v(26+kp),sg*2048))
        for sg in range(2): e('ds_read_b128 %s, %s offset:%d'%(v(XF+16+4*sg,4),v(28+kp),sg*2048))
        e('s_mov_b32 exec_lo, 0x00200020'); e('s_mov_b32 exec_hi, 0x00200020')
        e('ds_read_b128 %s, v23 offset:%d'%(v(WA+16+4*kp,4),64*kp))
        e('s_mov_b64 exec, -1')
        e('s_sub_u32 s51, s51, 1'); e('s_cbranch_scc1 AX_B%d'%kp)
        e('AX_S%d:'%kp)
        def rot(lo,hi,mix):
            L=[]
            for i in range(lo,hi):
                L+=['v_mul_f32 %s, %s, %s'%(v(TM+i),v(RC),v(ACC+i)),'v_mul_f32 %s, %s, %s'%(v(TM+16+i),v(RC),v(ACC+16+i)),
                    'v_fma_f32 %s, -%s, %s, %s'%(v(TM+i),v(RC+1),v(ACC+16+i),v(TM+i)),'v_fmac_f32 %s, %s, %s'%(v(TM+16+i),v(RC+1),v(ACC+i))]
            if mix:
                L+=['v_mul_f32 %s, %s, %s'%(v(TM+32+i),v(RC+2),v(ACC+32+i)) for i in range(8)]
                L+=['v_fmac_f32_dpp %s, %s, %s row_ror:8 row_mask:0xf bank_mask:0xf'%(v(TM+32+i),v(ACC+32+i),v(RC+3)) for i in range(8)]
            return L
        M=lambda t,sg: mf(ACC+16*t+4*sg, XF+4*sg, WA+8*t+4*kp, TM+16*t+4*sg if kp==0 else None)
        X=lambda sg: mf(ACC+32+4*sg, XF+16+4*sg, WA+16+4*kp, TM+32+4*sg if kp==0 else None)
        if kp==0:
            R=rot(8,16,False)
            for x in R[:8]: e(x)
            e('s_waitcnt lgkmcnt(0)')
            R=R[8:]
            for m in (M(0,0),M(1,0),M(0,1),M(1,1),X(0),X(1)):
                e(m)
                for x in R[:4]: e(x)
                R=R[4:]
            assert not R
            for m in (M(0,2),M(1,2),M(0,3),M(1,3)): e(m)
        else:
            A_=['s_add_u32 s47, s47, 8192','s_and_b32 s47, s47, 32767','s_add_u32 s66, s47, s69','s_add_u32 s68, s68, 128','s_cmp_eq_u32 s68, 1152','s_cselect_b32 s68, 0, s68',
                'v_add_u32 v26, s47, v20','v_add_u32 v27, s47, v21','v_add_u32 v28, s66, v20','v_add_u32 v29, s66, v21','v_add_u32 v23, s68, v22']
            for x in A_: e(x)
            e('s_waitcnt lgkmcnt(0)')
            for m in (M(0,0),M(1,0),M(0,1),M(1,1),X(0),X(1)): e(m)
            e('s_nop 3')
            R=rot(0,8,True)
            for m in (M(0,2),M(1,2),M(0,3),M(1,3)):
                for x in R[:4]: e(x)
                R=R[4:]
                e(m)
            e('s_cmp_eq_u32 s46, 8'); e('s_cbranch_scc1 AX_D')
            for x in R: e(x)
    if TRACE: e('s_memtime s[92:93]')
    e('s_lshr_b32 s66, s45, 1'); e('s_xor_b32 s66, s66, s46'); e('s_add_u32 s46, s46, 1')
    e('s_bitcmp1_b32 s66, 0'); e('s_cbranch_scc1 AX_W0')
    e('s_cmp_eq_u32 s46, 1'); e('s_cbranch_scc0 AX_L')
    e('s_waitcnt vmcnt(8)'); e('s_branch AX_L')
    e('AX_W0:')
    e('s_waitcnt vmcnt(0)'); e('s_branch AX_L')
    for kp in range(2):
        e('AX_B%d:'%kp)
        e('s_cmp_ge_u32 s46, 5'); e('s_cselect_b32 s51, 100, 3')
        e('s_add_u32 s52, s46, 3'); e('s_min_u32 s52, s52, 8')
        e('AX_C%d:'%kp)
        issueX(0); issueX(1)
        e('s_add_u32 s53, s53, 1'); e('s_cmp_le_u32 s53, s52'); e('s_cbranch_scc1 AX_C%d'%kp)
        e('v_add_u32 v4, %s, v62'%s(sJ)); e('v_and_b32 v4, 7, v4'); e('v_cmp_eq_u32 vcc, 0, v62'); e('v_mov_b32 v5, 8'); e('v_add_u32 v62, 3, v62')
        e('v_cndmask_b32 v4, v4, v5, vcc'); e('v_lshl_add_u32 v4, v4, 7, v24')
        e('s_mov_b32 exec_lo, 0x7ffffff'); e('s_mov_b32 exec_hi, %s'%('0x7ffffff' if T2 else '0'))
        e('buffer_load_dword v15, v4, %s, s19 offen'%s(sW2,4))
        e('s_mov_b64 exec, -1')
        e('s_branch AX_S%d'%kp)
    e('AX_D:')
    e('s_barrier')
    e('s_setprio %d'%AP2); e('s_nop 3')
    st(1)
    e('v_lshlrev_b32 v12, 9, v9'); e('v_lshl_add_u32 v12, v8, 3, v12')
    e('s_lshl_b32 s16, %s, 5'%s(sJ)); e('s_add_u32 s16, s16, %s'%s(sC)); e('s_mul_i32 s16, s16, 12288'); e('s_add_u32 s16, s16, %d'%U_OFF)
    e('s_add_u32 s17, s16, 8192'); e('s_add_u32 s16, s16, s69')
    FR=16
    def pack(dst,src,n=8):
        for h in range(n): e('v_cvt_pk_bf16_f32 %s, %s, %s'%(v(dst+h),v(src+2*h),v(src+2*h+1)))
    def stageA(D,FR):
        for sh in range(2):
            for be in range(2):
                d=D+16*sh+8*be; a=FR+4*sh; b=FR+8+4*sh
                mfma(d,FC+4*be,a,'0'); mfma(d+4,FC+4*be,b,'0'); mfma(d,FS+4*be,b); mfma(d+4,FN+4*be,a)
    def ustore(D,O,so):
        for be in range(2):
            for r in range(4):
                o=O+8*be+2*r
                for sh in range(2): e('v_cvt_pk_bf16_f32 %s, %s, %s'%(v(o+sh),v(D+16*sh+8*be+r),v(D+16*sh+8*be+4+r)))
                e('buffer_store_dwordx2 %s, v12, %s, %s offen offset:%d sc1'%(v(o,2),s(sWS,4),so,be*2048+r*128))
    MF=136
    e('v_add_u32 v14, %d, v25'%MX)
    pack(MF,ACC+32,4)
    e('s_lshl_b32 s66, s7, 7'); e('s_add_u32 s66, s66, %d'%GL); e('v_lshlrev_b32 v13, 4, v9'); e('v_add_u32 v13, s66, v13')
    e('s_mov_b32 exec_lo, 0x00200020'); e('s_mov_b32 exec_hi, 0x00200020')
    for sg in range(2): e('ds_write_b128 v13, %s offset:%d'%(v(ACC+32+4*sg,4),64*sg))
    e('s_mov_b64 exec, -1')
    e('s_cmp_eq_u32 s7, 1'); e('s_cbranch_scc0 AX_A0'); e('ds_write_b128 v14, %s'%v(MF,4)); e('AX_A0:')
    pack(FR,ACC); pack(FR+8,ACC+16); e('s_nop 1')
    stageA(32,FR)
    e('s_nop 7')
    ustore(32,236,'s16')
    e('s_waitcnt lgkmcnt(0)')
    e('s_barrier')
    e('s_barrier')
    e('s_cmp_eq_u32 s7, 0'); e('s_cbranch_scc0 AX_A2')
    e('ds_read_b128 %s, v14'%v(MF+4,4)); e('s_waitcnt lgkmcnt(0)')
    for h in range(8): e('v_mov_b32_dpp %s, %s row_ror:8 row_mask:0xf bank_mask:0xf'%(v(MF+8+h),v(MF+h)))
    e('s_nop 1')
    stageA(64,MF)
    e('s_nop 7')
    e('s_mov_b32 exec_lo, 0x00ff00ff'); e('s_mov_b32 exec_hi, 0x00ff00ff')
    ustore(64,96,'s17')
    e('s_mov_b64 exec, -1')
    e('AX_A2:')
    out.extend(parts[1])
    e('s_waitcnt vmcnt(0)'); e('v_mov_b32 v10, 1')
    e('s_mov_b64 exec, 1'); e('buffer_store_dword v10, %s, %s, s71 offen sc1'%(v(L0),s(sWS,4))); e('s_mov_b64 exec, -1')
    for k in (2,3,4,5): out.extend(parts[k])
    for i in range(4): e('ds_read_b32 %s, %s'%(v(GG+i),v(GG+i)))
    e('s_lshl_b32 s65, %s, 10'%s(sC)); e('s_add_u32 s65, s65, %d'%FLP)
    e('s_waitcnt lgkmcnt(0)')
    for i in range(4):
        g=GG+i
        e('v_mul_f32 %s, 0xbfb8aa3b, %s'%(v(g),v(g))); e('v_exp_f32 %s, %s'%(v(g),v(g))); e('s_nop 0')
        e('v_add_f32 %s, 1.0, %s'%(v(g),v(g))); e('v_rcp_f32 %s, %s'%(v(g),v(g)))
    if NORED:
        for i in range(2,7): st(i)
        st_flush(7,0); e('s_endpgm')
    e('s_mov_b32 s47, 0')
    def gpoll(load,cmp,slp):
        L=lab('GP'); e('s_branch %sf'%L); e(L+':')
        if slp: e('s_sleep %d'%slp)
        e(L+'f:')
        for x in load: e(x)
        e('s_add_u32 s47, s47, 1'); e('s_waitcnt vmcnt(0)')
        for x in cmp: e(x)
        e('s_cmp_gt_u32 s47, %d'%SPINMAX); e('s_cbranch_scc1 %sx'%L); e('s_cbranch_vccnz '+L); e(L+'x:')
    e('s_lshl_b32 s16, s7, 8'); e('s_add_u32 s16, s16, %d'%CNS)
    e('v_and_b32 v15, 1, v0'); e('v_mul_u32_u24 v15, 516, v15'); e('v_add_u32 v15, s16, v15')
    def pace(n):
        L=lab('PC'); e(L+':'); e('s_sleep 3'); e('ds_read_b32 v5, v15')
        e('s_add_u32 s99, s99, 1'); e('s_cmp_gt_u32 s99, 0x100000'); e('s_cbranch_scc1 K_END'); e('s_waitcnt lgkmcnt(0)')
        e('v_cmp_gt_u32 vcc, %s, v5'%(n if isinstance(n,str) else min(n,38))); e('s_cbranch_vccnz '+L)
    e('v_and_b32 v4, 7, v0'); e('v_lshlrev_b32 v4, 5, v4')
    gpoll(['buffer_load_dword v5, v4, %s, 0 offen sc1'%s(sDBG,4)],['v_cmp_gt_u32 vcc, 32, v5'],8)
    e('s_and_b32 s16, %s, %d'%(s(sC),USTG)); e('s_add_u32 s16, s16, %d'%(20+UPACE))
    pace('s16')
    e('s_mov_b32 s16, %d'%FLU)
    gpoll(['buffer_load_dwordx4 v[96:99], %s, %s, s16 offen sc1'%(v(L16),s(sWS,4)),'buffer_load_dwordx4 v[100:103], %s, %s, s16 offen offset:1024 sc1'%(v(L16),s(sWS,4))],
          ['v_min3_u32 v5, v96, v97, v98','v_min3_u32 v5, v5, v99, v100','v_min3_u32 v5, v5, v101, v102','v_min_u32 v5, v5, v103','v_cmp_eq_u32 vcc, 0, v5'],USLP)
    st(2)
    UF=16; YA=80; SP=152
    def uloads(tb,dst):
        for k in range(4):
            for u in range(2):
                e('s_mov_b32 s17, %d'%(U_OFF+(8*k+u)*12288))
                e('buffer_load_dwordx2 %s, %s, %s, s17 offen sc1'%(v(dst+4*k+2*u,2),v(UO+tb),s(sWS,4)))
    def fin(y,p,og,o,vaddr,soff):
        for tb in range(2):
            for r in range(4): e('v_fma_f32 %s, %s, %s, %s'%(v(p[tb]+r),v(og),v(p[tb]+r),v(y[tb]+r)))
        for tb in range(2):
            for h in range(2): e('v_cvt_pk_bf16_f32 %s, %s, %s'%(v(o+2*tb+h),v(p[tb]+2*h),v(p[tb]+2*h+1)))
        e('s_nop 1')
        e('v_permlane16_swap_b32 %s, %s'%(v(o),v(o+2))); e('v_permlane16_swap_b32 %s, %s'%(v(o+1),v(o+3)))
        e('buffer_store_dwordx4 %s, %s, %s, %s offen%s'%(v(o,4),v(vaddr),s(sOUT,4),soff,[' ',' sc1',' nt'][OSC]))
    for tb in range(2): uloads(tb,UF+16*tb)
    e('s_cmp_eq_u32 s7, 1'); e('s_cbranch_scc0 AX_U')
    for tb in range(2,4): uloads(tb,UF+16*tb)
    gpoll(['buffer_load_dword v5, %s, %s, s65 offen sc1'%(v(PL2),s(sWS,4))],['v_cmp_gt_u32 vcc, 1, v5'],10)
    e('s_mul_i32 s16, %s, %d'%(s(sC),8*73728)); e('s_lshl_b32 s17, %s, 10'%s(sJ)); e('s_add_u32 s16, s16, s17'); e('s_add_u32 s16, s16, 65536')
    for jj in range(8):
        e('buffer_load_dwordx4 %s, %s, %s, s16 offen sc1'%(v(80+4*jj,4),v(L16),s(sWS,4)))
        if jj<7: e('s_add_u32 s16, s16, 73728')
    for tb in range(2,4):
        for i in range(16): e('v_xor_b32 %s, %s, %s'%(v(UF+16*tb+i),v(MK+tb),v(UF+16*tb+i)))
    e('s_nop 1')
    for k in range(4):
        for tb in range(2): mfma(112+4*tb, UF+32+16*tb+4*k, GF+4*k, '0' if k==0 else None)
    e('s_waitcnt vmcnt(0)')
    for jj in range(8):
        for tb in range(2): mfma(120+4*tb, SEL+4*tb, 80+4*jj, '0' if jj==0 else None)
    for r in range(8): e('v_mul_f32 %s, %s, %s'%(v(112+r),v(GG),v(112+r)))
    e('v_sub_f32 v14, 1.0, %s'%v(GG)); e('s_lshl_b32 s16, s55, 1')
    fin((112,116),(120,124),14,248,TR,'s16')
    e('s_branch AX_U2')
    e('AX_U:')
    e('s_waitcnt vmcnt(0)')
    e('AX_U2:')
    for tb in range(2):
        for i in range(16): e('v_xor_b32 %s, %s, %s'%(v(UF+16*tb+i),v(MK+tb),v(UF+16*tb+i)))
    e('s_nop 1')
    for k in range(4):
        for tb in range(2):
            for i in range(4): mfma(YA+16*tb+4*i, UF+16*tb+4*k, GF+16*i+4*k, '0' if k==0 else None)
    st(3)
    e('s_mul_i32 s18, %s, %d'%(s(sC),8*73728)); e('s_lshl_b32 s17, %s, 13'%s(sJ)); e('s_add_u32 s18, s18, s17'); e('s_add_u32 s18, s18, s44')
    def acc(buf,first):
        for i in range(4):
            for tb in range(2): mfma(SP+16*tb+4*i, SEL+4*tb, buf+4*i, '0' if first else None)
    BUF=lambda i: 16+16*(i%4)
    e('s_mov_b32 s66, 0')
    def addr(i,so,sm):
        e('s_sub_u32 %s, %s, %d'%(so,s(sJ),i)); e('s_and_b32 %s, %s, 7'%(so,so))
        e('s_lshl_b32 %s, %s, 1'%(sm,so)); e('s_lshl_b32 %s, 3, %s'%(sm,sm))
        e('s_mul_i32 %s, %s, 73728'%(so,so)); e('s_add_u32 %s, %s, s18'%(so,so))
    def pollbits(i,sm,sx,slp):
        e('s_branch AX_F%d'%i); e('AX_R%d:'%i)
        if slp: e('s_sleep %d'%slp)
        e('AX_F%d:'%i)
        e('buffer_load_dword v5, %s, %s, s65 offen sc1'%(v(PL1),s(sWS,4))); e('s_add_u32 s47, s47, 1'); e('s_waitcnt vmcnt(0)')
        e('v_cmp_le_u32 vcc, v254, v5'); e('s_cmp_gt_u32 s47, %d'%SPINMAX); e('s_cbranch_scc1 AX_G%d'%i)
        e('s_mov_b32 s66, vcc_lo'); e('s_mov_b32 exec_lo, %s'%sx); e('s_mov_b32 exec_hi, 0')
        e('s_and_b32 s19, s66, %s'%sm); e('s_cmp_eq_u32 s19, %s'%sm); e('s_cbranch_scc0 AX_R%d'%i)
    def loads(i,so):
        for u in range(4): e('buffer_load_dwordx4 %s, %s, %s, %s offen sc1'%(v(BUF(i)+4*u,4),v(PO+u),s(sWS,4),so))
    addr(7,'s48','s49')
    e('s_add_u32 s16, s44, %d'%QH)
    for u in range(4): e('v_add_u32 %s, s16, %s'%(v(128+u),v(PO+u)))
    for i in range(1,7):
        addr(i,'s16','s17')
        e('s_and_b32 s19, s66, s17'); e('s_cmp_eq_u32 s19, s17'); e('s_cbranch_scc1 AX_G%d'%i)
        pace(max(20+2*(i+2)+PPACE-FEARLY, LATE if i>1 else 0))
        if i==6: e('s_or_b32 s50, s17, s49'); e('s_mov_b32 exec_lo, s50'); e('s_mov_b32 exec_hi, 0')
        pollbits(i,'s17','s50' if i==6 else 's17', 0 if i==6 else PSLP)
        e('AX_G%d:'%i)
        e('s_mov_b64 exec, -1')
        loads(i,'s16')
        if 3<=i<=6: e('s_waitcnt vmcnt(8)'); acc(BUF(i-2), i==3)
        if i==1:
            for sl in range(4):
                for tb in range(2):
                    for r in range(4): e('v_mul_f32 %s, %s, %s'%(v(YA+16*tb+4*sl+r),v(GG+sl),v(YA+16*tb+4*sl+r)))
                e('v_sub_f32 %s, 1.0, %s'%(v(GG+sl),v(GG+sl)))
    e('s_and_b32 s19, s66, s49'); e('s_cmp_eq_u32 s19, s49'); e('s_cbranch_scc1 AX_G7')
    e('s_mov_b32 exec_lo, s49'); e('s_mov_b32 exec_hi, 0')
    pollbits(7,'s49','s49',0)
    e('AX_G7:')
    e('s_mov_b64 exec, -1')
    loads(7,'s48')
    e('s_waitcnt vmcnt(8)'); acc(BUF(5),False)
    lds_wait(15,5,'39')
    for u in range(4): e('ds_read_b128 %s, %s'%(v(BUF(4)+4*u,4),v(128+u)))
    e('s_waitcnt lgkmcnt(0)'); acc(BUF(4),False)
    st(4)
    e('s_waitcnt vmcnt(4)'); acc(BUF(6),False)
    st(5)
    e('s_lshl_b32 s16, s54, 1')
    for sl in range(4):
        e('s_waitcnt vmcnt(%d)'%(3-sl))
        for tb in range(2): mfma(SP+16*tb+4*sl, SEL+4*tb, BUF(7)+4*sl)
    e('s_nop 3')
    for sl in range(4): fin((YA+4*sl,YA+16+4*sl),(SP+4*sl,SP+16+4*sl),GG+sl,232+4*sl,TR+sl,'s16')
    if STAMP:
        e('s_waitcnt vmcnt(0)'); st(6); st_flush(7,0)
        if TRACE: trace_flush(252,253)
    e('s_endpgm')
    for n,k in enumerate(later):
        e('AX_SL%d:'%n); out.extend(parts[k]); e('s_branch AX_SR')

def main():
    global INMAIN
    e('K_MAIN:')
    ACC=112; AF=16; XB=52
    e('v_lshlrev_b32 v7, 2, v0'); e('s_lshl_b32 s16, %s, 8'%s(sWV)); e('s_add_u32 s16, s16, %d'%LND); e('v_add_u32 v3, s16, v7'); e('v_mov_b32 v107, 0')
    for i in range(3): e('ds_write_b32 v3, v107 offset:%d'%(1024*i))
    e('v_add_u32 v108, 1024, v3')
    e('v_and_b32 v3, 1, v0'); e('v_mul_u32_u24 v3, 260, v3'); e('v_add_u32 v109, %d, v3'%LND)
    e('v_and_b32 v3, 7, v0'); e('v_min_u32 v3, 5, v3'); e('v_mul_u32_u24 v3, 260, v3'); e('v_add_u32 v111, %d, v3'%CNS)
    e('s_waitcnt lgkmcnt(0)')
    srd(sWS,62,WS_BYTES); srd(sDBG,60,256)
    e('v_cmp_eq_u32 vcc, 0, v0'); e('v_mov_b32 v7, %d'%OOB); e('v_mov_b32 v8, 0'); e('v_cndmask_b32 v85, v7, v107, vcc')
    e('s_cmp_eq_u32 %s, 0'%s(sWV)); e('s_cbranch_scc0 M_NZ')
    e('v_mov_b32 v9, 0'); e('v_mov_b32 v10, 0'); e('v_mov_b32 v11, 0')
    e('s_lshl_b32 s16, s2, 7'); e('s_add_u32 s16, s16, %d'%FLP)
    e('buffer_store_dwordx4 v[8:11], v85, %s, s16 offen sc1'%s(sWS,4))
    e('s_lshl_b32 s16, s2, 3'); e('s_add_u32 s16, s16, %d'%FLU)
    e('buffer_store_dwordx2 v[8:9], v85, %s, s16 offen sc1'%s(sWS,4))
    e('M_NZ:')
    e('v_and_b32 v1, 15, v0'); e('v_lshrrev_b32 v2, 4, v0')
    e('s_movk_i32 s61, 1152')
    e('v_lshrrev_b32 v3, 2, v1'); e('v_and_b32 v4, 3, v0')
    e('v_lshl_add_u32 v5, v2, 3, v3'); e('v_mul_u32_u24 v5, s61, v5'); e('v_lshl_add_u32 v5, v4, 3, v5')
    e('v_lshrrev_b32 v6, 1, v3'); e('v_and_b32 v7, 1, v2'); e('v_lshl_add_u32 v6, v7, 1, v6')
    e('s_mul_i32 s60, %s, 9'%s(sWV))
    for i in range(4):
        e('s_add_u32 s16, s60, %d'%i); e('s_and_b32 s17, s16, 3'); e('s_lshr_b32 s16, s16, 2'); e('s_lshl_b32 s16, s16, 7')
        e('v_xor_b32 v7, s17, v6'); e('v_lshl_add_u32 v7, v7, 5, v5'); e('v_add_u32 %s, s16, v7'%v(88+i)); e('v_mov_b32 %s, %s'%(v(92+i),v(88+i)))
    e('v_lshrrev_b32 v7, 1, v1'); e('v_xor_b32 v7, v7, v2'); e('v_lshlrev_b32 v7, 4, v7')
    e('v_lshl_add_u32 v96, v1, 7, v7'); e('v_add_u32 v96, %d, v96'%XW0); e('s_lshl_b32 s16, s98, 6'); e('v_xor_b32 v96, s16, v96'); e('v_xor_b32 v97, 64, v96'); e('v_mov_b32 v86, v96'); e('v_mov_b32 v87, v97')
    e('v_lshlrev_b32 v106, 4, v0')
    for i in range(2):
        e('s_add_u32 s16, s60, %d'%i); e('s_and_b32 s17, s16, 1'); e('s_lshl_b32 s17, s17, 3'); e('s_lshr_b32 s16, s16, 1'); e('s_lshl_b32 s16, s16, 12')
        e('s_add_u32 s16, s16, s17'); e('s_add_u32 s16, s16, %d'%HB); e('v_add_u32 %s, s16, v106'%v(98+i))
    e('s_lshr_b32 s16, %s, 1'%s(sWV)); e('s_lshl_b32 s16, s16, 11'); e('s_add_u32 s16, s16, %d'%HB)
    e('v_add_u32 v100, s16, v106'); e('v_add_u32 v101, 36864, v100')
    e('v_lshl_add_u32 v5, v2, 2, v3'); e('v_bfe_u32 v6, v5, 1, 2'); e('v_lshlrev_b32 v5, 7, v5'); e('v_lshl_add_u32 v5, v4, 3, v5')
    e('s_and_b32 s16, %s, 1'%s(sWV)); e('s_lshl_b32 s16, s16, 1')
    for tb in range(2):
        e('s_add_u32 s17, s16, %d'%tb); e('v_xor_b32 v7, s17, v6'); e('v_lshl_add_u32 %s, v7, 5, v5'%v(102+tb)); e('v_add_u32 %s, %d, %s'%(v(104+tb),SLOT,v(102+tb)))
    e('v_mov_b32 v5, v85')
    for i in range(144): e('v_mov_b32 %s, 0'%v(ACC+i))
    for i in range(12): e('v_mov_b32 %s, 0'%v(AF+24+i))
    for i in range(16): e('v_mov_b32 %s, 0'%v(XB+16+i))
    e('s_mov_b32 s64, 0'); e('s_mov_b32 s65, 0'); e('s_mov_b32 s66, 1')
    e('s_cmp_eq_u32 %s, 0'%s(sWV)); e('s_cbranch_scc0 M_NA')
    if TAG:
        for i in range(4): e('v_mov_b32 v%d, -1'%(12+i))
        e('s_add_u32 s16, %s, 7'%s(sJ)); e('s_and_b32 s16, s16, 7'); e('s_lshl_b32 s16, s16, 13'); e('s_mul_i32 s17, s2, 73728'); e('s_add_u32 s16, s16, s17')
        for u in range(8):
            if u==4: e('s_add_u32 s16, s16, 4096')
            e('buffer_store_dwordx4 v[12:15], v106, %s, s16 offen offset:%d sc1'%(s(sWS,4),(u%4)*1024))
    e('s_lshl_b32 s16, %s, 5'%s(sJ)); e('s_waitcnt vmcnt(0)'); e('v_mov_b32 v12, 1')
    e('buffer_atomic_add v12, v5, %s, s16 offen sc1'%s(sDBG,4))
    e('M_NA:')
    e('v_mov_b32 v1, 0'); e('v_mov_b32 v3, 0')
    e('v_mov_b32 v110, 0')
    INMAIN=True
    if MPRIO: e('s_setprio 3')
    spins=[]
    def check(seq,thr,vaddr=109):
        L=lab('SP'); R=L+'R'
        seq.append(('need',['F'])); seq.append(('i','v_cmp_gt_u32 vcc, %s, v110'%thr)); seq.append(('i','s_cbranch_vccnz '+L)); seq.append(('i',R+':'))
        spins.append((L,R,thr,vaddr))
    def conv(t,sg):
        a=ACC+16*t+4*sg
        return ['v_cvt_pk_bf16_f32 %s, %s, %s'%(v(a),v(a),v(a+1)),'v_cvt_pk_bf16_f32 %s, %s, %s'%(v(a+1),v(a+2),v(a+3)),
                'v_pk_max_i16 %s, %s, 0'%(v(a),v(a)),'v_pk_max_i16 %s, %s, 0'%(v(a+1),v(a+1))]
    def hwr(t,sg): return 'ds_write_b64 %s, %s offset:%d'%(v(98+t%2),v(ACC+16*t+4*sg,2),(t//2)*4096+sg*1024)
    def step1(p,last=False):
        seq=[('i','s_barrier')]
        if TRACE: seq=[('i','s_memtime s[96:97]'),('i','s_waitcnt lgkmcnt(0)'),('i','s_mov_b32 m0, s66'),('i','s_barrier'),('i','v_writelane_b32 v1, s96, m0'),('i','s_memtime s[96:97]'),('i','s_waitcnt lgkmcnt(0)'),('i','v_writelane_b32 v3, s96, m0')]
        R=[('A',0,0),('A',0,1)]+[('X',p,sg) for sg in range(4)]+[('A',t,r) for t in range(1,9) for r in range(2)]
        extra=[]
        if not last:
            extra=['s_add_u32 s64, s64, %d'%SLOT,'s_cmp_eq_u32 s64, %d'%(3*SLOT),'s_cselect_b32 s64, 0, s64','s_add_u32 s66, s66, 1']+['v_add_u32 %s, s64, %s'%(v(92+i),v(88+i)) for i in range(4)]
            if p==1: extra+=['s_add_u32 s65, s65, 8192','s_and_b32 s65, s65, 32767','v_add_u32 v96, s65, v86','v_add_u32 v97, s65, v87']
            else: extra+=['s_cmp_eq_u32 s66, 18']
        cv=[]; wr=[]
        ng=48 if last else 36
        for g in range(ng):
            i,sg=divmod(g,4)
            if g<len(R):
                k,a,b=R[g]
                if k=='A': seq.append(('lds',R[g],'ds_read_b64_tr_b16 %s, %s offset:%d'%(v(AF+4*a+2*b,2),v(92+a%4),128*(a//4)+4608*b)))
                else: seq.append(('lds',R[g],'ds_read_b128 %s, %s offset:%d'%(v(XB+16*p+4*b,4),v(96+p),2048*b)))
            elif extra: seq.append(('i',extra.pop(0)))
            if last:
                if g==28: seq.append(('need',[('A',8,1)])); seq.append(('i','s_barrier'))
                if g>=20 and sg==0:
                    cv+=[(x,(i-5,q)) for q in range(4) for x in conv(i-5,q)]
                if g>=20:
                    for _ in range(2):
                        if cv:
                            x,tag=cv.pop(0); seq.append(('i',x))
                            if x.startswith('v_pk_max') and (not cv or cv[0][1]!=tag): wr.append(tag)
                if g>=28 and wr: seq.append(('lds','H',hwr(*wr.pop(0))))
            if i<3: t,xb=6+i,1-p
            else: t,xb=i-3,p
            seq.append(('need',[('A',t,0),('A',t,1),('X',xb,sg)]))
            seq.append(('i',mf(ACC+16*t+4*sg, AF+4*t, XB+16*xb+4*sg)))
        assert not extra
        if not last: seq.append(('need',[('A',8,1)]))
        if last:
            for t in (7,8): cv+=[(x,(t,q)) for q in range(4) for x in conv(t,q)]
            while cv or wr:
                for _ in range(2):
                    if cv:
                        x,tag=cv.pop(0); seq.append(('i',x))
                        if x.startswith('v_pk_max') and (not cv or cv[0][1]!=tag): wr.append(tag)
                if wr: seq.append(('lds','H',hwr(*wr.pop(0))))
        return seq
    s0=step1(0); s1=step1(1)
    touch=[('i','s_branch M1_L')]
    body=s0+[('i','s_cbranch_scc1 M1_X')]+s1+touch
    if STAMP:
        nb=8 if TRACE else 1
        s0=s0[:nb]+[('i','s_cmp_eq_u32 s66, 1'),('i','s_cbranch_scc0 M_NS'),('i','s_memrealtime s[74:75]'),('i','s_memtime s[88:89]'),('i','s_waitcnt lgkmcnt(0)'),('i','M_NS:')]+s0[nb:]
        body=s0+[('i','s_cbranch_scc1 M1_X')]+s1+touch
    e('M1_L:')
    stream(body,True)
    e('M1_X:')
    stream(step1(1,True),False,pre=s1+s0)
    e('s_waitcnt lgkmcnt(0)')
    st(2); stc(9)
    e('s_barrier')
    H=ACC
    for k in range(18):
        for sg in range(2): e('ds_read_b128 %s, %s offset:%d'%(v(H+8*k+4*sg,4),v(100+k//9),(k%9)*4096+sg*1024))
    e('v_mov_b32 v107, 20')
    e('ds_read_b32 v110, v109')
    WR=16; PA=64; QA=80; PK=8
    e('s_mov_b32 s64, %d'%(2*SLOT)); e('s_mov_b32 s65, 0'); e('s_mov_b32 s66, 19')
    e('s_mul_i32 s60, s2, 73728')
    e('s_lshl_b32 s61, %s, 11'%s(sWV)); e('s_add_u32 s60, s60, s61')
    e('s_mov_b32 s67, %d'%OOB)
    e('s_lshl_b32 s19, s2, 7'); e('s_lshl_b32 s61, %s, 2'%s(sWV)); e('s_add_u32 s19, s19, s61'); e('s_add_u32 s19, s19, %d'%FLP)
    e('v_mov_b32 v6, 0'); e('s_and_b32 s62, %s, %d'%(s(sC),NSITE-1))
    e('s_waitcnt lgkmcnt(0)'); e('s_barrier')
    st(3); stc(10)
    def mm2(kg,u):
        tb,sg=divmod(u,2)
        a=WR+8*(kg%6)+4*tb; b=H+8*kg+4*sg
        if kg<9: return mf(PA+8*tb+4*sg,a,b,'0' if kg==0 else None)
        return mf(QA+8*tb+4*sg,a,b,PA+8*tb+4*sg if kg==9 else None)
    def packq(final=False):
        L=[]
        for sg in range(2):
            for tb in range(2):
                for h in range(2):
                    q=QA+8*tb+4*sg+2*h
                    L.append('v_cvt_pk_bf16_f32 %s, %s, %s'%(v(PK+4*sg+2*tb+h),v(q),v(q+1)))
            if final: L.append('ds_write_b128 v7, %s offset:%d'%(v(PK+4*sg,4),1024*sg))
            else: L.append('buffer_store_dwordx4 %s, v106, %s, s67 offen offset:%d sc1'%(v(PK+4*sg,4),s(sWS,4),1024*sg))
        return L
    body=[]
    for hc in range(2):
        check(body,'s66')
        R=[(9*hc+k,tb,r) for k in range(9) for tb in range(2) for r in range(2)]
        ex={}
        if hc==0:
            cv=[x for x in packq() if x.startswith('v_cvt')]
            for i,x in enumerate(cv): ex[16+i]=[x]
            ex[2]=['v_add_u32 v104, s64, v104']; ex[3]=['v_add_u32 v105, s64, v105']; ex[4]=['s_sub_u32 s64, 0, s64']; ex[5]=['s_add_u32 s66, s66, 1']

        else:
            L=['v_add_u32 v102, s64, v102','v_add_u32 v103, s64, v103','s_add_u32 s66, s66, 1',
               's_add_u32 s61, s65, %s'%s(sJ),'s_and_b32 s61, s61, 7','s_cmp_eq_u32 s65, 0','s_cselect_b32 s61, 8, s61',
               's_lshl_b32 s61, s61, 13']
            for i,x in enumerate(L): ex[2+i]=[x]
            ex[26]=['s_add_u32 s67, s60, s61']; ex[30]=['s_cmp_eq_u32 s65, 8','s_cselect_b32 s62, 0, s62']
            ex[27]=['v_mov_b32 v6, s65']; ex[28]=['s_add_u32 s65, s65, 1']; ex[33]=['s_cmp_lt_u32 s65, 9']
            if FEARLY: ex[32]=['s_waitcnt vmcnt(0)','s_mov_b64 exec, 1','buffer_store_dword v6, v5, %s, s19 offen sc1'%s(sWS,4),'s_mov_b64 exec, -1']
        sites=[(0,25),(1,1),(1,13),(1,25)][:NSITE]
        for n,(h,g) in enumerate(sites):
            if h==hc:
                ex.setdefault(g,[]); ex[g]=ex[g]+['s_cmp_eq_u32 s62, %d'%n,'s_cbranch_scc1 M2_ST%d'%n,'M2_SR%d:'%n]
        for g in range(36):
            i,u=divmod(g,4)
            k,tb,r=R[g]
            body.append(('lds',R[g],'ds_read_b64_tr_b16 %s, %s offset:%d'%(v(WR+8*(k%6)+4*tb+2*r,2),v(102+2*hc+tb),(k%9)*4096+r*2048)))
            if g==30: body.append(('lds','F','ds_read_b32 v110, v109'))
            if g==34: body.append(('i','v_add_u32 v107, 1, v107'))
            if g==35: body.append(('lds','C','ds_write_b32 v108, v107'))
            for x in ex.get(g,[]): body.append(('i',x))
            kg=(9*hc+i-3)%18
            body.append(('need',[(kg,u//2,0),(kg,u//2,1)]))
            body.append(('i',mm2(kg,u)))
    e('v_add_u32 v104, s64, v104'); e('v_add_u32 v105, s64, v105'); e('s_sub_u32 s64, 0, s64')
    e('M2_L:')
    stream(body,True)
    e('s_cbranch_scc1 M2_L')
    e('s_lshl_b32 s61, %s, 11'%s(sWV)); e('s_add_u32 s61, s61, %d'%QH); e('v_add_u32 v7, s61, v106')
    e('s_waitcnt lgkmcnt(0)')
    for kg in (15,16,17):
        for u in range(4): e(mm2(kg,u))
    if not FEARLY: e('s_waitcnt vmcnt(0)'); e('s_mov_b64 exec, 1'); e('buffer_store_dword v6, v5, %s, s19 offen sc1'%s(sWS,4)); e('s_mov_b64 exec, -1')
    e('s_nop 7')
    for x in packq(True): e(x)
    e('v_add_u32 v107, 1, v107'); e('ds_write_b32 v108, v107')
    INMAIN=False
    if STAMP:
        st(4); stc(11); st_flush(12,0)
        if TRACE: trace_flush(1,3)
    e('s_waitcnt lgkmcnt(0)')
    e('s_endpgm')
    for n in range(NSITE):
        e('M2_ST%d:'%n)
        if not FEARLY: e('s_waitcnt vmcnt(0)'); e('s_mov_b64 exec, 1'); e('buffer_store_dword v6, v5, %s, s19 offen sc1'%s(sWS,4)); e('s_mov_b64 exec, -1')
        for x in packq():
            if x.startswith('buffer') and not NOST: e(x)
        e('s_branch M2_SR%d'%n)
    for (L,R,thr,va) in spins:
        e(L+':')
        tr=TRACE and thr=='s66'
        if tr:
            e('s_memtime s[96:97]'); e('s_waitcnt lgkmcnt(0)'); e('s_mov_b32 m0, s66'); e('s_nop 3'); e('v_writelane_b32 v1, s96, m0'); L=L+'b'; e(L+':')
        e('ds_read_b32 v110, %s'%v(va))
        e('s_add_u32 s99, s99, 1'); e('s_cmp_gt_u32 s99, 0x100000'); e('s_cbranch_scc1 K_END'); e('s_waitcnt lgkmcnt(0)')
        e('v_cmp_gt_u32 vcc, %s, v110'%thr); e('s_cbranch_vccnz '+L)
        if tr: e('s_memtime s[96:97]'); e('s_waitcnt lgkmcnt(0)'); e('v_writelane_b32 v3, s96, m0')
        e('s_branch '+R)

assert all((L*57)>>9==L//9 for L in range(288))
assert all((L*57)>>11==L//36 for L in range(289))
out.append('; @launch grid=(256,1,1) block=(512,1,1) lds=163840')
out.append('.amdgcn_target "amdgcn-amd-amdhsa--gfx950"')
out.append('.text'); out.append('.globl '+NAME)
kernel()
out.append('.section .rodata,"a"'); out.append('.p2align 6')
out.append('.amdhsa_kernel '+NAME)
for l in ['next_free_vgpr 256','next_free_sgpr 100','accum_offset 256','group_segment_fixed_size 0','kernarg_size 96','user_sgpr_count 2','user_sgpr_kernarg_segment_ptr 1','system_sgpr_workgroup_id_x 1']:
    out.append('  .amdhsa_'+l)
out.append('.end_amdhsa_kernel')
print('\n'.join(out))
```

```python
import sys, struct
A=sys.argv
STAMP='--stamp' in A; NODMA='--nodma' in A; NOMFMA='--nomfma' in A; NOREAD='--noread' in A; NOPRIO='--noprio' in A; NOTX='--notx' in A; NORED='--nored' in A; NOST='--nost' in A; NOU='--nou' in A; NOXW='--noxw' in A; TRACE='--trace' in A; MPRIO='--mprio' in A; SLP='--slp' in A; opt=lambda n,d: int([x for x in A if x.startswith('--'+n+'=')][0].split('=')[1]) if any(x.startswith('--'+n+'=') for x in A) else d
PRE=opt('pre',2); AP2=opt('ap2',0); USLP=opt('uslp',10); PSLP=opt('pslp',6); UPACE=opt('upace',8); PPACE=opt('ppace',1); LP=opt('lp',0); AP=opt('ap',1); EARLY=opt('early',1); JROT=opt('jrot',1); PK=0; TAG=0; FEARLY=opt('fearly',1); T2=0; CT=opt('ct',0); IW=opt('iw',0); PUB1=opt('pub1',12); OSC=opt('osc',0); LATE=opt('late',35); USTG=opt('ustg',0); NSITE=opt('nsite',1); XSTG=opt('xstg',3)
DBGT='--dbgt' in A; NOSW='--nosw' in A; WSPLIT=0 if '--nowsplit' in A else 1
NAME='gated_mix__spectral_fnet__dense_activation_relu__prompt_kernel'
out=[]; INMAIN=False
def e(s=''):
    if NODMA and s.endswith(' lds') and ('s[20:23]' in s or 's[24:27]' in s): return
    if (NOPRIO or MPRIO) and s.startswith('s_setprio') and not INMAIN: return
    if INMAIN and NOST and s.startswith('buffer_store_dword'): return
    if NOU and s.startswith('buffer_load_dword v') and 's17 offen sc1' in s: return
    if NOXW and s.endswith(' lds') and ('s[8:11]' in s or 's[12:15]' in s): return
    if INMAIN and NOMFMA and s.startswith('v_mfma'): return
    out.append('    '+s if s and not s.endswith(':') else s)
def v(n,c=1): return 'v%d'%n if c==1 else 'v[%d:%d]'%(n,n+c-1)
def s(n,c=1): return 's%d'%n if c==1 else 's[%d:%d]'%(n,n+c-1)
def f2u(x): return struct.unpack('<I',struct.pack('<f',float(x)))[0]

SLOT=36864; XW0=110592; XWS=18432; HB=73728
MISC=147456; QH=MISC; LND=MISC+8192; CNS=LND+4*256; GL=CNS+6*256
GWL=LND+3072; MX=GWL+1152
U_OFF=0x1400000; FLP=0x1800000; FLU=0x1810000; ST_OFF=0x1900000; WS_BYTES=0x1B00000
BIG=0x7fffffff; OOB=0x40000000
sX,sWH,sW1,sW2,sGW,sWS,sOUT,sDBG=8,12,20,24,28,32,36,40
sJ,sC,sWV,sROT=3,4,5,6
SPINMAX=0x8000

def srd(d,base,nbytes):
    e('s_mov_b32 %s, %s'%(s(d),s(base))); e('s_mov_b32 %s, %s'%(s(d+1),s(base+1)))
    e('s_mov_b32 %s, %d'%(s(d+2),nbytes)); e('s_mov_b32 %s, 0x20000'%s(d+3))
def mf(d,a,b,c=None):
    return 'v_mfma_f32_16x16x32_bf16 %s, %s, %s, %s'%(v(d,4),v(a,4),v(b,4), v(d,4) if c is None else (c if isinstance(c,str) else v(c,4)))
def mfma(*a): e(mf(*a))
def st(slot):
    if STAMP: e('s_memrealtime %s'%s(72+2*slot,2))
def stc(slot):
    if STAMP: e('s_memtime %s'%s(72+2*slot,2))
def st_flush(n,base_row):
    if not STAMP: return
    e('s_waitcnt lgkmcnt(0)')
    e('s_lshl_b32 s68, s2, 3'); e('s_add_u32 s68, s68, %s'%s(sWV)); e('s_lshl_b32 s68, s68, 7'); e('s_add_u32 s68, s68, %d'%ST_OFF)
    e('v_mov_b32 v2, 0')
    for i in range(n):
        e('v_mov_b32 v4, %s'%s(72+2*i)); e('v_mov_b32 v5, %s'%s(73+2*i))
        e('buffer_store_dwordx2 v[4:5], v2, %s, s68 offen offset:%d'%(s(sWS,4),8*i)); e('s_nop 1')
def trace_flush(a,b):
    e('s_lshl_b32 s68, s2, 3'); e('s_add_u32 s68, s68, %s'%s(sWV)); e('s_lshl_b32 s68, s68, 9'); e('s_add_u32 s68, s68, %d'%(ST_OFF+0x40000))
    e('v_lshlrev_b32 v2, 2, v0')
    e('buffer_store_dword %s, v2, %s, s68 offen'%(v(a),s(sWS,4))); e('buffer_store_dword %s, v2, %s, s68 offen offset:256'%(v(b),s(sWS,4)))
_lab=[0]
def lab(p): _lab[0]+=1; return '%s%d'%(p,_lab[0])
def lds_wait(vaddr,vtmp,thr):
    L=lab('W')
    e(L+':')
    if SLP and not INMAIN: e('s_sleep 2')
    e('ds_read_b32 %s, %s'%(v(vtmp),v(vaddr)))
    e('s_add_u32 s99, s99, 1'); e('s_cmp_gt_u32 s99, 0x100000'); e('s_cbranch_scc1 K_END'); e('s_waitcnt lgkmcnt(0)')
    e('v_cmp_gt_u32 vcc, %s, %s'%(thr,v(vtmp))); e('s_cbranch_vccnz '+L)

def stream(seq, cyclic, pre=None):
    hist=[]; done=0
    def run(sq,emit):
        nonlocal done
        for it in sq:
            if it[0]=='lds':
                hist.append(it[1])
                if emit and not (NOREAD and it[2].startswith('ds_read_b64_tr')): e(it[2])
            elif it[0]=='need':
                idx=-1
                for t in it[1]:
                    k=[i for i,x in enumerate(hist) if x==t]
                    if k: idx=max(idx,k[-1])
                    else: assert not emit, t
                if idx+1>done:
                    n=min(len(hist)-1-idx,15)
                    if emit: e('s_waitcnt lgkmcnt(%d)'%(0 if NOREAD else n))
                    done=len(hist)-n
            elif emit: e(it[1])
    if cyclic: run(seq,False)
    if pre is not None: run(pre,False)
    run(seq,True)

def kernel():
    e('.p2align 8'); e('.type %s,@function'%NAME); e(NAME+':')
    e('s_cmp_ge_u32 s2, 256'); e('s_cbranch_scc1 K_END')
    st(0)
    if DBGT: e('s_memrealtime s[72:73]')
    e('s_load_dwordx2 s[44:45], s[0:1], 0')
    e('s_load_dwordx4 s[48:51], s[0:1], 24')
    e('s_load_dwordx4 s[52:55], s[0:1], 48')
    e('s_load_dwordx8 s[56:63], s[0:1], 64')
    e('s_mov_b32 s99, 0')
    e('v_lshrrev_b32 v1, 6, v0')
    e('s_and_b32 %s, s2, 7'%s(sJ)); e('s_lshr_b32 %s, s2, 3'%s(sC))
    e('v_readfirstlane_b32 %s, v1'%s(sWV))
    e('v_and_b32 v0, 63, v0')
    e('s_mul_i32 s6, %s, 57'%s(sC)); e('s_lshr_b32 s6, s6, 9'); e('s_and_b32 s98, s6, %d'%(0 if NOSW else 1)); e('s_mul_i32 s6, s6, 9'); e('s_sub_u32 s6, %s, s6'%s(sC))
    if JROT: e('s_add_u32 s6, s6, %s'%s(sJ)); e('s_sub_u32 s7, s6, 9'); e('s_cmp_ge_u32 s6, 9'); e('s_cselect_b32 s6, s7, s6')
    e('s_cmp_ge_u32 %s, 6'%s(sWV)); e('s_cbranch_scc1 K_AUX')
    e('s_cmp_ge_u32 %s, 4'%s(sWV)); e('s_cbranch_scc0 K_MAIN')
    loader(); aux(); main()
    e('K_END:'); e('s_endpgm')

def loader():
    e('s_setprio %d'%LP)
    e('s_sub_u32 s7, %s, 4'%s(sWV))
    e('v_lshrrev_b32 v1, 3, v0'); e('v_and_b32 v2, 7, v0')
    e('v_lshrrev_b32 v4, 1, v2')
    e('v_and_b32 v5, 1, v2'); e('v_lshlrev_b32 v5, 4, v5')
    e('s_movk_i32 s16, %d'%(9216-1152))
    for p in range(9):
        e('v_add_u32 v6, %d, v1'%(8*p))
        e('v_mul_u32_u24 v7, 57, v6'); e('v_lshrrev_b32 v7, 9, v7')
        e('v_bfe_u32 v9, v7, 1, 1'); e('v_xor_b32 v9, v9, v4')
        e('v_lshl_add_u32 v6, v6, 7, v5')
        e('v_mad_u32_u24 v6, v7, s16, v6')
        e('v_lshl_add_u32 v6, v9, 5, v6')
        e('v_xor_b32 v7, 64, v6')
        e('v_subrev_u32 %s, %d, v6'%(v(16+p),(p%4)*1024))
        e('v_add_u32 %s, %d, v7'%(v(25+p),8*9216-((p+9)%4)*1024))
    e('v_lshrrev_b32 v6, 1, v1'); e('v_and_b32 v6, 3, v6'); e('v_lshlrev_b32 v6, 1, v6'); e('v_xor_b32 v6, v6, v2')
    e('s_movk_i32 s69, 1152'); e('v_mul_u32_u24 v7, s69, v1'); e('v_lshl_add_u32 v36, v6, 4, v7')
    for i in range(1,4): e('v_add_u32 %s, %d, v36'%(v(36+i),i*8192))
    e('s_mul_i32 s64, s7, 18432')
    e('s_mul_i32 s17, %s, 1152'%s(sJ)); e('s_mul_i32 s18, s7, %d'%(16*9216)); e('s_add_u32 s17, s17, s18')
    e('s_lshl_b32 s18, s6, 1')
    e('s_xor_b32 s66, s18, s98'); e('s_mul_i32 s66, s66, %d'%(32*9216)); e('s_add_u32 s66, s66, s17')
    e('s_mov_b32 s67, s64')
    e('s_mov_b32 s68, 0'); e('s_mov_b32 s69, -2')
    e('s_mul_i32 s70, %s, 576'%s(sJ)); e('s_mul_i32 s71, s7, 144'); e('s_add_u32 s70, s70, s71'); e('s_mul_i32 s70, s70, 1152')
    e('s_lshl_b32 s19, s7, 8'); e('s_add_u32 s19, s19, %d'%LND)
    e('v_lshlrev_b32 v11, 2, v0'); e('v_add_u32 v11, s19, v11'); e('v_mov_b32 v10, 0'); e('v_mov_b32 v13, 0'); e('v_mov_b32 v40, 0'); e('v_mov_b32 v41, 0')
    e('v_and_b32 v12, 3, v0'); e('v_mul_u32_u24 v12, 260, v12'); e('v_add_u32 v12, %d, v12'%CNS)
    e('s_waitcnt lgkmcnt(0)')
    srd(sW1,52,5308416); srd(sW2,54,5308416)
    if STAMP: srd(sWS,62,WS_BYTES)
    PUB=12
    def dma(ph,p):
        if p%4==0 and p:
            e('s_add_u32 m0, s67, %d'%(p*1024))
            if ph==2: e('s_add_u32 s66, s66, %d'%(32*1152))
            else: e('s_nop 0')
        if ph==1: e('buffer_load_dwordx4 %s, %s, s66 offen offset:%d lds'%(v(16+p),s(sW1,4),(p%4)*1024))
        else: e('buffer_load_dwordx4 %s, %s, s66 offen offset:%d lds'%(v(36+p%4),s(sW2,4),(p%4)*1024))
    def grp(fill):
        groups=[]; i=0
        while i<len(fill):
            if fill[i].startswith('s_cmp'): groups.append(fill[i:i+2]); i+=2
            else: groups.append([fill[i]]); i+=1
        return groups
    def tr_top():
        if TRACE: e('s_memtime s[96:97]'); e('s_waitcnt lgkmcnt(0)'); e('s_mov_b32 m0, s68'); e('s_nop 3'); e('v_writelane_b32 v40, s96, m0'); e('v_writelane_b32 v42, s92, m0'); e('v_writelane_b32 v43, s94, m0')
    e('LD_P:'); tr_top()
    e('s_mov_b32 m0, s67'); e('s_nop 0')
    g=grp(['s_add_u32 s18, s18, 1','s_cmp_eq_u32 s18, 18','s_cselect_b32 s18, 0, s18','s_xor_b32 s44, s18, s98','s_mul_i32 s44, s44, %d'%(32*9216),'s_add_u32 s44, s44, s17',
           's_add_u32 s45, s67, %d'%SLOT,'s_cmp_ge_u32 s45, %d'%(3*SLOT),'s_cselect_b32 s45, s64, s45'])
    for p in range(18):
        if p==PUB:
            e('s_cmp_eq_u32 s68, 0'); e('s_cbranch_scc1 LD_P0')
            if TRACE: e('s_memtime s[92:93]')
            e('s_waitcnt vmcnt(%d)'%PUB)
            if TRACE: e('s_memtime s[94:95]')
            e('s_barrier')
            e('LD_P0:')
        dma(1,p)
        if g:
            for x in g.pop(0): e(x)
    e('s_mov_b32 s66, s44'); e('s_mov_b32 s67, s45')
    e('s_add_u32 s68, s68, 1'); e('s_cmp_lt_u32 s68, 18'); e('s_cbranch_scc1 LD_P')
    e('s_add_u32 s66, s70, 1024'); e('s_mov_b32 s69, 0')
    e('LD_Q:'); tr_top()
    e('s_waitcnt lgkmcnt(1)'); e('v_cmp_gt_u32 vcc, s69, v13'); e('s_mov_b32 m0, s67'); e('s_cbranch_vccnz LD_QS')
    e('LD_QR:')
    g=grp(['s_sub_u32 s46, s68, 17','s_lshr_b32 s44, s46, 1','s_add_u32 s47, s44, %s'%s(sJ),'s_and_b32 s47, s47, 7','s_cmp_eq_u32 s44, 0','s_cselect_b32 s47, 8, s47',
           's_lshl_b32 s47, s47, 7','s_and_b32 s44, s46, 1','s_mul_i32 s44, s44, %d'%(288*1152),'s_add_u32 s44, s44, s47','s_add_u32 s44, s44, s70',
           's_add_u32 s45, s67, %d'%SLOT,'s_cmp_ge_u32 s45, %d'%(4*SLOT),'s_cselect_b32 s45, s64, s45',
           's_cmp_le_u32 s68, 20','s_cselect_b32 s69, 0, s68'])
    for p in range(18):
        if p==PUB:
            e('v_mov_b32 v10, s68')
            if TRACE: e('s_memtime s[92:93]')
            e('s_waitcnt vmcnt(%d)'%PUB)
            e('s_cmp_le_u32 s68, %d'%(19 if EARLY else 18)); e('s_cbranch_scc0 LD_Q0'); e('s_barrier'); e('LD_Q0:')
            if TRACE: e('s_memtime s[94:95]')
            e('ds_read_b32 v13, v12'); e('ds_write_b32 v11, v10')
        dma(2,p)
        if g:
            for x in g.pop(0): e(x)
    assert not g
    e('s_mov_b32 s66, s44'); e('s_mov_b32 s67, s45')
    e('s_add_u32 s68, s68, 1'); e('s_cmp_%s_u32 s68, 20'%('eq' if EARLY else 'le')); e('s_cbranch_scc1 LD_E')
    e('s_cmp_lt_u32 s68, 36'); e('s_cbranch_scc1 LD_Q')
    e('v_mov_b32 v10, s68'); e('s_waitcnt vmcnt(0)'); e('ds_write_b32 v11, v10')
    if STAMP: st(1); st_flush(2,0)
    if TRACE:
        e('s_cmp_eq_u32 s7, 0'); e('s_cbranch_scc1 TRX'); e('v_mov_b32 v41, v43'); e('v_mov_b32 v40, v42'); e('TRX:')
        trace_flush(40,41)
    e('s_waitcnt lgkmcnt(0)')
    e('s_endpgm')
    e('LD_E:')
    if not EARLY:
        e('s_barrier')
        e('s_cmp_eq_u32 s68, 20'); e('s_cbranch_scc1 LD_Q')
    e('v_mov_b32 v10, s68'); e('s_waitcnt vmcnt(0)'); e('ds_write_b32 v11, v10'); e('s_waitcnt lgkmcnt(0)')
    if EARLY: e('s_barrier')
    e('s_barrier'); e('s_branch LD_Q')
    e('LD_QS:')
    e('ds_read_b32 v13, v12'); e('s_waitcnt lgkmcnt(0)'); e('v_cmp_gt_u32 vcc, s69, v13'); e('s_cbranch_vccz LD_QR')
    e('v_mov_b32 v10, s68'); e('s_waitcnt vmcnt(0)'); e('ds_write_b32 v11, v10')
    lds_wait(12,13,'s69')
    if TRACE: e('s_memtime s[96:97]'); e('s_waitcnt lgkmcnt(0)'); e('s_mov_b32 m0, s68'); e('s_nop 3'); e('v_writelane_b32 v41, s96, m0'); e('s_mov_b32 m0, s67')
    e('s_branch LD_QR')

def aux():
    e('K_AUX:')
    e('s_setprio %d'%AP)
    e('s_sub_u32 s7, %s, 6'%s(sWV))
    e('v_lshrrev_b32 v1, 3, v0'); e('v_and_b32 v2, 7, v0'); e('v_lshrrev_b32 v3, 1, v1')
    e('v_xor_b32 v4, v2, v3'); e('v_lshlrev_b32 v4, 4, v4'); e('v_xor_b32 v5, 64, v4')
    e('s_mov_b32 s16, 73728'); e('v_mul_u32_u24 v6, s16, v1')
    for p in range(4):
        e('v_add_u32 %s, v6, %s'%(v(16+p),'v5' if p%2 else 'v4'))
        if p: e('v_add_u32 %s, %d, %s'%(v(16+p),p*(8*73728-1024),v(16+p)))
    e('v_lshlrev_b32 v25, 4, v0')
    e('s_movk_i32 s17, 1152'); e('v_and_b32 v8, 31, v0'); e('v_mul_u32_u24 v7, 57, v8'); e('v_lshrrev_b32 v62, 9, v7'); e('v_mul_u32_u24 v7, 9, v62'); e('v_sub_u32 v7, v8, v7'); e('v_mul_u32_u24 v24, s17, v7'); e('v_lshrrev_b32 v7, 5, v0'); e('v_lshl_add_u32 v24, v7, 6, v24')
    e('s_lshl_b32 s18, s7, 5'); e('s_add_u32 s18, s18, %s'%s(sC)); e('s_mul_i32 s18, s18, 1152')
    e('s_mul_i32 s19, %s, 576'%s(sJ)); e('s_mul_i32 s64, %s, 18'%s(sC)); e('s_add_u32 s19, s19, s64')
    e('s_mul_i32 s64, s7, 9'); e('s_add_u32 s19, s19, s64'); e('s_mul_i32 s19, s19, 1152')
    e('s_mov_b32 s64, s6')
    e('s_lshl_b32 s69, s7, 12'); e('s_lshl_b32 s70, s7, 10'); e('s_add_u32 s65, s69, %d'%XW0)
    e('s_waitcnt lgkmcnt(0)')
    srd(sX,44,2359296); srd(sGW,56,1152)
    def issueX(h):
        if h==0: e('s_lshl_b32 s67, s64, 7'); e('s_add_u32 s67, s67, s18')
        e('s_mov_b32 m0, s65'); e('s_nop 0')
        for p in (2*h,2*h+1): e('buffer_load_dwordx4 %s, %s, s67 offen offset:%d lds'%(v(16+p),s(sX,4),p*1024))
        if h==1:
            e('s_add_u32 s64, s64, 1'); e('s_cmp_eq_u32 s64, 9'); e('s_cselect_b32 s64, 0, s64')
            e('s_add_u32 s65, s65, 8192'); e('s_sub_u32 s66, s65, 32768'); e('s_cmp_ge_u32 s65, %d'%(XW0+32768)); e('s_cselect_b32 s65, s66, s65')
    issueX(0); issueX(1)
    e('s_add_u32 m0, s70, %d'%GWL); e('s_cmp_eq_u32 s7, 0'); e('s_cselect_b32 exec_lo, -1, 0xff'); e('s_cselect_b32 exec_hi, -1, 0')
    e('buffer_load_dwordx4 v25, %s, s70 offen lds'%s(sGW,4))
    e('s_mov_b64 exec, -1')
    srd(sW2,54,5308416); srd(sWS,62,WS_BYTES); srd(sOUT,58,2359296); srd(sDBG,60,256)
    FC,FS,FN=112,120,128; GF=136; SEL=200; UO=208; MK=212; TR=216; PO=220; GG=224; L16=228; PL1=229; PL2=230; L0=231
    e('v_and_b32 v8, 15, v0'); e('v_lshrrev_b32 v9, 4, v0')
    e('v_mov_b32 %s, 0'%v(L0))
    e('s_lshl_b32 s71, s2, 1'); e('s_add_u32 s71, s71, s7'); e('s_lshl_b32 s71, s71, 2'); e('s_add_u32 s71, s71, %d'%FLU)
    e('v_lshrrev_b32 v10, 1, v8'); e('v_xor_b32 v10, v10, v9'); e('v_lshlrev_b32 v10, 4, v10')
    e('v_lshl_add_u32 v20, v8, 7, v10'); e('v_add_u32 v20, %d, v20'%XW0); e('v_xor_b32 v21, 64, v20')
    e('v_mov_b32 v26, v20'); e('v_mov_b32 v27, v21'); e('v_add_u32 v28, s69, v20'); e('v_add_u32 v29, s69, v21')
    e('v_lshlrev_b32 v22, 4, v9'); e('v_add_u32 v22, %d, v22'%GWL); e('s_lshl_b32 s68, s6, 7'); e('v_add_u32 v23, s68, v22')
    e('s_lshl_b32 s44, s7, 11')
    ACC=64; TM=136; WA=176; RC=232
    for i in list(range(8))+list(range(16,24))+list(range(32,40)): e('v_mov_b32 %s, 0'%v(TM+i))
    for i in list(range(8,16))+list(range(24,32)): e('v_mov_b32 %s, 0'%v(ACC+i))
    e('s_sub_u32 s48, s6, 1'); e('s_cmp_eq_u32 s6, 0'); e('s_cselect_b32 s48, 8, s48'); e('s_lshl_b32 s48, s48, 6')
    e('v_lshlrev_b32 v11, 3, v9'); e('v_add_u32 v11, s48, v11'); e('v_cvt_f32_u32 v11, v11')
    e('s_mul_i32 s49, %s, 36'%s(sJ)); e('s_lshl_b32 s50, s7, 4'); e('s_add_u32 s50, s50, s49'); e('s_add_u32 s49, s49, 32')
    for mix in range(2):
        if mix==0: e('v_add_u32 v12, s50, v8')
        else: e('v_and_b32 v12, 7, v8'); e('v_add_u32 v12, s49, v12')
        e('v_cvt_f32_u32 v12, v12'); e('v_mul_f32 v10, 0x%08x, v12'%f2u(1/9.)); e('v_mul_f32 v12, 0x%08x, v12'%f2u(1/576.)); e('v_mul_f32 v13, v12, v11')
        e('v_cos_f32 %s, v10'%v(RC+2*mix)); e('v_sin_f32 %s, v10'%v(RC+2*mix+1))
        if mix:
            e('v_cmp_gt_u32 vcc, 8, v8'); e('v_add_f32 v4, 0x3e800000, v13'); e('v_sub_f32 v5, 0, %s'%v(RC+3))
            e('v_cndmask_b32 v13, v4, v13, vcc'); e('v_cndmask_b32 %s, %s, v5, vcc'%(v(RC+3),v(RC+3)))
            e('v_cmp_eq_u32 vcc, 5, v8'); e('v_mov_b32 v4, 1.0'); e('v_mov_b32 v5, 0')
            e('v_cndmask_b32 %s, %s, v4, vcc'%(v(RC+2),v(RC+2))); e('v_cndmask_b32 %s, %s, v5, vcc'%(v(RC+3),v(RC+3)))
        for kp in range(2):
            for jp in range(4):
                for u in range(2):
                    e('v_fmamk_f32 %s, v12, 0x%08x, v13'%(v(30+u),f2u(32*kp+2*jp+u))); e('v_fract_f32 %s, %s'%(v(30+u),v(30+u)))
                e('v_cos_f32 v32, v30'); e('v_cos_f32 v33, v31')
                if mix==0:
                    e('v_sin_f32 v34, v30'); e('v_sin_f32 v35, v31')
                    e('v_cvt_pk_bf16_f32 %s, v32, v33'%v(WA+4*kp+jp)); e('v_cvt_pk_bf16_f32 %s, -v34, -v35'%v(WA+8+4*kp+jp))
                else:
                    e('s_nop 0'); e('v_cvt_pk_bf16_f32 %s, v32, v33'%v(WA+16+4*kp+jp))
    for _ in range(3): issueX(0); issueX(1)
    if PK:
        e('v_mov_b32 v60, %s'%v(RC+1)); e('v_mov_b32 v61, %s'%v(RC+1)); e('v_mov_b32 %s, %s'%(v(RC+1),v(RC)))
    global out
    save=out; parts=[]
    def begin():
        global out
        out=[]
    def end(): parts.append(out)
    begin()
    e('v_lshlrev_b32 v11, 2, v9'); e('v_cvt_f32_u32 v11, v11')
    for b in range(2):
        e('v_add_u32 v12, %d, v8'%(16*b)); e('v_cvt_f32_u32 v12, v12'); e('v_mul_f32 v12, 0x3d000000, v12'); e('v_mul_f32 v13, v12, v11')
        for jp in range(4):
            o=[(2*jp+u)%4+16*((2*jp+u)//4) for u in range(2)]
            for u in range(2): e('v_fmamk_f32 %s, v12, 0x%08x, v13'%(v(30+u),f2u(o[u])))
            e('v_cos_f32 v32, v30'); e('v_cos_f32 v33, v31'); e('v_sin_f32 v34, v30'); e('v_sin_f32 v35, v31')
            e('v_cvt_pk_bf16_f32 %s, v32, v33'%v(FC+4*b+jp)); e('v_cvt_pk_bf16_f32 %s, v34, v35'%v(FS+4*b+jp))
            e('v_xor_b32 %s, 0x80008000, %s'%(v(FN+4*b+jp),v(FS+4*b+jp)))
    end()
    for i in range(4):
        begin()
        e('s_lshr_b32 s48, %s, 2'%s(sJ)); e('s_lshl_b32 s48, s48, 1'); e('s_and_b32 s49, %s, 1'%s(sJ)); e('s_add_u32 s48, s48, s49')
        e('s_add_u32 s48, s48, %d'%i); e('s_and_b32 s48, s48, 3')
        e('v_lshlrev_b32 %s, 4, v0'%v(L16)); e('v_lshlrev_b32 v11, 1, v9'); e('v_cvt_f32_u32 v11, v11')
        e('s_lshl_b32 s49, s48, 6'); e('s_add_u32 s49, s49, %d'%GL); e('v_lshlrev_b32 v13, 2, v8'); e('v_add_u32 %s, s49, v13'%v(GG+i))
        e('s_lshr_b32 s49, s48, 1'); e('s_and_b32 s50, s48, 1')
        e('s_lshl_b32 s51, s49, 12'); e('s_lshl_b32 s52, s50, 10'); e('s_add_u32 s51, s51, s52'); e('v_add_u32 %s, s51, %s'%(v(PO+i),v(L16)))
        e('s_lshl_b32 s49, s49, 5'); e('s_add_u32 s49, s49, s52'); e('s_add_u32 s49, s49, %s'%s(sC))
        e('v_lshlrev_b32 v5, 6, v8'); e('v_add_u32 v6, s49, v5')
        e('v_cvt_f32_u32 v5, v6'); e('v_mul_f32 v5, 0x3a000000, v5'); e('v_mul_f32 v13, v5, v11')
        e('s_movk_i32 s49, 1152'); e('v_and_b32 v4, 1, v9'); e('v_lshlrev_b32 v4, 5, v4'); e('v_lshrrev_b32 v7, 1, v9'); e('v_lshl_add_u32 v4, v7, 4, v4')
        e('v_mad_u32_u24 %s, v6, s49, v4'%v(TR+i))
        for k in range(4):
            for u in range(2):
                for h in range(2): e('v_fmamk_f32 %s, v5, 0x%08x, v13'%(v(30+h),f2u(8*k+u+32*h)))
                e('v_cos_f32 v32, v30'); e('v_sin_f32 v33, v30'); e('v_cos_f32 v34, v31'); e('v_sin_f32 v35, v31')
                e('v_cvt_pk_bf16_f32 %s, v32, v33'%v(GF+16*i+4*k+2*u)); e('v_cvt_pk_bf16_f32 %s, v34, v35'%v(GF+16*i+4*k+2*u+1))
        end()
    begin()
    e('v_lshrrev_b32 v4, 2, v8'); e('v_cmp_eq_u32 vcc, v4, v9'); e('v_and_b32 v5, 1, v8'); e('v_lshlrev_b32 v5, 4, v5')
    e('v_mov_b32 v6, 0x3f80'); e('v_lshlrev_b32 v6, v5, v6'); e('v_cndmask_b32 v6, 0, v6, vcc')
    e('v_and_b32 v5, 2, v8'); e('v_cmp_eq_u32 vcc, 0, v5'); e('v_mov_b32 %s, 0'%v(SEL+2)); e('v_mov_b32 %s, 0'%v(SEL+3))
    e('v_cndmask_b32 %s, 0, v6, vcc'%v(SEL)); e('v_sub_u32 %s, v6, %s'%(v(SEL+1),v(SEL)))
    e('v_mov_b32 %s, 0'%v(SEL+4)); e('v_mov_b32 %s, 0'%v(SEL+5)); e('v_mov_b32 %s, %s'%(v(SEL+6),v(SEL))); e('v_mov_b32 %s, %s'%(v(SEL+7),v(SEL+1)))
    e('v_and_b32 v4, 1, v0'); e('v_lshlrev_b32 v4, 3, v4'); e('s_lshl_b32 s49, s7, 2'); e('v_add_u32 v4, s49, v4'); e('v_bfe_u32 v5, v0, 1, 3'); e('v_lshl_add_u32 %s, v5, 7, v4'%v(PL1))
    e('v_sub_u32 v5, %s, v5'%s(sJ)); e('v_and_b32 v5, 7, v5'); e('v_add_u32 v254, 1, v5')
    e('v_and_b32 v4, 7, v0'); e('v_lshlrev_b32 v4, 7, v4'); e('s_lshr_b32 s49, %s, 1'%s(sJ)); e('s_lshl_b32 s49, s49, 2'); e('v_add_u32 %s, s49, v4'%v(PL2))
    e('s_sub_u32 s48, 32, %s'%s(sC)); e('s_and_b32 s48, s48, 31')
    e('s_mov_b32 s49, %d'%(2*12288)); e('v_mul_u32_u24 v12, s49, v9')
    e('s_mov_b32 s50, %d'%(32*12288))
    e('s_lshl_b32 s54, %s, 6'%s(sJ)); e('s_lshl_b32 s49, s7, 5'); e('s_add_u32 s54, s54, s49')
    e('s_and_b32 s55, %s, 2'%s(sJ)); e('s_lshl_b32 s55, s55, 4'); e('s_add_u32 s55, s55, 512')
    for tb in range(4):
        e('s_add_u32 s49, %s, %d'%(('s54',16*tb) if tb<2 else ('s55',16*(tb-2)))); e('v_add_u32 v4, s49, v8')
        e('v_sub_u32 v5, 576, v4'); e('v_cmp_lt_u32 vcc, 288, v4'); e('v_mov_b32 v6, %s'%s(sC)); e('v_mov_b32 v7, s48')
        e('v_cndmask_b32 v4, v4, v5, vcc'); e('v_cndmask_b32 v6, v6, v7, vcc')
        e('v_mov_b32 v7, 0x80000000'); e('v_cndmask_b32 %s, 0, v7, vcc'%v(MK+tb))
        e('v_mul_u32_u24 v5, 57, v4'); e('v_lshrrev_b32 v5, 11, v5'); e('v_min_u32 v5, 7, v5')
        e('v_mul_u32_u24 v7, 36, v5'); e('v_sub_u32 v4, v4, v7')
        e('v_mul_u32_u24 v5, s50, v5'); e('v_lshl_add_u32 v5, v6, 7, v5'); e('v_add_u32 v5, v5, v12')
        e('v_lshrrev_b32 v6, 4, v4'); e('v_lshl_add_u32 v5, v6, 12, v5'); e('v_and_b32 v4, 15, v4'); e('v_lshl_add_u32 %s, v4, 3, v5'%v(UO+tb))
    end()
    out=save
    NPRE=PRE
    out.extend(parts[0])
    later=[]
    XF=36
    def rotate(lo,hi,mix):
        if PK:
            for i in range(lo,hi,2):
                e('v_pk_mul_f32 %s, %s, %s'%(v(TM+i,2),v(RC,2),v(ACC+i,2))); e('v_pk_mul_f32 %s, %s, %s'%(v(TM+16+i,2),v(RC,2),v(ACC+16+i,2)))
                e('v_pk_fma_f32 %s, %s, %s, %s neg_lo:[1,0,0] neg_hi:[1,0,0]'%(v(TM+i,2),v(60,2),v(ACC+16+i,2),v(TM+i,2))); e('v_pk_fma_f32 %s, %s, %s, %s'%(v(TM+16+i,2),v(60,2),v(ACC+i,2),v(TM+16+i,2)))
        else:
            for i in range(lo,hi):
                e('v_mul_f32 %s, %s, %s'%(v(TM+i),v(RC),v(ACC+i))); e('v_mul_f32 %s, %s, %s'%(v(TM+16+i),v(RC),v(ACC+16+i)))
                e('v_fma_f32 %s, -%s, %s, %s'%(v(TM+i),v(RC+1),v(ACC+16+i),v(TM+i))); e('v_fmac_f32 %s, %s, %s'%(v(TM+16+i),v(RC+1),v(ACC+i)))
        if mix:
            for i in range(8): e('v_mul_f32 %s, %s, %s'%(v(TM+32+i),v(RC+2),v(ACC+32+i)))
            for i in range(8): e('v_fmac_f32_dpp %s, %s, %s row_ror:8 row_mask:0xf bank_mask:0xf'%(v(TM+32+i),v(ACC+32+i),v(RC+3)))
    e('s_mov_b32 s46, 0'); e('s_mov_b32 s47, 0')
    e('s_and_b32 s45, %s, %d'%(s(sC),XSTG)); e('s_mov_b32 s53, 4'); e('s_add_u32 s51, s45, 4'); e('s_cmp_ge_u32 s45, 2'); e('s_cselect_b32 s51, s45, s51')
    e('s_waitcnt vmcnt(12)')
    e('AX_L:')
    for kp in range(2):
        if TRACE:
            e('s_memtime s[96:97]'); e('s_lshl_b32 s95, s46, 1'); e('s_add_u32 m0, s95, %d'%(kp+1)); e('s_waitcnt lgkmcnt(0)'); e('v_writelane_b32 v252, s96, m0'); e('v_writelane_b32 v253, s92, m0')
        e('s_barrier')
        for sg in range(4): e('ds_read_b128 %s, %s offset:%d'%(v(XF+4*sg,4),v(26+kp),sg*2048))
        for sg in range(2): e('ds_read_b128 %s, %s offset:%d'%(v(XF+16+4*sg,4),v(28+kp),sg*2048))
        e('s_mov_b32 exec_lo, 0x00200020'); e('s_mov_b32 exec_hi, 0x00200020')
        e('ds_read_b128 %s, v23 offset:%d'%(v(WA+16+4*kp,4),64*kp))
        e('s_mov_b64 exec, -1')
        e('s_sub_u32 s51, s51, 1'); e('s_cbranch_scc1 AX_B%d'%kp)
        e('AX_S%d:'%kp)
        def rot(lo,hi,mix):
            L=[]
            for i in range(lo,hi):
                L+=['v_mul_f32 %s, %s, %s'%(v(TM+i),v(RC),v(ACC+i)),'v_mul_f32 %s, %s, %s'%(v(TM+16+i),v(RC),v(ACC+16+i)),
                    'v_fma_f32 %s, -%s, %s, %s'%(v(TM+i),v(RC+1),v(ACC+16+i),v(TM+i)),'v_fmac_f32 %s, %s, %s'%(v(TM+16+i),v(RC+1),v(ACC+i))]
            if mix:
                L+=['v_mul_f32 %s, %s, %s'%(v(TM+32+i),v(RC+2),v(ACC+32+i)) for i in range(8)]
                L+=['v_fmac_f32_dpp %s, %s, %s row_ror:8 row_mask:0xf bank_mask:0xf'%(v(TM+32+i),v(ACC+32+i),v(RC+3)) for i in range(8)]
            return L
        M=lambda t,sg: mf(ACC+16*t+4*sg, XF+4*sg, WA+8*t+4*kp, TM+16*t+4*sg if kp==0 else None)
        X=lambda sg: mf(ACC+32+4*sg, XF+16+4*sg, WA+16+4*kp, TM+32+4*sg if kp==0 else None)
        if kp==0:
            R=rot(8,16,False)
            for x in R[:8]: e(x)
            e('s_waitcnt lgkmcnt(0)')
            R=R[8:]
            for m in (M(0,0),M(1,0),M(0,1),M(1,1),X(0),X(1)):
                e(m)
                for x in R[:4]: e(x)
                R=R[4:]
            assert not R
            for m in (M(0,2),M(1,2),M(0,3),M(1,3)): e(m)
        else:
            A_=['s_add_u32 s47, s47, 8192','s_and_b32 s47, s47, 32767','s_add_u32 s66, s47, s69','s_add_u32 s68, s68, 128','s_cmp_eq_u32 s68, 1152','s_cselect_b32 s68, 0, s68',
                'v_add_u32 v26, s47, v20','v_add_u32 v27, s47, v21','v_add_u32 v28, s66, v20','v_add_u32 v29, s66, v21','v_add_u32 v23, s68, v22']
            for x in A_: e(x)
            e('s_waitcnt lgkmcnt(0)')
            for m in (M(0,0),M(1,0),M(0,1),M(1,1),X(0),X(1)): e(m)
            e('s_nop 3')
            R=rot(0,8,True)
            for m in (M(0,2),M(1,2),M(0,3),M(1,3)):
                for x in R[:4]: e(x)
                R=R[4:]
                e(m)
            e('s_cmp_eq_u32 s46, 8'); e('s_cbranch_scc1 AX_D')
            for x in R: e(x)
    if TRACE: e('s_memtime s[92:93]')
    e('s_lshr_b32 s66, s45, 1'); e('s_xor_b32 s66, s66, s46'); e('s_add_u32 s46, s46, 1')
    e('s_bitcmp1_b32 s66, 0'); e('s_cbranch_scc1 AX_W0')
    e('s_cmp_eq_u32 s46, 1'); e('s_cbranch_scc0 AX_L')
    e('s_waitcnt vmcnt(8)'); e('s_branch AX_L')
    e('AX_W0:')
    e('s_waitcnt vmcnt(0)'); e('s_branch AX_L')
    for kp in range(2):
        e('AX_B%d:'%kp)
        e('s_cmp_ge_u32 s46, 5'); e('s_cselect_b32 s51, 100, 3')
        e('s_add_u32 s52, s46, 3'); e('s_min_u32 s52, s52, 8')
        e('AX_C%d:'%kp)
        issueX(0); issueX(1)
        e('s_add_u32 s53, s53, 1'); e('s_cmp_le_u32 s53, s52'); e('s_cbranch_scc1 AX_C%d'%kp)
        e('v_add_u32 v4, %s, v62'%s(sJ)); e('v_and_b32 v4, 7, v4'); e('v_cmp_eq_u32 vcc, 0, v62'); e('v_mov_b32 v5, 8'); e('v_add_u32 v62, 3, v62')
        e('v_cndmask_b32 v4, v4, v5, vcc'); e('v_lshl_add_u32 v4, v4, 7, v24')
        e('s_mov_b32 exec_lo, 0x7ffffff'); e('s_mov_b32 exec_hi, %s'%('0x7ffffff' if T2 else '0'))
        e('buffer_load_dword v15, v4, %s, s19 offen'%s(sW2,4))
        e('s_mov_b64 exec, -1')
        e('s_branch AX_S%d'%kp)
    e('AX_D:')
    e('s_barrier')
    e('s_setprio %d'%AP2); e('s_nop 3')
    st(1)
    e('v_lshlrev_b32 v12, 9, v9'); e('v_lshl_add_u32 v12, v8, 3, v12')
    e('s_lshl_b32 s16, %s, 5'%s(sJ)); e('s_add_u32 s16, s16, %s'%s(sC)); e('s_mul_i32 s16, s16, 12288'); e('s_add_u32 s16, s16, %d'%U_OFF)
    e('s_add_u32 s17, s16, 8192'); e('s_add_u32 s16, s16, s69')
    FR=16
    def pack(dst,src,n=8):
        for h in range(n): e('v_cvt_pk_bf16_f32 %s, %s, %s'%(v(dst+h),v(src+2*h),v(src+2*h+1)))
    def stageA(D,FR):
        for sh in range(2):
            for be in range(2):
                d=D+16*sh+8*be; a=FR+4*sh; b=FR+8+4*sh
                mfma(d,FC+4*be,a,'0'); mfma(d+4,FC+4*be,b,'0'); mfma(d,FS+4*be,b); mfma(d+4,FN+4*be,a)
    def ustore(D,O,so):
        for be in range(2):
            for r in range(4):
                o=O+8*be+2*r
                for sh in range(2): e('v_cvt_pk_bf16_f32 %s, %s, %s'%(v(o+sh),v(D+16*sh+8*be+r),v(D+16*sh+8*be+4+r)))
                e('buffer_store_dwordx2 %s, v12, %s, %s offen offset:%d sc1'%(v(o,2),s(sWS,4),so,be*2048+r*128))
    MF=136
    e('v_add_u32 v14, %d, v25'%MX)
    pack(MF,ACC+32,4)
    e('s_lshl_b32 s66, s7, 7'); e('s_add_u32 s66, s66, %d'%GL); e('v_lshlrev_b32 v13, 4, v9'); e('v_add_u32 v13, s66, v13')
    e('s_mov_b32 exec_lo, 0x00200020'); e('s_mov_b32 exec_hi, 0x00200020')
    for sg in range(2): e('ds_write_b128 v13, %s offset:%d'%(v(ACC+32+4*sg,4),64*sg))
    e('s_mov_b64 exec, -1')
    e('s_cmp_eq_u32 s7, 1'); e('s_cbranch_scc0 AX_A0'); e('ds_write_b128 v14, %s'%v(MF,4)); e('AX_A0:')
    pack(FR,ACC); pack(FR+8,ACC+16); e('s_nop 1')
    stageA(32,FR)
    e('s_nop 7')
    ustore(32,236,'s16')
    e('s_waitcnt lgkmcnt(0)')
    e('s_barrier')
    e('s_barrier')
    e('s_cmp_eq_u32 s7, 0'); e('s_cbranch_scc0 AX_A2')
    e('ds_read_b128 %s, v14'%v(MF+4,4)); e('s_waitcnt lgkmcnt(0)')
    for h in range(8): e('v_mov_b32_dpp %s, %s row_ror:8 row_mask:0xf bank_mask:0xf'%(v(MF+8+h),v(MF+h)))
    e('s_nop 1')
    stageA(64,MF)
    e('s_nop 7')
    e('s_mov_b32 exec_lo, 0x00ff00ff'); e('s_mov_b32 exec_hi, 0x00ff00ff')
    ustore(64,96,'s17')
    e('s_mov_b64 exec, -1')
    e('AX_A2:')
    out.extend(parts[1])
    e('s_waitcnt vmcnt(0)'); e('v_mov_b32 v10, 1')
    e('s_mov_b64 exec, 1'); e('buffer_store_dword v10, %s, %s, s71 offen sc1'%(v(L0),s(sWS,4))); e('s_mov_b64 exec, -1')
    for k in (2,3,4,5): out.extend(parts[k])
    for i in range(4): e('ds_read_b32 %s, %s'%(v(GG+i),v(GG+i)))
    e('s_lshl_b32 s65, %s, 10'%s(sC)); e('s_add_u32 s65, s65, %d'%FLP)
    e('s_waitcnt lgkmcnt(0)')
    for i in range(4):
        g=GG+i
        e('v_mul_f32 %s, 0xbfb8aa3b, %s'%(v(g),v(g))); e('v_exp_f32 %s, %s'%(v(g),v(g))); e('s_nop 0')
        e('v_add_f32 %s, 1.0, %s'%(v(g),v(g))); e('v_rcp_f32 %s, %s'%(v(g),v(g)))
    if NORED:
        for i in range(2,7): st(i)
        st_flush(7,0); e('s_endpgm')
    e('s_mov_b32 s47, 0')
    def gpoll(load,cmp,slp):
        L=lab('GP'); e('s_branch %sf'%L); e(L+':')
        if slp: e('s_sleep %d'%slp)
        e(L+'f:')
        for x in load: e(x)
        e('s_add_u32 s47, s47, 1'); e('s_waitcnt vmcnt(0)')
        for x in cmp: e(x)
        e('s_cmp_gt_u32 s47, %d'%SPINMAX); e('s_cbranch_scc1 %sx'%L); e('s_cbranch_vccnz '+L); e(L+'x:')
    e('s_lshl_b32 s16, s7, 8'); e('s_add_u32 s16, s16, %d'%CNS)
    e('v_and_b32 v15, 1, v0'); e('v_mul_u32_u24 v15, 516, v15'); e('v_add_u32 v15, s16, v15')
    def pace(n):
        L=lab('PC'); e(L+':'); e('s_sleep 3'); e('ds_read_b32 v5, v15')
        e('s_add_u32 s99, s99, 1'); e('s_cmp_gt_u32 s99, 0x100000'); e('s_cbranch_scc1 K_END'); e('s_waitcnt lgkmcnt(0)')
        e('v_cmp_gt_u32 vcc, %s, v5'%(n if isinstance(n,str) else min(n,38))); e('s_cbranch_vccnz '+L)
    e('v_and_b32 v4, 7, v0'); e('v_lshlrev_b32 v4, 5, v4')
    gpoll(['buffer_load_dword v5, v4, %s, 0 offen sc1'%s(sDBG,4)],['v_cmp_gt_u32 vcc, 32, v5'],8)
    e('s_and_b32 s16, %s, %d'%(s(sC),USTG)); e('s_add_u32 s16, s16, %d'%(20+UPACE))
    pace('s16')
    e('s_mov_b32 s16, %d'%FLU)
    gpoll(['buffer_load_dwordx4 v[96:99], %s, %s, s16 offen sc1'%(v(L16),s(sWS,4)),'buffer_load_dwordx4 v[100:103], %s, %s, s16 offen offset:1024 sc1'%(v(L16),s(sWS,4))],
          ['v_min3_u32 v5, v96, v97, v98','v_min3_u32 v5, v5, v99, v100','v_min3_u32 v5, v5, v101, v102','v_min_u32 v5, v5, v103','v_cmp_eq_u32 vcc, 0, v5'],USLP)
    st(2)
    UF=16; YA=80; SP=152
    def uloads(tb,dst):
        for k in range(4):
            for u in range(2):
                e('s_mov_b32 s17, %d'%(U_OFF+(8*k+u)*12288))
                e('buffer_load_dwordx2 %s, %s, %s, s17 offen sc1'%(v(dst+4*k+2*u,2),v(UO+tb),s(sWS,4)))
    def fin(y,p,og,o,vaddr,soff):
        for tb in range(2):
            for r in range(4): e('v_fma_f32 %s, %s, %s, %s'%(v(p[tb]+r),v(og),v(p[tb]+r),v(y[tb]+r)))
        for tb in range(2):
            for h in range(2): e('v_cvt_pk_bf16_f32 %s, %s, %s'%(v(o+2*tb+h),v(p[tb]+2*h),v(p[tb]+2*h+1)))
        e('s_nop 1')
        e('v_permlane16_swap_b32 %s, %s'%(v(o),v(o+2))); e('v_permlane16_swap_b32 %s, %s'%(v(o+1),v(o+3)))
        e('buffer_store_dwordx4 %s, %s, %s, %s offen%s'%(v(o,4),v(vaddr),s(sOUT,4),soff,[' ',' sc1',' nt'][OSC]))
    for tb in range(2): uloads(tb,UF+16*tb)
    e('s_cmp_eq_u32 s7, 1'); e('s_cbranch_scc0 AX_U')
    for tb in range(2,4): uloads(tb,UF+16*tb)
    gpoll(['buffer_load_dword v5, %s, %s, s65 offen sc1'%(v(PL2),s(sWS,4))],['v_cmp_gt_u32 vcc, 1, v5'],10)
    e('s_mul_i32 s16, %s, %d'%(s(sC),8*73728)); e('s_lshl_b32 s17, %s, 10'%s(sJ)); e('s_add_u32 s16, s16, s17'); e('s_add_u32 s16, s16, 65536')
    for jj in range(8):
        e('buffer_load_dwordx4 %s, %s, %s, s16 offen sc1'%(v(80+4*jj,4),v(L16),s(sWS,4)))
        if jj<7: e('s_add_u32 s16, s16, 73728')
    for tb in range(2,4):
        for i in range(16): e('v_xor_b32 %s, %s, %s'%(v(UF+16*tb+i),v(MK+tb),v(UF+16*tb+i)))
    e('s_nop 1')
    for k in range(4):
        for tb in range(2): mfma(112+4*tb, UF+32+16*tb+4*k, GF+4*k, '0' if k==0 else None)
    e('s_waitcnt vmcnt(0)')
    for jj in range(8):
        for tb in range(2): mfma(120+4*tb, SEL+4*tb, 80+4*jj, '0' if jj==0 else None)
    for r in range(8): e('v_mul_f32 %s, %s, %s'%(v(112+r),v(GG),v(112+r)))
    e('v_sub_f32 v14, 1.0, %s'%v(GG)); e('s_lshl_b32 s16, s55, 1')
    fin((112,116),(120,124),14,248,TR,'s16')
    e('s_branch AX_U2')
    e('AX_U:')
    e('s_waitcnt vmcnt(0)')
    e('AX_U2:')
    for tb in range(2):
        for i in range(16): e('v_xor_b32 %s, %s, %s'%(v(UF+16*tb+i),v(MK+tb),v(UF+16*tb+i)))
    e('s_nop 1')
    for k in range(4):
        for tb in range(2):
            for i in range(4): mfma(YA+16*tb+4*i, UF+16*tb+4*k, GF+16*i+4*k, '0' if k==0 else None)
    st(3)
    e('s_mul_i32 s18, %s, %d'%(s(sC),8*73728)); e('s_lshl_b32 s17, %s, 13'%s(sJ)); e('s_add_u32 s18, s18, s17'); e('s_add_u32 s18, s18, s44')
    def acc(buf,first):
        for i in range(4):
            for tb in range(2): mfma(SP+16*tb+4*i, SEL+4*tb, buf+4*i, '0' if first else None)
    BUF=lambda i: 16+16*(i%4)
    e('s_mov_b32 s66, 0')
    def addr(i,so,sm):
        e('s_sub_u32 %s, %s, %d'%(so,s(sJ),i)); e('s_and_b32 %s, %s, 7'%(so,so))
        e('s_lshl_b32 %s, %s, 1'%(sm,so)); e('s_lshl_b32 %s, 3, %s'%(sm,sm))
        e('s_mul_i32 %s, %s, 73728'%(so,so)); e('s_add_u32 %s, %s, s18'%(so,so))
    def pollbits(i,sm,sx,slp):
        e('s_branch AX_F%d'%i); e('AX_R%d:'%i)
        if slp: e('s_sleep %d'%slp)
        e('AX_F%d:'%i)
        e('buffer_load_dword v5, %s, %s, s65 offen sc1'%(v(PL1),s(sWS,4))); e('s_add_u32 s47, s47, 1'); e('s_waitcnt vmcnt(0)')
        e('v_cmp_le_u32 vcc, v254, v5'); e('s_cmp_gt_u32 s47, %d'%SPINMAX); e('s_cbranch_scc1 AX_G%d'%i)
        e('s_mov_b32 s66, vcc_lo'); e('s_mov_b32 exec_lo, %s'%sx); e('s_mov_b32 exec_hi, 0')
        e('s_and_b32 s19, s66, %s'%sm); e('s_cmp_eq_u32 s19, %s'%sm); e('s_cbranch_scc0 AX_R%d'%i)
    def loads(i,so):
        for u in range(4): e('buffer_load_dwordx4 %s, %s, %s, %s offen sc1'%(v(BUF(i)+4*u,4),v(PO+u),s(sWS,4),so))
    addr(7,'s48','s49')
    e('s_add_u32 s16, s44, %d'%QH)
    for u in range(4): e('v_add_u32 %s, s16, %s'%(v(128+u),v(PO+u)))
    for i in range(1,7):
        addr(i,'s16','s17')
        e('s_and_b32 s19, s66, s17'); e('s_cmp_eq_u32 s19, s17'); e('s_cbranch_scc1 AX_G%d'%i)
        pace(max(20+2*(i+2)+PPACE-FEARLY, LATE if i>1 else 0))
        if i==6: e('s_or_b32 s50, s17, s49'); e('s_mov_b32 exec_lo, s50'); e('s_mov_b32 exec_hi, 0')
        pollbits(i,'s17','s50' if i==6 else 's17', 0 if i==6 else PSLP)
        e('AX_G%d:'%i)
        e('s_mov_b64 exec, -1')
        loads(i,'s16')
        if 3<=i<=6: e('s_waitcnt vmcnt(8)'); acc(BUF(i-2), i==3)
        if i==1:
            for sl in range(4):
                for tb in range(2):
                    for r in range(4): e('v_mul_f32 %s, %s, %s'%(v(YA+16*tb+4*sl+r),v(GG+sl),v(YA+16*tb+4*sl+r)))
                e('v_sub_f32 %s, 1.0, %s'%(v(GG+sl),v(GG+sl)))
    e('s_and_b32 s19, s66, s49'); e('s_cmp_eq_u32 s19, s49'); e('s_cbranch_scc1 AX_G7')
    e('s_mov_b32 exec_lo, s49'); e('s_mov_b32 exec_hi, 0')
    pollbits(7,'s49','s49',0)
    e('AX_G7:')
    e('s_mov_b64 exec, -1')
    loads(7,'s48')
    e('s_waitcnt vmcnt(8)'); acc(BUF(5),False)
    lds_wait(15,5,'39')
    for u in range(4): e('ds_read_b128 %s, %s'%(v(BUF(4)+4*u,4),v(128+u)))
    e('s_waitcnt lgkmcnt(0)'); acc(BUF(4),False)
    st(4)
    e('s_waitcnt vmcnt(4)'); acc(BUF(6),False)
    st(5)
    e('s_lshl_b32 s16, s54, 1')
    for sl in range(4):
        e('s_waitcnt vmcnt(%d)'%(3-sl))
        for tb in range(2): mfma(SP+16*tb+4*sl, SEL+4*tb, BUF(7)+4*sl)
    e('s_nop 3')
    for sl in range(4): fin((YA+4*sl,YA+16+4*sl),(SP+4*sl,SP+16+4*sl),GG+sl,232+4*sl,TR+sl,'s16')
    if STAMP:
        e('s_waitcnt vmcnt(0)'); st(6); st_flush(7,0)
        if TRACE: trace_flush(252,253)
    e('s_endpgm')
    for n,k in enumerate(later):
        e('AX_SL%d:'%n); out.extend(parts[k]); e('s_branch AX_SR')

def main():
    global INMAIN
    e('K_MAIN:')
    if IW:
        e('s_getpc_b64 s[16:17]'); e('IWP:')
        e('s_sub_u32 s16, s16, IWP-%s'%NAME); e('s_subb_u32 s17, s17, 0')
        e('s_lshl_b32 s18, %s, 2'%s(sC)); e('s_add_u32 s18, s18, %s'%s(sWV)); e('s_lshl_b32 s18, s18, 8')
        e('v_lshlrev_b32 v3, 7, v0'); e('v_add_u32 v3, s18, v3'); e('v_min_u32 v3, K_END-%s, v3'%NAME)
        e('s_mov_b64 exec, 3'); e('global_load_dword v84, v3, s[16:17]'); e('s_mov_b64 exec, -1')
    ACC=112; AF=16; XB=52
    e('v_lshlrev_b32 v7, 2, v0'); e('s_lshl_b32 s16, %s, 8'%s(sWV)); e('s_add_u32 s16, s16, %d'%LND); e('v_add_u32 v3, s16, v7'); e('v_mov_b32 v107, 0')
    for i in range(3): e('ds_write_b32 v3, v107 offset:%d'%(1024*i))
    e('v_add_u32 v108, 1024, v3')
    e('v_and_b32 v3, 1, v0'); e('v_mul_u32_u24 v3, 260, v3'); e('v_add_u32 v109, %d, v3'%LND)
    e('v_and_b32 v3, 7, v0'); e('v_min_u32 v3, 5, v3'); e('v_mul_u32_u24 v3, 260, v3'); e('v_add_u32 v111, %d, v3'%CNS)
    if CT:
        e('s_mul_i32 s16, %s, 41'%s(sWV)); e('v_add_u32 v3, s16, v0'); e('v_mul_u32_u24 v4, 57, v3'); e('v_lshrrev_b32 v4, 9, v4')
        e('s_movk_i32 s16, %d'%(9216-1152)); e('v_lshlrev_b32 v3, 7, v3'); e('v_mad_u32_u24 v3, v4, s16, v3')
        e('s_mul_i32 s16, %s, %d'%(s(sC),18*9216)); e('s_mul_i32 s17, %s, 1152'%s(sJ)); e('s_add_u32 s16, s16, s17')
    e('s_waitcnt lgkmcnt(0)')
    if CT:
        srd(sW1,52,5308416)
        e('s_mov_b32 exec_hi, 0x1ff'); e('buffer_load_dword v84, v3, %s, s16 offen'%s(sW1,4)); e('s_mov_b32 exec_hi, -1')
    srd(sWS,62,WS_BYTES); srd(sDBG,60,256)
    e('v_cmp_eq_u32 vcc, 0, v0'); e('v_mov_b32 v7, %d'%OOB); e('v_mov_b32 v8, 0'); e('v_cndmask_b32 v85, v7, v107, vcc')
    e('s_cmp_eq_u32 %s, 0'%s(sWV)); e('s_cbranch_scc0 M_NZ')
    e('v_mov_b32 v9, 0'); e('v_mov_b32 v10, 0'); e('v_mov_b32 v11, 0')
    e('s_lshl_b32 s16, s2, 7'); e('s_add_u32 s16, s16, %d'%FLP)
    e('buffer_store_dwordx4 v[8:11], v85, %s, s16 offen sc1'%s(sWS,4))
    e('s_lshl_b32 s16, s2, 3'); e('s_add_u32 s16, s16, %d'%FLU)
    e('buffer_store_dwordx2 v[8:9], v85, %s, s16 offen sc1'%s(sWS,4))
    e('M_NZ:')
    e('v_and_b32 v1, 15, v0'); e('v_lshrrev_b32 v2, 4, v0')
    e('s_movk_i32 s61, 1152')
    e('v_lshrrev_b32 v3, 2, v1'); e('v_and_b32 v4, 3, v0')
    e('v_lshl_add_u32 v5, v2, 3, v3'); e('v_mul_u32_u24 v5, s61, v5'); e('v_lshl_add_u32 v5, v4, 3, v5')
    e('v_lshrrev_b32 v6, 1, v3'); e('v_and_b32 v7, 1, v2'); e('v_lshl_add_u32 v6, v7, 1, v6')
    e('s_mul_i32 s60, %s, 9'%s(sWV))
    for i in range(4):
        e('s_add_u32 s16, s60, %d'%i); e('s_and_b32 s17, s16, 3'); e('s_lshr_b32 s16, s16, 2'); e('s_lshl_b32 s16, s16, 7')
        e('v_xor_b32 v7, s17, v6'); e('v_lshl_add_u32 v7, v7, 5, v5'); e('v_add_u32 %s, s16, v7'%v(88+i)); e('v_mov_b32 %s, %s'%(v(92+i),v(88+i)))
    e('v_lshrrev_b32 v7, 1, v1'); e('v_xor_b32 v7, v7, v2'); e('v_lshlrev_b32 v7, 4, v7')
    e('v_lshl_add_u32 v96, v1, 7, v7'); e('v_add_u32 v96, %d, v96'%XW0); e('s_lshl_b32 s16, s98, 6'); e('v_xor_b32 v96, s16, v96'); e('v_xor_b32 v97, 64, v96'); e('v_mov_b32 v86, v96'); e('v_mov_b32 v87, v97')
    e('v_lshlrev_b32 v106, 4, v0')
    for i in range(2):
        e('s_add_u32 s16, s60, %d'%i); e('s_and_b32 s17, s16, 1'); e('s_lshl_b32 s17, s17, 3'); e('s_lshr_b32 s16, s16, 1'); e('s_lshl_b32 s16, s16, 12')
        e('s_add_u32 s16, s16, s17'); e('s_add_u32 s16, s16, %d'%HB); e('v_add_u32 %s, s16, v106'%v(98+i))
    e('s_lshr_b32 s16, %s, 1'%s(sWV)); e('s_lshl_b32 s16, s16, 11'); e('s_add_u32 s16, s16, %d'%HB)
    e('v_add_u32 v100, s16, v106'); e('v_add_u32 v101, 36864, v100')
    e('v_lshl_add_u32 v5, v2, 2, v3'); e('v_bfe_u32 v6, v5, 1, 2'); e('v_lshlrev_b32 v5, 7, v5'); e('v_lshl_add_u32 v5, v4, 3, v5')
    e('s_and_b32 s16, %s, 1'%s(sWV)); e('s_lshl_b32 s16, s16, 1')
    for tb in range(2):
        e('s_add_u32 s17, s16, %d'%tb); e('v_xor_b32 v7, s17, v6'); e('v_lshl_add_u32 %s, v7, 5, v5'%v(102+tb)); e('v_add_u32 %s, %d, %s'%(v(104+tb),SLOT,v(102+tb)))
    e('v_mov_b32 v5, v85')
    for i in range(144): e('v_mov_b32 %s, 0'%v(ACC+i))
    for i in range(12): e('v_mov_b32 %s, 0'%v(AF+24+i))
    for i in range(16): e('v_mov_b32 %s, 0'%v(XB+16+i))
    e('s_mov_b32 s64, 0'); e('s_mov_b32 s65, 0'); e('s_mov_b32 s66, 1')
    e('s_cmp_eq_u32 %s, 0'%s(sWV)); e('s_cbranch_scc0 M_NA')
    if TAG:
        for i in range(4): e('v_mov_b32 v%d, -1'%(12+i))
        e('s_add_u32 s16, %s, 7'%s(sJ)); e('s_and_b32 s16, s16, 7'); e('s_lshl_b32 s16, s16, 13'); e('s_mul_i32 s17, s2, 73728'); e('s_add_u32 s16, s16, s17')
        for u in range(8):
            if u==4: e('s_add_u32 s16, s16, 4096')
            e('buffer_store_dwordx4 v[12:15], v106, %s, s16 offen offset:%d sc1'%(s(sWS,4),(u%4)*1024))
    e('s_lshl_b32 s16, %s, 5'%s(sJ)); e('s_waitcnt vmcnt(0)'); e('v_mov_b32 v12, 1')
    e('buffer_atomic_add v12, v5, %s, s16 offen sc1'%s(sDBG,4))
    e('M_NA:')
    e('v_mov_b32 v1, 0'); e('v_mov_b32 v3, 0')
    e('v_mov_b32 v110, 0')
    INMAIN=True
    if MPRIO: e('s_setprio 3')
    spins=[]
    def check(seq,thr,vaddr=109):
        L=lab('SP'); R=L+'R'
        seq.append(('need',['F'])); seq.append(('i','v_cmp_gt_u32 vcc, %s, v110'%thr)); seq.append(('i','s_cbranch_vccnz '+L)); seq.append(('i',R+':'))
        spins.append((L,R,thr,vaddr))
    def conv(t,sg):
        a=ACC+16*t+4*sg
        return ['v_cvt_pk_bf16_f32 %s, %s, %s'%(v(a),v(a),v(a+1)),'v_cvt_pk_bf16_f32 %s, %s, %s'%(v(a+1),v(a+2),v(a+3)),
                'v_pk_max_i16 %s, %s, 0'%(v(a),v(a)),'v_pk_max_i16 %s, %s, 0'%(v(a+1),v(a+1))]
    def hwr(t,sg): return 'ds_write_b64 %s, %s offset:%d'%(v(98+t%2),v(ACC+16*t+4*sg,2),(t//2)*4096+sg*1024)
    def step1(p,last=False):
        seq=[('i','s_barrier')]
        if TRACE: seq=[('i','s_memtime s[96:97]'),('i','s_waitcnt lgkmcnt(0)'),('i','s_mov_b32 m0, s66'),('i','s_barrier'),('i','v_writelane_b32 v1, s96, m0'),('i','s_memtime s[96:97]'),('i','s_waitcnt lgkmcnt(0)'),('i','v_writelane_b32 v3, s96, m0')]
        R=[('A',0,0),('A',0,1)]+[('X',p,sg) for sg in range(4)]+[('A',t,r) for t in range(1,9) for r in range(2)]
        extra=[]
        if not last:
            extra=['s_add_u32 s64, s64, %d'%SLOT,'s_cmp_eq_u32 s64, %d'%(3*SLOT),'s_cselect_b32 s64, 0, s64','s_add_u32 s66, s66, 1']+['v_add_u32 %s, s64, %s'%(v(92+i),v(88+i)) for i in range(4)]
            if p==1: extra+=['s_add_u32 s65, s65, 8192','s_and_b32 s65, s65, 32767','v_add_u32 v96, s65, v86','v_add_u32 v97, s65, v87']
            else: extra+=['s_cmp_eq_u32 s66, 18']
        cv=[]; wr=[]
        ng=48 if last else 36
        for g in range(ng):
            i,sg=divmod(g,4)
            if g<len(R):
                k,a,b=R[g]
                if k=='A': seq.append(('lds',R[g],'ds_read_b64_tr_b16 %s, %s offset:%d'%(v(AF+4*a+2*b,2),v(92+a%4),128*(a//4)+4608*b)))
                else: seq.append(('lds',R[g],'ds_read_b128 %s, %s offset:%d'%(v(XB+16*p+4*b,4),v(96+p),2048*b)))
            elif extra: seq.append(('i',extra.pop(0)))
            if last:
                if g==28: seq.append(('need',[('A',8,1)])); seq.append(('i','s_barrier'))
                if g>=20 and sg==0:
                    cv+=[(x,(i-5,q)) for q in range(4) for x in conv(i-5,q)]
                if g>=20:
                    for _ in range(2):
                        if cv:
                            x,tag=cv.pop(0); seq.append(('i',x))
                            if x.startswith('v_pk_max') and (not cv or cv[0][1]!=tag): wr.append(tag)
                if g>=28 and wr: seq.append(('lds','H',hwr(*wr.pop(0))))
            if i<3: t,xb=6+i,1-p
            else: t,xb=i-3,p
            seq.append(('need',[('A',t,0),('A',t,1),('X',xb,sg)]))
            seq.append(('i',mf(ACC+16*t+4*sg, AF+4*t, XB+16*xb+4*sg)))
        assert not extra
        if not last: seq.append(('need',[('A',8,1)]))
        if last:
            for t in (7,8): cv+=[(x,(t,q)) for q in range(4) for x in conv(t,q)]
            while cv or wr:
                for _ in range(2):
                    if cv:
                        x,tag=cv.pop(0); seq.append(('i',x))
                        if x.startswith('v_pk_max') and (not cv or cv[0][1]!=tag): wr.append(tag)
                if wr: seq.append(('lds','H',hwr(*wr.pop(0))))
        return seq
    s0=step1(0); s1=step1(1)
    touch=[('i','s_branch M1_L')]
    body=s0+[('i','s_cbranch_scc1 M1_X')]+s1+touch
    if STAMP:
        nb=8 if TRACE else 1
        s0=s0[:nb]+[('i','s_cmp_eq_u32 s66, 1'),('i','s_cbranch_scc0 M_NS'),('i','s_memrealtime s[74:75]'),('i','s_memtime s[88:89]'),('i','s_waitcnt lgkmcnt(0)'),('i','M_NS:')]+s0[nb:]
        body=s0+[('i','s_cbranch_scc1 M1_X')]+s1+touch
    e('M1_L:')
    stream(body,True)
    e('M1_X:')
    stream(step1(1,True),False,pre=s1+s0)
    e('s_waitcnt lgkmcnt(0)')
    st(2); stc(9)
    e('s_barrier')
    H=ACC
    for k in range(18):
        for sg in range(2): e('ds_read_b128 %s, %s offset:%d'%(v(H+8*k+4*sg,4),v(100+k//9),(k%9)*4096+sg*1024))
    e('v_mov_b32 v107, 20')
    e('ds_read_b32 v110, v109')
    WR=16; PA=64; QA=80; PK=8
    e('s_mov_b32 s64, %d'%(2*SLOT)); e('s_mov_b32 s65, 0'); e('s_mov_b32 s66, 19')
    e('s_mul_i32 s60, s2, 73728')
    e('s_lshl_b32 s61, %s, 11'%s(sWV)); e('s_add_u32 s60, s60, s61')
    e('s_mov_b32 s67, %d'%OOB)
    e('s_lshl_b32 s19, s2, 7'); e('s_lshl_b32 s61, %s, 2'%s(sWV)); e('s_add_u32 s19, s19, s61'); e('s_add_u32 s19, s19, %d'%FLP)
    e('v_mov_b32 v6, 0'); e('s_and_b32 s62, %s, %d'%(s(sC),NSITE-1))
    e('s_waitcnt lgkmcnt(0)'); e('s_barrier')
    st(3); stc(10)
    def mm2(kg,u):
        tb,sg=divmod(u,2)
        a=WR+8*(kg%6)+4*tb; b=H+8*kg+4*sg
        if kg<9: return mf(PA+8*tb+4*sg,a,b,'0' if kg==0 else None)
        return mf(QA+8*tb+4*sg,a,b,PA+8*tb+4*sg if kg==9 else None)
    def packq(final=False):
        L=[]
        for sg in range(2):
            for tb in range(2):
                for h in range(2):
                    q=QA+8*tb+4*sg+2*h
                    L.append('v_cvt_pk_bf16_f32 %s, %s, %s'%(v(PK+4*sg+2*tb+h),v(q),v(q+1)))
            if final: L.append('ds_write_b128 v7, %s offset:%d'%(v(PK+4*sg,4),1024*sg))
            else: L.append('buffer_store_dwordx4 %s, v106, %s, s67 offen offset:%d sc1'%(v(PK+4*sg,4),s(sWS,4),1024*sg))
        return L
    body=[]
    for hc in range(2):
        check(body,'s66')
        R=[(9*hc+k,tb,r) for k in range(9) for tb in range(2) for r in range(2)]
        ex={}
        if hc==0:
            cv=[x for x in packq() if x.startswith('v_cvt')]
            for i,x in enumerate(cv): ex[16+i]=[x]
            ex[2]=['v_add_u32 v104, s64, v104']; ex[3]=['v_add_u32 v105, s64, v105']; ex[4]=['s_sub_u32 s64, 0, s64']; ex[5]=['s_add_u32 s66, s66, 1']

        else:
            L=['v_add_u32 v102, s64, v102','v_add_u32 v103, s64, v103','s_add_u32 s66, s66, 1',
               's_add_u32 s61, s65, %s'%s(sJ),'s_and_b32 s61, s61, 7','s_cmp_eq_u32 s65, 0','s_cselect_b32 s61, 8, s61',
               's_lshl_b32 s61, s61, 13']
            for i,x in enumerate(L): ex[2+i]=[x]
            ex[26]=['s_add_u32 s67, s60, s61']; ex[30]=['s_cmp_eq_u32 s65, 8','s_cselect_b32 s62, 0, s62']
            ex[27]=['v_mov_b32 v6, s65']; ex[28]=['s_add_u32 s65, s65, 1']; ex[33]=['s_cmp_lt_u32 s65, 9']
            if FEARLY: ex[32]=['s_waitcnt vmcnt(0)','s_mov_b64 exec, 1','buffer_store_dword v6, v5, %s, s19 offen sc1'%s(sWS,4),'s_mov_b64 exec, -1']
        sites=[(0,25),(1,1),(1,13),(1,25)][:NSITE]
        for n,(h,g) in enumerate(sites):
            if h==hc:
                ex.setdefault(g,[]); ex[g]=ex[g]+['s_cmp_eq_u32 s62, %d'%n,'s_cbranch_scc1 M2_ST%d'%n,'M2_SR%d:'%n]
        for g in range(36):
            i,u=divmod(g,4)
            k,tb,r=R[g]
            body.append(('lds',R[g],'ds_read_b64_tr_b16 %s, %s offset:%d'%(v(WR+8*(k%6)+4*tb+2*r,2),v(102+2*hc+tb),(k%9)*4096+r*2048)))
            if g==30: body.append(('lds','F','ds_read_b32 v110, v109'))
            if g==34: body.append(('i','v_add_u32 v107, 1, v107'))
            if g==35: body.append(('lds','C','ds_write_b32 v108, v107'))
            for x in ex.get(g,[]): body.append(('i',x))
            kg=(9*hc+i-3)%18
            body.append(('need',[(kg,u//2,0),(kg,u//2,1)]))
            body.append(('i',mm2(kg,u)))
    e('v_add_u32 v104, s64, v104'); e('v_add_u32 v105, s64, v105'); e('s_sub_u32 s64, 0, s64')
    e('M2_L:')
    stream(body,True)
    e('s_cbranch_scc1 M2_L')
    e('s_lshl_b32 s61, %s, 11'%s(sWV)); e('s_add_u32 s61, s61, %d'%QH); e('v_add_u32 v7, s61, v106')
    e('s_waitcnt lgkmcnt(0)')
    for kg in (15,16,17):
        for u in range(4): e(mm2(kg,u))
    if not FEARLY: e('s_waitcnt vmcnt(0)'); e('s_mov_b64 exec, 1'); e('buffer_store_dword v6, v5, %s, s19 offen sc1'%s(sWS,4)); e('s_mov_b64 exec, -1')
    e('s_nop 7')
    for x in packq(True): e(x)
    e('v_add_u32 v107, 1, v107'); e('ds_write_b32 v108, v107')
    INMAIN=False
    if STAMP:
        st(4); stc(11); st_flush(12,0)
        if TRACE: trace_flush(1,3)
    e('s_waitcnt lgkmcnt(0)')
    e('s_endpgm')
    for n in range(NSITE):
        e('M2_ST%d:'%n)
        if not FEARLY: e('s_waitcnt vmcnt(0)'); e('s_mov_b64 exec, 1'); e('buffer_store_dword v6, v5, %s, s19 offen sc1'%s(sWS,4)); e('s_mov_b64 exec, -1')
        for x in packq():
            if x.startswith('buffer') and not NOST: e(x)
        e('s_branch M2_SR%d'%n)
    for (L,R,thr,va) in spins:
        e(L+':')
        tr=TRACE and thr=='s66'
        if tr:
            e('s_memtime s[96:97]'); e('s_waitcnt lgkmcnt(0)'); e('s_mov_b32 m0, s66'); e('s_nop 3'); e('v_writelane_b32 v1, s96, m0'); L=L+'b'; e(L+':')
        e('ds_read_b32 v110, %s'%v(va))
        e('s_add_u32 s99, s99, 1'); e('s_cmp_gt_u32 s99, 0x100000'); e('s_cbranch_scc1 K_END'); e('s_waitcnt lgkmcnt(0)')
        e('v_cmp_gt_u32 vcc, %s, v110'%thr); e('s_cbranch_vccnz '+L)
        if tr: e('s_memtime s[96:97]'); e('s_waitcnt lgkmcnt(0)'); e('v_writelane_b32 v3, s96, m0')
        e('s_branch '+R)

assert all((L*57)>>9==L//9 for L in range(288))
assert all((L*57)>>11==L//36 for L in range(289))
out.append('; @launch grid=(256,1,1) block=(512,1,1) lds=163840')
out.append('.amdgcn_target "amdgcn-amd-amdhsa--gfx950"')
out.append('.text'); out.append('.globl '+NAME)
kernel()
out.append('.section .rodata,"a"'); out.append('.p2align 6')
out.append('.amdhsa_kernel '+NAME)
for l in ['next_free_vgpr 256','next_free_sgpr 100','accum_offset 256','group_segment_fixed_size 0','kernarg_size 96','user_sgpr_count 2','user_sgpr_kernarg_segment_ptr 1','system_sgpr_workgroup_id_x 1']:
    out.append('  .amdhsa_'+l)
out.append('.end_amdhsa_kernel')
print('\n'.join(out))
```

```python
import sys, struct
A=sys.argv
STAMP='--stamp' in A; NODMA='--nodma' in A; NOMFMA='--nomfma' in A; NOREAD='--noread' in A; NOPRIO='--noprio' in A; NOTX='--notx' in A; NORED='--nored' in A; NOST='--nost' in A; NOU='--nou' in A; NOXW='--noxw' in A; TRACE='--trace' in A; MPRIO='--mprio' in A; SLP='--slp' in A; opt=lambda n,d: int([x for x in A if x.startswith('--'+n+'=')][0].split('=')[1]) if any(x.startswith('--'+n+'=') for x in A) else d
PRE=opt('pre',2); AP2=opt('ap2',0); USLP=opt('uslp',30); PSLP=opt('pslp',12); UPACE=opt('upace',8); PPACE=opt('ppace',1); LP=opt('lp',0); AP=opt('ap',1); EARLY=opt('early',0); RM=0; CROT=opt('crot',1); FMASK=opt('fmask',0x1d4); JROT=opt('jrot',1); PK=0; TAG=0; FEARLY=opt('fearly',1); T2=0; CT=opt('ct',0); IW=opt('iw',0); DIAG=opt('diag',0); NA=10; NB=8; CPG=opt('cpg',2); PUB1=opt('pub1',12); OSC=opt('osc',0); LATE=opt('late',35); USTG=opt('ustg',0); NSITE=opt('nsite',1); XSTG=opt('xstg',2); E3A=opt('e3a',0)
DBGT='--dbgt' in A; NOSW='--nosw' in A; WSPLIT=0 if '--nowsplit' in A else 1
NAME='gated_mix__spectral_fnet__dense_activation_relu__prompt_kernel'
out=[]; INMAIN=False
def e(s=''):
    if NODMA and s.endswith(' lds') and ('s[20:23]' in s or 's[24:27]' in s): return
    if (NOPRIO or MPRIO) and s.startswith('s_setprio') and not INMAIN: return
    if INMAIN and NOST and s.startswith('buffer_store_dword'): return
    if NOU and s.startswith('buffer_load_dword v') and 's17 offen sc1' in s: return
    if NOXW and s.endswith(' lds') and ('s[8:11]' in s or 's[12:15]' in s): return
    if INMAIN and NOMFMA and s.startswith('v_mfma'): return
    out.append('    '+s if s and not s.endswith(':') else s)
def v(n,c=1): return 'v%d'%n if c==1 else 'v[%d:%d]'%(n,n+c-1)
def s(n,c=1): return 's%d'%n if c==1 else 's[%d:%d]'%(n,n+c-1)
def f2u(x): return struct.unpack('<I',struct.pack('<f',float(x)))[0]

SLOT=36864; XW0=110592; XWS=18432; HB=73728
MISC=147456; QH=MISC; LND=MISC+8192; CNS=LND+4*256; GL=CNS+6*256
GWL=LND+3072; MX=GWL+1152
U_OFF=0x1400000; FLP=0x1800000; FLU=0x1810000; ST_OFF=0x1900000; WS_BYTES=0x1B00000
BIG=0x7fffffff; OOB=0x40000000
sX,sWH,sW1,sW2,sGW,sWS,sOUT,sDBG=8,12,20,24,28,32,36,40
sJ,sC,sWV,sROT=3,4,5,6
SPINMAX=0x8000

def srd(d,base,nbytes):
    e('s_mov_b32 %s, %s'%(s(d),s(base))); e('s_mov_b32 %s, %s'%(s(d+1),s(base+1)))
    e('s_mov_b32 %s, %d'%(s(d+2),nbytes)); e('s_mov_b32 %s, 0x20000'%s(d+3))
def mf(d,a,b,c=None):
    return 'v_mfma_f32_16x16x32_bf16 %s, %s, %s, %s'%(v(d,4),v(a,4),v(b,4), v(d,4) if c is None else (c if isinstance(c,str) else v(c,4)))
def mfma(*a): e(mf(*a))
def st(slot):
    if STAMP: e('s_memrealtime %s'%s(72+2*slot,2))
def stc(slot):
    if STAMP: e('s_memtime %s'%s(72+2*slot,2))
def st_flush(n,base_row):
    if not STAMP: return
    e('s_waitcnt lgkmcnt(0)')
    e('s_lshl_b32 s68, s2, 3'); e('s_add_u32 s68, s68, %s'%s(sWV)); e('s_lshl_b32 s68, s68, 7'); e('s_add_u32 s68, s68, %d'%ST_OFF)
    e('v_mov_b32 v2, 0')
    for i in range(n):
        e('v_mov_b32 v4, %s'%s(72+2*i)); e('v_mov_b32 v5, %s'%s(73+2*i))
        e('buffer_store_dwordx2 v[4:5], v2, %s, s68 offen offset:%d'%(s(sWS,4),8*i)); e('s_nop 1')
def trace_flush(a,b):
    e('s_lshl_b32 s68, s2, 3'); e('s_add_u32 s68, s68, %s'%s(sWV)); e('s_lshl_b32 s68, s68, 9'); e('s_add_u32 s68, s68, %d'%(ST_OFF+0x40000))
    e('v_lshlrev_b32 v2, 2, v0')
    e('buffer_store_dword %s, v2, %s, s68 offen'%(v(a),s(sWS,4))); e('buffer_store_dword %s, v2, %s, s68 offen offset:256'%(v(b),s(sWS,4)))
_lab=[0]
def lab(p): _lab[0]+=1; return '%s%d'%(p,_lab[0])
def lds_wait(vaddr,vtmp,thr):
    L=lab('W')
    e(L+':')
    if SLP and not INMAIN: e('s_sleep 2')
    e('ds_read_b32 %s, %s'%(v(vtmp),v(vaddr)))
    e('s_add_u32 s99, s99, 1'); e('s_cmp_gt_u32 s99, 0x100000'); e('s_cbranch_scc1 K_END'); e('s_waitcnt lgkmcnt(0)')
    e('v_cmp_gt_u32 vcc, %s, %s'%(thr,v(vtmp))); e('s_cbranch_vccnz '+L)

def stream(seq, cyclic, pre=None):
    hist=[]; done=0
    def run(sq,emit):
        nonlocal done
        for it in sq:
            if it[0]=='lds':
                hist.append(it[1])
                if emit and not (NOREAD and it[2].startswith('ds_read_b64_tr')): e(it[2])
            elif it[0]=='need':
                idx=-1
                for t in it[1]:
                    k=[i for i,x in enumerate(hist) if x==t]
                    if k: idx=max(idx,k[-1])
                    else: assert not emit, t
                if idx+1>done:
                    n=min(len(hist)-1-idx,15)
                    if emit: e('s_waitcnt lgkmcnt(%d)'%(0 if NOREAD else n))
                    done=len(hist)-n
            elif emit: e(it[1])
    if cyclic: run(seq,False)
    if pre is not None: run(pre,False)
    run(seq,True)

def kernel():
    e('.p2align 8'); e('.type %s,@function'%NAME); e(NAME+':')
    e('s_cmp_ge_u32 s2, 256'); e('s_cbranch_scc1 K_END')
    st(0)
    if DBGT or DIAG: e('s_memrealtime s[72:73]')
    e('s_load_dwordx2 s[44:45], s[0:1], 0')
    e('s_load_dwordx4 s[48:51], s[0:1], 24')
    e('s_load_dwordx4 s[52:55], s[0:1], 48')
    e('s_load_dwordx8 s[56:63], s[0:1], 64')
    e('s_mov_b32 s99, 0')
    e('v_lshrrev_b32 v1, 6, v0')
    e('s_and_b32 %s, s2, 7'%s(sJ)); e('s_lshr_b32 %s, s2, 3'%s(sC))
    e('v_readfirstlane_b32 %s, v1'%s(sWV))
    e('v_and_b32 v0, 63, v0')
    e('s_mul_i32 s6, %s, 57'%s(sC)); e('s_lshr_b32 s6, s6, 9'); e('s_and_b32 s98, s6, %d'%(0 if NOSW else 1)); e('s_mul_i32 s6, s6, 9'); e('s_sub_u32 s6, %s, s6'%s(sC))
    if JROT: e('s_add_u32 s6, s6, %s'%s(sJ)); e('s_sub_u32 s7, s6, 9'); e('s_cmp_ge_u32 s6, 9'); e('s_cselect_b32 s6, s7, s6')
    e('s_add_u32 s15, %s, %s'%(s(sJ),s(sC) if CROT else '0')); e('s_and_b32 s15, s15, 7')
    e('s_cmp_ge_u32 %s, 6'%s(sWV)); e('s_cbranch_scc1 K_AUX')
    e('s_cmp_ge_u32 %s, 4'%s(sWV)); e('s_cbranch_scc0 K_MAIN')
    loader(); aux(); main()
    e('K_END:'); e('s_endpgm')

def loader():
    e('s_setprio %d'%LP)
    e('s_sub_u32 s7, %s, 4'%s(sWV))
    e('v_lshrrev_b32 v1, 3, v0'); e('v_and_b32 v2, 7, v0')
    e('v_lshrrev_b32 v4, 1, v2')
    e('v_and_b32 v5, 1, v2'); e('v_lshlrev_b32 v5, 4, v5')
    e('s_movk_i32 s16, %d'%(9216-1152))
    for p in range(9):
        e('v_add_u32 v6, %d, v1'%(8*p))
        e('v_mul_u32_u24 v7, 57, v6'); e('v_lshrrev_b32 v7, 9, v7')
        e('v_bfe_u32 v9, v7, 1, 1'); e('v_xor_b32 v9, v9, v4')
        e('v_lshl_add_u32 v6, v6, 7, v5')
        e('v_mad_u32_u24 v6, v7, s16, v6')
        e('v_lshl_add_u32 v6, v9, 5, v6')
        e('v_xor_b32 v7, 64, v6')
        e('v_subrev_u32 %s, %d, v6'%(v(16+p),(p%4)*1024))
        e('v_add_u32 %s, %d, v7'%(v(25+p),8*9216-((p+9)%4)*1024))
    e('v_lshrrev_b32 v6, 1, v1'); e('v_and_b32 v6, 3, v6'); e('v_lshlrev_b32 v6, 1, v6'); e('v_xor_b32 v6, v6, v2')
    e('s_movk_i32 s69, 1152'); e('v_mul_u32_u24 v7, s69, v1'); e('v_lshl_add_u32 v36, v6, 4, v7')
    for i in range(1,4): e('v_add_u32 %s, %d, v36'%(v(36+i),i*8192))
    e('s_mul_i32 s64, s7, 18432')
    e('s_mul_i32 s17, %s, 1152'%s(sJ)); e('s_mul_i32 s18, s7, %d'%(16*9216)); e('s_add_u32 s17, s17, s18')
    e('s_lshl_b32 s18, s6, 1')
    e('s_xor_b32 s66, s18, s98'); e('s_mul_i32 s66, s66, %d'%(32*9216)); e('s_add_u32 s66, s66, s17')
    e('s_mov_b32 s67, s64')
    e('s_mov_b32 s68, 0'); e('s_mov_b32 s69, -2')
    e('s_mul_i32 s70, %s, 576'%s(sJ)); e('s_mul_i32 s71, s7, 144'); e('s_add_u32 s70, s70, s71'); e('s_mul_i32 s70, s70, 1152')
    e('s_lshl_b32 s19, s7, 8'); e('s_add_u32 s19, s19, %d'%LND)
    e('v_lshlrev_b32 v11, 2, v0'); e('v_add_u32 v11, s19, v11'); e('v_mov_b32 v10, 0'); e('v_mov_b32 v13, 0'); e('v_mov_b32 v40, 0'); e('v_mov_b32 v41, 0')
    e('v_and_b32 v12, 3, v0'); e('v_mul_u32_u24 v12, 260, v12'); e('v_add_u32 v12, %d, v12'%CNS)
    e('s_waitcnt lgkmcnt(0)')
    srd(sW1,52,5308416); srd(sW2,54,5308416)
    if STAMP: srd(sWS,62,WS_BYTES)
    PUB=12
    def dma(ph,p):
        if p%4==0 and p:
            e('s_add_u32 m0, s67, %d'%(p*1024))
            if ph==2: e('s_add_u32 s66, s66, %d'%(32*1152))
            else: e('s_nop 0')
        if ph==1: e('buffer_load_dwordx4 %s, %s, s66 offen offset:%d lds'%(v(16+p),s(sW1,4),(p%4)*1024))
        else: e('buffer_load_dwordx4 %s, %s, s66 offen offset:%d lds'%(v(36+p%4),s(sW2,4),(p%4)*1024))
    def grp(fill):
        groups=[]; i=0
        while i<len(fill):
            if fill[i].startswith('s_cmp'): groups.append(fill[i:i+2]); i+=2
            else: groups.append([fill[i]]); i+=1
        return groups
    def tr_top():
        if TRACE: e('s_memtime s[96:97]'); e('s_waitcnt lgkmcnt(0)'); e('s_mov_b32 m0, s68'); e('s_nop 3'); e('v_writelane_b32 v40, s96, m0'); e('v_writelane_b32 v42, s92, m0'); e('v_writelane_b32 v43, s94, m0')
    e('LD_P:'); tr_top()
    e('s_mov_b32 m0, s67'); e('s_nop 0')
    g=grp(['s_add_u32 s18, s18, 1','s_cmp_eq_u32 s18, 18','s_cselect_b32 s18, 0, s18','s_xor_b32 s44, s18, s98','s_mul_i32 s44, s44, %d'%(32*9216),'s_add_u32 s44, s44, s17',
           's_add_u32 s45, s67, %d'%SLOT,'s_cmp_ge_u32 s45, %d'%(3*SLOT),'s_cselect_b32 s45, s64, s45'])
    for p in range(18):
        if p==PUB:
            e('s_cmp_eq_u32 s68, 0'); e('s_cbranch_scc1 LD_P0')
            if TRACE: e('s_memtime s[92:93]')
            e('s_waitcnt vmcnt(%d)'%PUB)
            if TRACE: e('s_memtime s[94:95]')
            e('s_barrier')
            e('LD_P0:')
        dma(1,p)
        if g:
            for x in g.pop(0): e(x)
    e('s_mov_b32 s66, s44'); e('s_mov_b32 s67, s45')
    e('s_add_u32 s68, s68, 1'); e('s_cmp_lt_u32 s68, 18'); e('s_cbranch_scc1 LD_P')
    e('s_add_u32 s66, s70, 1024'); e('s_mov_b32 s69, 0')
    e('LD_Q:'); tr_top()
    e('s_waitcnt lgkmcnt(1)'); e('v_cmp_gt_u32 vcc, s69, v13'); e('s_mov_b32 m0, s67'); e('s_cbranch_vccnz LD_QS')
    e('LD_QR:')
    g=grp(['s_sub_u32 s46, s68, 17','s_lshr_b32 s44, s46, 1','s_add_u32 s47, s44, s15','s_and_b32 s47, s47, 7','s_cmp_eq_u32 s44, 0','s_cselect_b32 s47, 8, s47',
           's_lshl_b32 s47, s47, 7','s_and_b32 s44, s46, 1','s_mul_i32 s44, s44, %d'%(288*1152),'s_add_u32 s44, s44, s47','s_add_u32 s44, s44, s70',
           's_add_u32 s45, s67, %d'%SLOT,'s_cmp_ge_u32 s45, %d'%(4*SLOT),'s_cselect_b32 s45, s64, s45',
           's_cmp_le_u32 s68, 20','s_cselect_b32 s69, 0, s68'])
    for p in range(18):
        if p==PUB:
            e('v_mov_b32 v10, s68')
            if TRACE: e('s_memtime s[92:93]')
            e('s_waitcnt vmcnt(%d)'%PUB)
            e('s_cmp_eq_u32 s68, 18'); e('s_cbranch_scc0 LD_Q0'); e('s_barrier'); e('LD_Q0:')
            if TRACE: e('s_memtime s[94:95]')
            e('ds_read_b32 v13, v12'); e('ds_write_b32 v11, v10')
        if E3A and p==E3A: e('s_cmp_eq_u32 s68, 20'); e('s_cbranch_scc0 LD_Q1'); e('s_barrier'); e('LD_Q1:')
        dma(2,p)
        if g:
            for x in g.pop(0): e(x)
    assert not g
    e('s_mov_b32 s66, s44'); e('s_mov_b32 s67, s45')
    e('s_add_u32 s68, s68, 1'); e('s_cmp_le_u32 s68, 20'); e('s_cbranch_scc1 LD_E')
    e('s_cmp_lt_u32 s68, 36'); e('s_cbranch_scc1 LD_Q')
    e('v_mov_b32 v10, s68'); e('s_waitcnt vmcnt(0)'); e('ds_write_b32 v11, v10')
    if STAMP: st(1); st_flush(2,0)
    if TRACE:
        e('s_cmp_eq_u32 s7, 0'); e('s_cbranch_scc1 TRX'); e('v_mov_b32 v41, v43'); e('v_mov_b32 v40, v42'); e('TRX:')
        trace_flush(40,41)
    e('s_waitcnt lgkmcnt(0)')
    e('s_endpgm')
    e('LD_E:')
    if not EARLY:
        e('s_barrier')
        e('s_cmp_eq_u32 s68, 20'); e('s_cbranch_scc1 LD_Q')
        e('v_mov_b32 v10, s68'); e('s_waitcnt vmcnt(0)'); e('ds_write_b32 v11, v10'); e('s_waitcnt lgkmcnt(0)')
        e('s_barrier'); e('s_branch LD_Q')
    else:
        e('s_cmp_eq_u32 s68, 19'); e('s_cbranch_scc1 LD_E1')
        e('v_mov_b32 v10, s68'); e('s_waitcnt vmcnt(0)'); e('ds_write_b32 v11, v10'); e('s_waitcnt lgkmcnt(0)')
        e('s_barrier')
        e('LD_E1:')
        e('s_barrier'); e('s_branch LD_Q')
    e('LD_QS:')
    e('ds_read_b32 v13, v12'); e('s_waitcnt lgkmcnt(0)'); e('v_cmp_gt_u32 vcc, s69, v13'); e('s_cbranch_vccz LD_QR')
    e('v_mov_b32 v10, s68'); e('s_waitcnt vmcnt(0)'); e('ds_write_b32 v11, v10')
    lds_wait(12,13,'s69')
    if TRACE: e('s_memtime s[96:97]'); e('s_waitcnt lgkmcnt(0)'); e('s_mov_b32 m0, s68'); e('s_nop 3'); e('v_writelane_b32 v41, s96, m0'); e('s_mov_b32 m0, s67')
    e('s_branch LD_QR')

def aux():
    e('K_AUX:')
    e('s_setprio %d'%AP)
    e('s_sub_u32 s7, %s, 6'%s(sWV))
    e('v_lshrrev_b32 v1, 3, v0'); e('v_and_b32 v2, 7, v0'); e('v_lshrrev_b32 v3, 1, v1')
    e('v_xor_b32 v4, v2, v3'); e('v_lshlrev_b32 v4, 4, v4'); e('v_xor_b32 v5, 64, v4')
    e('s_mov_b32 s16, 73728'); e('v_mul_u32_u24 v6, s16, v1')
    for p in range(4):
        e('v_add_u32 %s, v6, %s'%(v(16+p),'v5' if p%2 else 'v4'))
        if p: e('v_add_u32 %s, %d, %s'%(v(16+p),p*(8*73728-1024),v(16+p)))
    e('v_lshlrev_b32 v25, 4, v0')
    e('s_movk_i32 s17, 1152'); e('v_and_b32 v8, 31, v0'); e('v_mul_u32_u24 v7, 57, v8'); e('v_lshrrev_b32 v62, 9, v7'); e('v_mul_u32_u24 v7, 9, v62'); e('v_sub_u32 v7, v8, v7'); e('v_mul_u32_u24 v24, s17, v7'); e('v_lshrrev_b32 v7, 5, v0'); e('v_lshl_add_u32 v24, v7, 6, v24')
    e('s_lshl_b32 s18, s7, 5'); e('s_add_u32 s18, s18, %s'%s(sC)); e('s_mul_i32 s18, s18, 1152')
    e('s_mul_i32 s19, %s, 576'%s(sJ)); e('s_mul_i32 s64, %s, 18'%s(sC)); e('s_add_u32 s19, s19, s64')
    e('s_mul_i32 s64, s7, 9'); e('s_add_u32 s19, s19, s64'); e('s_mul_i32 s19, s19, 1152')
    e('s_mov_b32 s64, s6')
    e('s_lshl_b32 s69, s7, 12'); e('s_lshl_b32 s70, s7, 10'); e('s_add_u32 s65, s69, %d'%XW0)
    e('s_waitcnt lgkmcnt(0)')
    srd(sX,44,2359296); srd(sGW,56,1152)
    def issueX(h):
        if h==0: e('s_lshl_b32 s67, s64, 7'); e('s_add_u32 s67, s67, s18')
        e('s_mov_b32 m0, s65'); e('s_nop 0')
        for p in (2*h,2*h+1): e('buffer_load_dwordx4 %s, %s, s67 offen offset:%d lds'%(v(16+p),s(sX,4),p*1024))
        if h==1:
            e('s_add_u32 s64, s64, 1'); e('s_cmp_eq_u32 s64, 9'); e('s_cselect_b32 s64, 0, s64')
            e('s_add_u32 s65, s65, 8192'); e('s_sub_u32 s66, s65, 32768'); e('s_cmp_ge_u32 s65, %d'%(XW0+32768)); e('s_cselect_b32 s65, s66, s65')
    issueX(0); issueX(1)
    e('s_add_u32 m0, s70, %d'%GWL); e('s_cmp_eq_u32 s7, 0'); e('s_cselect_b32 exec_lo, -1, 0xff'); e('s_cselect_b32 exec_hi, -1, 0')
    e('buffer_load_dwordx4 v25, %s, s70 offen lds'%s(sGW,4))
    e('s_mov_b64 exec, -1')
    srd(sW2,54,5308416); srd(sWS,62,WS_BYTES); srd(sOUT,58,2359296); srd(sDBG,60,256)
    FC,FS,FN=112,120,128; GF=136; SEL=200; UO=208; MK=212; TR=216; PO=220; GG=224; L16=228; PL1=229; PL2=230; L0=231
    e('v_and_b32 v8, 15, v0'); e('v_lshrrev_b32 v9, 4, v0')
    e('v_mov_b32 %s, 0'%v(L0))
    e('s_lshl_b32 s71, s2, 1'); e('s_add_u32 s71, s71, s7'); e('s_lshl_b32 s71, s71, 2'); e('s_add_u32 s71, s71, %d'%FLU)
    e('v_mov_b32 v12, 0'); e('v_mov_b32 v13, 0'); e('s_lshl_b32 s48, s2, 7'); e('s_lshl_b32 s49, s7, 3'); e('s_add_u32 s48, s48, s49'); e('s_add_u32 s48, s48, %d'%FLP)
    e('s_mov_b64 exec, 1')
    e('buffer_store_dwordx2 v[12:13], %s, %s, s48 offen sc1'%(v(L0),s(sWS,4))); e('buffer_store_dword %s, %s, %s, s71 offen sc1'%(v(L0),v(L0),s(sWS,4)))
    e('s_mov_b64 exec, -1')
    e('v_lshrrev_b32 v10, 1, v8'); e('v_xor_b32 v10, v10, v9'); e('v_lshlrev_b32 v10, 4, v10')
    e('v_lshl_add_u32 v20, v8, 7, v10'); e('v_add_u32 v20, %d, v20'%XW0); e('v_xor_b32 v21, 64, v20')
    e('v_mov_b32 v26, v20'); e('v_mov_b32 v27, v21'); e('v_add_u32 v28, s69, v20'); e('v_add_u32 v29, s69, v21')
    e('v_lshlrev_b32 v22, 4, v9'); e('v_add_u32 v22, %d, v22'%GWL); e('s_lshl_b32 s68, s6, 7'); e('v_add_u32 v23, s68, v22')
    e('s_lshl_b32 s44, s7, 11')
    ACC=64; TM=136; WA=176; RC=232
    for i in list(range(8))+list(range(16,24))+list(range(32,40)): e('v_mov_b32 %s, 0'%v(TM+i))
    for i in list(range(8,16))+list(range(24,32)): e('v_mov_b32 %s, 0'%v(ACC+i))
    e('s_sub_u32 s48, s6, 1'); e('s_cmp_eq_u32 s6, 0'); e('s_cselect_b32 s48, 8, s48'); e('s_lshl_b32 s48, s48, 6')
    e('v_lshlrev_b32 v11, 3, v9'); e('v_add_u32 v11, s48, v11'); e('v_cvt_f32_u32 v11, v11')
    e('s_mul_i32 s49, %s, 36'%s(sJ)); e('s_lshl_b32 s50, s7, 4'); e('s_add_u32 s50, s50, s49'); e('s_add_u32 s49, s49, 32')
    for mix in range(2):
        if mix==0: e('v_add_u32 v12, s50, v8')
        else: e('v_and_b32 v12, 7, v8'); e('v_add_u32 v12, s49, v12')
        e('v_cvt_f32_u32 v12, v12'); e('v_mul_f32 v10, 0x%08x, v12'%f2u(1/9.)); e('v_mul_f32 v12, 0x%08x, v12'%f2u(1/576.)); e('v_mul_f32 v13, v12, v11')
        e('v_cos_f32 %s, v10'%v(RC+2*mix)); e('v_sin_f32 %s, v10'%v(RC+2*mix+1))
        if mix:
            e('v_cmp_gt_u32 vcc, 8, v8'); e('v_add_f32 v4, 0x3e800000, v13'); e('v_sub_f32 v5, 0, %s'%v(RC+3))
            e('v_cndmask_b32 v13, v4, v13, vcc'); e('v_cndmask_b32 %s, %s, v5, vcc'%(v(RC+3),v(RC+3)))
            e('v_cmp_eq_u32 vcc, 5, v8'); e('v_mov_b32 v4, 1.0'); e('v_mov_b32 v5, 0')
            e('v_cndmask_b32 %s, %s, v4, vcc'%(v(RC+2),v(RC+2))); e('v_cndmask_b32 %s, %s, v5, vcc'%(v(RC+3),v(RC+3)))
        for kp in range(2):
            for jp in range(4):
                for u in range(2):
                    e('v_fmamk_f32 %s, v12, 0x%08x, v13'%(v(30+u),f2u(32*kp+2*jp+u))); e('v_fract_f32 %s, %s'%(v(30+u),v(30+u)))
                e('v_cos_f32 v32, v30'); e('v_cos_f32 v33, v31')
                if mix==0:
                    e('v_sin_f32 v34, v30'); e('v_sin_f32 v35, v31')
                    e('v_cvt_pk_bf16_f32 %s, v32, v33'%v(WA+4*kp+jp)); e('v_cvt_pk_bf16_f32 %s, -v34, -v35'%v(WA+8+4*kp+jp))
                else:
                    e('s_nop 0'); e('v_cvt_pk_bf16_f32 %s, v32, v33'%v(WA+16+4*kp+jp))
    if PK:
        e('v_mov_b32 v60, %s'%v(RC+1)); e('v_mov_b32 v61, %s'%v(RC+1)); e('v_mov_b32 %s, %s'%(v(RC+1),v(RC)))
    global out
    save=out; parts=[]
    def begin():
        global out
        out=[]
    def end(): parts.append(out)
    begin()
    e('v_lshlrev_b32 v11, 2, v9'); e('v_cvt_f32_u32 v11, v11')
    for b in range(2):
        e('v_add_u32 v12, %d, v8'%(16*b)); e('v_cvt_f32_u32 v12, v12'); e('v_mul_f32 v12, 0x3d000000, v12'); e('v_mul_f32 v13, v12, v11')
        for jp in range(4):
            o=[(2*jp+u)%4+16*((2*jp+u)//4) for u in range(2)]
            for u in range(2): e('v_fmamk_f32 %s, v12, 0x%08x, v13'%(v(30+u),f2u(o[u])))
            e('v_cos_f32 v32, v30'); e('v_cos_f32 v33, v31'); e('v_sin_f32 v34, v30'); e('v_sin_f32 v35, v31')
            e('v_cvt_pk_bf16_f32 %s, v32, v33'%v(FC+4*b+jp)); e('v_cvt_pk_bf16_f32 %s, v34, v35'%v(FS+4*b+jp))
            e('v_xor_b32 %s, 0x80008000, %s'%(v(FN+4*b+jp),v(FS+4*b+jp)))
    end()
    for i in range(4):
        begin()
        e('s_lshr_b32 s48, %s, 2'%s(sJ)); e('s_lshl_b32 s48, s48, 1'); e('s_and_b32 s49, %s, 1'%s(sJ)); e('s_add_u32 s48, s48, s49')
        e('s_add_u32 s48, s48, %d'%i); e('s_and_b32 s48, s48, 3')
        e('v_lshlrev_b32 %s, 4, v0'%v(L16)); e('v_lshlrev_b32 v11, 1, v9'); e('v_cvt_f32_u32 v11, v11')
        e('s_lshl_b32 s49, s48, 6'); e('s_add_u32 s49, s49, %d'%GL); e('v_lshlrev_b32 v13, 2, v8'); e('v_add_u32 %s, s49, v13'%v(GG+i))
        e('s_lshr_b32 s49, s48, 1'); e('s_and_b32 s50, s48, 1')
        e('s_lshl_b32 s51, s49, 12'); e('s_lshl_b32 s52, s50, 10'); e('s_add_u32 s51, s51, s52'); e('v_add_u32 %s, s51, %s'%(v(PO+i),v(L16)))
        e('s_lshl_b32 s49, s49, 5'); e('s_add_u32 s49, s49, s52'); e('s_add_u32 s49, s49, %s'%s(sC))
        e('v_lshlrev_b32 v5, 6, v8'); e('v_add_u32 v6, s49, v5')
        e('v_cvt_f32_u32 v5, v6'); e('v_mul_f32 v5, 0x3a000000, v5'); e('v_mul_f32 v13, v5, v11')
        e('s_movk_i32 s49, 1152'); e('v_and_b32 v4, 1, v9'); e('v_lshlrev_b32 v4, 5, v4'); e('v_lshrrev_b32 v7, 1, v9'); e('v_lshl_add_u32 v4, v7, 4, v4')
        e('v_mad_u32_u24 %s, v6, s49, v4'%v(TR+i))
        for k in range(4):
            for u in range(2):
                for h in range(2): e('v_fmamk_f32 %s, v5, 0x%08x, v13'%(v(30+h),f2u(8*k+u+32*h)))
                e('v_cos_f32 v32, v30'); e('v_sin_f32 v33, v30'); e('v_cos_f32 v34, v31'); e('v_sin_f32 v35, v31')
                e('v_cvt_pk_bf16_f32 %s, v32, v33'%v(GF+16*i+4*k+2*u)); e('v_cvt_pk_bf16_f32 %s, v34, v35'%v(GF+16*i+4*k+2*u+1))
        end()
    begin()
    e('v_lshrrev_b32 v4, 2, v8'); e('v_cmp_eq_u32 vcc, v4, v9'); e('v_and_b32 v5, 1, v8'); e('v_lshlrev_b32 v5, 4, v5')
    e('v_mov_b32 v6, 0x3f80'); e('v_lshlrev_b32 v6, v5, v6'); e('v_cndmask_b32 v6, 0, v6, vcc')
    e('v_and_b32 v5, 2, v8'); e('v_cmp_eq_u32 vcc, 0, v5'); e('v_mov_b32 %s, 0'%v(SEL+2)); e('v_mov_b32 %s, 0'%v(SEL+3))
    e('v_cndmask_b32 %s, 0, v6, vcc'%v(SEL)); e('v_sub_u32 %s, v6, %s'%(v(SEL+1),v(SEL)))
    e('v_mov_b32 %s, 0'%v(SEL+4)); e('v_mov_b32 %s, 0'%v(SEL+5)); e('v_mov_b32 %s, %s'%(v(SEL+6),v(SEL))); e('v_mov_b32 %s, %s'%(v(SEL+7),v(SEL+1)))
    e('v_and_b32 v4, 1, v0'); e('v_lshlrev_b32 v4, 3, v4'); e('s_lshl_b32 s49, s7, 2'); e('v_add_u32 v4, s49, v4'); e('v_bfe_u32 v5, v0, 1, 3'); e('v_lshl_add_u32 %s, v5, 7, v4'%v(PL1))
    e('v_sub_u32 v5, %s, v5'%s(sJ)); e('v_and_b32 v5, 7, v5'); e('v_add_u32 v254, 1, v5')
    e('v_and_b32 v4, 7, v0'); e('v_lshlrev_b32 v4, 7, v4'); e('s_lshr_b32 s49, %s, 1'%s(sJ)); e('s_lshl_b32 s49, s49, 2'); e('v_add_u32 %s, s49, v4'%v(PL2))
    e('s_sub_u32 s48, 32, %s'%s(sC)); e('s_and_b32 s48, s48, 31')
    e('s_mov_b32 s49, %d'%(2*12288)); e('v_mul_u32_u24 v12, s49, v9')
    e('s_mov_b32 s50, %d'%(32*12288))
    e('s_lshl_b32 s54, s15, 6'); e('s_lshl_b32 s49, s7, 5'); e('s_add_u32 s54, s54, s49')
    e('s_and_b32 s55, %s, 2'%s(sJ)); e('s_lshl_b32 s55, s55, 4'); e('s_add_u32 s55, s55, 512')
    for tb in range(4):
        e('s_add_u32 s49, %s, %d'%(('s54',16*tb) if tb<2 else ('s55',16*(tb-2)))); e('v_add_u32 v4, s49, v8')
        e('v_sub_u32 v5, 576, v4'); e('v_cmp_lt_u32 vcc, 288, v4'); e('v_mov_b32 v6, %s'%s(sC)); e('v_mov_b32 v7, s48')
        e('v_cndmask_b32 v4, v4, v5, vcc'); e('v_cndmask_b32 v6, v6, v7, vcc')
        e('v_mov_b32 v7, 0x80000000'); e('v_cndmask_b32 %s, 0, v7, vcc'%v(MK+tb))
        e('v_mul_u32_u24 v5, 57, v4'); e('v_lshrrev_b32 v5, 11, v5'); e('v_min_u32 v5, 7, v5')
        e('v_mul_u32_u24 v7, 36, v5'); e('v_sub_u32 v4, v4, v7')
        e('v_mul_u32_u24 v5, s50, v5'); e('v_lshl_add_u32 v5, v6, 7, v5'); e('v_add_u32 v5, v5, v12')
        e('v_lshrrev_b32 v6, 4, v4'); e('v_lshl_add_u32 v5, v6, 12, v5'); e('v_and_b32 v4, 15, v4'); e('v_lshl_add_u32 %s, v4, 3, v5'%v(UO+tb))
    end()
    out=save
    NPRE=PRE
    out.extend(parts[0])
    later=[]
    XF=36
    def rotate(lo,hi,mix):
        if PK:
            for i in range(lo,hi,2):
                e('v_pk_mul_f32 %s, %s, %s'%(v(TM+i,2),v(RC,2),v(ACC+i,2))); e('v_pk_mul_f32 %s, %s, %s'%(v(TM+16+i,2),v(RC,2),v(ACC+16+i,2)))
                e('v_pk_fma_f32 %s, %s, %s, %s neg_lo:[1,0,0] neg_hi:[1,0,0]'%(v(TM+i,2),v(60,2),v(ACC+16+i,2),v(TM+i,2))); e('v_pk_fma_f32 %s, %s, %s, %s'%(v(TM+16+i,2),v(60,2),v(ACC+i,2),v(TM+16+i,2)))
        else:
            for i in range(lo,hi):
                e('v_mul_f32 %s, %s, %s'%(v(TM+i),v(RC),v(ACC+i))); e('v_mul_f32 %s, %s, %s'%(v(TM+16+i),v(RC),v(ACC+16+i)))
                e('v_fma_f32 %s, -%s, %s, %s'%(v(TM+i),v(RC+1),v(ACC+16+i),v(TM+i))); e('v_fmac_f32 %s, %s, %s'%(v(TM+16+i),v(RC+1),v(ACC+i)))
        if mix:
            for i in range(8): e('v_mul_f32 %s, %s, %s'%(v(TM+32+i),v(RC+2),v(ACC+32+i)))
            for i in range(8): e('v_fmac_f32_dpp %s, %s, %s row_ror:8 row_mask:0xf bank_mask:0xf'%(v(TM+32+i),v(ACC+32+i),v(RC+3)))
    e('s_mov_b32 s46, 0'); e('s_mov_b32 s47, 0')
    e('s_and_b32 s45, %s, %d'%(s(sC),XSTG)); e('s_mov_b32 s53, 1'); e('s_mov_b32 s51, 0')
    e('s_waitcnt vmcnt(0)')
    if DIAG==2: e('s_memrealtime s[74:75]'); e('s_waitcnt lgkmcnt(0)')
    e('AX_L:')
    for kp in range(2):
        if TRACE:
            e('s_memtime s[96:97]'); e('s_lshl_b32 s95, s46, 1'); e('s_add_u32 m0, s95, %d'%(kp+1)); e('s_waitcnt lgkmcnt(0)'); e('v_writelane_b32 v252, s96, m0'); e('v_writelane_b32 v253, s92, m0')
        e('s_barrier')
        for sg in range(4): e('ds_read_b128 %s, %s offset:%d'%(v(XF+4*sg,4),v(26+kp),sg*2048))
        for sg in range(2): e('ds_read_b128 %s, %s offset:%d'%(v(XF+16+4*sg,4),v(28+kp),sg*2048))
        e('s_mov_b32 exec_lo, 0x00200020'); e('s_mov_b32 exec_hi, 0x00200020')
        e('ds_read_b128 %s, v23 offset:%d'%(v(WA+16+4*kp,4),64*kp))
        e('s_mov_b64 exec, -1')
        e('s_sub_u32 s51, s51, 1'); e('s_cbranch_scc1 AX_B%d'%kp)
        e('AX_S%d:'%kp)
        def rot(lo,hi,mix):
            L=[]
            for i in range(lo,hi):
                L+=['v_mul_f32 %s, %s, %s'%(v(TM+i),v(RC),v(ACC+i)),'v_mul_f32 %s, %s, %s'%(v(TM+16+i),v(RC),v(ACC+16+i)),
                    'v_fma_f32 %s, -%s, %s, %s'%(v(TM+i),v(RC+1),v(ACC+16+i),v(TM+i)),'v_fmac_f32 %s, %s, %s'%(v(TM+16+i),v(RC+1),v(ACC+i))]
            if mix:
                L+=['v_mul_f32 %s, %s, %s'%(v(TM+32+i),v(RC+2),v(ACC+32+i)) for i in range(8)]
                L+=['v_fmac_f32_dpp %s, %s, %s row_ror:8 row_mask:0xf bank_mask:0xf'%(v(TM+32+i),v(ACC+32+i),v(RC+3)) for i in range(8)]
            return L
        M=lambda t,sg: mf(ACC+16*t+4*sg, XF+4*sg, WA+8*t+4*kp, TM+16*t+4*sg if kp==0 else None)
        X=lambda sg: mf(ACC+32+4*sg, XF+16+4*sg, WA+16+4*kp, TM+32+4*sg if kp==0 else None)
        if kp==0:
            R=rot(8,16,False)
            for x in R[:8]: e(x)
            e('s_waitcnt lgkmcnt(0)')
            R=R[8:]
            for m in (M(0,0),M(1,0),M(0,1),M(1,1),X(0),X(1)):
                e(m)
                for x in R[:4]: e(x)
                R=R[4:]
            assert not R
            for m in (M(0,2),M(1,2),M(0,3),M(1,3)): e(m)
        else:
            A_=['s_add_u32 s47, s47, 8192','s_and_b32 s47, s47, 32767','s_add_u32 s66, s47, s69','s_add_u32 s68, s68, 128','s_cmp_eq_u32 s68, 1152','s_cselect_b32 s68, 0, s68',
                'v_add_u32 v26, s47, v20','v_add_u32 v27, s47, v21','v_add_u32 v28, s66, v20','v_add_u32 v29, s66, v21','v_add_u32 v23, s68, v22']
            for x in A_: e(x)
            e('s_waitcnt lgkmcnt(0)')
            for m in (M(0,0),M(1,0),M(0,1),M(1,1),X(0),X(1)): e(m)
            e('s_nop 3')
            R=rot(0,8,True)
            for m in (M(0,2),M(1,2),M(0,3),M(1,3)):
                for x in R[:4]: e(x)
                R=R[4:]
                e(m)
            e('s_cmp_eq_u32 s46, 8'); e('s_cbranch_scc1 AX_D')
            for x in R: e(x)
    if TRACE: e('s_memtime s[92:93]')
    e('s_lshr_b32 s66, s45, 1'); e('s_xor_b32 s66, s66, s46'); e('s_add_u32 s46, s46, 1')
    e('s_bitcmp1_b32 s66, 0'); e('s_cbranch_scc1 AX_W0')
    e('s_cmp_eq_u32 s46, 1'); e('s_cbranch_scc0 AX_L')
    e('s_waitcnt vmcnt(8)'); e('s_branch AX_L')
    e('AX_W0:')
    e('s_waitcnt vmcnt(0)'); e('s_branch AX_L')
    for kp in range(2):
        e('AX_B%d:'%kp)
        e('s_cmp_ge_u32 s46, 5'); e('s_cselect_b32 s51, 100, 3')
        e('s_add_u32 s52, s46, 3'); e('s_min_u32 s52, s52, 8')
        e('s_cmp_eq_u32 s46, 0'); e('s_cbranch_scc0 AX_C%d'%kp)
        if kp==0:
            e('s_lshr_b32 s52, s45, 1'); e('s_add_u32 s52, s52, 1')
            e('s_sub_u32 s51, s45, 1'); e('s_cmp_ge_u32 s45, 2'); e('s_cselect_b32 s51, s51, 0')
        else:
            e('s_add_u32 s51, s45, 2')
        e('AX_C%d:'%kp)
        issueX(0); issueX(1)
        e('s_add_u32 s53, s53, 1'); e('s_cmp_le_u32 s53, s52'); e('s_cbranch_scc1 AX_C%d'%kp)
        e('s_cmp_eq_u32 s46, 0'); e('s_cbranch_scc1 AX_S%d'%kp)
        e('v_add_u32 v4, %s, v62'%s(sJ)); e('v_and_b32 v4, 7, v4'); e('v_cmp_eq_u32 vcc, 0, v62'); e('v_mov_b32 v5, 8'); e('v_add_u32 v62, 3, v62')
        e('v_cndmask_b32 v4, v4, v5, vcc'); e('v_lshl_add_u32 v4, v4, 7, v24')
        e('s_mov_b32 exec_lo, 0x7ffffff'); e('s_mov_b32 exec_hi, %s'%('0x7ffffff' if T2 else '0'))
        e('buffer_load_dword v15, v4, %s, s19 offen'%s(sW2,4))
        e('s_mov_b64 exec, -1')
        e('s_branch AX_S%d'%kp)
    e('AX_D:')
    e('s_barrier')
    e('s_setprio %d'%AP2); e('s_nop 3')
    st(1)
    e('v_lshlrev_b32 v12, 9, v9'); e('v_lshl_add_u32 v12, v8, 3, v12')
    e('s_lshl_b32 s16, %s, 5'%s(sJ)); e('s_add_u32 s16, s16, %s'%s(sC)); e('s_mul_i32 s16, s16, 12288'); e('s_add_u32 s16, s16, %d'%U_OFF)
    e('s_add_u32 s17, s16, 8192'); e('s_add_u32 s16, s16, s69')
    FR=16
    def pack(dst,src,n=8):
        for h in range(n): e('v_cvt_pk_bf16_f32 %s, %s, %s'%(v(dst+h),v(src+2*h),v(src+2*h+1)))
    def stageA(D,FR):
        for sh in range(2):
            for be in range(2):
                d=D+16*sh+8*be; a=FR+4*sh; b=FR+8+4*sh
                mfma(d,FC+4*be,a,'0'); mfma(d+4,FC+4*be,b,'0'); mfma(d,FS+4*be,b); mfma(d+4,FN+4*be,a)
    def ustore(D,O,so):
        for be in range(2):
            for r in range(4):
                o=O+8*be+2*r
                for sh in range(2): e('v_cvt_pk_bf16_f32 %s, %s, %s'%(v(o+sh),v(D+16*sh+8*be+r),v(D+16*sh+8*be+4+r)))
                e('buffer_store_dwordx2 %s, v12, %s, %s offen offset:%d sc1'%(v(o,2),s(sWS,4),so,be*2048+r*128))
    MF=136
    e('v_add_u32 v14, %d, v25'%MX)
    pack(MF,ACC+32,4)
    e('s_lshl_b32 s66, s7, 7'); e('s_add_u32 s66, s66, %d'%GL); e('v_lshlrev_b32 v13, 4, v9'); e('v_add_u32 v13, s66, v13')
    e('s_mov_b32 exec_lo, 0x00200020'); e('s_mov_b32 exec_hi, 0x00200020')
    for sg in range(2): e('ds_write_b128 v13, %s offset:%d'%(v(ACC+32+4*sg,4),64*sg))
    e('s_mov_b64 exec, -1')
    e('s_cmp_eq_u32 s7, 1'); e('s_cbranch_scc0 AX_A0'); e('ds_write_b128 v14, %s'%v(MF,4)); e('AX_A0:')
    pack(FR,ACC); pack(FR+8,ACC+16); e('s_nop 1')
    stageA(32,FR)
    e('s_nop 7')
    ustore(32,236,'s16')
    e('s_waitcnt lgkmcnt(0)')
    e('s_barrier')
    e('s_barrier')
    if E3A: e('s_barrier')
    if DIAG==3: e('s_memrealtime s[74:75]'); e('s_waitcnt lgkmcnt(0)')
    e('s_cmp_eq_u32 s7, 0'); e('s_cbranch_scc0 AX_A2')
    e('ds_read_b128 %s, v14'%v(MF+4,4)); e('s_waitcnt lgkmcnt(0)')
    for h in range(8): e('v_mov_b32_dpp %s, %s row_ror:8 row_mask:0xf bank_mask:0xf'%(v(MF+8+h),v(MF+h)))
    e('s_nop 1')
    stageA(64,MF)
    e('s_nop 7')
    e('s_mov_b32 exec_lo, 0x00ff00ff'); e('s_mov_b32 exec_hi, 0x00ff00ff')
    ustore(64,96,'s17')
    e('s_mov_b64 exec, -1')
    e('AX_A2:')
    out.extend(parts[1])
    e('s_waitcnt vmcnt(0)'); e('v_mov_b32 v10, 1')
    e('s_mov_b64 exec, 1'); e('buffer_store_dword v10, %s, %s, s71 offen sc1'%(v(L0),s(sWS,4))); e('s_mov_b64 exec, -1')
    for k in (2,3,4,5): out.extend(parts[k])
    for i in range(4): e('ds_read_b32 %s, %s'%(v(GG+i),v(GG+i)))
    e('s_lshl_b32 s65, %s, 10'%s(sC)); e('s_add_u32 s65, s65, %d'%FLP)
    e('s_waitcnt lgkmcnt(0)')
    for i in range(4):
        g=GG+i
        e('v_mul_f32 %s, 0xbfb8aa3b, %s'%(v(g),v(g))); e('v_exp_f32 %s, %s'%(v(g),v(g))); e('s_nop 0')
        e('v_add_f32 %s, 1.0, %s'%(v(g),v(g))); e('v_rcp_f32 %s, %s'%(v(g),v(g)))
    if NORED:
        for i in range(2,7): st(i)
        st_flush(7,0); e('s_endpgm')
    e('s_mov_b32 s47, 0')
    def gpoll(load,cmp,slp):
        L=lab('GP'); e('s_branch %sf'%L); e(L+':')
        if slp: e('s_sleep %d'%slp)
        e(L+'f:')
        for x in load: e(x)
        e('s_add_u32 s47, s47, 1'); e('s_waitcnt vmcnt(0)')
        for x in cmp: e(x)
        e('s_cmp_gt_u32 s47, %d'%SPINMAX); e('s_cbranch_scc1 %sx'%L); e('s_cbranch_vccnz '+L); e(L+'x:')
    e('s_lshl_b32 s16, s7, 8'); e('s_add_u32 s16, s16, %d'%CNS)
    e('v_and_b32 v15, 1, v0'); e('v_mul_u32_u24 v15, 516, v15'); e('v_add_u32 v15, s16, v15')
    def pace(n):
        L=lab('PC'); e(L+':'); e('s_sleep 3'); e('ds_read_b32 v5, v15')
        e('s_add_u32 s99, s99, 1'); e('s_cmp_gt_u32 s99, 0x100000'); e('s_cbranch_scc1 K_END'); e('s_waitcnt lgkmcnt(0)')
        e('v_cmp_gt_u32 vcc, %s, v5'%(n if isinstance(n,str) else min(n,38))); e('s_cbranch_vccnz '+L)
    e('v_and_b32 v4, 7, v0'); e('v_lshlrev_b32 v4, 5, v4')
    gpoll(['buffer_load_dword v5, v4, %s, 0 offen sc1'%s(sDBG,4)],['v_cmp_gt_u32 vcc, 32, v5'],8)
    e('s_and_b32 s16, %s, %d'%(s(sC),USTG)); e('s_add_u32 s16, s16, %d'%(20+UPACE))
    pace('s16')
    e('s_mov_b32 s16, %d'%FLU)
    gpoll(['buffer_load_dwordx4 v[96:99], %s, %s, s16 offen sc1'%(v(L16),s(sWS,4)),'buffer_load_dwordx4 v[100:103], %s, %s, s16 offen offset:1024 sc1'%(v(L16),s(sWS,4))],
          ['v_min3_u32 v5, v96, v97, v98','v_min3_u32 v5, v5, v99, v100','v_min3_u32 v5, v5, v101, v102','v_min_u32 v5, v5, v103','v_cmp_eq_u32 vcc, 0, v5'],USLP)
    st(2)
    UF=16; YA=80; SP=152
    def uloads(tb,dst):
        for k in range(4):
            for u in range(2):
                e('s_mov_b32 s17, %d'%(U_OFF+(8*k+u)*12288))
                e('buffer_load_dwordx2 %s, %s, %s, s17 offen sc1'%(v(dst+4*k+2*u,2),v(UO+tb),s(sWS,4)))
    def fin(y,p,og,o,vaddr,soff):
        for tb in range(2):
            for r in range(4): e('v_fma_f32 %s, %s, %s, %s'%(v(p[tb]+r),v(og),v(p[tb]+r),v(y[tb]+r)))
        for tb in range(2):
            for h in range(2): e('v_cvt_pk_bf16_f32 %s, %s, %s'%(v(o+2*tb+h),v(p[tb]+2*h),v(p[tb]+2*h+1)))
        e('s_nop 1')
        e('v_permlane16_swap_b32 %s, %s'%(v(o),v(o+2))); e('v_permlane16_swap_b32 %s, %s'%(v(o+1),v(o+3)))
        e('buffer_store_dwordx4 %s, %s, %s, %s offen%s'%(v(o,4),v(vaddr),s(sOUT,4),soff,[' ',' sc1',' nt'][OSC]))
    for tb in range(2): uloads(tb,UF+16*tb)
    e('s_cmp_eq_u32 s7, 1'); e('s_cbranch_scc0 AX_U')
    for tb in range(2,4): uloads(tb,UF+16*tb)
    gpoll(['buffer_load_dword v5, %s, %s, s65 offen sc1'%(v(PL2),s(sWS,4))],['v_cmp_gt_u32 vcc, 1, v5'],10)
    e('s_mul_i32 s16, %s, %d'%(s(sC),8*73728)); e('s_lshl_b32 s17, %s, 10'%s(sJ)); e('s_add_u32 s16, s16, s17'); e('s_add_u32 s16, s16, 65536')
    for jj in range(8):
        e('buffer_load_dwordx4 %s, %s, %s, s16 offen sc1'%(v(80+4*jj,4),v(L16),s(sWS,4)))
        if jj<7: e('s_add_u32 s16, s16, 73728')
    for tb in range(2,4):
        for i in range(16): e('v_xor_b32 %s, %s, %s'%(v(UF+16*tb+i),v(MK+tb),v(UF+16*tb+i)))
    e('s_nop 1')
    for k in range(4):
        for tb in range(2): mfma(112+4*tb, UF+32+16*tb+4*k, GF+4*k, '0' if k==0 else None)
    e('s_waitcnt vmcnt(0)')
    for jj in range(8):
        for tb in range(2): mfma(120+4*tb, SEL+4*tb, 80+4*jj, '0' if jj==0 else None)
    for r in range(8): e('v_mul_f32 %s, %s, %s'%(v(112+r),v(GG),v(112+r)))
    e('v_sub_f32 v14, 1.0, %s'%v(GG)); e('s_lshl_b32 s16, s55, 1')
    fin((112,116),(120,124),14,248,TR,'s16')
    e('s_branch AX_U2')
    e('AX_U:')
    e('s_waitcnt vmcnt(0)')
    e('AX_U2:')
    for tb in range(2):
        for i in range(16): e('v_xor_b32 %s, %s, %s'%(v(UF+16*tb+i),v(MK+tb),v(UF+16*tb+i)))
    e('s_nop 1')
    for k in range(4):
        for tb in range(2):
            for i in range(4): mfma(YA+16*tb+4*i, UF+16*tb+4*k, GF+16*i+4*k, '0' if k==0 else None)
    st(3)
    e('s_mul_i32 s18, %s, %d'%(s(sC),8*73728)); e('s_lshl_b32 s17, s15, 13'); e('s_add_u32 s18, s18, s17'); e('s_add_u32 s18, s18, s44')
    def acc(buf,first):
        for i in range(4):
            for tb in range(2): mfma(SP+16*tb+4*i, SEL+4*tb, buf+4*i, '0' if first else None)
    BUF=lambda i: 16+16*(i%4)
    e('s_mov_b32 s66, 0')
    def addr(i,so,sm):
        e('s_sub_u32 %s, %s, %d'%(so,s(sJ),i)); e('s_and_b32 %s, %s, 7'%(so,so))
        e('s_lshl_b32 %s, %s, 1'%(sm,so)); e('s_lshl_b32 %s, 3, %s'%(sm,sm))
        e('s_mul_i32 %s, %s, 73728'%(so,so)); e('s_add_u32 %s, %s, s18'%(so,so))
    def pollbits(i,sm,sx,slp):
        e('s_branch AX_F%d'%i); e('AX_R%d:'%i)
        if slp: e('s_sleep %d'%slp)
        e('AX_F%d:'%i)
        e('buffer_load_dword v5, %s, %s, s65 offen sc1'%(v(PL1),s(sWS,4))); e('s_add_u32 s47, s47, 1'); e('s_waitcnt vmcnt(0)')
        e('v_cmp_le_u32 vcc, v254, v5'); e('s_cmp_gt_u32 s47, %d'%SPINMAX); e('s_cbranch_scc1 AX_G%d'%i)
        e('s_mov_b32 s66, vcc_lo'); e('s_mov_b32 exec_lo, %s'%sx); e('s_mov_b32 exec_hi, 0')
        e('s_and_b32 s19, s66, %s'%sm); e('s_cmp_eq_u32 s19, %s'%sm); e('s_cbranch_scc0 AX_R%d'%i)
    def loads(i,so):
        for u in range(4): e('buffer_load_dwordx4 %s, %s, %s, %s offen sc1'%(v(BUF(i)+4*u,4),v(PO+u),s(sWS,4),so))
    addr(7,'s48','s49')
    e('s_add_u32 s16, s44, %d'%QH)
    for u in range(4): e('v_add_u32 %s, s16, %s'%(v(128+u),v(PO+u)))
    for i in range(1,7):
        addr(i,'s16','s17')
        e('s_and_b32 s19, s66, s17'); e('s_cmp_eq_u32 s19, s17'); e('s_cbranch_scc1 AX_G%d'%i)
        pace(max(20+2*(i+2)+PPACE-FEARLY, LATE if i>1 else 0))
        if i==6: e('s_or_b32 s50, s17, s49'); e('s_mov_b32 exec_lo, s50'); e('s_mov_b32 exec_hi, 0')
        pollbits(i,'s17','s50' if i==6 else 's17', 0 if i==6 else PSLP)
        e('AX_G%d:'%i)
        e('s_mov_b64 exec, -1')
        loads(i,'s16')
        if 3<=i<=6: e('s_waitcnt vmcnt(8)'); acc(BUF(i-2), i==3)
        if i==1:
            for sl in range(4):
                for tb in range(2):
                    for r in range(4): e('v_mul_f32 %s, %s, %s'%(v(YA+16*tb+4*sl+r),v(GG+sl),v(YA+16*tb+4*sl+r)))
                e('v_sub_f32 %s, 1.0, %s'%(v(GG+sl),v(GG+sl)))
    e('s_and_b32 s19, s66, s49'); e('s_cmp_eq_u32 s19, s49'); e('s_cbranch_scc1 AX_G7')
    e('s_mov_b32 exec_lo, s49'); e('s_mov_b32 exec_hi, 0')
    pollbits(7,'s49','s49',0)
    e('AX_G7:')
    e('s_mov_b64 exec, -1')
    loads(7,'s48')
    e('s_waitcnt vmcnt(8)'); acc(BUF(5),False)
    lds_wait(15,5,'39')
    for u in range(4): e('ds_read_b128 %s, %s'%(v(BUF(4)+4*u,4),v(128+u)))
    e('s_waitcnt lgkmcnt(0)'); acc(BUF(4),False)
    st(4)
    e('s_waitcnt vmcnt(4)'); acc(BUF(6),False)
    st(5)
    e('s_lshl_b32 s16, s54, 1')
    for sl in range(4):
        e('s_waitcnt vmcnt(%d)'%(3-sl))
        for tb in range(2): mfma(SP+16*tb+4*sl, SEL+4*tb, BUF(7)+4*sl)
    e('s_nop 3')
    for sl in range(4): fin((YA+4*sl,YA+16+4*sl),(SP+4*sl,SP+16+4*sl),GG+sl,232+4*sl,TR+sl,'s16')
    if STAMP:
        e('s_waitcnt vmcnt(0)'); st(6); st_flush(7,0)
        if TRACE: trace_flush(252,253)
    if DIAG:
        e('s_waitcnt vmcnt(0)'); e('s_memrealtime s[76:77]'); e('s_waitcnt lgkmcnt(0)')
        if DIAG==1: e('s_mov_b32 s74, s76')
        e('s_sub_u32 s16, s74, s72')
        if DIAG==2: e('s_lshl_b32 s16, s16, 2')
        e('DG:'); e('s_memrealtime s[78:79]'); e('s_waitcnt lgkmcnt(0)'); e('s_sub_u32 s17, s78, s76'); e('s_cmp_lt_u32 s17, s16'); e('s_cbranch_scc1 DG')
    e('s_endpgm')
    for n,k in enumerate(later):
        e('AX_SL%d:'%n); out.extend(parts[k]); e('s_branch AX_SR')

def main():
    global INMAIN
    e('K_MAIN:')
    if IW:
        e('s_getpc_b64 s[16:17]'); e('IWP:')
        e('s_sub_u32 s16, s16, IWP-%s'%NAME); e('s_subb_u32 s17, s17, 0')
        e('s_lshl_b32 s18, %s, 2'%s(sC)); e('s_add_u32 s18, s18, %s'%s(sWV)); e('s_lshl_b32 s18, s18, 8')
        e('v_lshlrev_b32 v3, 7, v0'); e('v_add_u32 v3, s18, v3'); e('v_min_u32 v3, K_END-%s, v3'%NAME)
        e('s_mov_b64 exec, 3'); e('global_load_dword v84, v3, s[16:17]'); e('s_mov_b64 exec, -1')
    ACC=96; AF=16; XB=56
    T=200
    e('v_lshlrev_b32 v7, 2, v0'); e('s_lshl_b32 s16, %s, 8'%s(sWV)); e('s_add_u32 s16, s16, %d'%LND); e('v_add_u32 v3, s16, v7'); e('v_mov_b32 v8, 0')
    for i in range(3): e('ds_write_b32 v3, v8 offset:%d'%(1024*i))
    e('v_add_u32 v13, 1024, v3')
    e('v_and_b32 v3, 1, v0'); e('v_mul_u32_u24 v3, 260, v3'); e('v_add_u32 v14, %d, v3'%LND)
    e('v_mov_b32 v5, 0')
    e('v_and_b32 v200, 15, v0'); e('v_lshrrev_b32 v201, 4, v0')
    e('s_movk_i32 s17, 1152')
    e('v_lshrrev_b32 v202, 2, v200'); e('v_and_b32 v203, 3, v0')
    e('v_lshl_add_u32 v204, v201, 3, v202'); e('v_mul_u32_u24 v204, s17, v204'); e('v_lshl_add_u32 v204, v203, 3, v204')
    e('v_lshrrev_b32 v205, 1, v202'); e('v_and_b32 v7, 1, v201'); e('v_lshl_add_u32 v205, v7, 1, v205')
    e('s_mul_i32 s18, %s, %d'%(s(sWV),NA)); e('s_cmp_eq_u32 %s, 3'%s(sWV)); e('s_cselect_b32 s18, %d, s18'%(36-NB))
    for i in range(4):
        e('s_add_u32 s16, s18, %d'%i); e('s_and_b32 s17, s16, 3'); e('s_lshr_b32 s16, s16, 2'); e('s_lshl_b32 s16, s16, 7')
        e('v_xor_b32 v7, s17, v205'); e('v_lshl_add_u32 v7, v7, 5, v204'); e('v_add_u32 %s, s16, v7'%v(88+i)); e('v_mov_b32 %s, %s'%(v(92+i),v(88+i)))
    e('v_lshrrev_b32 v7, 1, v200'); e('v_xor_b32 v7, v7, v201'); e('v_lshlrev_b32 v7, 4, v7')
    e('v_lshl_add_u32 v1, v200, 7, v7'); e('v_add_u32 v1, %d, v1'%XW0); e('s_lshl_b32 s16, s98, 6'); e('v_xor_b32 v1, s16, v1'); e('v_xor_b32 v2, 64, v1')
    e('v_mov_b32 v3, v1'); e('v_mov_b32 v4, v2')
    e('v_lshlrev_b32 v12, 4, v0')
    e('s_lshr_b32 s16, %s, 1'%s(sWV)); e('s_lshl_b32 s16, s16, 11'); e('s_add_u32 s16, s16, %d'%HB); e('v_add_u32 v9, s16, v12')
    e('v_lshl_add_u32 v204, v201, 2, v202'); e('v_bfe_u32 v205, v204, 1, 2'); e('v_lshlrev_b32 v204, 7, v204'); e('v_lshl_add_u32 v204, v203, 3, v204')
    e('s_and_b32 s16, %s, 1'%s(sWV)); e('s_lshl_b32 s16, s16, 1')
    for tb in range(2):
        e('s_add_u32 s17, s16, %d'%tb); e('v_xor_b32 v7, s17, v205'); e('v_lshl_add_u32 %s, v7, 5, v204'%v(10+tb))
    for i in range(16*NB): e('v_mov_b32 %s, 0'%v(ACC+i))
    for i in range(4*(NB-3),4*NA): e('v_mov_b32 %s, 0'%v(AF+i))
    for i in range(16): e('v_mov_b32 %s, 0'%v(XB+16+i))
    e('s_waitcnt lgkmcnt(0)')
    srd(sWS,62,WS_BYTES); srd(sDBG,60,256)
    e('s_lshl_b32 s16, s18, 11'); e('s_add_u32 s16, s16, %d'%HB); e('v_add_u32 v8, s16, v12')
    e('s_mov_b32 s64, 0'); e('s_mov_b32 s65, 0'); e('s_mov_b32 s66, 1')
    e('s_cmp_eq_u32 %s, 3'%s(sWV)); e('s_cselect_b32 s19, 3, 0'); e('v_mov_b32 v15, 1'); e('s_lshl_b32 s18, %s, 5'%s(sJ))
    INMAIN=True
    if MPRIO: e('s_setprio 3')
    spins=[]
    def check(seq,thr,vaddr=109):
        L=lab('SP'); R=L+'R'
        seq.append(('need',['F'])); seq.append(('i','v_cmp_gt_u32 vcc, %s, v110'%thr)); seq.append(('i','s_cbranch_vccnz '+L)); seq.append(('i',R+':'))
        spins.append((L,R,thr,vaddr))
    def conv(u,sg):
        a=ACC+32*u+4*sg; b=a+16
        if RM==1:
            L=[]
            for d,x in ((a,a),(a+1,a+2),(a+2,b),(a+3,b+2)):
                L+=['v_max_f32 %s, 0, %s'%(v(x),v(x)),'v_max_f32 %s, 0, %s'%(v(x+1),v(x+1)),'v_cvt_pk_bf16_f32 %s, %s, %s'%(v(d),v(x),v(x+1))]
            return L+['ds_write_b128 v8, %s offset:%d'%(v(a,4),u*4096+sg*1024)]
        if RM==2:
            return ['v_cvt_pk_bf16_f32 %s, %s, %s'%(v(d),v(x),v(x+1)) for d,x in ((a,a),(a+1,a+2),(a+2,b),(a+3,b+2))]+['s_nop 0','ds_write_b128 v8, %s offset:%d'%(v(a,4),u*4096+sg*1024)]
        if RM==3:
            return ['v_cvt_pk_bf16_f32 %s, %s, %s'%(v(d),v(x),v(x+1)) for d,x in ((a,a),(a+1,a+2),(a+2,b),(a+3,b+2))]+['v_pk_max_i16 %s, %s, 0'%(v(a+k),v(a+k)) for k in range(4)]+['s_nop 0']
        return ['v_cvt_pk_bf16_f32 %s, %s, %s'%(v(a),v(a),v(a+1)),'v_cvt_pk_bf16_f32 %s, %s, %s'%(v(a+1),v(a+2),v(a+3)),
                'v_cvt_pk_bf16_f32 %s, %s, %s'%(v(a+2),v(b),v(b+1)),'v_cvt_pk_bf16_f32 %s, %s, %s'%(v(a+3),v(b+2),v(b+3))]+['v_pk_max_i16 %s, %s, 0'%(v(a+k),v(a+k)) for k in range(4)]+[
                'ds_write_b128 v8, %s offset:%d'%(v(a,4),u*4096+sg*1024)]
    def step1(NT,p,last=False):
        seq=[('i','s_barrier')]
        R=[('A',0,0),('A',0,1)]+[('X',p,sg) for sg in range(4)]+[('A',t,r) for t in range(1,NT) for r in range(2)]
        extra=[]
        if not last:
            extra=['s_add_u32 s64, s64, %d'%SLOT,'s_cmp_eq_u32 s64, %d'%(3*SLOT),'s_cselect_b32 s64, 0, s64','s_add_u32 s66, s66, 1']+['v_add_u32 %s, s64, %s'%(v(92+i),v(88+i)) for i in range(4)]
            if p==1: extra+=['s_add_u32 s65, s65, 8192','s_and_b32 s65, s65, 32767','v_add_u32 v3, s65, v1','v_add_u32 v4, s65, v2']
            else: extra+=['s_cmp_eq_u32 s66, 18']
        cv=[]; nq=0
        ng=4*(NT+3) if last else 4*NT
        eb=len(R)+5
        def pop(n,ok):
            for _ in range(n):
                if cv and (ok or not cv[0].startswith('ds_')):
                    x=cv.pop(0)
                    seq.append(('lds','H',x) if x.startswith('ds_') else ('i',x))
        for g in range(ng):
            i,sg=divmod(g,4)
            if g<len(R):
                k,a,b=R[g]
                if k=='A': seq.append(('lds',R[g],'ds_read_b64_tr_b16 %s, %s offset:%d'%(v(AF+4*a+2*b,2),v(92+a%4),128*(a//4)+4608*b)))
                else: seq.append(('lds',R[g],'ds_read_b128 %s, %s offset:%d'%(v(XB+16*p+4*b,4),v(3+p),2048*b)))
            elif extra: seq.append(('i',extra.pop(0)))
            if last:
                if g==eb: seq.append(('need',[('A',NT-1,1)])); seq.append(('i','s_barrier'))
                if sg==0 and i>=6 and i%2==0:
                    cv+=[x for q in range(4) for x in conv(nq,q)]; nq+=1
                pop(CPG,g>=eb)
            if i<3: t,xb=NT-3+i,1-p
            else: t,xb=i-3,p
            seq.append(('need',[('A',t,0),('A',t,1),('X',xb,sg)]))
            seq.append(('i',mf(ACC+16*t+4*sg, AF+4*t, XB+16*xb+4*sg)))
        assert not extra
        if not last: seq.append(('need',[('A',NT-1,1)]))
        if last:
            assert len(cv)>=9
            while nq<NT//2:
                cv+=[x for q in range(4) for x in conv(nq,q)]; nq+=1
            pop(len(cv),True)
        return seq
    def phase1(NT,nm):
        s0=step1(NT,0); s1=step1(NT,1)
        s0e=s0
        if STAMP: s0e=s0[:1]+[('i','s_cmp_eq_u32 s66, 1'),('i','s_cbranch_scc0 %sNS'%nm),('i','s_memrealtime s[74:75]'),('i','s_memtime s[88:89]'),('i','s_waitcnt lgkmcnt(0)'),('i',nm+'NS:')]+s0[1:]
        e(nm+'L:')
        stream(s0e+[('i','s_cbranch_scc1 %sX'%nm)]+s1+([('i','s_cmp_eq_u32 s66, s19'),('i','s_cbranch_scc0 %sL'%nm),('i','s_mov_b64 exec, 1'),('i','buffer_atomic_add v15, v5, %s, s18 offen sc1'%s(sDBG,4)),('i','s_mov_b64 exec, -1')] if NT==NB else [])+[('i','s_branch %sL'%nm)],True)
        e(nm+'X:')
        stream(step1(NT,1,True),False,pre=s1+s0)
    e('s_cmp_ge_u32 %s, 2'%s(sWV)); e('s_cbranch_scc1 MBL')
    for i in range(16*NB,16*NA): e('v_mov_b32 %s, 0'%v(ACC+i))
    phase1(NA,'MA')
    e('s_branch M1_J')
    phase1(NB,'MB')
    e('M1_J:')
    e('s_waitcnt lgkmcnt(0)')
    st(2); stc(9)
    e('v_mov_b32 v100, v9'); e('v_add_u32 v101, 36864, v9')
    e('s_barrier')
    H=112
    for k in range(18):
        for sg in range(2): e('ds_read_b128 %s, %s offset:%d'%(v(H+8*k+4*sg,4),v(100+k//9),(k%9)*4096+sg*1024))
        if E3A and k==12: e('s_waitcnt lgkmcnt(8)'); e('s_barrier')
    e('v_mov_b32 v102, v10'); e('v_mov_b32 v103, v11'); e('v_add_u32 v104, %d, v10'%SLOT); e('v_add_u32 v105, %d, v11'%SLOT)
    e('v_mov_b32 v106, v12'); e('v_mov_b32 v108, v13'); e('v_mov_b32 v109, v14')
    if TRACE: e('v_mov_b32 v1, 0'); e('v_mov_b32 v3, 0')
    e('v_mov_b32 v107, 20')
    e('ds_read_b32 v110, v109')
    WR=16; PA=64; QA=80; PK=8
    e('s_mov_b32 s64, %d'%(2*SLOT)); e('s_mov_b32 s65, 0'); e('s_mov_b32 s66, 19')
    e('s_mul_i32 s60, s2, 73728')
    e('s_lshl_b32 s61, %s, 11'%s(sWV)); e('s_add_u32 s60, s60, s61')
    e('s_mov_b32 s67, %d'%OOB)
    e('s_lshl_b32 s19, s2, 7'); e('s_lshl_b32 s61, %s, 2'%s(sWV)); e('s_add_u32 s19, s19, s61'); e('s_add_u32 s19, s19, %d'%FLP)
    e('s_mov_b32 s63, %d'%(FMASK<<1))
    e('v_mov_b32 v6, 0'); e('s_and_b32 s62, %s, %d'%(s(sC),NSITE-1))
    e('s_waitcnt lgkmcnt(0)'); e('s_barrier')
    st(3); stc(10)
    def mm2(kg,u):
        tb,sg=divmod(u,2)
        a=WR+8*(kg%6)+4*tb; b=H+8*kg+4*sg
        if kg<9: return mf(PA+8*tb+4*sg,a,b,'0' if kg==0 else None)
        return mf(QA+8*tb+4*sg,a,b,PA+8*tb+4*sg if kg==9 else None)
    def packq(final=False):
        L=[]
        for sg in range(2):
            for tb in range(2):
                for h in range(2):
                    q=QA+8*tb+4*sg+2*h
                    L.append('v_cvt_pk_bf16_f32 %s, %s, %s'%(v(PK+4*sg+2*tb+h),v(q),v(q+1)))
            if final: L.append('ds_write_b128 v7, %s offset:%d'%(v(PK+4*sg,4),1024*sg))
            else: L.append('buffer_store_dwordx4 %s, v106, %s, s67 offen offset:%d sc1'%(v(PK+4*sg,4),s(sWS,4),1024*sg))
        return L
    body=[]
    for hc in range(2):
        check(body,'s66')
        R=[(9*hc+k,tb,r) for k in range(9) for tb in range(2) for r in range(2)]
        ex={}
        if hc==0:
            cv=[x for x in packq() if x.startswith('v_cvt')]
            for i,x in enumerate(cv): ex[16+i]=[x]
            ex[2]=['v_add_u32 v104, s64, v104']; ex[3]=['v_add_u32 v105, s64, v105']; ex[4]=['s_sub_u32 s64, 0, s64']; ex[5]=['s_add_u32 s66, s66, 1']

        else:
            L=['v_add_u32 v102, s64, v102','v_add_u32 v103, s64, v103','s_add_u32 s66, s66, 1',
               's_add_u32 s61, s65, s15','s_and_b32 s61, s61, 7','s_cmp_eq_u32 s65, 0','s_cselect_b32 s61, 8, s61',
               's_lshl_b32 s61, s61, 13']
            for i,x in enumerate(L): ex[2+i]=[x]
            ex[26]=['s_add_u32 s67, s60, s61']; ex[30]=['s_cmp_eq_u32 s65, 8','s_cselect_b32 s62, 0, s62']
            ex[27]=['v_mov_b32 v6, s65']; ex[28]=['s_add_u32 s65, s65, 1']; ex[33]=['s_cmp_lt_u32 s65, 9']
            if FEARLY: ex[32]=['s_bitcmp1_b32 s63, s65','s_cbranch_scc1 M2_FL','M2_FR:']
        sites=[(0,25),(1,1),(1,13),(1,25)][:NSITE]
        for n,(h,g) in enumerate(sites):
            if h==hc:
                ex.setdefault(g,[]); ex[g]=ex[g]+['s_cmp_eq_u32 s62, %d'%n,'s_cbranch_scc1 M2_ST%d'%n,'M2_SR%d:'%n]
        for g in range(36):
            i,u=divmod(g,4)
            k,tb,r=R[g]
            body.append(('lds',R[g],'ds_read_b64_tr_b16 %s, %s offset:%d'%(v(WR+8*(k%6)+4*tb+2*r,2),v(102+2*hc+tb),(k%9)*4096+r*2048)))
            if g==30: body.append(('lds','F','ds_read_b32 v110, v109'))
            if g==34: body.append(('i','v_add_u32 v107, 1, v107'))
            if g==35: body.append(('lds','C','ds_write_b32 v108, v107'))
            for x in ex.get(g,[]): body.append(('i',x))
            kg=(9*hc+i-3)%18
            body.append(('need',[(kg,u//2,0),(kg,u//2,1)]))
            body.append(('i',mm2(kg,u)))
    e('v_add_u32 v104, s64, v104'); e('v_add_u32 v105, s64, v105'); e('s_sub_u32 s64, 0, s64')
    e('M2_L:')
    stream(body,True)
    e('s_cbranch_scc1 M2_L')
    e('s_lshl_b32 s61, %s, 11'%s(sWV)); e('s_add_u32 s61, s61, %d'%QH); e('v_add_u32 v7, s61, v106')
    e('s_waitcnt lgkmcnt(0)')
    for kg in (15,16,17):
        for u in range(4): e(mm2(kg,u))
    if not FEARLY: e('s_waitcnt vmcnt(0)'); e('s_mov_b64 exec, 1'); e('buffer_store_dword v6, v5, %s, s19 offen sc1'%s(sWS,4)); e('s_mov_b64 exec, -1')
    e('s_nop 7')
    for x in packq(True): e(x)
    e('v_add_u32 v107, 1, v107'); e('ds_write_b32 v108, v107')
    INMAIN=False
    if STAMP:
        st(4); stc(11); st_flush(12,0)
        if TRACE: trace_flush(1,3)
    e('s_waitcnt lgkmcnt(0)')
    e('s_endpgm')
    e('M2_FL:'); e('s_waitcnt vmcnt(0)'); e('s_mov_b64 exec, 1'); e('buffer_store_dword v6, v5, %s, s19 offen sc1'%s(sWS,4)); e('s_mov_b64 exec, -1'); e('s_branch M2_FR')
    for n in range(NSITE):
        e('M2_ST%d:'%n)
        if not FEARLY: e('s_waitcnt vmcnt(0)'); e('s_mov_b64 exec, 1'); e('buffer_store_dword v6, v5, %s, s19 offen sc1'%s(sWS,4)); e('s_mov_b64 exec, -1')
        for x in packq():
            if x.startswith('buffer') and not NOST: e(x)
        e('s_branch M2_SR%d'%n)
    for (L,R,thr,va) in spins:
        e(L+':')
        tr=TRACE and thr=='s66'
        if tr:
            e('s_memtime s[96:97]'); e('s_waitcnt lgkmcnt(0)'); e('s_mov_b32 m0, s66'); e('s_nop 3'); e('v_writelane_b32 v1, s96, m0'); L=L+'b'; e(L+':')
        e('ds_read_b32 v110, %s'%v(va))
        e('s_add_u32 s99, s99, 1'); e('s_cmp_gt_u32 s99, 0x100000'); e('s_cbranch_scc1 K_END'); e('s_waitcnt lgkmcnt(0)')
        e('v_cmp_gt_u32 vcc, %s, v110'%thr); e('s_cbranch_vccnz '+L)
        if tr: e('s_memtime s[96:97]'); e('s_waitcnt lgkmcnt(0)'); e('v_writelane_b32 v3, s96, m0')
        e('s_branch '+R)

assert all((L*57)>>9==L//9 for L in range(288))
assert all((L*57)>>11==L//36 for L in range(289))
out.append('; @launch grid=(256,1,1) block=(512,1,1) lds=163840')
out.append('.amdgcn_target "amdgcn-amd-amdhsa--gfx950"')
out.append('.text'); out.append('.globl '+NAME)
kernel()
out.append('.section .rodata,"a"'); out.append('.p2align 6')
out.append('.amdhsa_kernel '+NAME)
for l in ['next_free_vgpr 256','next_free_sgpr 100','accum_offset 256','group_segment_fixed_size 0','kernarg_size 96','user_sgpr_count 2','user_sgpr_kernarg_segment_ptr 1','system_sgpr_workgroup_id_x 1']:
    out.append('  .amdhsa_'+l)
out.append('.end_amdhsa_kernel')
print('\n'.join(out))
```

```python
import sys, struct
A=sys.argv
STAMP='--stamp' in A; NODMA='--nodma' in A; NOMFMA='--nomfma' in A; NOREAD='--noread' in A; NOPRIO='--noprio' in A; NOTX='--notx' in A; NORED='--nored' in A; NOST='--nost' in A; NOU='--nou' in A; NOXW='--noxw' in A; TRACE='--trace' in A; MPRIO='--mprio' in A; SLP='--slp' in A; opt=lambda n,d: int([x for x in A if x.startswith('--'+n+'=')][0].split('=')[1]) if any(x.startswith('--'+n+'=') for x in A) else d
PRE=opt('pre',2); AP2=opt('ap2',0); USLP=opt('uslp',30); PSLP=opt('pslp',12); UPACE=opt('upace',8); PPACE=opt('ppace',1); LP=opt('lp',0); AP=opt('ap',1); EARLY=opt('early',0); RM=0; CROT=opt('crot',1); FMASK=opt('fmask',0x1c8); JROT=opt('jrot',1); PK=0; TAG=0; FEARLY=opt('fearly',1); T2=0; CT=opt('ct',0); IW=opt('iw',0); DIAG=opt('diag',0); NA=10; NB=8; CPG=opt('cpg',2); PUB1=opt('pub1',12); OSC=opt('osc',0); LATE=opt('late',35); USTG=opt('ustg',0); NSITE=opt('nsite',1); XSTG=opt('xstg',2); E3A=opt('e3a',0)
DBGT='--dbgt' in A; NOSW='--nosw' in A; WSPLIT=0 if '--nowsplit' in A else 1
NAME='gated_mix__spectral_fnet__dense_activation_relu__prompt_kernel'
out=[]; INMAIN=False
def e(s=''):
    if NODMA and s.endswith(' lds') and ('s[20:23]' in s or 's[24:27]' in s): return
    if (NOPRIO or MPRIO) and s.startswith('s_setprio') and not INMAIN: return
    if INMAIN and NOST and s.startswith('buffer_store_dword'): return
    if NOU and s.startswith('buffer_load_dword v') and 's17 offen sc1' in s: return
    if NOXW and s.endswith(' lds') and ('s[8:11]' in s or 's[12:15]' in s): return
    if INMAIN and NOMFMA and s.startswith('v_mfma'): return
    out.append('    '+s if s and not s.endswith(':') else s)
def v(n,c=1): return 'v%d'%n if c==1 else 'v[%d:%d]'%(n,n+c-1)
def s(n,c=1): return 's%d'%n if c==1 else 's[%d:%d]'%(n,n+c-1)
def f2u(x): return struct.unpack('<I',struct.pack('<f',float(x)))[0]

SLOT=36864; XW0=110592; XWS=18432; HB=73728
MISC=147456; QH=MISC; LND=MISC+8192; CNS=LND+4*256; GL=CNS+6*256
GWL=LND+3072; MX=GWL+1152
U_OFF=0x1400000; FLP=0x1800000; FLU=0x1810000; ST_OFF=0x1900000; WS_BYTES=0x1B00000
BIG=0x7fffffff; OOB=0x40000000
sX,sWH,sW1,sW2,sGW,sWS,sOUT,sDBG=8,12,20,24,28,32,36,40
sJ,sC,sWV,sROT=3,4,5,6
SPINMAX=0x8000

def srd(d,base,nbytes):
    e('s_mov_b32 %s, %s'%(s(d),s(base))); e('s_mov_b32 %s, %s'%(s(d+1),s(base+1)))
    e('s_mov_b32 %s, %d'%(s(d+2),nbytes)); e('s_mov_b32 %s, 0x20000'%s(d+3))
def mf(d,a,b,c=None):
    return 'v_mfma_f32_16x16x32_bf16 %s, %s, %s, %s'%(v(d,4),v(a,4),v(b,4), v(d,4) if c is None else (c if isinstance(c,str) else v(c,4)))
def mfma(*a): e(mf(*a))
def st(slot):
    if STAMP: e('s_memrealtime %s'%s(72+2*slot,2))
def stc(slot):
    if STAMP: e('s_memtime %s'%s(72+2*slot,2))
def st_flush(n,base_row):
    if not STAMP: return
    e('s_waitcnt lgkmcnt(0)')
    e('s_lshl_b32 s68, s2, 3'); e('s_add_u32 s68, s68, %s'%s(sWV)); e('s_lshl_b32 s68, s68, 7'); e('s_add_u32 s68, s68, %d'%ST_OFF)
    e('v_mov_b32 v2, 0')
    for i in range(n):
        e('v_mov_b32 v4, %s'%s(72+2*i)); e('v_mov_b32 v5, %s'%s(73+2*i))
        e('buffer_store_dwordx2 v[4:5], v2, %s, s68 offen offset:%d'%(s(sWS,4),8*i)); e('s_nop 1')
def trace_flush(a,b):
    e('s_lshl_b32 s68, s2, 3'); e('s_add_u32 s68, s68, %s'%s(sWV)); e('s_lshl_b32 s68, s68, 9'); e('s_add_u32 s68, s68, %d'%(ST_OFF+0x40000))
    e('v_lshlrev_b32 v2, 2, v0')
    e('buffer_store_dword %s, v2, %s, s68 offen'%(v(a),s(sWS,4))); e('buffer_store_dword %s, v2, %s, s68 offen offset:256'%(v(b),s(sWS,4)))
_lab=[0]
def lab(p): _lab[0]+=1; return '%s%d'%(p,_lab[0])
def lds_wait(vaddr,vtmp,thr):
    L=lab('W')
    e(L+':')
    if SLP and not INMAIN: e('s_sleep 2')
    e('ds_read_b32 %s, %s'%(v(vtmp),v(vaddr)))
    e('s_add_u32 s99, s99, 1'); e('s_cmp_gt_u32 s99, 0x100000'); e('s_cbranch_scc1 K_END'); e('s_waitcnt lgkmcnt(0)')
    e('v_cmp_gt_u32 vcc, %s, %s'%(thr,v(vtmp))); e('s_cbranch_vccnz '+L)

def stream(seq, cyclic, pre=None):
    hist=[]; done=0
    def run(sq,emit):
        nonlocal done
        for it in sq:
            if it[0]=='lds':
                hist.append(it[1])
                if emit and not (NOREAD and it[2].startswith('ds_read_b64_tr')): e(it[2])
            elif it[0]=='need':
                idx=-1
                for t in it[1]:
                    k=[i for i,x in enumerate(hist) if x==t]
                    if k: idx=max(idx,k[-1])
                    else: assert not emit, t
                if idx+1>done:
                    n=min(len(hist)-1-idx,15)
                    if emit: e('s_waitcnt lgkmcnt(%d)'%(0 if NOREAD else n))
                    done=len(hist)-n
            elif emit: e(it[1])
    if cyclic: run(seq,False)
    if pre is not None: run(pre,False)
    run(seq,True)

def kernel():
    e('.p2align 8'); e('.type %s,@function'%NAME); e(NAME+':')
    e('s_cmp_ge_u32 s2, 256'); e('s_cbranch_scc1 K_END')
    st(0)
    if DBGT or DIAG: e('s_memrealtime s[72:73]')
    e('s_load_dwordx2 s[44:45], s[0:1], 0')
    e('s_load_dwordx4 s[48:51], s[0:1], 24')
    e('s_load_dwordx4 s[52:55], s[0:1], 48')
    e('s_load_dwordx8 s[56:63], s[0:1], 64')
    e('s_mov_b32 s99, 0')
    e('v_lshrrev_b32 v1, 6, v0')
    e('s_and_b32 %s, s2, 7'%s(sJ)); e('s_lshr_b32 %s, s2, 3'%s(sC))
    e('v_readfirstlane_b32 %s, v1'%s(sWV))
    e('v_and_b32 v0, 63, v0')
    e('s_mul_i32 s6, %s, 57'%s(sC)); e('s_lshr_b32 s6, s6, 9'); e('s_and_b32 s98, s6, %d'%(0 if NOSW else 1)); e('s_mul_i32 s6, s6, 9'); e('s_sub_u32 s6, %s, s6'%s(sC))
    if JROT: e('s_add_u32 s6, s6, %s'%s(sJ)); e('s_sub_u32 s7, s6, 9'); e('s_cmp_ge_u32 s6, 9'); e('s_cselect_b32 s6, s7, s6')
    e('s_add_u32 s15, %s, %s'%(s(sJ),s(sC) if CROT else '0')); e('s_and_b32 s15, s15, 7')
    e('s_cmp_ge_u32 %s, 6'%s(sWV)); e('s_cbranch_scc1 K_AUX')
    e('s_cmp_ge_u32 %s, 4'%s(sWV)); e('s_cbranch_scc0 K_MAIN')
    loader(); aux(); main()
    e('K_END:'); e('s_endpgm')

def loader():
    e('s_setprio %d'%LP)
    e('s_sub_u32 s7, %s, 4'%s(sWV))
    e('v_lshrrev_b32 v1, 3, v0'); e('v_and_b32 v2, 7, v0')
    e('v_lshrrev_b32 v4, 1, v2')
    e('v_and_b32 v5, 1, v2'); e('v_lshlrev_b32 v5, 4, v5')
    e('s_movk_i32 s16, %d'%(9216-1152))
    for p in range(9):
        e('v_add_u32 v6, %d, v1'%(8*p))
        e('v_mul_u32_u24 v7, 57, v6'); e('v_lshrrev_b32 v7, 9, v7')
        e('v_bfe_u32 v9, v7, 1, 1'); e('v_xor_b32 v9, v9, v4')
        e('v_lshl_add_u32 v6, v6, 7, v5')
        e('v_mad_u32_u24 v6, v7, s16, v6')
        e('v_lshl_add_u32 v6, v9, 5, v6')
        e('v_xor_b32 v7, 64, v6')
        e('v_subrev_u32 %s, %d, v6'%(v(16+p),(p%4)*1024))
        e('v_add_u32 %s, %d, v7'%(v(25+p),8*9216-((p+9)%4)*1024))
    e('v_lshrrev_b32 v6, 1, v1'); e('v_and_b32 v6, 3, v6'); e('v_lshlrev_b32 v6, 1, v6'); e('v_xor_b32 v6, v6, v2')
    e('s_movk_i32 s69, 1152'); e('v_mul_u32_u24 v7, s69, v1'); e('v_lshl_add_u32 v36, v6, 4, v7')
    for i in range(1,4): e('v_add_u32 %s, %d, v36'%(v(36+i),i*8192))
    e('s_mul_i32 s64, s7, 18432')
    e('s_mul_i32 s17, %s, 1152'%s(sJ)); e('s_mul_i32 s18, s7, %d'%(16*9216)); e('s_add_u32 s17, s17, s18')
    e('s_lshl_b32 s18, s6, 1')
    e('s_xor_b32 s66, s18, s98'); e('s_mul_i32 s66, s66, %d'%(32*9216)); e('s_add_u32 s66, s66, s17')
    e('s_mov_b32 s67, s64')
    e('s_mov_b32 s68, 0'); e('s_mov_b32 s69, -2')
    e('s_mul_i32 s70, %s, 576'%s(sJ)); e('s_mul_i32 s71, s7, 144'); e('s_add_u32 s70, s70, s71'); e('s_mul_i32 s70, s70, 1152')
    e('s_lshl_b32 s19, s7, 8'); e('s_add_u32 s19, s19, %d'%LND)
    e('v_lshlrev_b32 v11, 2, v0'); e('v_add_u32 v11, s19, v11'); e('v_mov_b32 v10, 0'); e('v_mov_b32 v13, 0'); e('v_mov_b32 v40, 0'); e('v_mov_b32 v41, 0')
    e('v_and_b32 v12, 3, v0'); e('v_mul_u32_u24 v12, 260, v12'); e('v_add_u32 v12, %d, v12'%CNS)
    e('s_waitcnt lgkmcnt(0)')
    srd(sW1,52,5308416); srd(sW2,54,5308416)
    if STAMP: srd(sWS,62,WS_BYTES)
    PUB=12
    def dma(ph,p):
        if p%4==0 and p:
            e('s_add_u32 m0, s67, %d'%(p*1024))
            if ph==2: e('s_add_u32 s66, s66, %d'%(32*1152))
            else: e('s_nop 0')
        if ph==1: e('buffer_load_dwordx4 %s, %s, s66 offen offset:%d lds'%(v(16+p),s(sW1,4),(p%4)*1024))
        else: e('buffer_load_dwordx4 %s, %s, s66 offen offset:%d lds'%(v(36+p%4),s(sW2,4),(p%4)*1024))
    def grp(fill):
        groups=[]; i=0
        while i<len(fill):
            if fill[i].startswith('s_cmp'): groups.append(fill[i:i+2]); i+=2
            else: groups.append([fill[i]]); i+=1
        return groups
    def tr_top():
        if TRACE: e('s_memtime s[96:97]'); e('s_waitcnt lgkmcnt(0)'); e('s_mov_b32 m0, s68'); e('s_nop 3'); e('v_writelane_b32 v40, s96, m0'); e('v_writelane_b32 v42, s92, m0'); e('v_writelane_b32 v43, s94, m0')
    e('LD_P:'); tr_top()
    e('s_mov_b32 m0, s67'); e('s_nop 0')
    g=grp(['s_add_u32 s18, s18, 1','s_cmp_eq_u32 s18, 18','s_cselect_b32 s18, 0, s18','s_xor_b32 s44, s18, s98','s_mul_i32 s44, s44, %d'%(32*9216),'s_add_u32 s44, s44, s17',
           's_add_u32 s45, s67, %d'%SLOT,'s_cmp_ge_u32 s45, %d'%(3*SLOT),'s_cselect_b32 s45, s64, s45'])
    for p in range(18):
        if p==PUB:
            e('s_cmp_eq_u32 s68, 0'); e('s_cbranch_scc1 LD_P0')
            if TRACE: e('s_memtime s[92:93]')
            e('s_waitcnt vmcnt(%d)'%PUB)
            if TRACE: e('s_memtime s[94:95]')
            e('s_barrier')
            e('LD_P0:')
        dma(1,p)
        if g:
            for x in g.pop(0): e(x)
    e('s_mov_b32 s66, s44'); e('s_mov_b32 s67, s45')
    e('s_add_u32 s68, s68, 1'); e('s_cmp_lt_u32 s68, 18'); e('s_cbranch_scc1 LD_P')
    e('s_add_u32 s66, s70, 1024'); e('s_mov_b32 s69, 0')
    e('LD_Q:'); tr_top()
    e('s_waitcnt lgkmcnt(1)'); e('v_cmp_gt_u32 vcc, s69, v13'); e('s_mov_b32 m0, s67'); e('s_cbranch_vccnz LD_QS')
    e('LD_QR:')
    g=grp(['s_sub_u32 s46, s68, 17','s_lshr_b32 s44, s46, 1','s_add_u32 s47, s44, s15','s_and_b32 s47, s47, 7','s_cmp_eq_u32 s44, 0','s_cselect_b32 s47, 8, s47',
           's_lshl_b32 s47, s47, 7','s_and_b32 s44, s46, 1','s_mul_i32 s44, s44, %d'%(288*1152),'s_add_u32 s44, s44, s47','s_add_u32 s44, s44, s70',
           's_add_u32 s45, s67, %d'%SLOT,'s_cmp_ge_u32 s45, %d'%(4*SLOT),'s_cselect_b32 s45, s64, s45',
           's_cmp_le_u32 s68, 20','s_cselect_b32 s69, 0, s68'])
    for p in range(18):
        if p==PUB:
            e('v_mov_b32 v10, s68')
            if TRACE: e('s_memtime s[92:93]')
            e('s_waitcnt vmcnt(%d)'%PUB)
            e('s_cmp_eq_u32 s68, 18'); e('s_cbranch_scc0 LD_Q0'); e('s_barrier'); e('LD_Q0:')
            if TRACE: e('s_memtime s[94:95]')
            e('ds_read_b32 v13, v12'); e('ds_write_b32 v11, v10')
        if E3A and p==E3A: e('s_cmp_eq_u32 s68, 20'); e('s_cbranch_scc0 LD_Q1'); e('s_barrier'); e('LD_Q1:')
        dma(2,p)
        if g:
            for x in g.pop(0): e(x)
    assert not g
    e('s_mov_b32 s66, s44'); e('s_mov_b32 s67, s45')
    e('s_add_u32 s68, s68, 1'); e('s_cmp_le_u32 s68, 20'); e('s_cbranch_scc1 LD_E')
    e('s_cmp_lt_u32 s68, 36'); e('s_cbranch_scc1 LD_Q')
    e('v_mov_b32 v10, s68'); e('s_waitcnt vmcnt(0)'); e('ds_write_b32 v11, v10')
    if STAMP: st(1); st_flush(2,0)
    if TRACE:
        e('s_cmp_eq_u32 s7, 0'); e('s_cbranch_scc1 TRX'); e('v_mov_b32 v41, v43'); e('v_mov_b32 v40, v42'); e('TRX:')
        trace_flush(40,41)
    e('s_waitcnt lgkmcnt(0)')
    e('s_endpgm')
    e('LD_E:')
    if not EARLY:
        e('s_barrier')
        e('s_cmp_eq_u32 s68, 20'); e('s_cbranch_scc1 LD_Q')
        e('v_mov_b32 v10, s68'); e('s_waitcnt vmcnt(0)'); e('ds_write_b32 v11, v10'); e('s_waitcnt lgkmcnt(0)')
        e('s_barrier'); e('s_branch LD_Q')
    else:
        e('s_cmp_eq_u32 s68, 19'); e('s_cbranch_scc1 LD_E1')
        e('v_mov_b32 v10, s68'); e('s_waitcnt vmcnt(0)'); e('ds_write_b32 v11, v10'); e('s_waitcnt lgkmcnt(0)')
        e('s_barrier')
        e('LD_E1:')
        e('s_barrier'); e('s_branch LD_Q')
    e('LD_QS:')
    e('ds_read_b32 v13, v12'); e('s_waitcnt lgkmcnt(0)'); e('v_cmp_gt_u32 vcc, s69, v13'); e('s_cbranch_vccz LD_QR')
    e('v_mov_b32 v10, s68'); e('s_waitcnt vmcnt(0)'); e('ds_write_b32 v11, v10')
    lds_wait(12,13,'s69')
    if TRACE: e('s_memtime s[96:97]'); e('s_waitcnt lgkmcnt(0)'); e('s_mov_b32 m0, s68'); e('s_nop 3'); e('v_writelane_b32 v41, s96, m0'); e('s_mov_b32 m0, s67')
    e('s_branch LD_QR')

def aux():
    e('K_AUX:')
    e('s_setprio %d'%AP)
    e('s_sub_u32 s7, %s, 6'%s(sWV))
    e('v_lshrrev_b32 v1, 3, v0'); e('v_and_b32 v2, 7, v0'); e('v_lshrrev_b32 v3, 1, v1')
    e('v_xor_b32 v4, v2, v3'); e('v_lshlrev_b32 v4, 4, v4'); e('v_xor_b32 v5, 64, v4')
    e('s_mov_b32 s16, 73728'); e('v_mul_u32_u24 v6, s16, v1')
    for p in range(4):
        e('v_add_u32 %s, v6, %s'%(v(16+p),'v5' if p%2 else 'v4'))
        if p: e('v_add_u32 %s, %d, %s'%(v(16+p),p*(8*73728-1024),v(16+p)))
    e('v_lshlrev_b32 v25, 4, v0')
    e('s_movk_i32 s17, 1152'); e('v_and_b32 v8, 31, v0'); e('v_mul_u32_u24 v7, 57, v8'); e('v_lshrrev_b32 v62, 9, v7'); e('v_mul_u32_u24 v7, 9, v62'); e('v_sub_u32 v7, v8, v7'); e('v_mul_u32_u24 v24, s17, v7'); e('v_lshrrev_b32 v7, 5, v0'); e('v_lshl_add_u32 v24, v7, 6, v24')
    e('s_lshl_b32 s18, s7, 5'); e('s_add_u32 s18, s18, %s'%s(sC)); e('s_mul_i32 s18, s18, 1152')
    e('s_mul_i32 s19, %s, 576'%s(sJ)); e('s_mul_i32 s64, %s, 18'%s(sC)); e('s_add_u32 s19, s19, s64')
    e('s_mul_i32 s64, s7, 9'); e('s_add_u32 s19, s19, s64'); e('s_mul_i32 s19, s19, 1152')
    e('s_mov_b32 s64, s6')
    e('s_lshl_b32 s69, s7, 12'); e('s_lshl_b32 s70, s7, 10'); e('s_add_u32 s65, s69, %d'%XW0)
    e('s_waitcnt lgkmcnt(0)')
    if DIAG==4: e('s_memrealtime s[74:75]')
    srd(sX,44,2359296); srd(sGW,56,1152)
    def issueX(h):
        if h==0: e('s_lshl_b32 s67, s64, 7'); e('s_add_u32 s67, s67, s18')
        e('s_mov_b32 m0, s65'); e('s_nop 0')
        for p in (2*h,2*h+1): e('buffer_load_dwordx4 %s, %s, s67 offen offset:%d lds'%(v(16+p),s(sX,4),p*1024))
        if h==1:
            e('s_add_u32 s64, s64, 1'); e('s_cmp_eq_u32 s64, 9'); e('s_cselect_b32 s64, 0, s64')
            e('s_add_u32 s65, s65, 8192'); e('s_sub_u32 s66, s65, 32768'); e('s_cmp_ge_u32 s65, %d'%(XW0+32768)); e('s_cselect_b32 s65, s66, s65')
    issueX(0); issueX(1)
    e('s_add_u32 m0, s70, %d'%GWL); e('s_cmp_eq_u32 s7, 0'); e('s_cselect_b32 exec_lo, -1, 0xff'); e('s_cselect_b32 exec_hi, -1, 0')
    e('buffer_load_dwordx4 v25, %s, s70 offen lds'%s(sGW,4))
    e('s_mov_b64 exec, -1')
    srd(sW2,54,5308416); srd(sWS,62,WS_BYTES); srd(sOUT,58,2359296); srd(sDBG,60,256)
    FC,FS,FN=112,120,128; GF=136; SEL=200; UO=208; MK=212; TR=216; PO=220; GG=224; L16=228; PL1=229; PL2=230; L0=231
    e('v_and_b32 v8, 15, v0'); e('v_lshrrev_b32 v9, 4, v0')
    e('v_mov_b32 %s, 0'%v(L0))
    e('s_lshl_b32 s71, s2, 1'); e('s_add_u32 s71, s71, s7'); e('s_lshl_b32 s71, s71, 2'); e('s_add_u32 s71, s71, %d'%FLU)
    e('v_mov_b32 v12, 0'); e('v_mov_b32 v13, 0'); e('s_lshl_b32 s48, s2, 7'); e('s_lshl_b32 s49, s7, 3'); e('s_add_u32 s48, s48, s49'); e('s_add_u32 s48, s48, %d'%FLP)
    e('s_mov_b64 exec, 1')
    e('buffer_store_dwordx2 v[12:13], %s, %s, s48 offen sc1'%(v(L0),s(sWS,4))); e('buffer_store_dword %s, %s, %s, s71 offen sc1'%(v(L0),v(L0),s(sWS,4)))
    e('s_mov_b64 exec, -1')
    e('v_lshrrev_b32 v10, 1, v8'); e('v_xor_b32 v10, v10, v9'); e('v_lshlrev_b32 v10, 4, v10')
    e('v_lshl_add_u32 v20, v8, 7, v10'); e('v_add_u32 v20, %d, v20'%XW0); e('v_xor_b32 v21, 64, v20')
    e('v_mov_b32 v26, v20'); e('v_mov_b32 v27, v21'); e('v_add_u32 v28, s69, v20'); e('v_add_u32 v29, s69, v21')
    e('v_lshlrev_b32 v22, 4, v9'); e('v_add_u32 v22, %d, v22'%GWL); e('s_lshl_b32 s68, s6, 7'); e('v_add_u32 v23, s68, v22')
    e('s_lshl_b32 s44, s7, 11')
    ACC=64; TM=136; WA=176; RC=232
    for i in list(range(8))+list(range(16,24))+list(range(32,40)): e('v_mov_b32 %s, 0'%v(TM+i))
    for i in list(range(8,16))+list(range(24,32)): e('v_mov_b32 %s, 0'%v(ACC+i))
    e('s_sub_u32 s48, s6, 1'); e('s_cmp_eq_u32 s6, 0'); e('s_cselect_b32 s48, 8, s48'); e('s_lshl_b32 s48, s48, 6')
    e('v_lshlrev_b32 v11, 3, v9'); e('v_add_u32 v11, s48, v11'); e('v_cvt_f32_u32 v11, v11')
    e('s_mul_i32 s49, %s, 36'%s(sJ)); e('s_lshl_b32 s50, s7, 4'); e('s_add_u32 s50, s50, s49'); e('s_add_u32 s49, s49, 32')
    for mix in range(2):
        if mix==0: e('v_add_u32 v12, s50, v8')
        else: e('v_and_b32 v12, 7, v8'); e('v_add_u32 v12, s49, v12')
        e('v_cvt_f32_u32 v12, v12'); e('v_mul_f32 v10, 0x%08x, v12'%f2u(1/9.)); e('v_mul_f32 v12, 0x%08x, v12'%f2u(1/576.)); e('v_mul_f32 v13, v12, v11')
        e('v_cos_f32 %s, v10'%v(RC+2*mix)); e('v_sin_f32 %s, v10'%v(RC+2*mix+1))
        if mix:
            e('v_cmp_gt_u32 vcc, 8, v8'); e('v_add_f32 v4, 0x3e800000, v13'); e('v_sub_f32 v5, 0, %s'%v(RC+3))
            e('v_cndmask_b32 v13, v4, v13, vcc'); e('v_cndmask_b32 %s, %s, v5, vcc'%(v(RC+3),v(RC+3)))
            e('v_cmp_eq_u32 vcc, 5, v8'); e('v_mov_b32 v4, 1.0'); e('v_mov_b32 v5, 0')
            e('v_cndmask_b32 %s, %s, v4, vcc'%(v(RC+2),v(RC+2))); e('v_cndmask_b32 %s, %s, v5, vcc'%(v(RC+3),v(RC+3)))
        for kp in range(2):
            for jp in range(4):
                for u in range(2):
                    e('v_fmamk_f32 %s, v12, 0x%08x, v13'%(v(30+u),f2u(32*kp+2*jp+u))); e('v_fract_f32 %s, %s'%(v(30+u),v(30+u)))
                e('v_cos_f32 v32, v30'); e('v_cos_f32 v33, v31')
                if mix==0:
                    e('v_sin_f32 v34, v30'); e('v_sin_f32 v35, v31')
                    e('v_cvt_pk_bf16_f32 %s, v32, v33'%v(WA+4*kp+jp)); e('v_cvt_pk_bf16_f32 %s, -v34, -v35'%v(WA+8+4*kp+jp))
                else:
                    e('s_nop 0'); e('v_cvt_pk_bf16_f32 %s, v32, v33'%v(WA+16+4*kp+jp))
    if PK:
        e('v_mov_b32 v60, %s'%v(RC+1)); e('v_mov_b32 v61, %s'%v(RC+1)); e('v_mov_b32 %s, %s'%(v(RC+1),v(RC)))
    global out
    save=out; parts=[]
    def begin():
        global out
        out=[]
    def end(): parts.append(out)
    begin()
    e('v_lshlrev_b32 v11, 2, v9'); e('v_cvt_f32_u32 v11, v11')
    for b in range(2):
        e('v_add_u32 v12, %d, v8'%(16*b)); e('v_cvt_f32_u32 v12, v12'); e('v_mul_f32 v12, 0x3d000000, v12'); e('v_mul_f32 v13, v12, v11')
        for jp in range(4):
            o=[(2*jp+u)%4+16*((2*jp+u)//4) for u in range(2)]
            for u in range(2): e('v_fmamk_f32 %s, v12, 0x%08x, v13'%(v(30+u),f2u(o[u])))
            e('v_cos_f32 v32, v30'); e('v_cos_f32 v33, v31'); e('v_sin_f32 v34, v30'); e('v_sin_f32 v35, v31')
            e('v_cvt_pk_bf16_f32 %s, v32, v33'%v(FC+4*b+jp)); e('v_cvt_pk_bf16_f32 %s, v34, v35'%v(FS+4*b+jp))
            e('v_xor_b32 %s, 0x80008000, %s'%(v(FN+4*b+jp),v(FS+4*b+jp)))
    end()
    for i in range(4):
        begin()
        e('s_lshr_b32 s48, %s, 2'%s(sJ)); e('s_lshl_b32 s48, s48, 1'); e('s_and_b32 s49, %s, 1'%s(sJ)); e('s_add_u32 s48, s48, s49')
        e('s_add_u32 s48, s48, %d'%i); e('s_and_b32 s48, s48, 3')
        e('v_lshlrev_b32 %s, 4, v0'%v(L16)); e('v_lshlrev_b32 v11, 1, v9'); e('v_cvt_f32_u32 v11, v11')
        e('s_lshl_b32 s49, s48, 6'); e('s_add_u32 s49, s49, %d'%GL); e('v_lshlrev_b32 v13, 2, v8'); e('v_add_u32 %s, s49, v13'%v(GG+i))
        e('s_lshr_b32 s49, s48, 1'); e('s_and_b32 s50, s48, 1')
        e('s_lshl_b32 s51, s49, 12'); e('s_lshl_b32 s52, s50, 10'); e('s_add_u32 s51, s51, s52'); e('v_add_u32 %s, s51, %s'%(v(PO+i),v(L16)))
        e('s_lshl_b32 s49, s49, 5'); e('s_add_u32 s49, s49, s52'); e('s_add_u32 s49, s49, %s'%s(sC))
        e('v_lshlrev_b32 v5, 6, v8'); e('v_add_u32 v6, s49, v5')
        e('v_cvt_f32_u32 v5, v6'); e('v_mul_f32 v5, 0x3a000000, v5'); e('v_mul_f32 v13, v5, v11')
        e('s_movk_i32 s49, 1152'); e('v_and_b32 v4, 1, v9'); e('v_lshlrev_b32 v4, 5, v4'); e('v_lshrrev_b32 v7, 1, v9'); e('v_lshl_add_u32 v4, v7, 4, v4')
        e('v_mad_u32_u24 %s, v6, s49, v4'%v(TR+i))
        for k in range(4):
            for u in range(2):
                for h in range(2): e('v_fmamk_f32 %s, v5, 0x%08x, v13'%(v(30+h),f2u(8*k+u+32*h)))
                e('v_cos_f32 v32, v30'); e('v_sin_f32 v33, v30'); e('v_cos_f32 v34, v31'); e('v_sin_f32 v35, v31')
                e('v_cvt_pk_bf16_f32 %s, v32, v33'%v(GF+16*i+4*k+2*u)); e('v_cvt_pk_bf16_f32 %s, v34, v35'%v(GF+16*i+4*k+2*u+1))
        end()
    begin()
    e('v_lshrrev_b32 v4, 2, v8'); e('v_cmp_eq_u32 vcc, v4, v9'); e('v_and_b32 v5, 1, v8'); e('v_lshlrev_b32 v5, 4, v5')
    e('v_mov_b32 v6, 0x3f80'); e('v_lshlrev_b32 v6, v5, v6'); e('v_cndmask_b32 v6, 0, v6, vcc')
    e('v_and_b32 v5, 2, v8'); e('v_cmp_eq_u32 vcc, 0, v5'); e('v_mov_b32 %s, 0'%v(SEL+2)); e('v_mov_b32 %s, 0'%v(SEL+3))
    e('v_cndmask_b32 %s, 0, v6, vcc'%v(SEL)); e('v_sub_u32 %s, v6, %s'%(v(SEL+1),v(SEL)))
    e('v_mov_b32 %s, 0'%v(SEL+4)); e('v_mov_b32 %s, 0'%v(SEL+5)); e('v_mov_b32 %s, %s'%(v(SEL+6),v(SEL))); e('v_mov_b32 %s, %s'%(v(SEL+7),v(SEL+1)))
    e('v_and_b32 v4, 1, v0'); e('v_lshlrev_b32 v4, 3, v4'); e('s_lshl_b32 s49, s7, 2'); e('v_add_u32 v4, s49, v4'); e('v_bfe_u32 v5, v0, 1, 3'); e('v_lshl_add_u32 %s, v5, 7, v4'%v(PL1))
    e('v_sub_u32 v5, %s, v5'%s(sJ)); e('v_and_b32 v5, 7, v5'); e('v_add_u32 v254, 1, v5')
    e('v_and_b32 v4, 7, v0'); e('v_lshlrev_b32 v4, 7, v4'); e('s_lshr_b32 s49, %s, 1'%s(sJ)); e('s_lshl_b32 s49, s49, 2'); e('v_add_u32 %s, s49, v4'%v(PL2))
    e('s_sub_u32 s48, 32, %s'%s(sC)); e('s_and_b32 s48, s48, 31')
    e('s_mov_b32 s49, %d'%(2*12288)); e('v_mul_u32_u24 v12, s49, v9')
    e('s_mov_b32 s50, %d'%(32*12288))
    e('s_lshl_b32 s54, s15, 6'); e('s_lshl_b32 s49, s7, 5'); e('s_add_u32 s54, s54, s49')
    e('s_and_b32 s55, %s, 2'%s(sJ)); e('s_lshl_b32 s55, s55, 4'); e('s_add_u32 s55, s55, 512')
    for tb in range(4):
        e('s_add_u32 s49, %s, %d'%(('s54',16*tb) if tb<2 else ('s55',16*(tb-2)))); e('v_add_u32 v4, s49, v8')
        e('v_sub_u32 v5, 576, v4'); e('v_cmp_lt_u32 vcc, 288, v4'); e('v_mov_b32 v6, %s'%s(sC)); e('v_mov_b32 v7, s48')
        e('v_cndmask_b32 v4, v4, v5, vcc'); e('v_cndmask_b32 v6, v6, v7, vcc')
        e('v_mov_b32 v7, 0x80000000'); e('v_cndmask_b32 %s, 0, v7, vcc'%v(MK+tb))
        e('v_mul_u32_u24 v5, 57, v4'); e('v_lshrrev_b32 v5, 11, v5'); e('v_min_u32 v5, 7, v5')
        e('v_mul_u32_u24 v7, 36, v5'); e('v_sub_u32 v4, v4, v7')
        e('v_mul_u32_u24 v5, s50, v5'); e('v_lshl_add_u32 v5, v6, 7, v5'); e('v_add_u32 v5, v5, v12')
        e('v_lshrrev_b32 v6, 4, v4'); e('v_lshl_add_u32 v5, v6, 12, v5'); e('v_and_b32 v4, 15, v4'); e('v_lshl_add_u32 %s, v4, 3, v5'%v(UO+tb))
    end()
    out=save
    NPRE=PRE
    out.extend(parts[0])
    later=[]
    XF=36
    def rotate(lo,hi,mix):
        if PK:
            for i in range(lo,hi,2):
                e('v_pk_mul_f32 %s, %s, %s'%(v(TM+i,2),v(RC,2),v(ACC+i,2))); e('v_pk_mul_f32 %s, %s, %s'%(v(TM+16+i,2),v(RC,2),v(ACC+16+i,2)))
                e('v_pk_fma_f32 %s, %s, %s, %s neg_lo:[1,0,0] neg_hi:[1,0,0]'%(v(TM+i,2),v(60,2),v(ACC+16+i,2),v(TM+i,2))); e('v_pk_fma_f32 %s, %s, %s, %s'%(v(TM+16+i,2),v(60,2),v(ACC+i,2),v(TM+16+i,2)))
        else:
            for i in range(lo,hi):
                e('v_mul_f32 %s, %s, %s'%(v(TM+i),v(RC),v(ACC+i))); e('v_mul_f32 %s, %s, %s'%(v(TM+16+i),v(RC),v(ACC+16+i)))
                e('v_fma_f32 %s, -%s, %s, %s'%(v(TM+i),v(RC+1),v(ACC+16+i),v(TM+i))); e('v_fmac_f32 %s, %s, %s'%(v(TM+16+i),v(RC+1),v(ACC+i)))
        if mix:
            for i in range(8): e('v_mul_f32 %s, %s, %s'%(v(TM+32+i),v(RC+2),v(ACC+32+i)))
            for i in range(8): e('v_fmac_f32_dpp %s, %s, %s row_ror:8 row_mask:0xf bank_mask:0xf'%(v(TM+32+i),v(ACC+32+i),v(RC+3)))
    e('s_mov_b32 s46, 0'); e('s_mov_b32 s47, 0')
    e('s_and_b32 s45, %s, %d'%(s(sC),XSTG)); e('s_mov_b32 s53, 1'); e('s_mov_b32 s51, 0')
    e('s_waitcnt vmcnt(0)')
    e('AX_L:')
    for kp in range(2):
        if TRACE:
            e('s_memtime s[96:97]'); e('s_lshl_b32 s95, s46, 1'); e('s_add_u32 m0, s95, %d'%(kp+1)); e('s_waitcnt lgkmcnt(0)'); e('v_writelane_b32 v252, s96, m0'); e('v_writelane_b32 v253, s92, m0')
        e('s_barrier')
        if DIAG in (2,6) and kp==0: e('s_cmp_eq_u32 s46, %d'%(0 if DIAG==2 else 2)); e('s_cbranch_scc0 DGN'); e('s_memrealtime s[74:75]'); e('s_waitcnt lgkmcnt(0)'); e('DGN:')
        for sg in range(4): e('ds_read_b128 %s, %s offset:%d'%(v(XF+4*sg,4),v(26+kp),sg*2048))
        for sg in range(2): e('ds_read_b128 %s, %s offset:%d'%(v(XF+16+4*sg,4),v(28+kp),sg*2048))
        e('s_mov_b32 exec_lo, 0x00200020'); e('s_mov_b32 exec_hi, 0x00200020')
        e('ds_read_b128 %s, v23 offset:%d'%(v(WA+16+4*kp,4),64*kp))
        e('s_mov_b64 exec, -1')
        e('s_sub_u32 s51, s51, 1'); e('s_cbranch_scc1 AX_B%d'%kp)
        e('AX_S%d:'%kp)
        def rot(lo,hi,mix):
            L=[]
            for i in range(lo,hi):
                L+=['v_mul_f32 %s, %s, %s'%(v(TM+i),v(RC),v(ACC+i)),'v_mul_f32 %s, %s, %s'%(v(TM+16+i),v(RC),v(ACC+16+i)),
                    'v_fma_f32 %s, -%s, %s, %s'%(v(TM+i),v(RC+1),v(ACC+16+i),v(TM+i)),'v_fmac_f32 %s, %s, %s'%(v(TM+16+i),v(RC+1),v(ACC+i))]
            if mix:
                L+=['v_mul_f32 %s, %s, %s'%(v(TM+32+i),v(RC+2),v(ACC+32+i)) for i in range(8)]
                L+=['v_fmac_f32_dpp %s, %s, %s row_ror:8 row_mask:0xf bank_mask:0xf'%(v(TM+32+i),v(ACC+32+i),v(RC+3)) for i in range(8)]
            return L
        M=lambda t,sg: mf(ACC+16*t+4*sg, XF+4*sg, WA+8*t+4*kp, TM+16*t+4*sg if kp==0 else None)
        X=lambda sg: mf(ACC+32+4*sg, XF+16+4*sg, WA+16+4*kp, TM+32+4*sg if kp==0 else None)
        if kp==0:
            R=rot(8,16,False)
            for x in R[:8]: e(x)
            e('s_waitcnt lgkmcnt(0)')
            R=R[8:]
            for m in (M(0,0),M(1,0),M(0,1),M(1,1),X(0),X(1)):
                e(m)
                for x in R[:4]: e(x)
                R=R[4:]
            assert not R
            for m in (M(0,2),M(1,2),M(0,3),M(1,3)): e(m)
        else:
            A_=['s_add_u32 s47, s47, 8192','s_and_b32 s47, s47, 32767','s_add_u32 s66, s47, s69','s_add_u32 s68, s68, 128','s_cmp_eq_u32 s68, 1152','s_cselect_b32 s68, 0, s68',
                'v_add_u32 v26, s47, v20','v_add_u32 v27, s47, v21','v_add_u32 v28, s66, v20','v_add_u32 v29, s66, v21','v_add_u32 v23, s68, v22']
            for x in A_: e(x)
            e('s_waitcnt lgkmcnt(0)')
            for m in (M(0,0),M(1,0),M(0,1),M(1,1),X(0),X(1)): e(m)
            e('s_nop 3')
            R=rot(0,8,True)
            for m in (M(0,2),M(1,2),M(0,3),M(1,3)):
                for x in R[:4]: e(x)
                R=R[4:]
                e(m)
            e('s_cmp_eq_u32 s46, 8'); e('s_cbranch_scc1 AX_D')
            for x in R: e(x)
    if TRACE: e('s_memtime s[92:93]')
    e('s_lshr_b32 s66, s45, 1'); e('s_xor_b32 s66, s66, s46'); e('s_add_u32 s46, s46, 1')
    e('s_bitcmp1_b32 s66, 0'); e('s_cbranch_scc1 AX_W0')
    e('s_cmp_eq_u32 s46, 1'); e('s_cbranch_scc0 AX_L')
    e('s_waitcnt vmcnt(8)'); e('s_branch AX_L')
    e('AX_W0:')
    e('s_waitcnt vmcnt(0)'); e('s_branch AX_L')
    for kp in range(2):
        e('AX_B%d:'%kp)
        e('s_cmp_ge_u32 s46, 5'); e('s_cselect_b32 s51, 100, 3')
        e('s_add_u32 s52, s46, 3'); e('s_min_u32 s52, s52, 8')
        e('s_cmp_eq_u32 s46, 0'); e('s_cbranch_scc0 AX_C%d'%kp)
        if kp==0:
            e('s_lshr_b32 s52, s45, 1'); e('s_add_u32 s52, s52, 1')
            e('s_sub_u32 s51, s45, 1'); e('s_cmp_ge_u32 s45, 2'); e('s_cselect_b32 s51, s51, 0')
        else:
            e('s_add_u32 s51, s45, 2')
        e('AX_C%d:'%kp)
        issueX(0); issueX(1)
        e('s_add_u32 s53, s53, 1'); e('s_cmp_le_u32 s53, s52'); e('s_cbranch_scc1 AX_C%d'%kp)
        e('s_cmp_eq_u32 s46, 0'); e('s_cbranch_scc1 AX_S%d'%kp)
        e('v_add_u32 v4, %s, v62'%s(sJ)); e('v_and_b32 v4, 7, v4'); e('v_cmp_eq_u32 vcc, 0, v62'); e('v_mov_b32 v5, 8'); e('v_add_u32 v62, 3, v62')
        e('v_cndmask_b32 v4, v4, v5, vcc'); e('v_lshl_add_u32 v4, v4, 7, v24')
        e('s_mov_b32 exec_lo, 0x7ffffff'); e('s_mov_b32 exec_hi, %s'%('0x7ffffff' if T2 else '0'))
        e('buffer_load_dword v15, v4, %s, s19 offen'%s(sW2,4))
        e('s_mov_b64 exec, -1')
        e('s_branch AX_S%d'%kp)
    e('AX_D:')
    e('s_barrier')
    if DIAG==5: e('s_memrealtime s[74:75]'); e('s_waitcnt lgkmcnt(0)')
    e('s_setprio %d'%AP2); e('s_nop 3')
    st(1)
    e('v_lshlrev_b32 v12, 9, v9'); e('v_lshl_add_u32 v12, v8, 3, v12')
    e('s_lshl_b32 s16, %s, 5'%s(sJ)); e('s_add_u32 s16, s16, %s'%s(sC)); e('s_mul_i32 s16, s16, 12288'); e('s_add_u32 s16, s16, %d'%U_OFF)
    e('s_add_u32 s17, s16, 8192'); e('s_add_u32 s16, s16, s69')
    FR=16
    def pack(dst,src,n=8):
        for h in range(n): e('v_cvt_pk_bf16_f32 %s, %s, %s'%(v(dst+h),v(src+2*h),v(src+2*h+1)))
    def stageA(D,FR):
        for sh in range(2):
            for be in range(2):
                d=D+16*sh+8*be; a=FR+4*sh; b=FR+8+4*sh
                mfma(d,FC+4*be,a,'0'); mfma(d+4,FC+4*be,b,'0'); mfma(d,FS+4*be,b); mfma(d+4,FN+4*be,a)
    def ustore(D,O,so):
        for be in range(2):
            for r in range(4):
                o=O+8*be+2*r
                for sh in range(2): e('v_cvt_pk_bf16_f32 %s, %s, %s'%(v(o+sh),v(D+16*sh+8*be+r),v(D+16*sh+8*be+4+r)))
                e('buffer_store_dwordx2 %s, v12, %s, %s offen offset:%d sc1'%(v(o,2),s(sWS,4),so,be*2048+r*128))
    MF=136
    e('v_add_u32 v14, %d, v25'%MX)
    pack(MF,ACC+32,4)
    e('s_lshl_b32 s66, s7, 7'); e('s_add_u32 s66, s66, %d'%GL); e('v_lshlrev_b32 v13, 4, v9'); e('v_add_u32 v13, s66, v13')
    e('s_mov_b32 exec_lo, 0x00200020'); e('s_mov_b32 exec_hi, 0x00200020')
    for sg in range(2): e('ds_write_b128 v13, %s offset:%d'%(v(ACC+32+4*sg,4),64*sg))
    e('s_mov_b64 exec, -1')
    e('s_cmp_eq_u32 s7, 1'); e('s_cbranch_scc0 AX_A0'); e('ds_write_b128 v14, %s'%v(MF,4)); e('AX_A0:')
    pack(FR,ACC); pack(FR+8,ACC+16); e('s_nop 1')
    stageA(32,FR)
    e('s_nop 7')
    ustore(32,236,'s16')
    e('s_waitcnt lgkmcnt(0)')
    e('s_barrier')
    e('s_barrier')
    if E3A: e('s_barrier')
    if DIAG==3: e('s_memrealtime s[74:75]'); e('s_waitcnt lgkmcnt(0)')
    e('s_cmp_eq_u32 s7, 0'); e('s_cbranch_scc0 AX_A2')
    e('ds_read_b128 %s, v14'%v(MF+4,4)); e('s_waitcnt lgkmcnt(0)')
    for h in range(8): e('v_mov_b32_dpp %s, %s row_ror:8 row_mask:0xf bank_mask:0xf'%(v(MF+8+h),v(MF+h)))
    e('s_nop 1')
    stageA(64,MF)
    e('s_nop 7')
    e('s_mov_b32 exec_lo, 0x00ff00ff'); e('s_mov_b32 exec_hi, 0x00ff00ff')
    ustore(64,96,'s17')
    e('s_mov_b64 exec, -1')
    e('AX_A2:')
    out.extend(parts[1])
    e('s_waitcnt vmcnt(0)'); e('v_mov_b32 v10, 1')
    e('s_mov_b64 exec, 1'); e('buffer_store_dword v10, %s, %s, s71 offen sc1'%(v(L0),s(sWS,4))); e('s_mov_b64 exec, -1')
    for k in (2,3,4,5): out.extend(parts[k])
    for i in range(4): e('ds_read_b32 %s, %s'%(v(GG+i),v(GG+i)))
    e('s_lshl_b32 s65, %s, 10'%s(sC)); e('s_add_u32 s65, s65, %d'%FLP)
    e('s_waitcnt lgkmcnt(0)')
    for i in range(4):
        g=GG+i
        e('v_mul_f32 %s, 0xbfb8aa3b, %s'%(v(g),v(g))); e('v_exp_f32 %s, %s'%(v(g),v(g))); e('s_nop 0')
        e('v_add_f32 %s, 1.0, %s'%(v(g),v(g))); e('v_rcp_f32 %s, %s'%(v(g),v(g)))
    if NORED:
        for i in range(2,7): st(i)
        st_flush(7,0); e('s_endpgm')
    e('s_mov_b32 s47, 0')
    def gpoll(load,cmp,slp):
        L=lab('GP'); e('s_branch %sf'%L); e(L+':')
        if slp: e('s_sleep %d'%slp)
        e(L+'f:')
        for x in load: e(x)
        e('s_add_u32 s47, s47, 1'); e('s_waitcnt vmcnt(0)')
        for x in cmp: e(x)
        e('s_cmp_gt_u32 s47, %d'%SPINMAX); e('s_cbranch_scc1 %sx'%L); e('s_cbranch_vccnz '+L); e(L+'x:')
    e('s_lshl_b32 s16, s7, 8'); e('s_add_u32 s16, s16, %d'%CNS)
    e('v_and_b32 v15, 1, v0'); e('v_mul_u32_u24 v15, 516, v15'); e('v_add_u32 v15, s16, v15')
    def pace(n):
        L=lab('PC'); e(L+':'); e('s_sleep 3'); e('ds_read_b32 v5, v15')
        e('s_add_u32 s99, s99, 1'); e('s_cmp_gt_u32 s99, 0x100000'); e('s_cbranch_scc1 K_END'); e('s_waitcnt lgkmcnt(0)')
        e('v_cmp_gt_u32 vcc, %s, v5'%(n if isinstance(n,str) else min(n,38))); e('s_cbranch_vccnz '+L)
    e('v_and_b32 v4, 7, v0'); e('v_lshlrev_b32 v4, 5, v4')
    gpoll(['buffer_load_dword v5, v4, %s, 0 offen sc1'%s(sDBG,4)],['v_cmp_gt_u32 vcc, 32, v5'],8)
    e('s_and_b32 s16, %s, %d'%(s(sC),USTG)); e('s_add_u32 s16, s16, %d'%(20+UPACE))
    pace('s16')
    e('s_mov_b32 s16, %d'%FLU)
    gpoll(['buffer_load_dwordx4 v[96:99], %s, %s, s16 offen sc1'%(v(L16),s(sWS,4)),'buffer_load_dwordx4 v[100:103], %s, %s, s16 offen offset:1024 sc1'%(v(L16),s(sWS,4))],
          ['v_min3_u32 v5, v96, v97, v98','v_min3_u32 v5, v5, v99, v100','v_min3_u32 v5, v5, v101, v102','v_min_u32 v5, v5, v103','v_cmp_eq_u32 vcc, 0, v5'],USLP)
    st(2)
    UF=16; YA=80; SP=152
    def uloads(tb,dst):
        for k in range(4):
            for u in range(2):
                e('s_mov_b32 s17, %d'%(U_OFF+(8*k+u)*12288))
                e('buffer_load_dwordx2 %s, %s, %s, s17 offen sc1'%(v(dst+4*k+2*u,2),v(UO+tb),s(sWS,4)))
    def fin(y,p,og,o,vaddr,soff):
        for tb in range(2):
            for r in range(4): e('v_fma_f32 %s, %s, %s, %s'%(v(p[tb]+r),v(og),v(p[tb]+r),v(y[tb]+r)))
        for tb in range(2):
            for h in range(2): e('v_cvt_pk_bf16_f32 %s, %s, %s'%(v(o+2*tb+h),v(p[tb]+2*h),v(p[tb]+2*h+1)))
        e('s_nop 1')
        e('v_permlane16_swap_b32 %s, %s'%(v(o),v(o+2))); e('v_permlane16_swap_b32 %s, %s'%(v(o+1),v(o+3)))
        e('buffer_store_dwordx4 %s, %s, %s, %s offen%s'%(v(o,4),v(vaddr),s(sOUT,4),soff,[' ',' sc1',' nt'][OSC]))
    for tb in range(2): uloads(tb,UF+16*tb)
    e('s_cmp_eq_u32 s7, 1'); e('s_cbranch_scc0 AX_U')
    for tb in range(2,4): uloads(tb,UF+16*tb)
    gpoll(['buffer_load_dword v5, %s, %s, s65 offen sc1'%(v(PL2),s(sWS,4))],['v_cmp_gt_u32 vcc, 1, v5'],10)
    e('s_mul_i32 s16, %s, %d'%(s(sC),8*73728)); e('s_lshl_b32 s17, %s, 10'%s(sJ)); e('s_add_u32 s16, s16, s17'); e('s_add_u32 s16, s16, 65536')
    for jj in range(8):
        e('buffer_load_dwordx4 %s, %s, %s, s16 offen sc1'%(v(80+4*jj,4),v(L16),s(sWS,4)))
        if jj<7: e('s_add_u32 s16, s16, 73728')
    for tb in range(2,4):
        for i in range(16): e('v_xor_b32 %s, %s, %s'%(v(UF+16*tb+i),v(MK+tb),v(UF+16*tb+i)))
    e('s_nop 1')
    for k in range(4):
        for tb in range(2): mfma(112+4*tb, UF+32+16*tb+4*k, GF+4*k, '0' if k==0 else None)
    e('s_waitcnt vmcnt(0)')
    for jj in range(8):
        for tb in range(2): mfma(120+4*tb, SEL+4*tb, 80+4*jj, '0' if jj==0 else None)
    for r in range(8): e('v_mul_f32 %s, %s, %s'%(v(112+r),v(GG),v(112+r)))
    e('v_sub_f32 v14, 1.0, %s'%v(GG)); e('s_lshl_b32 s16, s55, 1')
    fin((112,116),(120,124),14,248,TR,'s16')
    e('s_branch AX_U2')
    e('AX_U:')
    e('s_waitcnt vmcnt(0)')
    e('AX_U2:')
    for tb in range(2):
        for i in range(16): e('v_xor_b32 %s, %s, %s'%(v(UF+16*tb+i),v(MK+tb),v(UF+16*tb+i)))
    e('s_nop 1')
    for k in range(4):
        for tb in range(2):
            for i in range(4): mfma(YA+16*tb+4*i, UF+16*tb+4*k, GF+16*i+4*k, '0' if k==0 else None)
    st(3)
    e('s_mul_i32 s18, %s, %d'%(s(sC),8*73728)); e('s_lshl_b32 s17, s15, 13'); e('s_add_u32 s18, s18, s17'); e('s_add_u32 s18, s18, s44')
    def acc(buf,first):
        for i in range(4):
            for tb in range(2): mfma(SP+16*tb+4*i, SEL+4*tb, buf+4*i, '0' if first else None)
    BUF=lambda i: 16+16*(i%4)
    e('s_mov_b32 s66, 0')
    def addr(i,so,sm):
        e('s_sub_u32 %s, %s, %d'%(so,s(sJ),i)); e('s_and_b32 %s, %s, 7'%(so,so))
        e('s_lshl_b32 %s, %s, 1'%(sm,so)); e('s_lshl_b32 %s, 3, %s'%(sm,sm))
        e('s_mul_i32 %s, %s, 73728'%(so,so)); e('s_add_u32 %s, %s, s18'%(so,so))
    def pollbits(i,sm,sx,slp):
        e('s_branch AX_F%d'%i); e('AX_R%d:'%i)
        if slp: e('s_sleep %d'%slp)
        e('AX_F%d:'%i)
        e('buffer_load_dword v5, %s, %s, s65 offen sc1'%(v(PL1),s(sWS,4))); e('s_add_u32 s47, s47, 1'); e('s_waitcnt vmcnt(0)')
        e('v_cmp_le_u32 vcc, v254, v5'); e('s_cmp_gt_u32 s47, %d'%SPINMAX); e('s_cbranch_scc1 AX_G%d'%i)
        e('s_mov_b32 s66, vcc_lo'); e('s_mov_b32 exec_lo, %s'%sx); e('s_mov_b32 exec_hi, 0')
        e('s_and_b32 s19, s66, %s'%sm); e('s_cmp_eq_u32 s19, %s'%sm); e('s_cbranch_scc0 AX_R%d'%i)
    def loads(i,so):
        for u in range(4): e('buffer_load_dwordx4 %s, %s, %s, %s offen sc1'%(v(BUF(i)+4*u,4),v(PO+u),s(sWS,4),so))
    addr(7,'s48','s49')
    e('s_add_u32 s16, s44, %d'%QH)
    for u in range(4): e('v_add_u32 %s, s16, %s'%(v(128+u),v(PO+u)))
    for i in range(1,7):
        addr(i,'s16','s17')
        e('s_and_b32 s19, s66, s17'); e('s_cmp_eq_u32 s19, s17'); e('s_cbranch_scc1 AX_G%d'%i)
        pace(max(20+2*(i+2)+PPACE-FEARLY, LATE if i>1 else 0))
        if i==6: e('s_or_b32 s50, s17, s49'); e('s_mov_b32 exec_lo, s50'); e('s_mov_b32 exec_hi, 0')
        pollbits(i,'s17','s50' if i==6 else 's17', 0 if i==6 else PSLP)
        e('AX_G%d:'%i)
        e('s_mov_b64 exec, -1')
        loads(i,'s16')
        if 3<=i<=6: e('s_waitcnt vmcnt(8)'); acc(BUF(i-2), i==3)
        if i==1:
            for sl in range(4):
                for tb in range(2):
                    for r in range(4): e('v_mul_f32 %s, %s, %s'%(v(YA+16*tb+4*sl+r),v(GG+sl),v(YA+16*tb+4*sl+r)))
                e('v_sub_f32 %s, 1.0, %s'%(v(GG+sl),v(GG+sl)))
    e('s_and_b32 s19, s66, s49'); e('s_cmp_eq_u32 s19, s49'); e('s_cbranch_scc1 AX_G7')
    e('s_mov_b32 exec_lo, s49'); e('s_mov_b32 exec_hi, 0')
    pollbits(7,'s49','s49',0)
    e('AX_G7:')
    e('s_mov_b64 exec, -1')
    loads(7,'s48')
    e('s_waitcnt vmcnt(8)'); acc(BUF(5),False)
    lds_wait(15,5,'39')
    for u in range(4): e('ds_read_b128 %s, %s'%(v(BUF(4)+4*u,4),v(128+u)))
    e('s_waitcnt lgkmcnt(0)'); acc(BUF(4),False)
    st(4)
    e('s_waitcnt vmcnt(4)'); acc(BUF(6),False)
    st(5)
    e('s_lshl_b32 s16, s54, 1')
    for sl in range(4):
        e('s_waitcnt vmcnt(%d)'%(3-sl))
        for tb in range(2): mfma(SP+16*tb+4*sl, SEL+4*tb, BUF(7)+4*sl)
    e('s_nop 3')
    for sl in range(4): fin((YA+4*sl,YA+16+4*sl),(SP+4*sl,SP+16+4*sl),GG+sl,232+4*sl,TR+sl,'s16')
    if STAMP:
        e('s_waitcnt vmcnt(0)'); st(6); st_flush(7,0)
        if TRACE: trace_flush(252,253)
    if DIAG:
        e('s_waitcnt vmcnt(0)'); e('s_memrealtime s[76:77]'); e('s_waitcnt lgkmcnt(0)')
        if DIAG==1: e('s_mov_b32 s74, s76')
        e('s_sub_u32 s16, s74, s72')
        if DIAG in (2,6): e('s_lshl_b32 s16, s16, 2')
        if DIAG==4: e('s_lshl_b32 s16, s16, 3')
        e('DG:'); e('s_memrealtime s[78:79]'); e('s_waitcnt lgkmcnt(0)'); e('s_sub_u32 s17, s78, s76'); e('s_cmp_lt_u32 s17, s16'); e('s_cbranch_scc1 DG')
    e('s_endpgm')
    for n,k in enumerate(later):
        e('AX_SL%d:'%n); out.extend(parts[k]); e('s_branch AX_SR')

def main():
    global INMAIN
    e('K_MAIN:')
    if IW:
        e('s_getpc_b64 s[16:17]'); e('IWP:')
        e('s_sub_u32 s16, s16, IWP-%s'%NAME); e('s_subb_u32 s17, s17, 0')
        e('s_lshl_b32 s18, %s, 2'%s(sC)); e('s_add_u32 s18, s18, %s'%s(sWV)); e('s_lshl_b32 s18, s18, 8')
        e('v_lshlrev_b32 v3, 7, v0'); e('v_add_u32 v3, s18, v3'); e('v_min_u32 v3, K_END-%s, v3'%NAME)
        e('s_mov_b64 exec, 3'); e('global_load_dword v84, v3, s[16:17]'); e('s_mov_b64 exec, -1')
    ACC=96; AF=16; XB=56
    T=200
    e('v_lshlrev_b32 v7, 2, v0'); e('s_lshl_b32 s16, %s, 8'%s(sWV)); e('s_add_u32 s16, s16, %d'%LND); e('v_add_u32 v3, s16, v7'); e('v_mov_b32 v8, 0')
    for i in range(3): e('ds_write_b32 v3, v8 offset:%d'%(1024*i))
    e('v_add_u32 v13, 1024, v3')
    e('v_and_b32 v3, 1, v0'); e('v_mul_u32_u24 v3, 260, v3'); e('v_add_u32 v14, %d, v3'%LND)
    e('v_mov_b32 v5, 0')
    e('v_and_b32 v200, 15, v0'); e('v_lshrrev_b32 v201, 4, v0')
    e('s_movk_i32 s17, 1152')
    e('v_lshrrev_b32 v202, 2, v200'); e('v_and_b32 v203, 3, v0')
    e('v_lshl_add_u32 v204, v201, 3, v202'); e('v_mul_u32_u24 v204, s17, v204'); e('v_lshl_add_u32 v204, v203, 3, v204')
    e('v_lshrrev_b32 v205, 1, v202'); e('v_and_b32 v7, 1, v201'); e('v_lshl_add_u32 v205, v7, 1, v205')
    e('s_mul_i32 s18, %s, %d'%(s(sWV),NA)); e('s_cmp_eq_u32 %s, 3'%s(sWV)); e('s_cselect_b32 s18, %d, s18'%(36-NB))
    for i in range(4):
        e('s_add_u32 s16, s18, %d'%i); e('s_and_b32 s17, s16, 3'); e('s_lshr_b32 s16, s16, 2'); e('s_lshl_b32 s16, s16, 7')
        e('v_xor_b32 v7, s17, v205'); e('v_lshl_add_u32 v7, v7, 5, v204'); e('v_add_u32 %s, s16, v7'%v(88+i)); e('v_mov_b32 %s, %s'%(v(92+i),v(88+i)))
    e('v_lshrrev_b32 v7, 1, v200'); e('v_xor_b32 v7, v7, v201'); e('v_lshlrev_b32 v7, 4, v7')
    e('v_lshl_add_u32 v1, v200, 7, v7'); e('v_add_u32 v1, %d, v1'%XW0); e('s_lshl_b32 s16, s98, 6'); e('v_xor_b32 v1, s16, v1'); e('v_xor_b32 v2, 64, v1')
    e('v_mov_b32 v3, v1'); e('v_mov_b32 v4, v2')
    e('v_lshlrev_b32 v12, 4, v0')
    e('s_lshr_b32 s16, %s, 1'%s(sWV)); e('s_lshl_b32 s16, s16, 11'); e('s_add_u32 s16, s16, %d'%HB); e('v_add_u32 v9, s16, v12')
    e('v_lshl_add_u32 v204, v201, 2, v202'); e('v_bfe_u32 v205, v204, 1, 2'); e('v_lshlrev_b32 v204, 7, v204'); e('v_lshl_add_u32 v204, v203, 3, v204')
    e('s_and_b32 s16, %s, 1'%s(sWV)); e('s_lshl_b32 s16, s16, 1')
    for tb in range(2):
        e('s_add_u32 s17, s16, %d'%tb); e('v_xor_b32 v7, s17, v205'); e('v_lshl_add_u32 %s, v7, 5, v204'%v(10+tb))
    for i in range(16*NB): e('v_mov_b32 %s, 0'%v(ACC+i))
    for i in range(4*(NB-3),4*NA): e('v_mov_b32 %s, 0'%v(AF+i))
    for i in range(16): e('v_mov_b32 %s, 0'%v(XB+16+i))
    e('s_waitcnt lgkmcnt(0)')
    srd(sWS,62,WS_BYTES); srd(sDBG,60,256)
    e('s_lshl_b32 s16, s18, 11'); e('s_add_u32 s16, s16, %d'%HB); e('v_add_u32 v8, s16, v12')
    e('s_mov_b32 s64, 0'); e('s_mov_b32 s65, 0'); e('s_mov_b32 s66, 1')
    e('s_cmp_eq_u32 %s, 3'%s(sWV)); e('s_cselect_b32 s19, 3, 0'); e('v_mov_b32 v15, 1'); e('s_lshl_b32 s18, %s, 5'%s(sJ))
    INMAIN=True
    if MPRIO: e('s_setprio 3')
    spins=[]
    def check(seq,thr,vaddr=109):
        L=lab('SP'); R=L+'R'
        seq.append(('need',['F'])); seq.append(('i','v_cmp_gt_u32 vcc, %s, v110'%thr)); seq.append(('i','s_cbranch_vccnz '+L)); seq.append(('i',R+':'))
        spins.append((L,R,thr,vaddr))
    def conv(u,sg):
        a=ACC+32*u+4*sg; b=a+16
        if RM==1:
            L=[]
            for d,x in ((a,a),(a+1,a+2),(a+2,b),(a+3,b+2)):
                L+=['v_max_f32 %s, 0, %s'%(v(x),v(x)),'v_max_f32 %s, 0, %s'%(v(x+1),v(x+1)),'v_cvt_pk_bf16_f32 %s, %s, %s'%(v(d),v(x),v(x+1))]
            return L+['ds_write_b128 v8, %s offset:%d'%(v(a,4),u*4096+sg*1024)]
        if RM==2:
            return ['v_cvt_pk_bf16_f32 %s, %s, %s'%(v(d),v(x),v(x+1)) for d,x in ((a,a),(a+1,a+2),(a+2,b),(a+3,b+2))]+['s_nop 0','ds_write_b128 v8, %s offset:%d'%(v(a,4),u*4096+sg*1024)]
        if RM==3:
            return ['v_cvt_pk_bf16_f32 %s, %s, %s'%(v(d),v(x),v(x+1)) for d,x in ((a,a),(a+1,a+2),(a+2,b),(a+3,b+2))]+['v_pk_max_i16 %s, %s, 0'%(v(a+k),v(a+k)) for k in range(4)]+['s_nop 0']
        return ['v_cvt_pk_bf16_f32 %s, %s, %s'%(v(a),v(a),v(a+1)),'v_cvt_pk_bf16_f32 %s, %s, %s'%(v(a+1),v(a+2),v(a+3)),
                'v_cvt_pk_bf16_f32 %s, %s, %s'%(v(a+2),v(b),v(b+1)),'v_cvt_pk_bf16_f32 %s, %s, %s'%(v(a+3),v(b+2),v(b+3))]+['v_pk_max_i16 %s, %s, 0'%(v(a+k),v(a+k)) for k in range(4)]+[
                'ds_write_b128 v8, %s offset:%d'%(v(a,4),u*4096+sg*1024)]
    def step1(NT,p,last=False):
        seq=[('i','s_barrier')]
        R=[('A',0,0),('A',0,1)]+[('X',p,sg) for sg in range(4)]+[('A',t,r) for t in range(1,NT) for r in range(2)]
        extra=[]
        if not last:
            extra=['s_add_u32 s64, s64, %d'%SLOT,'s_cmp_eq_u32 s64, %d'%(3*SLOT),'s_cselect_b32 s64, 0, s64','s_add_u32 s66, s66, 1']+['v_add_u32 %s, s64, %s'%(v(92+i),v(88+i)) for i in range(4)]
            if p==1: extra+=['s_add_u32 s65, s65, 8192','s_and_b32 s65, s65, 32767','v_add_u32 v3, s65, v1','v_add_u32 v4, s65, v2']
            else: extra+=['s_cmp_eq_u32 s66, 18']
        cv=[]; nq=0
        ng=4*(NT+3) if last else 4*NT
        eb=len(R)+5
        def pop(n,ok):
            for _ in range(n):
                if cv and (ok or not cv[0].startswith('ds_')):
                    x=cv.pop(0)
                    seq.append(('lds','H',x) if x.startswith('ds_') else ('i',x))
        for g in range(ng):
            i,sg=divmod(g,4)
            if g<len(R):
                k,a,b=R[g]
                if k=='A': seq.append(('lds',R[g],'ds_read_b64_tr_b16 %s, %s offset:%d'%(v(AF+4*a+2*b,2),v(92+a%4),128*(a//4)+4608*b)))
                else: seq.append(('lds',R[g],'ds_read_b128 %s, %s offset:%d'%(v(XB+16*p+4*b,4),v(3+p),2048*b)))
            elif extra: seq.append(('i',extra.pop(0)))
            if last:
                if g==eb: seq.append(('need',[('A',NT-1,1)])); seq.append(('i','s_barrier'))
                if sg==0 and i>=6 and i%2==0:
                    cv+=[x for q in range(4) for x in conv(nq,q)]; nq+=1
                pop(CPG,g>=eb)
            if i<3: t,xb=NT-3+i,1-p
            else: t,xb=i-3,p
            seq.append(('need',[('A',t,0),('A',t,1),('X',xb,sg)]))
            seq.append(('i',mf(ACC+16*t+4*sg, AF+4*t, XB+16*xb+4*sg)))
        assert not extra
        if not last: seq.append(('need',[('A',NT-1,1)]))
        if last:
            assert len(cv)>=9
            while nq<NT//2:
                cv+=[x for q in range(4) for x in conv(nq,q)]; nq+=1
            pop(len(cv),True)
        return seq
    def phase1(NT,nm):
        s0=step1(NT,0); s1=step1(NT,1)
        s0e=s0
        if STAMP: s0e=s0[:1]+[('i','s_cmp_eq_u32 s66, 1'),('i','s_cbranch_scc0 %sNS'%nm),('i','s_memrealtime s[74:75]'),('i','s_memtime s[88:89]'),('i','s_waitcnt lgkmcnt(0)'),('i',nm+'NS:')]+s0[1:]
        e(nm+'L:')
        stream(s0e+[('i','s_cbranch_scc1 %sX'%nm)]+s1+([('i','s_cmp_eq_u32 s66, s19'),('i','s_cbranch_scc0 %sL'%nm),('i','s_mov_b64 exec, 1'),('i','buffer_atomic_add v15, v5, %s, s18 offen sc1'%s(sDBG,4)),('i','s_mov_b64 exec, -1')] if NT==NB else [])+[('i','s_branch %sL'%nm)],True)
        e(nm+'X:')
        stream(step1(NT,1,True),False,pre=s1+s0)
    e('s_cmp_ge_u32 %s, 2'%s(sWV)); e('s_cbranch_scc1 MBL')
    for i in range(16*NB,16*NA): e('v_mov_b32 %s, 0'%v(ACC+i))
    phase1(NA,'MA')
    e('s_branch M1_J')
    phase1(NB,'MB')
    e('M1_J:')
    e('s_waitcnt lgkmcnt(0)')
    st(2); stc(9)
    e('v_mov_b32 v100, v9'); e('v_add_u32 v101, 36864, v9')
    e('s_barrier')
    H=112
    for k in range(18):
        for sg in range(2): e('ds_read_b128 %s, %s offset:%d'%(v(H+8*k+4*sg,4),v(100+k//9),(k%9)*4096+sg*1024))
        if E3A and k==12: e('s_waitcnt lgkmcnt(8)'); e('s_barrier')
    e('v_mov_b32 v102, v10'); e('v_mov_b32 v103, v11'); e('v_add_u32 v104, %d, v10'%SLOT); e('v_add_u32 v105, %d, v11'%SLOT)
    e('v_mov_b32 v106, v12'); e('v_mov_b32 v108, v13'); e('v_mov_b32 v109, v14')
    if TRACE: e('v_mov_b32 v1, 0'); e('v_mov_b32 v3, 0')
    e('v_mov_b32 v107, 20')
    e('ds_read_b32 v110, v109')
    WR=16; PA=64; QA=80; PK=8
    e('s_mov_b32 s64, %d'%(2*SLOT)); e('s_mov_b32 s65, 0'); e('s_mov_b32 s66, 19')
    e('s_mul_i32 s60, s2, 73728')
    e('s_lshl_b32 s61, %s, 11'%s(sWV)); e('s_add_u32 s60, s60, s61')
    e('s_mov_b32 s67, %d'%OOB)
    e('s_lshl_b32 s19, s2, 7'); e('s_lshl_b32 s61, %s, 2'%s(sWV)); e('s_add_u32 s19, s19, s61'); e('s_add_u32 s19, s19, %d'%FLP)
    e('s_mov_b32 s63, %d'%(FMASK<<1))
    e('v_mov_b32 v6, 0'); e('s_and_b32 s62, %s, %d'%(s(sC),NSITE-1))
    e('s_waitcnt lgkmcnt(0)'); e('s_barrier')
    st(3); stc(10)
    def mm2(kg,u):
        tb,sg=divmod(u,2)
        a=WR+8*(kg%6)+4*tb; b=H+8*kg+4*sg
        if kg<9: return mf(PA+8*tb+4*sg,a,b,'0' if kg==0 else None)
        return mf(QA+8*tb+4*sg,a,b,PA+8*tb+4*sg if kg==9 else None)
    def packq(final=False):
        L=[]
        for sg in range(2):
            for tb in range(2):
                for h in range(2):
                    q=QA+8*tb+4*sg+2*h
                    L.append('v_cvt_pk_bf16_f32 %s, %s, %s'%(v(PK+4*sg+2*tb+h),v(q),v(q+1)))
            if final: L.append('ds_write_b128 v7, %s offset:%d'%(v(PK+4*sg,4),1024*sg))
            else: L.append('buffer_store_dwordx4 %s, v106, %s, s67 offen offset:%d sc1'%(v(PK+4*sg,4),s(sWS,4),1024*sg))
        return L
    body=[]
    for hc in range(2):
        check(body,'s66')
        R=[(9*hc+k,tb,r) for k in range(9) for tb in range(2) for r in range(2)]
        ex={}
        if hc==0:
            cv=[x for x in packq() if x.startswith('v_cvt')]
            for i,x in enumerate(cv): ex[16+i]=[x]
            ex[2]=['v_add_u32 v104, s64, v104']; ex[3]=['v_add_u32 v105, s64, v105']; ex[4]=['s_sub_u32 s64, 0, s64']; ex[5]=['s_add_u32 s66, s66, 1']

        else:
            L=['v_add_u32 v102, s64, v102','v_add_u32 v103, s64, v103','s_add_u32 s66, s66, 1',
               's_add_u32 s61, s65, s15','s_and_b32 s61, s61, 7','s_cmp_eq_u32 s65, 0','s_cselect_b32 s61, 8, s61',
               's_lshl_b32 s61, s61, 13']
            for i,x in enumerate(L): ex[2+i]=[x]
            ex[26]=['s_add_u32 s67, s60, s61']; ex[30]=['s_cmp_eq_u32 s65, 8','s_cselect_b32 s62, 0, s62']
            ex[27]=['v_mov_b32 v6, s65']; ex[28]=['s_add_u32 s65, s65, 1']; ex[33]=['s_cmp_lt_u32 s65, 9']
            if FEARLY: ex[32]=['s_bitcmp1_b32 s63, s65','s_cbranch_scc1 M2_FL','M2_FR:']
        sites=[(0,25),(1,1),(1,13),(1,25)][:NSITE]
        for n,(h,g) in enumerate(sites):
            if h==hc:
                ex.setdefault(g,[]); ex[g]=ex[g]+['s_cmp_eq_u32 s62, %d'%n,'s_cbranch_scc1 M2_ST%d'%n,'M2_SR%d:'%n]
        for g in range(36):
            i,u=divmod(g,4)
            k,tb,r=R[g]
            body.append(('lds',R[g],'ds_read_b64_tr_b16 %s, %s offset:%d'%(v(WR+8*(k%6)+4*tb+2*r,2),v(102+2*hc+tb),(k%9)*4096+r*2048)))
            if g==30: body.append(('lds','F','ds_read_b32 v110, v109'))
            if g==34: body.append(('i','v_add_u32 v107, 1, v107'))
            if g==35: body.append(('lds','C','ds_write_b32 v108, v107'))
            for x in ex.get(g,[]): body.append(('i',x))
            kg=(9*hc+i-3)%18
            body.append(('need',[(kg,u//2,0),(kg,u//2,1)]))
            body.append(('i',mm2(kg,u)))
    e('v_add_u32 v104, s64, v104'); e('v_add_u32 v105, s64, v105'); e('s_sub_u32 s64, 0, s64')
    e('M2_L:')
    stream(body,True)
    e('s_cbranch_scc1 M2_L')
    e('s_lshl_b32 s61, %s, 11'%s(sWV)); e('s_add_u32 s61, s61, %d'%QH); e('v_add_u32 v7, s61, v106')
    e('s_waitcnt lgkmcnt(0)')
    for kg in (15,16,17):
        for u in range(4): e(mm2(kg,u))
    if not FEARLY: e('s_waitcnt vmcnt(0)'); e('s_mov_b64 exec, 1'); e('buffer_store_dword v6, v5, %s, s19 offen sc1'%s(sWS,4)); e('s_mov_b64 exec, -1')
    e('s_nop 7')
    for x in packq(True): e(x)
    e('v_add_u32 v107, 1, v107'); e('ds_write_b32 v108, v107')
    INMAIN=False
    if STAMP:
        st(4); stc(11); st_flush(12,0)
        if TRACE: trace_flush(1,3)
    e('s_waitcnt lgkmcnt(0)')
    e('s_endpgm')
    e('M2_FL:'); e('s_waitcnt vmcnt(0)'); e('s_mov_b64 exec, 1'); e('buffer_store_dword v6, v5, %s, s19 offen sc1'%s(sWS,4)); e('s_mov_b64 exec, -1'); e('s_branch M2_FR')
    for n in range(NSITE):
        e('M2_ST%d:'%n)
        if not FEARLY: e('s_waitcnt vmcnt(0)'); e('s_mov_b64 exec, 1'); e('buffer_store_dword v6, v5, %s, s19 offen sc1'%s(sWS,4)); e('s_mov_b64 exec, -1')
        for x in packq():
            if x.startswith('buffer') and not NOST: e(x)
        e('s_branch M2_SR%d'%n)
    for (L,R,thr,va) in spins:
        e(L+':')
        tr=TRACE and thr=='s66'
        if tr:
            e('s_memtime s[96:97]'); e('s_waitcnt lgkmcnt(0)'); e('s_mov_b32 m0, s66'); e('s_nop 3'); e('v_writelane_b32 v1, s96, m0'); L=L+'b'; e(L+':')
        e('ds_read_b32 v110, %s'%v(va))
        e('s_add_u32 s99, s99, 1'); e('s_cmp_gt_u32 s99, 0x100000'); e('s_cbranch_scc1 K_END'); e('s_waitcnt lgkmcnt(0)')
        e('v_cmp_gt_u32 vcc, %s, v110'%thr); e('s_cbranch_vccnz '+L)
        if tr: e('s_memtime s[96:97]'); e('s_waitcnt lgkmcnt(0)'); e('v_writelane_b32 v3, s96, m0')
        e('s_branch '+R)

assert all((L*57)>>9==L//9 for L in range(288))
assert all((L*57)>>11==L//36 for L in range(289))
out.append('; @launch grid=(256,1,1) block=(512,1,1) lds=163840')
out.append('.amdgcn_target "amdgcn-amd-amdhsa--gfx950"')
out.append('.text'); out.append('.globl '+NAME)
kernel()
out.append('.section .rodata,"a"'); out.append('.p2align 6')
out.append('.amdhsa_kernel '+NAME)
for l in ['next_free_vgpr 256','next_free_sgpr 100','accum_offset 256','group_segment_fixed_size 0','kernarg_size 96','user_sgpr_count 2','user_sgpr_kernarg_segment_ptr 1','system_sgpr_workgroup_id_x 1']:
    out.append('  .amdhsa_'+l)
out.append('.end_amdhsa_kernel')
print('\n'.join(out))
```

```python
import sys, struct
A=sys.argv
STAMP='--stamp' in A; NODMA='--nodma' in A; NOMFMA='--nomfma' in A; NOREAD='--noread' in A; NOPRIO='--noprio' in A; NOTX='--notx' in A; NORED='--nored' in A; NOST='--nost' in A; NOU='--nou' in A; NOXW='--noxw' in A; TRACE='--trace' in A; MPRIO='--mprio' in A; SLP='--slp' in A; opt=lambda n,d: int([x for x in A if x.startswith('--'+n+'=')][0].split('=')[1]) if any(x.startswith('--'+n+'=') for x in A) else d
PRE=opt('pre',2); AP2=opt('ap2',0); USLP=opt('uslp',30); PSLP=opt('pslp',12); UPACE=opt('upace',8); PPACE=opt('ppace',1); LP=opt('lp',0); AP=opt('ap',1); EARLY=opt('early',0); RM=0; XUP=opt('xup',0); CROT=opt('crot',1); FMASK=opt('fmask',0x1c8); JROT=opt('jrot',1); PK=0; TAG=0; FEARLY=opt('fearly',1); T2=0; CT=opt('ct',0); IW=opt('iw',0); DIAG=opt('diag',0); NA=10; NB=8; CPG=opt('cpg',2); PUB1=opt('pub1',12); OSC=opt('osc',0); LATE=opt('late',35); USTG=opt('ustg',0); NSITE=opt('nsite',1); XSTG=opt('xstg',2); E3A=opt('e3a',0)
DBGT='--dbgt' in A; NOSW='--nosw' in A; WSPLIT=0 if '--nowsplit' in A else 1
NAME='gated_mix__spectral_fnet__dense_activation_relu__prompt_kernel'
out=[]; INMAIN=False
def e(s=''):
    if NODMA and s.endswith(' lds') and ('s[20:23]' in s or 's[24:27]' in s): return
    if (NOPRIO or MPRIO) and s.startswith('s_setprio') and not INMAIN: return
    if INMAIN and NOST and s.startswith('buffer_store_dword'): return
    if NOU and s.startswith('buffer_load_dword v') and 's17 offen sc1' in s: return
    if NOXW and s.endswith(' lds') and ('s[8:11]' in s or 's[12:15]' in s): return
    if INMAIN and NOMFMA and s.startswith('v_mfma'): return
    out.append('    '+s if s and not s.endswith(':') else s)
def v(n,c=1): return 'v%d'%n if c==1 else 'v[%d:%d]'%(n,n+c-1)
def s(n,c=1): return 's%d'%n if c==1 else 's[%d:%d]'%(n,n+c-1)
def f2u(x): return struct.unpack('<I',struct.pack('<f',float(x)))[0]

SLOT=36864; XW0=110592; XWS=18432; HB=73728
MISC=147456; QH=MISC; LND=MISC+8192; CNS=LND+4*256; GL=CNS+6*256
GWL=LND+3072; MX=GWL+1152
U_OFF=0x1400000; FLP=0x1800000; FLU=0x1810000; ST_OFF=0x1900000; WS_BYTES=0x1B00000
BIG=0x7fffffff; OOB=0x40000000
sX,sWH,sW1,sW2,sGW,sWS,sOUT,sDBG=8,12,20,24,28,32,36,40
sJ,sC,sWV,sROT=3,4,5,6
SPINMAX=0x8000

def srd(d,base,nbytes):
    e('s_mov_b32 %s, %s'%(s(d),s(base))); e('s_mov_b32 %s, %s'%(s(d+1),s(base+1)))
    e('s_mov_b32 %s, %d'%(s(d+2),nbytes)); e('s_mov_b32 %s, 0x20000'%s(d+3))
def mf(d,a,b,c=None):
    return 'v_mfma_f32_16x16x32_bf16 %s, %s, %s, %s'%(v(d,4),v(a,4),v(b,4), v(d,4) if c is None else (c if isinstance(c,str) else v(c,4)))
def mfma(*a): e(mf(*a))
def st(slot):
    if STAMP: e('s_memrealtime %s'%s(72+2*slot,2))
def stc(slot):
    if STAMP: e('s_memtime %s'%s(72+2*slot,2))
def st_flush(n,base_row):
    if not STAMP: return
    e('s_waitcnt lgkmcnt(0)')
    e('s_lshl_b32 s68, s2, 3'); e('s_add_u32 s68, s68, %s'%s(sWV)); e('s_lshl_b32 s68, s68, 7'); e('s_add_u32 s68, s68, %d'%ST_OFF)
    e('v_mov_b32 v2, 0')
    for i in range(n):
        e('v_mov_b32 v4, %s'%s(72+2*i)); e('v_mov_b32 v5, %s'%s(73+2*i))
        e('buffer_store_dwordx2 v[4:5], v2, %s, s68 offen offset:%d'%(s(sWS,4),8*i)); e('s_nop 1')
def trace_flush(a,b):
    e('s_lshl_b32 s68, s2, 3'); e('s_add_u32 s68, s68, %s'%s(sWV)); e('s_lshl_b32 s68, s68, 9'); e('s_add_u32 s68, s68, %d'%(ST_OFF+0x40000))
    e('v_lshlrev_b32 v2, 2, v0')
    e('buffer_store_dword %s, v2, %s, s68 offen'%(v(a),s(sWS,4))); e('buffer_store_dword %s, v2, %s, s68 offen offset:256'%(v(b),s(sWS,4)))
_lab=[0]
def lab(p): _lab[0]+=1; return '%s%d'%(p,_lab[0])
def lds_wait(vaddr,vtmp,thr):
    L=lab('W')
    e(L+':')
    if SLP and not INMAIN: e('s_sleep 2')
    e('ds_read_b32 %s, %s'%(v(vtmp),v(vaddr)))
    e('s_add_u32 s99, s99, 1'); e('s_cmp_gt_u32 s99, 0x100000'); e('s_cbranch_scc1 K_END'); e('s_waitcnt lgkmcnt(0)')
    e('v_cmp_gt_u32 vcc, %s, %s'%(thr,v(vtmp))); e('s_cbranch_vccnz '+L)

def stream(seq, cyclic, pre=None):
    hist=[]; done=0
    def run(sq,emit):
        nonlocal done
        for it in sq:
            if it[0]=='lds':
                hist.append(it[1])
                if emit and not (NOREAD and it[2].startswith('ds_read_b64_tr')): e(it[2])
            elif it[0]=='need':
                idx=-1
                for t in it[1]:
                    k=[i for i,x in enumerate(hist) if x==t]
                    if k: idx=max(idx,k[-1])
                    else: assert not emit, t
                if idx+1>done:
                    n=min(len(hist)-1-idx,15)
                    if emit: e('s_waitcnt lgkmcnt(%d)'%(0 if NOREAD else n))
                    done=len(hist)-n
            elif emit: e(it[1])
    if cyclic: run(seq,False)
    if pre is not None: run(pre,False)
    run(seq,True)

def kernel():
    e('.p2align 8'); e('.type %s,@function'%NAME); e(NAME+':')
    e('s_cmp_ge_u32 s2, 256'); e('s_cbranch_scc1 K_END')
    st(0)
    if DBGT or DIAG: e('s_memrealtime s[72:73]')
    e('s_load_dwordx2 s[44:45], s[0:1], 0')
    e('s_load_dwordx4 s[48:51], s[0:1], 24')
    e('s_load_dwordx4 s[52:55], s[0:1], 48')
    e('s_load_dwordx8 s[56:63], s[0:1], 64')
    e('s_mov_b32 s99, 0')
    e('v_lshrrev_b32 v1, 6, v0')
    e('s_and_b32 %s, s2, 7'%s(sJ)); e('s_lshr_b32 %s, s2, 3'%s(sC))
    e('v_readfirstlane_b32 %s, v1'%s(sWV))
    e('v_and_b32 v0, 63, v0')
    e('s_mul_i32 s6, %s, 57'%s(sC)); e('s_lshr_b32 s6, s6, 9'); e('s_and_b32 s98, s6, %d'%(0 if NOSW else 1)); e('s_mul_i32 s6, s6, 9'); e('s_sub_u32 s6, %s, s6'%s(sC))
    if JROT: e('s_add_u32 s6, s6, %s'%s(sJ)); e('s_sub_u32 s7, s6, 9'); e('s_cmp_ge_u32 s6, 9'); e('s_cselect_b32 s6, s7, s6')
    e('s_add_u32 s15, %s, %s'%(s(sJ),s(sC) if CROT else '0')); e('s_and_b32 s15, s15, 7')
    e('s_cmp_ge_u32 %s, 6'%s(sWV)); e('s_cbranch_scc1 K_AUX')
    e('s_cmp_ge_u32 %s, 4'%s(sWV)); e('s_cbranch_scc0 K_MAIN')
    loader(); aux(); main()
    e('K_END:'); e('s_endpgm')

def loader():
    e('s_setprio %d'%LP)
    e('s_sub_u32 s7, %s, 4'%s(sWV))
    e('v_lshrrev_b32 v1, 3, v0'); e('v_and_b32 v2, 7, v0')
    e('v_lshrrev_b32 v4, 1, v2')
    e('v_and_b32 v5, 1, v2'); e('v_lshlrev_b32 v5, 4, v5')
    e('s_movk_i32 s16, %d'%(9216-1152))
    for p in range(9):
        e('v_add_u32 v6, %d, v1'%(8*p))
        e('v_mul_u32_u24 v7, 57, v6'); e('v_lshrrev_b32 v7, 9, v7')
        e('v_bfe_u32 v9, v7, 1, 1'); e('v_xor_b32 v9, v9, v4')
        e('v_lshl_add_u32 v6, v6, 7, v5')
        e('v_mad_u32_u24 v6, v7, s16, v6')
        e('v_lshl_add_u32 v6, v9, 5, v6')
        e('v_xor_b32 v7, 64, v6')
        e('v_subrev_u32 %s, %d, v6'%(v(16+p),(p%4)*1024))
        e('v_add_u32 %s, %d, v7'%(v(25+p),8*9216-((p+9)%4)*1024))
    e('v_lshrrev_b32 v6, 1, v1'); e('v_and_b32 v6, 3, v6'); e('v_lshlrev_b32 v6, 1, v6'); e('v_xor_b32 v6, v6, v2')
    e('s_movk_i32 s69, 1152'); e('v_mul_u32_u24 v7, s69, v1'); e('v_lshl_add_u32 v36, v6, 4, v7')
    for i in range(1,4): e('v_add_u32 %s, %d, v36'%(v(36+i),i*8192))
    e('s_mul_i32 s64, s7, 18432')
    e('s_mul_i32 s17, %s, 1152'%s(sJ)); e('s_mul_i32 s18, s7, %d'%(16*9216)); e('s_add_u32 s17, s17, s18')
    e('s_lshl_b32 s18, s6, 1')
    e('s_xor_b32 s66, s18, s98'); e('s_mul_i32 s66, s66, %d'%(32*9216)); e('s_add_u32 s66, s66, s17')
    e('s_mov_b32 s67, s64')
    e('s_mov_b32 s68, 0'); e('s_mov_b32 s69, -2')
    e('s_mul_i32 s70, %s, 576'%s(sJ)); e('s_mul_i32 s71, s7, 144'); e('s_add_u32 s70, s70, s71'); e('s_mul_i32 s70, s70, 1152')
    e('s_lshl_b32 s19, s7, 8'); e('s_add_u32 s19, s19, %d'%LND)
    e('v_lshlrev_b32 v11, 2, v0'); e('v_add_u32 v11, s19, v11'); e('v_mov_b32 v10, 0'); e('v_mov_b32 v13, 0'); e('v_mov_b32 v40, 0'); e('v_mov_b32 v41, 0')
    e('v_and_b32 v12, 3, v0'); e('v_mul_u32_u24 v12, 260, v12'); e('v_add_u32 v12, %d, v12'%CNS)
    e('s_waitcnt lgkmcnt(0)')
    srd(sW1,52,5308416); srd(sW2,54,5308416)
    if STAMP: srd(sWS,62,WS_BYTES)
    PUB=12
    def dma(ph,p):
        if p%4==0 and p:
            e('s_add_u32 m0, s67, %d'%(p*1024))
            if ph==2: e('s_add_u32 s66, s66, %d'%(32*1152))
            else: e('s_nop 0')
        if ph==1: e('buffer_load_dwordx4 %s, %s, s66 offen offset:%d lds'%(v(16+p),s(sW1,4),(p%4)*1024))
        else: e('buffer_load_dwordx4 %s, %s, s66 offen offset:%d lds'%(v(36+p%4),s(sW2,4),(p%4)*1024))
    def grp(fill):
        groups=[]; i=0
        while i<len(fill):
            if fill[i].startswith('s_cmp'): groups.append(fill[i:i+2]); i+=2
            else: groups.append([fill[i]]); i+=1
        return groups
    def tr_top():
        if TRACE: e('s_memtime s[96:97]'); e('s_waitcnt lgkmcnt(0)'); e('s_mov_b32 m0, s68'); e('s_nop 3'); e('v_writelane_b32 v40, s96, m0'); e('v_writelane_b32 v42, s92, m0'); e('v_writelane_b32 v43, s94, m0')
    e('LD_P:'); tr_top()
    e('s_mov_b32 m0, s67'); e('s_nop 0')
    g=grp(['s_add_u32 s18, s18, 1','s_cmp_eq_u32 s18, 18','s_cselect_b32 s18, 0, s18','s_xor_b32 s44, s18, s98','s_mul_i32 s44, s44, %d'%(32*9216),'s_add_u32 s44, s44, s17',
           's_add_u32 s45, s67, %d'%SLOT,'s_cmp_ge_u32 s45, %d'%(3*SLOT),'s_cselect_b32 s45, s64, s45'])
    for p in range(18):
        if p==PUB:
            e('s_cmp_eq_u32 s68, 0'); e('s_cbranch_scc1 LD_P0')
            if TRACE: e('s_memtime s[92:93]')
            e('s_waitcnt vmcnt(%d)'%PUB)
            if TRACE: e('s_memtime s[94:95]')
            e('s_barrier')
            e('LD_P0:')
        dma(1,p)
        if g:
            for x in g.pop(0): e(x)
    e('s_mov_b32 s66, s44'); e('s_mov_b32 s67, s45')
    e('s_add_u32 s68, s68, 1'); e('s_cmp_lt_u32 s68, 18'); e('s_cbranch_scc1 LD_P')
    e('s_add_u32 s66, s70, 1024'); e('s_mov_b32 s69, 0')
    e('LD_Q:'); tr_top()
    e('s_waitcnt lgkmcnt(1)'); e('v_cmp_gt_u32 vcc, s69, v13'); e('s_mov_b32 m0, s67'); e('s_cbranch_vccnz LD_QS')
    e('LD_QR:')
    g=grp(['s_sub_u32 s46, s68, 17','s_lshr_b32 s44, s46, 1','s_add_u32 s47, s44, s15','s_and_b32 s47, s47, 7','s_cmp_eq_u32 s44, 0','s_cselect_b32 s47, 8, s47',
           's_lshl_b32 s47, s47, 7','s_and_b32 s44, s46, 1','s_mul_i32 s44, s44, %d'%(288*1152),'s_add_u32 s44, s44, s47','s_add_u32 s44, s44, s70',
           's_add_u32 s45, s67, %d'%SLOT,'s_cmp_ge_u32 s45, %d'%(4*SLOT),'s_cselect_b32 s45, s64, s45',
           's_cmp_le_u32 s68, 20','s_cselect_b32 s69, 0, s68'])
    for p in range(18):
        if p==PUB:
            e('v_mov_b32 v10, s68')
            if TRACE: e('s_memtime s[92:93]')
            e('s_waitcnt vmcnt(%d)'%PUB)
            e('s_cmp_eq_u32 s68, 18'); e('s_cbranch_scc0 LD_Q0'); e('s_barrier'); e('LD_Q0:')
            if TRACE: e('s_memtime s[94:95]')
            e('ds_read_b32 v13, v12'); e('ds_write_b32 v11, v10')
        if E3A and p==E3A: e('s_cmp_eq_u32 s68, 20'); e('s_cbranch_scc0 LD_Q1'); e('s_barrier'); e('LD_Q1:')
        dma(2,p)
        if g:
            for x in g.pop(0): e(x)
    assert not g
    e('s_mov_b32 s66, s44'); e('s_mov_b32 s67, s45')
    e('s_add_u32 s68, s68, 1'); e('s_cmp_le_u32 s68, 20'); e('s_cbranch_scc1 LD_E')
    e('s_cmp_lt_u32 s68, 36'); e('s_cbranch_scc1 LD_Q')
    e('v_mov_b32 v10, s68'); e('s_waitcnt vmcnt(0)'); e('ds_write_b32 v11, v10')
    if STAMP: st(1); st_flush(2,0)
    if TRACE:
        e('s_cmp_eq_u32 s7, 0'); e('s_cbranch_scc1 TRX'); e('v_mov_b32 v41, v43'); e('v_mov_b32 v40, v42'); e('TRX:')
        trace_flush(40,41)
    e('s_waitcnt lgkmcnt(0)')
    e('s_endpgm')
    e('LD_E:')
    if not EARLY:
        e('s_barrier')
        e('s_cmp_eq_u32 s68, 20'); e('s_cbranch_scc1 LD_Q')
        e('v_mov_b32 v10, s68'); e('s_waitcnt vmcnt(0)'); e('ds_write_b32 v11, v10'); e('s_waitcnt lgkmcnt(0)')
        e('s_barrier'); e('s_branch LD_Q')
    else:
        e('s_cmp_eq_u32 s68, 19'); e('s_cbranch_scc1 LD_E1')
        e('v_mov_b32 v10, s68'); e('s_waitcnt vmcnt(0)'); e('ds_write_b32 v11, v10'); e('s_waitcnt lgkmcnt(0)')
        e('s_barrier')
        e('LD_E1:')
        e('s_barrier'); e('s_branch LD_Q')
    e('LD_QS:')
    e('ds_read_b32 v13, v12'); e('s_waitcnt lgkmcnt(0)'); e('v_cmp_gt_u32 vcc, s69, v13'); e('s_cbranch_vccz LD_QR')
    e('v_mov_b32 v10, s68'); e('s_waitcnt vmcnt(0)'); e('ds_write_b32 v11, v10')
    lds_wait(12,13,'s69')
    if TRACE: e('s_memtime s[96:97]'); e('s_waitcnt lgkmcnt(0)'); e('s_mov_b32 m0, s68'); e('s_nop 3'); e('v_writelane_b32 v41, s96, m0'); e('s_mov_b32 m0, s67')
    e('s_branch LD_QR')

def aux():
    e('K_AUX:')
    e('s_setprio %d'%AP)
    e('s_sub_u32 s7, %s, 6'%s(sWV))
    e('v_lshrrev_b32 v1, 3, v0'); e('v_and_b32 v2, 7, v0'); e('v_lshrrev_b32 v3, 1, v1')
    e('v_xor_b32 v4, v2, v3'); e('v_lshlrev_b32 v4, 4, v4'); e('v_xor_b32 v5, 64, v4')
    e('s_mov_b32 s16, 73728'); e('v_mul_u32_u24 v6, s16, v1')
    for p in range(4):
        e('v_add_u32 %s, v6, %s'%(v(16+p),'v5' if p%2 else 'v4'))
        if p: e('v_add_u32 %s, %d, %s'%(v(16+p),p*(8*73728-1024),v(16+p)))
    e('v_lshlrev_b32 v25, 4, v0')
    e('s_movk_i32 s17, 1152'); e('v_and_b32 v8, 31, v0'); e('v_mul_u32_u24 v7, 57, v8'); e('v_lshrrev_b32 v62, 9, v7'); e('v_mul_u32_u24 v7, 9, v62'); e('v_sub_u32 v7, v8, v7'); e('v_mul_u32_u24 v24, s17, v7'); e('v_lshrrev_b32 v7, 5, v0'); e('v_lshl_add_u32 v24, v7, 6, v24')
    e('s_lshl_b32 s18, s7, 5'); e('s_add_u32 s18, s18, %s'%s(sC)); e('s_mul_i32 s18, s18, 1152')
    e('s_mul_i32 s19, %s, 576'%s(sJ)); e('s_mul_i32 s64, %s, 18'%s(sC)); e('s_add_u32 s19, s19, s64')
    e('s_mul_i32 s64, s7, 9'); e('s_add_u32 s19, s19, s64'); e('s_mul_i32 s19, s19, 1152')
    e('s_mov_b32 s64, s6')
    e('s_lshl_b32 s69, s7, 12'); e('s_lshl_b32 s70, s7, 10'); e('s_add_u32 s65, s69, %d'%XW0)
    e('s_waitcnt lgkmcnt(0)')
    if DIAG==4: e('s_memrealtime s[74:75]')
    srd(sX,44,2359296); srd(sGW,56,1152)
    def issueX(h):
        if h==0: e('s_lshl_b32 s67, s64, 7'); e('s_add_u32 s67, s67, s18')
        e('s_mov_b32 m0, s65'); e('s_nop 0')
        for p in (2*h,2*h+1): e('buffer_load_dwordx4 %s, %s, s67 offen offset:%d lds'%(v(16+p),s(sX,4),p*1024))
        if h==1:
            e('s_add_u32 s64, s64, 1'); e('s_cmp_eq_u32 s64, 9'); e('s_cselect_b32 s64, 0, s64')
            e('s_add_u32 s65, s65, 8192'); e('s_sub_u32 s66, s65, 32768'); e('s_cmp_ge_u32 s65, %d'%(XW0+32768)); e('s_cselect_b32 s65, s66, s65')
    issueX(0); issueX(1)
    e('s_add_u32 m0, s70, %d'%GWL); e('s_cmp_eq_u32 s7, 0'); e('s_cselect_b32 exec_lo, -1, 0xff'); e('s_cselect_b32 exec_hi, -1, 0')
    e('buffer_load_dwordx4 v25, %s, s70 offen lds'%s(sGW,4))
    e('s_mov_b64 exec, -1')
    srd(sW2,54,5308416); srd(sWS,62,WS_BYTES); srd(sOUT,58,2359296); srd(sDBG,60,256)
    FC,FS,FN=112,120,128; GF=136; SEL=200; UO=208; MK=212; TR=216; PO=220; GG=224; L16=228; PL1=229; PL2=230; L0=231
    e('v_and_b32 v8, 15, v0'); e('v_lshrrev_b32 v9, 4, v0')
    e('v_mov_b32 %s, 0'%v(L0))
    e('s_lshl_b32 s71, s2, 1'); e('s_add_u32 s71, s71, s7'); e('s_lshl_b32 s71, s71, 2'); e('s_add_u32 s71, s71, %d'%FLU)
    e('v_mov_b32 v12, 0'); e('v_mov_b32 v13, 0'); e('s_lshl_b32 s48, s2, 7'); e('s_lshl_b32 s49, s7, 3'); e('s_add_u32 s48, s48, s49'); e('s_add_u32 s48, s48, %d'%FLP)
    e('s_mov_b64 exec, 1')
    e('buffer_store_dwordx2 v[12:13], %s, %s, s48 offen sc1'%(v(L0),s(sWS,4))); e('buffer_store_dword %s, %s, %s, s71 offen sc1'%(v(L0),v(L0),s(sWS,4)))
    e('s_mov_b64 exec, -1')
    e('v_lshrrev_b32 v10, 1, v8'); e('v_xor_b32 v10, v10, v9'); e('v_lshlrev_b32 v10, 4, v10')
    e('v_lshl_add_u32 v20, v8, 7, v10'); e('v_add_u32 v20, %d, v20'%XW0); e('v_xor_b32 v21, 64, v20')
    e('v_mov_b32 v26, v20'); e('v_mov_b32 v27, v21'); e('v_add_u32 v28, s69, v20'); e('v_add_u32 v29, s69, v21')
    e('v_lshlrev_b32 v22, 4, v9'); e('v_add_u32 v22, %d, v22'%GWL); e('s_lshl_b32 s68, s6, 7'); e('v_add_u32 v23, s68, v22')
    e('s_lshl_b32 s44, s7, 11')
    ACC=64; TM=136; WA=176; RC=232
    for i in list(range(8))+list(range(16,24))+list(range(32,40)): e('v_mov_b32 %s, 0'%v(TM+i))
    for i in list(range(8,16))+list(range(24,32)): e('v_mov_b32 %s, 0'%v(ACC+i))
    e('s_sub_u32 s48, s6, 1'); e('s_cmp_eq_u32 s6, 0'); e('s_cselect_b32 s48, 8, s48'); e('s_lshl_b32 s48, s48, 6')
    e('v_lshlrev_b32 v11, 3, v9'); e('v_add_u32 v11, s48, v11'); e('v_cvt_f32_u32 v11, v11')
    e('s_mul_i32 s49, %s, 36'%s(sJ)); e('s_lshl_b32 s50, s7, 4'); e('s_add_u32 s50, s50, s49'); e('s_add_u32 s49, s49, 32')
    for mix in range(2):
        if mix==0: e('v_add_u32 v12, s50, v8')
        else: e('v_and_b32 v12, 7, v8'); e('v_add_u32 v12, s49, v12')
        e('v_cvt_f32_u32 v12, v12'); e('v_mul_f32 v10, 0x%08x, v12'%f2u(1/9.)); e('v_mul_f32 v12, 0x%08x, v12'%f2u(1/576.)); e('v_mul_f32 v13, v12, v11')
        e('v_cos_f32 %s, v10'%v(RC+2*mix)); e('v_sin_f32 %s, v10'%v(RC+2*mix+1))
        if mix:
            e('v_cmp_gt_u32 vcc, 8, v8'); e('v_add_f32 v4, 0x3e800000, v13'); e('v_sub_f32 v5, 0, %s'%v(RC+3))
            e('v_cndmask_b32 v13, v4, v13, vcc'); e('v_cndmask_b32 %s, %s, v5, vcc'%(v(RC+3),v(RC+3)))
            e('v_cmp_eq_u32 vcc, 5, v8'); e('v_mov_b32 v4, 1.0'); e('v_mov_b32 v5, 0')
            e('v_cndmask_b32 %s, %s, v4, vcc'%(v(RC+2),v(RC+2))); e('v_cndmask_b32 %s, %s, v5, vcc'%(v(RC+3),v(RC+3)))
        for kp in range(2):
            for jp in range(4):
                for u in range(2):
                    e('v_fmamk_f32 %s, v12, 0x%08x, v13'%(v(30+u),f2u(32*kp+2*jp+u))); e('v_fract_f32 %s, %s'%(v(30+u),v(30+u)))
                e('v_cos_f32 v32, v30'); e('v_cos_f32 v33, v31')
                if mix==0:
                    e('v_sin_f32 v34, v30'); e('v_sin_f32 v35, v31')
                    e('v_cvt_pk_bf16_f32 %s, v32, v33'%v(WA+4*kp+jp)); e('v_cvt_pk_bf16_f32 %s, -v34, -v35'%v(WA+8+4*kp+jp))
                else:
                    e('s_nop 0'); e('v_cvt_pk_bf16_f32 %s, v32, v33'%v(WA+16+4*kp+jp))
    if PK:
        e('v_mov_b32 v60, %s'%v(RC+1)); e('v_mov_b32 v61, %s'%v(RC+1)); e('v_mov_b32 %s, %s'%(v(RC+1),v(RC)))
    global out
    save=out; parts=[]
    def begin():
        global out
        out=[]
    def end(): parts.append(out)
    begin()
    e('v_lshlrev_b32 v11, 2, v9'); e('v_cvt_f32_u32 v11, v11')
    for b in range(2):
        e('v_add_u32 v12, %d, v8'%(16*b)); e('v_cvt_f32_u32 v12, v12'); e('v_mul_f32 v12, 0x3d000000, v12'); e('v_mul_f32 v13, v12, v11')
        for jp in range(4):
            o=[(2*jp+u)%4+16*((2*jp+u)//4) for u in range(2)]
            for u in range(2): e('v_fmamk_f32 %s, v12, 0x%08x, v13'%(v(30+u),f2u(o[u])))
            e('v_cos_f32 v32, v30'); e('v_cos_f32 v33, v31'); e('v_sin_f32 v34, v30'); e('v_sin_f32 v35, v31')
            e('v_cvt_pk_bf16_f32 %s, v32, v33'%v(FC+4*b+jp)); e('v_cvt_pk_bf16_f32 %s, v34, v35'%v(FS+4*b+jp))
            e('v_xor_b32 %s, 0x80008000, %s'%(v(FN+4*b+jp),v(FS+4*b+jp)))
    end()
    for i in range(4):
        begin()
        e('s_lshr_b32 s48, %s, 2'%s(sJ)); e('s_lshl_b32 s48, s48, 1'); e('s_and_b32 s49, %s, 1'%s(sJ)); e('s_add_u32 s48, s48, s49')
        e('s_add_u32 s48, s48, %d'%i); e('s_and_b32 s48, s48, 3')
        e('v_lshlrev_b32 %s, 4, v0'%v(L16)); e('v_lshlrev_b32 v11, 1, v9'); e('v_cvt_f32_u32 v11, v11')
        e('s_lshl_b32 s49, s48, 6'); e('s_add_u32 s49, s49, %d'%GL); e('v_lshlrev_b32 v13, 2, v8'); e('v_add_u32 %s, s49, v13'%v(GG+i))
        e('s_lshr_b32 s49, s48, 1'); e('s_and_b32 s50, s48, 1')
        e('s_lshl_b32 s51, s49, 12'); e('s_lshl_b32 s52, s50, 10'); e('s_add_u32 s51, s51, s52'); e('v_add_u32 %s, s51, %s'%(v(PO+i),v(L16)))
        e('s_lshl_b32 s49, s49, 5'); e('s_add_u32 s49, s49, s52'); e('s_add_u32 s49, s49, %s'%s(sC))
        e('v_lshlrev_b32 v5, 6, v8'); e('v_add_u32 v6, s49, v5')
        e('v_cvt_f32_u32 v5, v6'); e('v_mul_f32 v5, 0x3a000000, v5'); e('v_mul_f32 v13, v5, v11')
        e('s_movk_i32 s49, 1152'); e('v_and_b32 v4, 1, v9'); e('v_lshlrev_b32 v4, 5, v4'); e('v_lshrrev_b32 v7, 1, v9'); e('v_lshl_add_u32 v4, v7, 4, v4')
        e('v_mad_u32_u24 %s, v6, s49, v4'%v(TR+i))
        for k in range(4):
            for u in range(2):
                for h in range(2): e('v_fmamk_f32 %s, v5, 0x%08x, v13'%(v(30+h),f2u(8*k+u+32*h)))
                e('v_cos_f32 v32, v30'); e('v_sin_f32 v33, v30'); e('v_cos_f32 v34, v31'); e('v_sin_f32 v35, v31')
                e('v_cvt_pk_bf16_f32 %s, v32, v33'%v(GF+16*i+4*k+2*u)); e('v_cvt_pk_bf16_f32 %s, v34, v35'%v(GF+16*i+4*k+2*u+1))
        end()
    begin()
    e('v_lshrrev_b32 v4, 2, v8'); e('v_cmp_eq_u32 vcc, v4, v9'); e('v_and_b32 v5, 1, v8'); e('v_lshlrev_b32 v5, 4, v5')
    e('v_mov_b32 v6, 0x3f80'); e('v_lshlrev_b32 v6, v5, v6'); e('v_cndmask_b32 v6, 0, v6, vcc')
    e('v_and_b32 v5, 2, v8'); e('v_cmp_eq_u32 vcc, 0, v5'); e('v_mov_b32 %s, 0'%v(SEL+2)); e('v_mov_b32 %s, 0'%v(SEL+3))
    e('v_cndmask_b32 %s, 0, v6, vcc'%v(SEL)); e('v_sub_u32 %s, v6, %s'%(v(SEL+1),v(SEL)))
    e('v_mov_b32 %s, 0'%v(SEL+4)); e('v_mov_b32 %s, 0'%v(SEL+5)); e('v_mov_b32 %s, %s'%(v(SEL+6),v(SEL))); e('v_mov_b32 %s, %s'%(v(SEL+7),v(SEL+1)))
    e('v_and_b32 v4, 1, v0'); e('v_lshlrev_b32 v4, 3, v4'); e('s_lshl_b32 s49, s7, 2'); e('v_add_u32 v4, s49, v4'); e('v_bfe_u32 v5, v0, 1, 3'); e('v_lshl_add_u32 %s, v5, 7, v4'%v(PL1))
    e('v_sub_u32 v5, %s, v5'%s(sJ)); e('v_and_b32 v5, 7, v5'); e('v_add_u32 v254, 1, v5')
    e('v_and_b32 v4, 7, v0'); e('v_lshlrev_b32 v4, 7, v4'); e('s_lshr_b32 s49, %s, 1'%s(sJ)); e('s_lshl_b32 s49, s49, 2'); e('v_add_u32 %s, s49, v4'%v(PL2))
    e('s_sub_u32 s48, 32, %s'%s(sC)); e('s_and_b32 s48, s48, 31')
    e('s_mov_b32 s49, %d'%(2*12288)); e('v_mul_u32_u24 v12, s49, v9')
    e('s_mov_b32 s50, %d'%(32*12288))
    e('s_lshl_b32 s54, s15, 6'); e('s_lshl_b32 s49, s7, 5'); e('s_add_u32 s54, s54, s49')
    e('s_and_b32 s55, %s, 2'%s(sJ)); e('s_lshl_b32 s55, s55, 4'); e('s_add_u32 s55, s55, 512')
    for tb in range(4):
        e('s_add_u32 s49, %s, %d'%(('s54',16*tb) if tb<2 else ('s55',16*(tb-2)))); e('v_add_u32 v4, s49, v8')
        e('v_sub_u32 v5, 576, v4'); e('v_cmp_lt_u32 vcc, 288, v4'); e('v_mov_b32 v6, %s'%s(sC)); e('v_mov_b32 v7, s48')
        e('v_cndmask_b32 v4, v4, v5, vcc'); e('v_cndmask_b32 v6, v6, v7, vcc')
        e('v_mov_b32 v7, 0x80000000'); e('v_cndmask_b32 %s, 0, v7, vcc'%v(MK+tb))
        e('v_mul_u32_u24 v5, 57, v4'); e('v_lshrrev_b32 v5, 11, v5'); e('v_min_u32 v5, 7, v5')
        e('v_mul_u32_u24 v7, 36, v5'); e('v_sub_u32 v4, v4, v7')
        e('v_mul_u32_u24 v5, s50, v5'); e('v_lshl_add_u32 v5, v6, 7, v5'); e('v_add_u32 v5, v5, v12')
        e('v_lshrrev_b32 v6, 4, v4'); e('v_lshl_add_u32 v5, v6, 12, v5'); e('v_and_b32 v4, 15, v4'); e('v_lshl_add_u32 %s, v4, 3, v5'%v(UO+tb))
    end()
    out=save
    NPRE=PRE
    out.extend(parts[0])
    later=[]
    XF=36
    def rotate(lo,hi,mix):
        if PK:
            for i in range(lo,hi,2):
                e('v_pk_mul_f32 %s, %s, %s'%(v(TM+i,2),v(RC,2),v(ACC+i,2))); e('v_pk_mul_f32 %s, %s, %s'%(v(TM+16+i,2),v(RC,2),v(ACC+16+i,2)))
                e('v_pk_fma_f32 %s, %s, %s, %s neg_lo:[1,0,0] neg_hi:[1,0,0]'%(v(TM+i,2),v(60,2),v(ACC+16+i,2),v(TM+i,2))); e('v_pk_fma_f32 %s, %s, %s, %s'%(v(TM+16+i,2),v(60,2),v(ACC+i,2),v(TM+16+i,2)))
        else:
            for i in range(lo,hi):
                e('v_mul_f32 %s, %s, %s'%(v(TM+i),v(RC),v(ACC+i))); e('v_mul_f32 %s, %s, %s'%(v(TM+16+i),v(RC),v(ACC+16+i)))
                e('v_fma_f32 %s, -%s, %s, %s'%(v(TM+i),v(RC+1),v(ACC+16+i),v(TM+i))); e('v_fmac_f32 %s, %s, %s'%(v(TM+16+i),v(RC+1),v(ACC+i)))
        if mix:
            for i in range(8): e('v_mul_f32 %s, %s, %s'%(v(TM+32+i),v(RC+2),v(ACC+32+i)))
            for i in range(8): e('v_fmac_f32_dpp %s, %s, %s row_ror:8 row_mask:0xf bank_mask:0xf'%(v(TM+32+i),v(ACC+32+i),v(RC+3)))
    e('s_mov_b32 s46, 0'); e('s_mov_b32 s47, 0')
    e('s_and_b32 s45, %s, %d'%(s(sC),XSTG)); e('s_mov_b32 s53, 1'); e('s_mov_b32 s51, 0')
    if XUP==3:
        for _ in range(3): issueX(0); issueX(1)
        e('s_mov_b32 s53, 4'); e('s_add_u32 s51, s45, 4'); e('s_cmp_ge_u32 s45, 2'); e('s_cselect_b32 s51, s45, s51')
    e('s_waitcnt vmcnt(%d)'%(4*XUP))
    e('AX_L:')
    for kp in range(2):
        if TRACE:
            e('s_memtime s[96:97]'); e('s_lshl_b32 s95, s46, 1'); e('s_add_u32 m0, s95, %d'%(kp+1)); e('s_waitcnt lgkmcnt(0)'); e('v_writelane_b32 v252, s96, m0'); e('v_writelane_b32 v253, s92, m0')
        e('s_barrier')
        if DIAG in (2,6) and kp==0: e('s_cmp_eq_u32 s46, %d'%(0 if DIAG==2 else 2)); e('s_cbranch_scc0 DGN'); e('s_memrealtime s[74:75]'); e('s_waitcnt lgkmcnt(0)'); e('DGN:')
        for sg in range(4): e('ds_read_b128 %s, %s offset:%d'%(v(XF+4*sg,4),v(26+kp),sg*2048))
        for sg in range(2): e('ds_read_b128 %s, %s offset:%d'%(v(XF+16+4*sg,4),v(28+kp),sg*2048))
        e('s_mov_b32 exec_lo, 0x00200020'); e('s_mov_b32 exec_hi, 0x00200020')
        e('ds_read_b128 %s, v23 offset:%d'%(v(WA+16+4*kp,4),64*kp))
        e('s_mov_b64 exec, -1')
        e('s_sub_u32 s51, s51, 1'); e('s_cbranch_scc1 AX_B%d'%kp)
        e('AX_S%d:'%kp)
        def rot(lo,hi,mix):
            L=[]
            for i in range(lo,hi):
                L+=['v_mul_f32 %s, %s, %s'%(v(TM+i),v(RC),v(ACC+i)),'v_mul_f32 %s, %s, %s'%(v(TM+16+i),v(RC),v(ACC+16+i)),
                    'v_fma_f32 %s, -%s, %s, %s'%(v(TM+i),v(RC+1),v(ACC+16+i),v(TM+i)),'v_fmac_f32 %s, %s, %s'%(v(TM+16+i),v(RC+1),v(ACC+i))]
            if mix:
                L+=['v_mul_f32 %s, %s, %s'%(v(TM+32+i),v(RC+2),v(ACC+32+i)) for i in range(8)]
                L+=['v_fmac_f32_dpp %s, %s, %s row_ror:8 row_mask:0xf bank_mask:0xf'%(v(TM+32+i),v(ACC+32+i),v(RC+3)) for i in range(8)]
            return L
        M=lambda t,sg: mf(ACC+16*t+4*sg, XF+4*sg, WA+8*t+4*kp, TM+16*t+4*sg if kp==0 else None)
        X=lambda sg: mf(ACC+32+4*sg, XF+16+4*sg, WA+16+4*kp, TM+32+4*sg if kp==0 else None)
        if kp==0:
            R=rot(8,16,False)
            for x in R[:8]: e(x)
            e('s_waitcnt lgkmcnt(0)')
            R=R[8:]
            for m in (M(0,0),M(1,0),M(0,1),M(1,1),X(0),X(1)):
                e(m)
                for x in R[:4]: e(x)
                R=R[4:]
            assert not R
            for m in (M(0,2),M(1,2),M(0,3),M(1,3)): e(m)
        else:
            A_=['s_add_u32 s47, s47, 8192','s_and_b32 s47, s47, 32767','s_add_u32 s66, s47, s69','s_add_u32 s68, s68, 128','s_cmp_eq_u32 s68, 1152','s_cselect_b32 s68, 0, s68',
                'v_add_u32 v26, s47, v20','v_add_u32 v27, s47, v21','v_add_u32 v28, s66, v20','v_add_u32 v29, s66, v21','v_add_u32 v23, s68, v22']
            for x in A_: e(x)
            e('s_waitcnt lgkmcnt(0)')
            for m in (M(0,0),M(1,0),M(0,1),M(1,1),X(0),X(1)): e(m)
            e('s_nop 3')
            R=rot(0,8,True)
            for m in (M(0,2),M(1,2),M(0,3),M(1,3)):
                for x in R[:4]: e(x)
                R=R[4:]
                e(m)
            e('s_cmp_eq_u32 s46, 8'); e('s_cbranch_scc1 AX_D')
            for x in R: e(x)
    if TRACE: e('s_memtime s[92:93]')
    e('s_lshr_b32 s66, s45, 1'); e('s_xor_b32 s66, s66, s46'); e('s_add_u32 s46, s46, 1')
    e('s_bitcmp1_b32 s66, 0'); e('s_cbranch_scc1 AX_W0')
    e('s_cmp_eq_u32 s46, 1'); e('s_cbranch_scc0 AX_L')
    e('s_waitcnt vmcnt(8)'); e('s_branch AX_L')
    e('AX_W0:')
    e('s_waitcnt vmcnt(0)'); e('s_branch AX_L')
    for kp in range(2):
        e('AX_B%d:'%kp)
        e('s_cmp_ge_u32 s46, 5'); e('s_cselect_b32 s51, 100, 3')
        e('s_add_u32 s52, s46, 3'); e('s_min_u32 s52, s52, 8')
        e('s_cmp_eq_u32 s46, 0'); e('s_cbranch_scc0 AX_C%d'%kp)
        if kp==0:
            e('s_lshr_b32 s52, s45, 1'); e('s_add_u32 s52, s52, 1')
            e('s_sub_u32 s51, s45, 1'); e('s_cmp_ge_u32 s45, 2'); e('s_cselect_b32 s51, s51, 0')
        else:
            e('s_add_u32 s51, s45, 2')
        e('AX_C%d:'%kp)
        issueX(0); issueX(1)
        e('s_add_u32 s53, s53, 1'); e('s_cmp_le_u32 s53, s52'); e('s_cbranch_scc1 AX_C%d'%kp)
        e('s_cmp_eq_u32 s46, 0'); e('s_cbranch_scc1 AX_S%d'%kp)
        e('v_add_u32 v4, %s, v62'%s(sJ)); e('v_and_b32 v4, 7, v4'); e('v_cmp_eq_u32 vcc, 0, v62'); e('v_mov_b32 v5, 8'); e('v_add_u32 v62, 3, v62')
        e('v_cndmask_b32 v4, v4, v5, vcc'); e('v_lshl_add_u32 v4, v4, 7, v24')
        e('s_mov_b32 exec_lo, 0x7ffffff'); e('s_mov_b32 exec_hi, %s'%('0x7ffffff' if T2 else '0'))
        e('buffer_load_dword v15, v4, %s, s19 offen'%s(sW2,4))
        e('s_mov_b64 exec, -1')
        e('s_branch AX_S%d'%kp)
    e('AX_D:')
    e('s_barrier')
    if DIAG==5: e('s_memrealtime s[74:75]'); e('s_waitcnt lgkmcnt(0)')
    e('s_setprio %d'%AP2); e('s_nop 3')
    st(1)
    e('v_lshlrev_b32 v12, 9, v9'); e('v_lshl_add_u32 v12, v8, 3, v12')
    e('s_lshl_b32 s16, %s, 5'%s(sJ)); e('s_add_u32 s16, s16, %s'%s(sC)); e('s_mul_i32 s16, s16, 12288'); e('s_add_u32 s16, s16, %d'%U_OFF)
    e('s_add_u32 s17, s16, 8192'); e('s_add_u32 s16, s16, s69')
    FR=16
    def pack(dst,src,n=8):
        for h in range(n): e('v_cvt_pk_bf16_f32 %s, %s, %s'%(v(dst+h),v(src+2*h),v(src+2*h+1)))
    def stageA(D,FR):
        for sh in range(2):
            for be in range(2):
                d=D+16*sh+8*be; a=FR+4*sh; b=FR+8+4*sh
                mfma(d,FC+4*be,a,'0'); mfma(d+4,FC+4*be,b,'0'); mfma(d,FS+4*be,b); mfma(d+4,FN+4*be,a)
    def ustore(D,O,so):
        for be in range(2):
            for r in range(4):
                o=O+8*be+2*r
                for sh in range(2): e('v_cvt_pk_bf16_f32 %s, %s, %s'%(v(o+sh),v(D+16*sh+8*be+r),v(D+16*sh+8*be+4+r)))
                e('buffer_store_dwordx2 %s, v12, %s, %s offen offset:%d sc1'%(v(o,2),s(sWS,4),so,be*2048+r*128))
    MF=136
    e('v_add_u32 v14, %d, v25'%MX)
    pack(MF,ACC+32,4)
    e('s_lshl_b32 s66, s7, 7'); e('s_add_u32 s66, s66, %d'%GL); e('v_lshlrev_b32 v13, 4, v9'); e('v_add_u32 v13, s66, v13')
    e('s_mov_b32 exec_lo, 0x00200020'); e('s_mov_b32 exec_hi, 0x00200020')
    for sg in range(2): e('ds_write_b128 v13, %s offset:%d'%(v(ACC+32+4*sg,4),64*sg))
    e('s_mov_b64 exec, -1')
    e('s_cmp_eq_u32 s7, 1'); e('s_cbranch_scc0 AX_A0'); e('ds_write_b128 v14, %s'%v(MF,4)); e('AX_A0:')
    pack(FR,ACC); pack(FR+8,ACC+16); e('s_nop 1')
    stageA(32,FR)
    e('s_nop 7')
    ustore(32,236,'s16')
    e('s_waitcnt lgkmcnt(0)')
    e('s_barrier')
    e('s_barrier')
    if E3A: e('s_barrier')
    if DIAG==3: e('s_memrealtime s[74:75]'); e('s_waitcnt lgkmcnt(0)')
    e('s_cmp_eq_u32 s7, 0'); e('s_cbranch_scc0 AX_A2')
    e('ds_read_b128 %s, v14'%v(MF+4,4)); e('s_waitcnt lgkmcnt(0)')
    for h in range(8): e('v_mov_b32_dpp %s, %s row_ror:8 row_mask:0xf bank_mask:0xf'%(v(MF+8+h),v(MF+h)))
    e('s_nop 1')
    stageA(64,MF)
    e('s_nop 7')
    e('s_mov_b32 exec_lo, 0x00ff00ff'); e('s_mov_b32 exec_hi, 0x00ff00ff')
    ustore(64,96,'s17')
    e('s_mov_b64 exec, -1')
    e('AX_A2:')
    out.extend(parts[1])
    e('s_waitcnt vmcnt(0)'); e('v_mov_b32 v10, 1')
    e('s_mov_b64 exec, 1'); e('buffer_store_dword v10, %s, %s, s71 offen sc1'%(v(L0),s(sWS,4))); e('s_mov_b64 exec, -1')
    for k in (2,3,4,5): out.extend(parts[k])
    for i in range(4): e('ds_read_b32 %s, %s'%(v(GG+i),v(GG+i)))
    e('s_lshl_b32 s65, %s, 10'%s(sC)); e('s_add_u32 s65, s65, %d'%FLP)
    e('s_waitcnt lgkmcnt(0)')
    for i in range(4):
        g=GG+i
        e('v_mul_f32 %s, 0xbfb8aa3b, %s'%(v(g),v(g))); e('v_exp_f32 %s, %s'%(v(g),v(g))); e('s_nop 0')
        e('v_add_f32 %s, 1.0, %s'%(v(g),v(g))); e('v_rcp_f32 %s, %s'%(v(g),v(g)))
    if NORED:
        for i in range(2,7): st(i)
        st_flush(7,0); e('s_endpgm')
    e('s_mov_b32 s47, 0')
    def gpoll(load,cmp,slp):
        L=lab('GP'); e('s_branch %sf'%L); e(L+':')
        if slp: e('s_sleep %d'%slp)
        e(L+'f:')
        for x in load: e(x)
        e('s_add_u32 s47, s47, 1'); e('s_waitcnt vmcnt(0)')
        for x in cmp: e(x)
        e('s_cmp_gt_u32 s47, %d'%SPINMAX); e('s_cbranch_scc1 %sx'%L); e('s_cbranch_vccnz '+L); e(L+'x:')
    e('s_lshl_b32 s16, s7, 8'); e('s_add_u32 s16, s16, %d'%CNS)
    e('v_and_b32 v15, 1, v0'); e('v_mul_u32_u24 v15, 516, v15'); e('v_add_u32 v15, s16, v15')
    def pace(n):
        L=lab('PC'); e(L+':'); e('s_sleep 3'); e('ds_read_b32 v5, v15')
        e('s_add_u32 s99, s99, 1'); e('s_cmp_gt_u32 s99, 0x100000'); e('s_cbranch_scc1 K_END'); e('s_waitcnt lgkmcnt(0)')
        e('v_cmp_gt_u32 vcc, %s, v5'%(n if isinstance(n,str) else min(n,38))); e('s_cbranch_vccnz '+L)
    e('v_and_b32 v4, 7, v0'); e('v_lshlrev_b32 v4, 5, v4')
    gpoll(['buffer_load_dword v5, v4, %s, 0 offen sc1'%s(sDBG,4)],['v_cmp_gt_u32 vcc, 32, v5'],8)
    e('s_and_b32 s16, %s, %d'%(s(sC),USTG)); e('s_add_u32 s16, s16, %d'%(20+UPACE))
    pace('s16')
    e('s_mov_b32 s16, %d'%FLU)
    gpoll(['buffer_load_dwordx4 v[96:99], %s, %s, s16 offen sc1'%(v(L16),s(sWS,4)),'buffer_load_dwordx4 v[100:103], %s, %s, s16 offen offset:1024 sc1'%(v(L16),s(sWS,4))],
          ['v_min3_u32 v5, v96, v97, v98','v_min3_u32 v5, v5, v99, v100','v_min3_u32 v5, v5, v101, v102','v_min_u32 v5, v5, v103','v_cmp_eq_u32 vcc, 0, v5'],USLP)
    st(2)
    UF=16; YA=80; SP=152
    def uloads(tb,dst):
        for k in range(4):
            for u in range(2):
                e('s_mov_b32 s17, %d'%(U_OFF+(8*k+u)*12288))
                e('buffer_load_dwordx2 %s, %s, %s, s17 offen sc1'%(v(dst+4*k+2*u,2),v(UO+tb),s(sWS,4)))
    def fin(y,p,og,o,vaddr,soff):
        for tb in range(2):
            for r in range(4): e('v_fma_f32 %s, %s, %s, %s'%(v(p[tb]+r),v(og),v(p[tb]+r),v(y[tb]+r)))
        for tb in range(2):
            for h in range(2): e('v_cvt_pk_bf16_f32 %s, %s, %s'%(v(o+2*tb+h),v(p[tb]+2*h),v(p[tb]+2*h+1)))
        e('s_nop 1')
        e('v_permlane16_swap_b32 %s, %s'%(v(o),v(o+2))); e('v_permlane16_swap_b32 %s, %s'%(v(o+1),v(o+3)))
        e('buffer_store_dwordx4 %s, %s, %s, %s offen%s'%(v(o,4),v(vaddr),s(sOUT,4),soff,[' ',' sc1',' nt'][OSC]))
    for tb in range(2): uloads(tb,UF+16*tb)
    e('s_cmp_eq_u32 s7, 1'); e('s_cbranch_scc0 AX_U')
    for tb in range(2,4): uloads(tb,UF+16*tb)
    gpoll(['buffer_load_dword v5, %s, %s, s65 offen sc1'%(v(PL2),s(sWS,4))],['v_cmp_gt_u32 vcc, 1, v5'],10)
    e('s_mul_i32 s16, %s, %d'%(s(sC),8*73728)); e('s_lshl_b32 s17, %s, 10'%s(sJ)); e('s_add_u32 s16, s16, s17'); e('s_add_u32 s16, s16, 65536')
    for jj in range(8):
        e('buffer_load_dwordx4 %s, %s, %s, s16 offen sc1'%(v(80+4*jj,4),v(L16),s(sWS,4)))
        if jj<7: e('s_add_u32 s16, s16, 73728')
    for tb in range(2,4):
        for i in range(16): e('v_xor_b32 %s, %s, %s'%(v(UF+16*tb+i),v(MK+tb),v(UF+16*tb+i)))
    e('s_nop 1')
    for k in range(4):
        for tb in range(2): mfma(112+4*tb, UF+32+16*tb+4*k, GF+4*k, '0' if k==0 else None)
    e('s_waitcnt vmcnt(0)')
    for jj in range(8):
        for tb in range(2): mfma(120+4*tb, SEL+4*tb, 80+4*jj, '0' if jj==0 else None)
    for r in range(8): e('v_mul_f32 %s, %s, %s'%(v(112+r),v(GG),v(112+r)))
    e('v_sub_f32 v14, 1.0, %s'%v(GG)); e('s_lshl_b32 s16, s55, 1')
    fin((112,116),(120,124),14,248,TR,'s16')
    e('s_branch AX_U2')
    e('AX_U:')
    e('s_waitcnt vmcnt(0)')
    e('AX_U2:')
    for tb in range(2):
        for i in range(16): e('v_xor_b32 %s, %s, %s'%(v(UF+16*tb+i),v(MK+tb),v(UF+16*tb+i)))
    e('s_nop 1')
    for k in range(4):
        for tb in range(2):
            for i in range(4): mfma(YA+16*tb+4*i, UF+16*tb+4*k, GF+16*i+4*k, '0' if k==0 else None)
    st(3)
    e('s_mul_i32 s18, %s, %d'%(s(sC),8*73728)); e('s_lshl_b32 s17, s15, 13'); e('s_add_u32 s18, s18, s17'); e('s_add_u32 s18, s18, s44')
    def acc(buf,first):
        for i in range(4):
            for tb in range(2): mfma(SP+16*tb+4*i, SEL+4*tb, buf+4*i, '0' if first else None)
    BUF=lambda i: 16+16*(i%4)
    e('s_mov_b32 s66, 0')
    def addr(i,so,sm):
        e('s_sub_u32 %s, %s, %d'%(so,s(sJ),i)); e('s_and_b32 %s, %s, 7'%(so,so))
        e('s_lshl_b32 %s, %s, 1'%(sm,so)); e('s_lshl_b32 %s, 3, %s'%(sm,sm))
        e('s_mul_i32 %s, %s, 73728'%(so,so)); e('s_add_u32 %s, %s, s18'%(so,so))
    def pollbits(i,sm,sx,slp):
        e('s_branch AX_F%d'%i); e('AX_R%d:'%i)
        if slp: e('s_sleep %d'%slp)
        e('AX_F%d:'%i)
        e('buffer_load_dword v5, %s, %s, s65 offen sc1'%(v(PL1),s(sWS,4))); e('s_add_u32 s47, s47, 1'); e('s_waitcnt vmcnt(0)')
        e('v_cmp_le_u32 vcc, v254, v5'); e('s_cmp_gt_u32 s47, %d'%SPINMAX); e('s_cbranch_scc1 AX_G%d'%i)
        e('s_mov_b32 s66, vcc_lo'); e('s_mov_b32 exec_lo, %s'%sx); e('s_mov_b32 exec_hi, 0')
        e('s_and_b32 s19, s66, %s'%sm); e('s_cmp_eq_u32 s19, %s'%sm); e('s_cbranch_scc0 AX_R%d'%i)
    def loads(i,so):
        for u in range(4): e('buffer_load_dwordx4 %s, %s, %s, %s offen sc1'%(v(BUF(i)+4*u,4),v(PO+u),s(sWS,4),so))
    addr(7,'s48','s49')
    e('s_add_u32 s16, s44, %d'%QH)
    for u in range(4): e('v_add_u32 %s, s16, %s'%(v(128+u),v(PO+u)))
    for i in range(1,7):
        addr(i,'s16','s17')
        e('s_and_b32 s19, s66, s17'); e('s_cmp_eq_u32 s19, s17'); e('s_cbranch_scc1 AX_G%d'%i)
        pace(max(20+2*(i+2)+PPACE-FEARLY, LATE if i>1 else 0))
        if i==6: e('s_or_b32 s50, s17, s49'); e('s_mov_b32 exec_lo, s50'); e('s_mov_b32 exec_hi, 0')
        pollbits(i,'s17','s50' if i==6 else 's17', 0 if i==6 else PSLP)
        e('AX_G%d:'%i)
        e('s_mov_b64 exec, -1')
        loads(i,'s16')
        if 3<=i<=6: e('s_waitcnt vmcnt(8)'); acc(BUF(i-2), i==3)
        if i==1:
            for sl in range(4):
                for tb in range(2):
                    for r in range(4): e('v_mul_f32 %s, %s, %s'%(v(YA+16*tb+4*sl+r),v(GG+sl),v(YA+16*tb+4*sl+r)))
                e('v_sub_f32 %s, 1.0, %s'%(v(GG+sl),v(GG+sl)))
    e('s_and_b32 s19, s66, s49'); e('s_cmp_eq_u32 s19, s49'); e('s_cbranch_scc1 AX_G7')
    e('s_mov_b32 exec_lo, s49'); e('s_mov_b32 exec_hi, 0')
    pollbits(7,'s49','s49',0)
    e('AX_G7:')
    e('s_mov_b64 exec, -1')
    loads(7,'s48')
    e('s_waitcnt vmcnt(8)'); acc(BUF(5),False)
    lds_wait(15,5,'39')
    for u in range(4): e('ds_read_b128 %s, %s'%(v(BUF(4)+4*u,4),v(128+u)))
    e('s_waitcnt lgkmcnt(0)'); acc(BUF(4),False)
    st(4)
    e('s_waitcnt vmcnt(4)'); acc(BUF(6),False)
    st(5)
    e('s_lshl_b32 s16, s54, 1')
    for sl in range(4):
        e('s_waitcnt vmcnt(%d)'%(3-sl))
        for tb in range(2): mfma(SP+16*tb+4*sl, SEL+4*tb, BUF(7)+4*sl)
    e('s_nop 3')
    for sl in range(4): fin((YA+4*sl,YA+16+4*sl),(SP+4*sl,SP+16+4*sl),GG+sl,232+4*sl,TR+sl,'s16')
    if STAMP:
        e('s_waitcnt vmcnt(0)'); st(6); st_flush(7,0)
        if TRACE: trace_flush(252,253)
    if DIAG:
        e('s_waitcnt vmcnt(0)'); e('s_memrealtime s[76:77]'); e('s_waitcnt lgkmcnt(0)')
        if DIAG==1: e('s_mov_b32 s74, s76')
        e('s_sub_u32 s16, s74, s72')
        if DIAG in (2,6): e('s_lshl_b32 s16, s16, 2')
        if DIAG==4: e('s_lshl_b32 s16, s16, 3')
        e('DG:'); e('s_memrealtime s[78:79]'); e('s_waitcnt lgkmcnt(0)'); e('s_sub_u32 s17, s78, s76'); e('s_cmp_lt_u32 s17, s16'); e('s_cbranch_scc1 DG')
    e('s_endpgm')
    for n,k in enumerate(later):
        e('AX_SL%d:'%n); out.extend(parts[k]); e('s_branch AX_SR')

def main():
    global INMAIN
    e('K_MAIN:')
    if IW:
        e('s_getpc_b64 s[16:17]'); e('IWP:')
        e('s_sub_u32 s16, s16, IWP-%s'%NAME); e('s_subb_u32 s17, s17, 0')
        e('s_lshl_b32 s18, %s, 2'%s(sC)); e('s_add_u32 s18, s18, %s'%s(sWV)); e('s_lshl_b32 s18, s18, 8')
        e('v_lshlrev_b32 v3, 7, v0'); e('v_add_u32 v3, s18, v3'); e('v_min_u32 v3, K_END-%s, v3'%NAME)
        e('s_mov_b64 exec, 3'); e('global_load_dword v6, v3, s[16:17]'); e('s_mov_b64 exec, -1')
    ACC=96; AF=16; XB=56
    T=200
    e('v_lshlrev_b32 v7, 2, v0'); e('s_lshl_b32 s16, %s, 8'%s(sWV)); e('s_add_u32 s16, s16, %d'%LND); e('v_add_u32 v3, s16, v7'); e('v_mov_b32 v8, 0')
    for i in range(3): e('ds_write_b32 v3, v8 offset:%d'%(1024*i))
    e('v_add_u32 v13, 1024, v3')
    e('v_and_b32 v3, 1, v0'); e('v_mul_u32_u24 v3, 260, v3'); e('v_add_u32 v14, %d, v3'%LND)
    e('v_mov_b32 v5, 0')
    e('v_and_b32 v200, 15, v0'); e('v_lshrrev_b32 v201, 4, v0')
    e('s_movk_i32 s17, 1152')
    e('v_lshrrev_b32 v202, 2, v200'); e('v_and_b32 v203, 3, v0')
    e('v_lshl_add_u32 v204, v201, 3, v202'); e('v_mul_u32_u24 v204, s17, v204'); e('v_lshl_add_u32 v204, v203, 3, v204')
    e('v_lshrrev_b32 v205, 1, v202'); e('v_and_b32 v7, 1, v201'); e('v_lshl_add_u32 v205, v7, 1, v205')
    e('s_mul_i32 s18, %s, %d'%(s(sWV),NA)); e('s_cmp_eq_u32 %s, 3'%s(sWV)); e('s_cselect_b32 s18, %d, s18'%(36-NB))
    for i in range(4):
        e('s_add_u32 s16, s18, %d'%i); e('s_and_b32 s17, s16, 3'); e('s_lshr_b32 s16, s16, 2'); e('s_lshl_b32 s16, s16, 7')
        e('v_xor_b32 v7, s17, v205'); e('v_lshl_add_u32 v7, v7, 5, v204'); e('v_add_u32 %s, s16, v7'%v(88+i)); e('v_mov_b32 %s, %s'%(v(92+i),v(88+i)))
    e('v_lshrrev_b32 v7, 1, v200'); e('v_xor_b32 v7, v7, v201'); e('v_lshlrev_b32 v7, 4, v7')
    e('v_lshl_add_u32 v1, v200, 7, v7'); e('v_add_u32 v1, %d, v1'%XW0); e('s_lshl_b32 s16, s98, 6'); e('v_xor_b32 v1, s16, v1'); e('v_xor_b32 v2, 64, v1')
    e('v_mov_b32 v3, v1'); e('v_mov_b32 v4, v2')
    e('v_lshlrev_b32 v12, 4, v0')
    e('s_lshr_b32 s16, %s, 1'%s(sWV)); e('s_lshl_b32 s16, s16, 11'); e('s_add_u32 s16, s16, %d'%HB); e('v_add_u32 v9, s16, v12')
    e('v_lshl_add_u32 v204, v201, 2, v202'); e('v_bfe_u32 v205, v204, 1, 2'); e('v_lshlrev_b32 v204, 7, v204'); e('v_lshl_add_u32 v204, v203, 3, v204')
    e('s_and_b32 s16, %s, 1'%s(sWV)); e('s_lshl_b32 s16, s16, 1')
    for tb in range(2):
        e('s_add_u32 s17, s16, %d'%tb); e('v_xor_b32 v7, s17, v205'); e('v_lshl_add_u32 %s, v7, 5, v204'%v(10+tb))
    for i in range(16*NB): e('v_mov_b32 %s, 0'%v(ACC+i))
    for i in range(4*(NB-3),4*NA): e('v_mov_b32 %s, 0'%v(AF+i))
    for i in range(16): e('v_mov_b32 %s, 0'%v(XB+16+i))
    e('s_waitcnt lgkmcnt(0)')
    srd(sWS,62,WS_BYTES); srd(sDBG,60,256)
    e('s_lshl_b32 s16, s18, 11'); e('s_add_u32 s16, s16, %d'%HB); e('v_add_u32 v8, s16, v12')
    e('s_mov_b32 s64, 0'); e('s_mov_b32 s65, 0'); e('s_mov_b32 s66, 1')
    e('s_cmp_eq_u32 %s, 3'%s(sWV)); e('s_cselect_b32 s19, 3, 0'); e('v_mov_b32 v15, 1'); e('s_lshl_b32 s18, %s, 5'%s(sJ))
    INMAIN=True
    if MPRIO: e('s_setprio 3')
    spins=[]
    def check(seq,thr,vaddr=109):
        L=lab('SP'); R=L+'R'
        seq.append(('need',['F'])); seq.append(('i','v_cmp_gt_u32 vcc, %s, v110'%thr)); seq.append(('i','s_cbranch_vccnz '+L)); seq.append(('i',R+':'))
        spins.append((L,R,thr,vaddr))
    def conv(u,sg):
        a=ACC+32*u+4*sg; b=a+16
        if RM==1:
            L=[]
            for d,x in ((a,a),(a+1,a+2),(a+2,b),(a+3,b+2)):
                L+=['v_max_f32 %s, 0, %s'%(v(x),v(x)),'v_max_f32 %s, 0, %s'%(v(x+1),v(x+1)),'v_cvt_pk_bf16_f32 %s, %s, %s'%(v(d),v(x),v(x+1))]
            return L+['ds_write_b128 v8, %s offset:%d'%(v(a,4),u*4096+sg*1024)]
        if RM==2:
            return ['v_cvt_pk_bf16_f32 %s, %s, %s'%(v(d),v(x),v(x+1)) for d,x in ((a,a),(a+1,a+2),(a+2,b),(a+3,b+2))]+['s_nop 0','ds_write_b128 v8, %s offset:%d'%(v(a,4),u*4096+sg*1024)]
        if RM==3:
            return ['v_cvt_pk_bf16_f32 %s, %s, %s'%(v(d),v(x),v(x+1)) for d,x in ((a,a),(a+1,a+2),(a+2,b),(a+3,b+2))]+['v_pk_max_i16 %s, %s, 0'%(v(a+k),v(a+k)) for k in range(4)]+['s_nop 0']
        return ['v_cvt_pk_bf16_f32 %s, %s, %s'%(v(a),v(a),v(a+1)),'v_cvt_pk_bf16_f32 %s, %s, %s'%(v(a+1),v(a+2),v(a+3)),
                'v_cvt_pk_bf16_f32 %s, %s, %s'%(v(a+2),v(b),v(b+1)),'v_cvt_pk_bf16_f32 %s, %s, %s'%(v(a+3),v(b+2),v(b+3))]+['v_pk_max_i16 %s, %s, 0'%(v(a+k),v(a+k)) for k in range(4)]+[
                'ds_write_b128 v8, %s offset:%d'%(v(a,4),u*4096+sg*1024)]
    def step1(NT,p,last=False):
        seq=[('i','s_barrier')]
        R=[('A',0,0),('A',0,1)]+[('X',p,sg) for sg in range(4)]+[('A',t,r) for t in range(1,NT) for r in range(2)]
        extra=[]
        if not last:
            extra=['s_add_u32 s64, s64, %d'%SLOT,'s_cmp_eq_u32 s64, %d'%(3*SLOT),'s_cselect_b32 s64, 0, s64','s_add_u32 s66, s66, 1']+['v_add_u32 %s, s64, %s'%(v(92+i),v(88+i)) for i in range(4)]
            if p==1: extra+=['s_add_u32 s65, s65, 8192','s_and_b32 s65, s65, 32767','v_add_u32 v3, s65, v1','v_add_u32 v4, s65, v2']
            else: extra+=['s_cmp_eq_u32 s66, 18']
        cv=[]; nq=0
        ng=4*(NT+3) if last else 4*NT
        eb=len(R)+5
        def pop(n,ok):
            for _ in range(n):
                if cv and (ok or not cv[0].startswith('ds_')):
                    x=cv.pop(0)
                    seq.append(('lds','H',x) if x.startswith('ds_') else ('i',x))
        for g in range(ng):
            i,sg=divmod(g,4)
            if g<len(R):
                k,a,b=R[g]
                if k=='A': seq.append(('lds',R[g],'ds_read_b64_tr_b16 %s, %s offset:%d'%(v(AF+4*a+2*b,2),v(92+a%4),128*(a//4)+4608*b)))
                else: seq.append(('lds',R[g],'ds_read_b128 %s, %s offset:%d'%(v(XB+16*p+4*b,4),v(3+p),2048*b)))
            elif extra: seq.append(('i',extra.pop(0)))
            if last:
                if g==eb: seq.append(('need',[('A',NT-1,1)])); seq.append(('i','s_barrier'))
                if sg==0 and i>=6 and i%2==0:
                    cv+=[x for q in range(4) for x in conv(nq,q)]; nq+=1
                pop(CPG,g>=eb)
            if i<3: t,xb=NT-3+i,1-p
            else: t,xb=i-3,p
            seq.append(('need',[('A',t,0),('A',t,1),('X',xb,sg)]))
            seq.append(('i',mf(ACC+16*t+4*sg, AF+4*t, XB+16*xb+4*sg)))
        assert not extra
        if not last: seq.append(('need',[('A',NT-1,1)]))
        if last:
            assert len(cv)>=9
            while nq<NT//2:
                cv+=[x for q in range(4) for x in conv(nq,q)]; nq+=1
            pop(len(cv),True)
        return seq
    def phase1(NT,nm):
        s0=step1(NT,0); s1=step1(NT,1)
        s0e=s0
        if STAMP: s0e=s0[:1]+[('i','s_cmp_eq_u32 s66, 1'),('i','s_cbranch_scc0 %sNS'%nm),('i','s_memrealtime s[74:75]'),('i','s_memtime s[88:89]'),('i','s_waitcnt lgkmcnt(0)'),('i',nm+'NS:')]+s0[1:]
        e(nm+'L:')
        stream(s0e+[('i','s_cbranch_scc1 %sX'%nm)]+s1+([('i','s_cmp_eq_u32 s66, s19'),('i','s_cbranch_scc0 %sL'%nm),('i','s_mov_b64 exec, 1'),('i','buffer_atomic_add v15, v5, %s, s18 offen sc1'%s(sDBG,4)),('i','s_mov_b64 exec, -1')] if NT==NB else [])+[('i','s_branch %sL'%nm)],True)
        e(nm+'X:')
        stream(step1(NT,1,True),False,pre=s1+s0)
    e('s_cmp_ge_u32 %s, 2'%s(sWV)); e('s_cbranch_scc1 MBL')
    for i in range(16*NB,16*NA): e('v_mov_b32 %s, 0'%v(ACC+i))
    phase1(NA,'MA')
    e('s_branch M1_J')
    phase1(NB,'MB')
    e('M1_J:')
    e('s_waitcnt lgkmcnt(0)')
    st(2); stc(9)
    e('v_mov_b32 v100, v9'); e('v_add_u32 v101, 36864, v9')
    e('s_barrier')
    H=112
    for k in range(18):
        for sg in range(2): e('ds_read_b128 %s, %s offset:%d'%(v(H+8*k+4*sg,4),v(100+k//9),(k%9)*4096+sg*1024))
        if E3A and k==12: e('s_waitcnt lgkmcnt(8)'); e('s_barrier')
    e('v_mov_b32 v102, v10'); e('v_mov_b32 v103, v11'); e('v_add_u32 v104, %d, v10'%SLOT); e('v_add_u32 v105, %d, v11'%SLOT)
    e('v_mov_b32 v106, v12'); e('v_mov_b32 v108, v13'); e('v_mov_b32 v109, v14')
    if TRACE: e('v_mov_b32 v1, 0'); e('v_mov_b32 v3, 0')
    e('v_mov_b32 v107, 20')
    e('ds_read_b32 v110, v109')
    WR=16; PA=64; QA=80; PK=8
    e('s_mov_b32 s64, %d'%(2*SLOT)); e('s_mov_b32 s65, 0'); e('s_mov_b32 s66, 19')
    e('s_mul_i32 s60, s2, 73728')
    e('s_lshl_b32 s61, %s, 11'%s(sWV)); e('s_add_u32 s60, s60, s61')
    e('s_mov_b32 s67, %d'%OOB)
    e('s_lshl_b32 s19, s2, 7'); e('s_lshl_b32 s61, %s, 2'%s(sWV)); e('s_add_u32 s19, s19, s61'); e('s_add_u32 s19, s19, %d'%FLP)
    e('s_mov_b32 s63, %d'%(FMASK<<1))
    e('v_mov_b32 v6, 0'); e('s_and_b32 s62, %s, %d'%(s(sC),NSITE-1))
    e('s_waitcnt lgkmcnt(0)'); e('s_barrier')
    st(3); stc(10)
    def mm2(kg,u):
        tb,sg=divmod(u,2)
        a=WR+8*(kg%6)+4*tb; b=H+8*kg+4*sg
        if kg<9: return mf(PA+8*tb+4*sg,a,b,'0' if kg==0 else None)
        return mf(QA+8*tb+4*sg,a,b,PA+8*tb+4*sg if kg==9 else None)
    def packq(final=False):
        L=[]
        for sg in range(2):
            for tb in range(2):
                for h in range(2):
                    q=QA+8*tb+4*sg+2*h
                    L.append('v_cvt_pk_bf16_f32 %s, %s, %s'%(v(PK+4*sg+2*tb+h),v(q),v(q+1)))
            if final: L.append('ds_write_b128 v7, %s offset:%d'%(v(PK+4*sg,4),1024*sg))
            else: L.append('buffer_store_dwordx4 %s, v106, %s, s67 offen offset:%d sc1'%(v(PK+4*sg,4),s(sWS,4),1024*sg))
        return L
    body=[]
    for hc in range(2):
        check(body,'s66')
        R=[(9*hc+k,tb,r) for k in range(9) for tb in range(2) for r in range(2)]
        ex={}
        if hc==0:
            cv=[x for x in packq() if x.startswith('v_cvt')]
            for i,x in enumerate(cv): ex[16+i]=[x]
            ex[2]=['v_add_u32 v104, s64, v104']; ex[3]=['v_add_u32 v105, s64, v105']; ex[4]=['s_sub_u32 s64, 0, s64']; ex[5]=['s_add_u32 s66, s66, 1']

        else:
            L=['v_add_u32 v102, s64, v102','v_add_u32 v103, s64, v103','s_add_u32 s66, s66, 1',
               's_add_u32 s61, s65, s15','s_and_b32 s61, s61, 7','s_cmp_eq_u32 s65, 0','s_cselect_b32 s61, 8, s61',
               's_lshl_b32 s61, s61, 13']
            for i,x in enumerate(L): ex[2+i]=[x]
            ex[26]=['s_add_u32 s67, s60, s61']; ex[30]=['s_cmp_eq_u32 s65, 8','s_cselect_b32 s62, 0, s62']
            ex[27]=['v_mov_b32 v6, s65']; ex[28]=['s_add_u32 s65, s65, 1']; ex[33]=['s_cmp_lt_u32 s65, 9']
            if FEARLY: ex[32]=['s_bitcmp1_b32 s63, s65','s_cbranch_scc1 M2_FL','M2_FR:']
        sites=[(0,25),(1,1),(1,13),(1,25)][:NSITE]
        for n,(h,g) in enumerate(sites):
            if h==hc:
                ex.setdefault(g,[]); ex[g]=ex[g]+['s_cmp_eq_u32 s62, %d'%n,'s_cbranch_scc1 M2_ST%d'%n,'M2_SR%d:'%n]
        for g in range(36):
            i,u=divmod(g,4)
            k,tb,r=R[g]
            body.append(('lds',R[g],'ds_read_b64_tr_b16 %s, %s offset:%d'%(v(WR+8*(k%6)+4*tb+2*r,2),v(102+2*hc+tb),(k%9)*4096+r*2048)))
            if g==30: body.append(('lds','F','ds_read_b32 v110, v109'))
            if g==34: body.append(('i','v_add_u32 v107, 1, v107'))
            if g==35: body.append(('lds','C','ds_write_b32 v108, v107'))
            for x in ex.get(g,[]): body.append(('i',x))
            kg=(9*hc+i-3)%18
            body.append(('need',[(kg,u//2,0),(kg,u//2,1)]))
            body.append(('i',mm2(kg,u)))
    e('v_add_u32 v104, s64, v104'); e('v_add_u32 v105, s64, v105'); e('s_sub_u32 s64, 0, s64')
    e('M2_L:')
    stream(body,True)
    e('s_cbranch_scc1 M2_L')
    e('s_lshl_b32 s61, %s, 11'%s(sWV)); e('s_add_u32 s61, s61, %d'%QH); e('v_add_u32 v7, s61, v106')
    e('s_waitcnt lgkmcnt(0)')
    for kg in (15,16,17):
        for u in range(4): e(mm2(kg,u))
    if not FEARLY: e('s_waitcnt vmcnt(0)'); e('s_mov_b64 exec, 1'); e('buffer_store_dword v6, v5, %s, s19 offen sc1'%s(sWS,4)); e('s_mov_b64 exec, -1')
    e('s_nop 7')
    for x in packq(True): e(x)
    e('v_add_u32 v107, 1, v107'); e('ds_write_b32 v108, v107')
    INMAIN=False
    if STAMP:
        st(4); stc(11); st_flush(12,0)
        if TRACE: trace_flush(1,3)
    e('s_waitcnt lgkmcnt(0)')
    e('s_endpgm')
    e('M2_FL:'); e('s_waitcnt vmcnt(0)'); e('s_mov_b64 exec, 1'); e('buffer_store_dword v6, v5, %s, s19 offen sc1'%s(sWS,4)); e('s_mov_b64 exec, -1'); e('s_branch M2_FR')
    for n in range(NSITE):
        e('M2_ST%d:'%n)
        if not FEARLY: e('s_waitcnt vmcnt(0)'); e('s_mov_b64 exec, 1'); e('buffer_store_dword v6, v5, %s, s19 offen sc1'%s(sWS,4)); e('s_mov_b64 exec, -1')
        for x in packq():
            if x.startswith('buffer') and not NOST: e(x)
        e('s_branch M2_SR%d'%n)
    for (L,R,thr,va) in spins:
        e(L+':')
        tr=TRACE and thr=='s66'
        if tr:
            e('s_memtime s[96:97]'); e('s_waitcnt lgkmcnt(0)'); e('s_mov_b32 m0, s66'); e('s_nop 3'); e('v_writelane_b32 v1, s96, m0'); L=L+'b'; e(L+':')
        e('ds_read_b32 v110, %s'%v(va))
        e('s_add_u32 s99, s99, 1'); e('s_cmp_gt_u32 s99, 0x100000'); e('s_cbranch_scc1 K_END'); e('s_waitcnt lgkmcnt(0)')
        e('v_cmp_gt_u32 vcc, %s, v110'%thr); e('s_cbranch_vccnz '+L)
        if tr: e('s_memtime s[96:97]'); e('s_waitcnt lgkmcnt(0)'); e('v_writelane_b32 v3, s96, m0')
        e('s_branch '+R)

assert all((L*57)>>9==L//9 for L in range(288))
assert all((L*57)>>11==L//36 for L in range(289))
out.append('; @launch grid=(256,1,1) block=(512,1,1) lds=163840')
out.append('.amdgcn_target "amdgcn-amd-amdhsa--gfx950"')
out.append('.text'); out.append('.globl '+NAME)
kernel()
out.append('.section .rodata,"a"'); out.append('.p2align 6')
out.append('.amdhsa_kernel '+NAME)
for l in ['next_free_vgpr 256','next_free_sgpr 100','accum_offset 256','group_segment_fixed_size 0','kernarg_size 96','user_sgpr_count 2','user_sgpr_kernarg_segment_ptr 1','system_sgpr_workgroup_id_x 1']:
    out.append('  .amdhsa_'+l)
out.append('.end_amdhsa_kernel')
print('\n'.join(out))
```

```python
import sys, struct
A=sys.argv
STAMP='--stamp' in A; NODMA='--nodma' in A; NOMFMA='--nomfma' in A; NOREAD='--noread' in A; NOPRIO='--noprio' in A; NOTX='--notx' in A; NORED='--nored' in A; NOST='--nost' in A; NOU='--nou' in A; NOXW='--noxw' in A; TRACE='--trace' in A; MPRIO='--mprio' in A; SLP='--slp' in A; opt=lambda n,d: int([x for x in A if x.startswith('--'+n+'=')][0].split('=')[1]) if any(x.startswith('--'+n+'=') for x in A) else d
PRE=opt('pre',2); AP2=opt('ap2',0); USLP=opt('uslp',30); PSLP=opt('pslp',12); UPACE=opt('upace',8); PPACE=opt('ppace',1); LP=opt('lp',3); AP=opt('ap',2); LP2=opt('lp2',0); LP1=opt('lp1',3); EARLY=opt('early',0); RM=0; XUP=opt('xup',0); CROT=opt('crot',1); FMASK=opt('fmask',0x1c8); JROT=opt('jrot',1); PK=0; TAG=0; FEARLY=opt('fearly',1); T2=0; CT=opt('ct',0); IW=opt('iw',1); LAY=opt('lay',1); DIAG=opt('diag',0); NA=10; NB=8; CPG=opt('cpg',2); PUB1=opt('pub1',12); OSC=opt('osc',0); LATE=opt('late',35); USTG=opt('ustg',0); NSITE=opt('nsite',1); XSTG=opt('xstg',2); E3A=opt('e3a',0)
DBGT='--dbgt' in A; NOSW='--nosw' in A; WSPLIT=0 if '--nowsplit' in A else 1
NAME='gated_mix__spectral_fnet__dense_activation_relu__prompt_kernel'
out=[]; INMAIN=False
def e(s=''):
    if NODMA and s.endswith(' lds') and ('s[20:23]' in s or 's[24:27]' in s): return
    if (NOPRIO or MPRIO) and s.startswith('s_setprio') and not INMAIN: return
    if INMAIN and NOST and s.startswith('buffer_store_dword'): return
    if NOU and s.startswith('buffer_load_dword v') and 's17 offen sc1' in s: return
    if NOXW and s.endswith(' lds') and ('s[8:11]' in s or 's[12:15]' in s): return
    if INMAIN and NOMFMA and s.startswith('v_mfma'): return
    out.append('    '+s if s and not s.endswith(':') else s)
def v(n,c=1): return 'v%d'%n if c==1 else 'v[%d:%d]'%(n,n+c-1)
def s(n,c=1): return 's%d'%n if c==1 else 's[%d:%d]'%(n,n+c-1)
def f2u(x): return struct.unpack('<I',struct.pack('<f',float(x)))[0]

SLOT=36864; XW0=110592; XWS=18432; HB=73728
MISC=147456; QH=MISC; LND=MISC+8192; CNS=LND+4*256; GL=CNS+6*256
GWL=LND+3072; MX=GWL+1152
U_OFF=0x1400000; FLP=0x1800000; FLU=0x1810000; ST_OFF=0x1900000; WS_BYTES=0x1B00000
BIG=0x7fffffff; OOB=0x40000000
sX,sWH,sW1,sW2,sGW,sWS,sOUT,sDBG=8,12,20,24,28,32,36,40
sJ,sC,sWV,sROT=3,4,5,6
SPINMAX=0x8000

def srd(d,base,nbytes):
    e('s_mov_b32 %s, %s'%(s(d),s(base))); e('s_mov_b32 %s, %s'%(s(d+1),s(base+1)))
    e('s_mov_b32 %s, %d'%(s(d+2),nbytes)); e('s_mov_b32 %s, 0x20000'%s(d+3))
def mf(d,a,b,c=None):
    return 'v_mfma_f32_16x16x32_bf16 %s, %s, %s, %s'%(v(d,4),v(a,4),v(b,4), v(d,4) if c is None else (c if isinstance(c,str) else v(c,4)))
def mfma(*a): e(mf(*a))
def st(slot):
    if STAMP: e('s_memrealtime %s'%s(72+2*slot,2))
def stc(slot):
    if STAMP: e('s_memtime %s'%s(72+2*slot,2))
def st_flush(n,base_row):
    if not STAMP: return
    e('s_waitcnt lgkmcnt(0)')
    e('s_lshl_b32 s68, s2, 3'); e('s_add_u32 s68, s68, %s'%s(sWV)); e('s_lshl_b32 s68, s68, 7'); e('s_add_u32 s68, s68, %d'%ST_OFF)
    e('v_mov_b32 v2, 0')
    for i in range(n):
        e('v_mov_b32 v4, %s'%s(72+2*i)); e('v_mov_b32 v5, %s'%s(73+2*i))
        e('buffer_store_dwordx2 v[4:5], v2, %s, s68 offen offset:%d'%(s(sWS,4),8*i)); e('s_nop 1')
def trace_flush(a,b):
    e('s_lshl_b32 s68, s2, 3'); e('s_add_u32 s68, s68, %s'%s(sWV)); e('s_lshl_b32 s68, s68, 9'); e('s_add_u32 s68, s68, %d'%(ST_OFF+0x40000))
    e('v_lshlrev_b32 v2, 2, v0')
    e('buffer_store_dword %s, v2, %s, s68 offen'%(v(a),s(sWS,4))); e('buffer_store_dword %s, v2, %s, s68 offen offset:256'%(v(b),s(sWS,4)))
_lab=[0]
def lab(p): _lab[0]+=1; return '%s%d'%(p,_lab[0])
def lds_wait(vaddr,vtmp,thr):
    L=lab('W')
    e(L+':')
    if SLP and not INMAIN: e('s_sleep 2')
    e('ds_read_b32 %s, %s'%(v(vtmp),v(vaddr)))
    e('s_add_u32 s99, s99, 1'); e('s_cmp_gt_u32 s99, 0x100000'); e('s_cbranch_scc1 K_END'); e('s_waitcnt lgkmcnt(0)')
    e('v_cmp_gt_u32 vcc, %s, %s'%(thr,v(vtmp))); e('s_cbranch_vccnz '+L)

def stream(seq, cyclic, pre=None):
    hist=[]; done=0
    def run(sq,emit):
        nonlocal done
        for it in sq:
            if it[0]=='lds':
                hist.append(it[1])
                if emit and not (NOREAD and it[2].startswith('ds_read_b64_tr')): e(it[2])
            elif it[0]=='need':
                idx=-1
                for t in it[1]:
                    k=[i for i,x in enumerate(hist) if x==t]
                    if k: idx=max(idx,k[-1])
                    else: assert not emit, t
                if idx+1>done:
                    n=min(len(hist)-1-idx,15)
                    if emit: e('s_waitcnt lgkmcnt(%d)'%(0 if NOREAD else n))
                    done=len(hist)-n
            elif emit: e(it[1])
    if cyclic: run(seq,False)
    if pre is not None: run(pre,False)
    run(seq,True)

def kernel():
    e('.p2align 8'); e('.type %s,@function'%NAME); e(NAME+':')
    e('s_cmp_ge_u32 s2, 256'); e('s_cbranch_scc1 K_END')
    st(0)
    if DBGT or DIAG: e('s_memrealtime s[72:73]')
    e('s_load_dwordx2 s[44:45], s[0:1], 0')
    e('s_load_dwordx4 s[48:51], s[0:1], 24')
    e('s_load_dwordx4 s[52:55], s[0:1], 48')
    e('s_load_dwordx8 s[56:63], s[0:1], 64')
    if IW:
        e('s_getpc_b64 s[16:17]'); e('IWP:')
        e('s_sub_u32 s16, s16, IWP-%s'%NAME); e('s_subb_u32 s17, s17, 0')
        e('s_andn2_b32 s18, s2, 7'); e('s_lshl_b32 s18, s18, 7')
        e('v_lshl_add_u32 v3, v0, 1, s18'); e('v_min_u32 v3, K_END-%s, v3'%NAME)
        e('s_mov_b64 exec, 1'); e('global_load_dword v15, v3, s[16:17]'); e('s_mov_b64 exec, -1')
    e('s_mov_b32 s99, 0')
    e('v_lshrrev_b32 v1, 6, v0')
    e('s_and_b32 %s, s2, 7'%s(sJ)); e('s_lshr_b32 %s, s2, 3'%s(sC))
    e('v_readfirstlane_b32 %s, v1'%s(sWV))
    e('v_and_b32 v0, 63, v0')
    e('s_mul_i32 s6, %s, 57'%s(sC)); e('s_lshr_b32 s6, s6, 9'); e('s_and_b32 s98, s6, %d'%(0 if NOSW else 1)); e('s_mul_i32 s6, s6, 9'); e('s_sub_u32 s6, %s, s6'%s(sC))
    if JROT: e('s_add_u32 s6, s6, %s'%s(sJ)); e('s_sub_u32 s7, s6, 9'); e('s_cmp_ge_u32 s6, 9'); e('s_cselect_b32 s6, s7, s6')
    e('s_add_u32 s15, %s, %s'%(s(sJ),s(sC) if CROT else '0')); e('s_and_b32 s15, s15, 7')
    e('s_cmp_ge_u32 %s, 6'%s(sWV)); e('s_cbranch_scc1 K_AUX')
    e('s_cmp_ge_u32 %s, 4'%s(sWV)); e('s_cbranch_scc0 K_MAIN')
    loader(); aux()
    global out
    tail=[]
    if LAY:
        k=out.index('AX_D:'); tail=out[k:]; del out[k:]
    main()
    out.extend(tail)
    e('K_END:'); e('s_endpgm')

def loader():
    e('s_setprio %d'%LP)
    e('s_sub_u32 s7, %s, 4'%s(sWV))
    e('v_lshrrev_b32 v1, 3, v0'); e('v_and_b32 v2, 7, v0')
    e('v_lshrrev_b32 v4, 1, v2')
    e('v_and_b32 v5, 1, v2'); e('v_lshlrev_b32 v5, 4, v5')
    e('s_movk_i32 s16, %d'%(9216-1152))
    for p in range(9):
        e('v_add_u32 v6, %d, v1'%(8*p))
        e('v_mul_u32_u24 v7, 57, v6'); e('v_lshrrev_b32 v7, 9, v7')
        e('v_bfe_u32 v9, v7, 1, 1'); e('v_xor_b32 v9, v9, v4')
        e('v_lshl_add_u32 v6, v6, 7, v5')
        e('v_mad_u32_u24 v6, v7, s16, v6')
        e('v_lshl_add_u32 v6, v9, 5, v6')
        e('v_xor_b32 v7, 64, v6')
        e('v_subrev_u32 %s, %d, v6'%(v(16+p),(p%4)*1024))
        e('v_add_u32 %s, %d, v7'%(v(25+p),8*9216-((p+9)%4)*1024))
    e('v_lshrrev_b32 v6, 1, v1'); e('v_and_b32 v6, 3, v6'); e('v_lshlrev_b32 v6, 1, v6'); e('v_xor_b32 v6, v6, v2')
    e('s_movk_i32 s69, 1152'); e('v_mul_u32_u24 v7, s69, v1'); e('v_lshl_add_u32 v36, v6, 4, v7')
    for i in range(1,4): e('v_add_u32 %s, %d, v36'%(v(36+i),i*8192))
    e('s_mul_i32 s64, s7, 18432')
    e('s_mul_i32 s17, %s, 1152'%s(sJ)); e('s_mul_i32 s18, s7, %d'%(16*9216)); e('s_add_u32 s17, s17, s18')
    e('s_lshl_b32 s18, s6, 1')
    e('s_xor_b32 s66, s18, s98'); e('s_mul_i32 s66, s66, %d'%(32*9216)); e('s_add_u32 s66, s66, s17')
    e('s_mov_b32 s67, s64')
    e('s_mov_b32 s68, 0'); e('s_mov_b32 s69, -2')
    e('s_mul_i32 s70, %s, 576'%s(sJ)); e('s_mul_i32 s71, s7, 144'); e('s_add_u32 s70, s70, s71'); e('s_mul_i32 s70, s70, 1152')
    e('s_lshl_b32 s19, s7, 8'); e('s_add_u32 s19, s19, %d'%LND)
    e('v_lshlrev_b32 v11, 2, v0'); e('v_add_u32 v11, s19, v11'); e('v_mov_b32 v10, 0'); e('v_mov_b32 v13, 0'); e('v_mov_b32 v40, 0'); e('v_mov_b32 v41, 0')
    e('v_and_b32 v12, 3, v0'); e('v_mul_u32_u24 v12, 260, v12'); e('v_add_u32 v12, %d, v12'%CNS)
    e('s_waitcnt lgkmcnt(0)')
    srd(sW1,52,5308416); srd(sW2,54,5308416)
    if STAMP: srd(sWS,62,WS_BYTES)
    PUB=12
    def dma(ph,p):
        if p%4==0 and p:
            e('s_add_u32 m0, s67, %d'%(p*1024))
            if ph==2: e('s_add_u32 s66, s66, %d'%(32*1152))
            else: e('s_nop 0')
        if ph==1: e('buffer_load_dwordx4 %s, %s, s66 offen offset:%d lds'%(v(16+p),s(sW1,4),(p%4)*1024))
        else: e('buffer_load_dwordx4 %s, %s, s66 offen offset:%d lds'%(v(36+p%4),s(sW2,4),(p%4)*1024))
    def grp(fill):
        groups=[]; i=0
        while i<len(fill):
            if fill[i].startswith('s_cmp'): groups.append(fill[i:i+2]); i+=2
            else: groups.append([fill[i]]); i+=1
        return groups
    def tr_top():
        if TRACE: e('s_memtime s[96:97]'); e('s_waitcnt lgkmcnt(0)'); e('s_mov_b32 m0, s68'); e('s_nop 3'); e('v_writelane_b32 v40, s96, m0'); e('v_writelane_b32 v42, s92, m0'); e('v_writelane_b32 v43, s94, m0')
    e('s_setprio %d'%LP1)
    e('LD_P:'); tr_top()
    e('s_mov_b32 m0, s67'); e('s_nop 0')
    g=grp(['s_add_u32 s18, s18, 1','s_cmp_eq_u32 s18, 18','s_cselect_b32 s18, 0, s18','s_xor_b32 s44, s18, s98','s_mul_i32 s44, s44, %d'%(32*9216),'s_add_u32 s44, s44, s17',
           's_add_u32 s45, s67, %d'%SLOT,'s_cmp_ge_u32 s45, %d'%(3*SLOT),'s_cselect_b32 s45, s64, s45'])
    for p in range(18):
        if p==PUB:
            e('s_cmp_eq_u32 s68, 0'); e('s_cbranch_scc1 LD_P0')
            if TRACE: e('s_memtime s[92:93]')
            e('s_waitcnt vmcnt(%d)'%PUB)
            if TRACE: e('s_memtime s[94:95]')
            e('s_barrier')
            e('LD_P0:')
        dma(1,p)
        if g:
            for x in g.pop(0): e(x)
    e('s_mov_b32 s66, s44'); e('s_mov_b32 s67, s45')
    e('s_add_u32 s68, s68, 1'); e('s_cmp_lt_u32 s68, 18'); e('s_cbranch_scc1 LD_P')
    e('s_add_u32 s66, s70, 1024'); e('s_mov_b32 s69, 0'); e('s_setprio %d'%LP2)
    e('LD_Q:'); tr_top()
    e('s_waitcnt lgkmcnt(1)'); e('v_cmp_gt_u32 vcc, s69, v13'); e('s_mov_b32 m0, s67'); e('s_cbranch_vccnz LD_QS')
    e('LD_QR:')
    g=grp(['s_sub_u32 s46, s68, 17','s_lshr_b32 s44, s46, 1','s_add_u32 s47, s44, s15','s_and_b32 s47, s47, 7','s_cmp_eq_u32 s44, 0','s_cselect_b32 s47, 8, s47',
           's_lshl_b32 s47, s47, 7','s_and_b32 s44, s46, 1','s_mul_i32 s44, s44, %d'%(288*1152),'s_add_u32 s44, s44, s47','s_add_u32 s44, s44, s70',
           's_add_u32 s45, s67, %d'%SLOT,'s_cmp_ge_u32 s45, %d'%(4*SLOT),'s_cselect_b32 s45, s64, s45',
           's_cmp_le_u32 s68, 20','s_cselect_b32 s69, 0, s68'])
    for p in range(18):
        if p==PUB:
            e('v_mov_b32 v10, s68')
            if TRACE: e('s_memtime s[92:93]')
            e('s_waitcnt vmcnt(%d)'%PUB)
            e('s_cmp_eq_u32 s68, 18'); e('s_cbranch_scc0 LD_Q0'); e('s_barrier'); e('LD_Q0:')
            if TRACE: e('s_memtime s[94:95]')
            e('ds_read_b32 v13, v12'); e('ds_write_b32 v11, v10')
        if E3A and p==E3A: e('s_cmp_eq_u32 s68, 20'); e('s_cbranch_scc0 LD_Q1'); e('s_barrier'); e('LD_Q1:')
        dma(2,p)
        if g:
            for x in g.pop(0): e(x)
    assert not g
    e('s_mov_b32 s66, s44'); e('s_mov_b32 s67, s45')
    e('s_add_u32 s68, s68, 1'); e('s_cmp_le_u32 s68, 20'); e('s_cbranch_scc1 LD_E')
    e('s_cmp_lt_u32 s68, 36'); e('s_cbranch_scc1 LD_Q')
    e('v_mov_b32 v10, s68'); e('s_waitcnt vmcnt(0)'); e('ds_write_b32 v11, v10')
    if STAMP: st(1); st_flush(2,0)
    if TRACE:
        e('s_cmp_eq_u32 s7, 0'); e('s_cbranch_scc1 TRX'); e('v_mov_b32 v41, v43'); e('v_mov_b32 v40, v42'); e('TRX:')
        trace_flush(40,41)
    e('s_waitcnt lgkmcnt(0)')
    e('s_endpgm')
    e('LD_E:')
    if not EARLY:
        e('s_barrier')
        e('s_cmp_eq_u32 s68, 20'); e('s_cbranch_scc1 LD_Q')
        e('v_mov_b32 v10, s68'); e('s_waitcnt vmcnt(0)'); e('ds_write_b32 v11, v10'); e('s_waitcnt lgkmcnt(0)')
        e('s_barrier'); e('s_branch LD_Q')
    else:
        e('s_cmp_eq_u32 s68, 19'); e('s_cbranch_scc1 LD_E1')
        e('v_mov_b32 v10, s68'); e('s_waitcnt vmcnt(0)'); e('ds_write_b32 v11, v10'); e('s_waitcnt lgkmcnt(0)')
        e('s_barrier')
        e('LD_E1:')
        e('s_barrier'); e('s_branch LD_Q')
    e('LD_QS:')
    e('ds_read_b32 v13, v12'); e('s_waitcnt lgkmcnt(0)'); e('v_cmp_gt_u32 vcc, s69, v13'); e('s_cbranch_vccz LD_QR')
    e('v_mov_b32 v10, s68'); e('s_waitcnt vmcnt(0)'); e('ds_write_b32 v11, v10')
    lds_wait(12,13,'s69')
    if TRACE: e('s_memtime s[96:97]'); e('s_waitcnt lgkmcnt(0)'); e('s_mov_b32 m0, s68'); e('s_nop 3'); e('v_writelane_b32 v41, s96, m0'); e('s_mov_b32 m0, s67')
    e('s_branch LD_QR')

def aux():
    e('K_AUX:')
    e('s_setprio %d'%AP)
    e('s_sub_u32 s7, %s, 6'%s(sWV))
    e('v_lshrrev_b32 v1, 3, v0'); e('v_and_b32 v2, 7, v0'); e('v_lshrrev_b32 v3, 1, v1')
    e('v_xor_b32 v4, v2, v3'); e('v_lshlrev_b32 v4, 4, v4'); e('v_xor_b32 v5, 64, v4')
    e('s_mov_b32 s16, 73728'); e('v_mul_u32_u24 v6, s16, v1')
    for p in range(4):
        e('v_add_u32 %s, v6, %s'%(v(16+p),'v5' if p%2 else 'v4'))
        if p: e('v_add_u32 %s, %d, %s'%(v(16+p),p*(8*73728-1024),v(16+p)))
    e('v_lshlrev_b32 v25, 4, v0')
    e('s_movk_i32 s17, 1152'); e('v_and_b32 v8, 31, v0'); e('v_mul_u32_u24 v7, 57, v8'); e('v_lshrrev_b32 v62, 9, v7'); e('v_mul_u32_u24 v7, 9, v62'); e('v_sub_u32 v7, v8, v7'); e('v_mul_u32_u24 v24, s17, v7'); e('v_lshrrev_b32 v7, 5, v0'); e('v_lshl_add_u32 v24, v7, 6, v24')
    e('s_lshl_b32 s18, s7, 5'); e('s_add_u32 s18, s18, %s'%s(sC)); e('s_mul_i32 s18, s18, 1152')
    e('s_mul_i32 s19, %s, 576'%s(sJ)); e('s_mul_i32 s64, %s, 18'%s(sC)); e('s_add_u32 s19, s19, s64')
    e('s_mul_i32 s64, s7, 9'); e('s_add_u32 s19, s19, s64'); e('s_mul_i32 s19, s19, 1152')
    e('s_mov_b32 s64, s6')
    e('s_lshl_b32 s69, s7, 12'); e('s_lshl_b32 s70, s7, 10'); e('s_add_u32 s65, s69, %d'%XW0)
    e('s_waitcnt lgkmcnt(0)')
    if DIAG==4: e('s_memrealtime s[74:75]')
    srd(sX,44,2359296); srd(sGW,56,1152)
    def issueX(h):
        if h==0: e('s_lshl_b32 s67, s64, 7'); e('s_add_u32 s67, s67, s18')
        e('s_mov_b32 m0, s65'); e('s_nop 0')
        for p in (2*h,2*h+1): e('buffer_load_dwordx4 %s, %s, s67 offen offset:%d lds'%(v(16+p),s(sX,4),p*1024))
        if h==1:
            e('s_add_u32 s64, s64, 1'); e('s_cmp_eq_u32 s64, 9'); e('s_cselect_b32 s64, 0, s64')
            e('s_add_u32 s65, s65, 8192'); e('s_sub_u32 s66, s65, 32768'); e('s_cmp_ge_u32 s65, %d'%(XW0+32768)); e('s_cselect_b32 s65, s66, s65')
    issueX(0); issueX(1)
    e('s_add_u32 m0, s70, %d'%GWL); e('s_cmp_eq_u32 s7, 0'); e('s_cselect_b32 exec_lo, -1, 0xff'); e('s_cselect_b32 exec_hi, -1, 0')
    e('buffer_load_dwordx4 v25, %s, s70 offen lds'%s(sGW,4))
    e('s_mov_b64 exec, -1')
    srd(sW2,54,5308416); srd(sWS,62,WS_BYTES); srd(sOUT,58,2359296); srd(sDBG,60,256)
    FC,FS,FN=112,120,128; GF=136; SEL=200; UO=208; MK=212; TR=216; PO=220; GG=224; L16=228; PL1=229; PL2=230; L0=231
    e('v_and_b32 v8, 15, v0'); e('v_lshrrev_b32 v9, 4, v0')
    e('v_mov_b32 %s, 0'%v(L0))
    e('s_lshl_b32 s71, s2, 1'); e('s_add_u32 s71, s71, s7'); e('s_lshl_b32 s71, s71, 2'); e('s_add_u32 s71, s71, %d'%FLU)
    e('s_or_b32 s14, %s, s7'%s(sC)); e('s_cmp_eq_u32 s14, 0'); e('s_cbranch_scc0 AX_NZ')
    for i in range(4): e('v_mov_b32 v%d, 0'%(56+i))
    e('v_lshlrev_b32 v12, 10, v0'); e('v_lshlrev_b32 v13, 6, v0')
    e('s_lshl_b32 s48, %s, 7'%s(sJ)); e('s_add_u32 s48, s48, %d'%FLP); e('s_lshl_b32 s49, %s, 3'%s(sJ)); e('s_add_u32 s49, s49, %d'%FLU)
    e('s_mov_b32 exec_hi, 0')
    e('buffer_store_dwordx4 v[56:59], v12, %s, s48 offen sc1'%s(sWS,4)); e('buffer_store_dwordx2 v[56:57], v13, %s, s49 offen sc1'%s(sWS,4))
    e('s_mov_b64 exec, -1')
    e('AX_NZ:')
    e('v_lshrrev_b32 v10, 1, v8'); e('v_xor_b32 v10, v10, v9'); e('v_lshlrev_b32 v10, 4, v10')
    e('v_lshl_add_u32 v20, v8, 7, v10'); e('v_add_u32 v20, %d, v20'%XW0); e('v_xor_b32 v21, 64, v20')
    e('v_mov_b32 v26, v20'); e('v_mov_b32 v27, v21'); e('v_add_u32 v28, s69, v20'); e('v_add_u32 v29, s69, v21')
    e('v_lshlrev_b32 v22, 4, v9'); e('v_add_u32 v22, %d, v22'%GWL); e('s_lshl_b32 s68, s6, 7'); e('v_add_u32 v23, s68, v22')
    e('s_lshl_b32 s44, s7, 11')
    ACC=64; TM=136; WA=176; RC=232
    for i in list(range(8))+list(range(16,24))+list(range(32,40)): e('v_mov_b32 %s, 0'%v(TM+i))
    for i in list(range(8,16))+list(range(24,32)): e('v_mov_b32 %s, 0'%v(ACC+i))
    e('s_sub_u32 s48, s6, 1'); e('s_cmp_eq_u32 s6, 0'); e('s_cselect_b32 s48, 8, s48'); e('s_lshl_b32 s48, s48, 6')
    e('v_lshlrev_b32 v11, 3, v9'); e('v_add_u32 v11, s48, v11'); e('v_cvt_f32_u32 v11, v11')
    e('s_mul_i32 s49, %s, 36'%s(sJ)); e('s_lshl_b32 s50, s7, 4'); e('s_add_u32 s50, s50, s49'); e('s_add_u32 s49, s49, 32')
    for mix in range(2):
        if mix==0: e('v_add_u32 v12, s50, v8')
        else: e('v_and_b32 v12, 7, v8'); e('v_add_u32 v12, s49, v12')
        e('v_cvt_f32_u32 v12, v12'); e('v_mul_f32 v10, 0x%08x, v12'%f2u(1/9.)); e('v_mul_f32 v12, 0x%08x, v12'%f2u(1/576.)); e('v_mul_f32 v13, v12, v11')
        e('v_cos_f32 %s, v10'%v(RC+2*mix)); e('v_sin_f32 %s, v10'%v(RC+2*mix+1))
        if mix:
            e('v_cmp_gt_u32 vcc, 8, v8'); e('v_add_f32 v4, 0x3e800000, v13'); e('v_sub_f32 v5, 0, %s'%v(RC+3))
            e('v_cndmask_b32 v13, v4, v13, vcc'); e('v_cndmask_b32 %s, %s, v5, vcc'%(v(RC+3),v(RC+3)))
            e('v_cmp_eq_u32 vcc, 5, v8'); e('v_mov_b32 v4, 1.0'); e('v_mov_b32 v5, 0')
            e('v_cndmask_b32 %s, %s, v4, vcc'%(v(RC+2),v(RC+2))); e('v_cndmask_b32 %s, %s, v5, vcc'%(v(RC+3),v(RC+3)))
        for kp in range(2):
            for jp in range(4):
                for u in range(2):
                    e('v_fmamk_f32 %s, v12, 0x%08x, v13'%(v(30+u),f2u(32*kp+2*jp+u))); e('v_fract_f32 %s, %s'%(v(30+u),v(30+u)))
                e('v_cos_f32 v32, v30'); e('v_cos_f32 v33, v31')
                if mix==0:
                    e('v_sin_f32 v34, v30'); e('v_sin_f32 v35, v31')
                    e('v_cvt_pk_bf16_f32 %s, v32, v33'%v(WA+4*kp+jp)); e('v_cvt_pk_bf16_f32 %s, -v34, -v35'%v(WA+8+4*kp+jp))
                else:
                    e('s_nop 0'); e('v_cvt_pk_bf16_f32 %s, v32, v33'%v(WA+16+4*kp+jp))
    if PK:
        e('v_mov_b32 v60, %s'%v(RC+1)); e('v_mov_b32 v61, %s'%v(RC+1)); e('v_mov_b32 %s, %s'%(v(RC+1),v(RC)))
    global out
    save=out; parts=[]
    def begin():
        global out
        out=[]
    def end(): parts.append(out)
    begin()
    e('v_lshlrev_b32 v11, 2, v9'); e('v_cvt_f32_u32 v11, v11')
    for b in range(2):
        e('v_add_u32 v12, %d, v8'%(16*b)); e('v_cvt_f32_u32 v12, v12'); e('v_mul_f32 v12, 0x3d000000, v12'); e('v_mul_f32 v13, v12, v11')
        for jp in range(4):
            o=[(2*jp+u)%4+16*((2*jp+u)//4) for u in range(2)]
            for u in range(2): e('v_fmamk_f32 %s, v12, 0x%08x, v13'%(v(30+u),f2u(o[u])))
            e('v_cos_f32 v32, v30'); e('v_cos_f32 v33, v31'); e('v_sin_f32 v34, v30'); e('v_sin_f32 v35, v31')
            e('v_cvt_pk_bf16_f32 %s, v32, v33'%v(FC+4*b+jp)); e('v_cvt_pk_bf16_f32 %s, v34, v35'%v(FS+4*b+jp))
            e('v_xor_b32 %s, 0x80008000, %s'%(v(FN+4*b+jp),v(FS+4*b+jp)))
    end()
    for i in range(4):
        begin()
        e('s_lshr_b32 s48, %s, 2'%s(sJ)); e('s_lshl_b32 s48, s48, 1'); e('s_and_b32 s49, %s, 1'%s(sJ)); e('s_add_u32 s48, s48, s49')
        e('s_add_u32 s48, s48, %d'%i); e('s_and_b32 s48, s48, 3')
        e('v_lshlrev_b32 %s, 4, v0'%v(L16)); e('v_lshlrev_b32 v11, 1, v9'); e('v_cvt_f32_u32 v11, v11')
        e('s_lshl_b32 s49, s48, 6'); e('s_add_u32 s49, s49, %d'%GL); e('v_lshlrev_b32 v13, 2, v8'); e('v_add_u32 %s, s49, v13'%v(GG+i))
        e('s_lshr_b32 s49, s48, 1'); e('s_and_b32 s50, s48, 1')
        e('s_lshl_b32 s51, s49, 12'); e('s_lshl_b32 s52, s50, 10'); e('s_add_u32 s51, s51, s52'); e('v_add_u32 %s, s51, %s'%(v(PO+i),v(L16)))
        e('s_lshl_b32 s49, s49, 5'); e('s_add_u32 s49, s49, s52'); e('s_add_u32 s49, s49, %s'%s(sC))
        e('v_lshlrev_b32 v5, 6, v8'); e('v_add_u32 v6, s49, v5')
        e('v_cvt_f32_u32 v5, v6'); e('v_mul_f32 v5, 0x3a000000, v5'); e('v_mul_f32 v13, v5, v11')
        e('s_movk_i32 s49, 1152'); e('v_and_b32 v4, 1, v9'); e('v_lshlrev_b32 v4, 5, v4'); e('v_lshrrev_b32 v7, 1, v9'); e('v_lshl_add_u32 v4, v7, 4, v4')
        e('v_mad_u32_u24 %s, v6, s49, v4'%v(TR+i))
        for k in range(4):
            for u in range(2):
                for h in range(2): e('v_fmamk_f32 %s, v5, 0x%08x, v13'%(v(30+h),f2u(8*k+u+32*h)))
                e('v_cos_f32 v32, v30'); e('v_sin_f32 v33, v30'); e('v_cos_f32 v34, v31'); e('v_sin_f32 v35, v31')
                e('v_cvt_pk_bf16_f32 %s, v32, v33'%v(GF+16*i+4*k+2*u)); e('v_cvt_pk_bf16_f32 %s, v34, v35'%v(GF+16*i+4*k+2*u+1))
        end()
    begin()
    e('v_lshrrev_b32 v4, 2, v8'); e('v_cmp_eq_u32 vcc, v4, v9'); e('v_and_b32 v5, 1, v8'); e('v_lshlrev_b32 v5, 4, v5')
    e('v_mov_b32 v6, 0x3f80'); e('v_lshlrev_b32 v6, v5, v6'); e('v_cndmask_b32 v6, 0, v6, vcc')
    e('v_and_b32 v5, 2, v8'); e('v_cmp_eq_u32 vcc, 0, v5'); e('v_mov_b32 %s, 0'%v(SEL+2)); e('v_mov_b32 %s, 0'%v(SEL+3))
    e('v_cndmask_b32 %s, 0, v6, vcc'%v(SEL)); e('v_sub_u32 %s, v6, %s'%(v(SEL+1),v(SEL)))
    e('v_mov_b32 %s, 0'%v(SEL+4)); e('v_mov_b32 %s, 0'%v(SEL+5)); e('v_mov_b32 %s, %s'%(v(SEL+6),v(SEL))); e('v_mov_b32 %s, %s'%(v(SEL+7),v(SEL+1)))
    e('v_and_b32 v4, 1, v0'); e('v_lshlrev_b32 v4, 3, v4'); e('s_lshl_b32 s49, s7, 2'); e('v_add_u32 v4, s49, v4'); e('v_bfe_u32 v5, v0, 1, 3'); e('v_lshl_add_u32 %s, v5, 7, v4'%v(PL1))
    e('v_sub_u32 v5, %s, v5'%s(sJ)); e('v_and_b32 v5, 7, v5'); e('v_add_u32 v254, 1, v5')
    e('v_and_b32 v4, 7, v0'); e('v_lshlrev_b32 v4, 7, v4'); e('s_lshr_b32 s49, %s, 1'%s(sJ)); e('s_lshl_b32 s49, s49, 2'); e('v_add_u32 %s, s49, v4'%v(PL2))
    e('s_sub_u32 s48, 32, %s'%s(sC)); e('s_and_b32 s48, s48, 31')
    e('s_mov_b32 s49, %d'%(2*12288)); e('v_mul_u32_u24 v12, s49, v9')
    e('s_mov_b32 s50, %d'%(32*12288))
    e('s_lshl_b32 s54, s15, 6'); e('s_lshl_b32 s49, s7, 5'); e('s_add_u32 s54, s54, s49')
    e('s_and_b32 s55, %s, 2'%s(sJ)); e('s_lshl_b32 s55, s55, 4'); e('s_add_u32 s55, s55, 512')
    for tb in range(4):
        e('s_add_u32 s49, %s, %d'%(('s54',16*tb) if tb<2 else ('s55',16*(tb-2)))); e('v_add_u32 v4, s49, v8')
        e('v_sub_u32 v5, 576, v4'); e('v_cmp_lt_u32 vcc, 288, v4'); e('v_mov_b32 v6, %s'%s(sC)); e('v_mov_b32 v7, s48')
        e('v_cndmask_b32 v4, v4, v5, vcc'); e('v_cndmask_b32 v6, v6, v7, vcc')
        e('v_mov_b32 v7, 0x80000000'); e('v_cndmask_b32 %s, 0, v7, vcc'%v(MK+tb))
        e('v_mul_u32_u24 v5, 57, v4'); e('v_lshrrev_b32 v5, 11, v5'); e('v_min_u32 v5, 7, v5')
        e('v_mul_u32_u24 v7, 36, v5'); e('v_sub_u32 v4, v4, v7')
        e('v_mul_u32_u24 v5, s50, v5'); e('v_lshl_add_u32 v5, v6, 7, v5'); e('v_add_u32 v5, v5, v12')
        e('v_lshrrev_b32 v6, 4, v4'); e('v_lshl_add_u32 v5, v6, 12, v5'); e('v_and_b32 v4, 15, v4'); e('v_lshl_add_u32 %s, v4, 3, v5'%v(UO+tb))
    end()
    out=save
    NPRE=PRE
    out.extend(parts[0])
    later=[]
    XF=36
    def rotate(lo,hi,mix):
        if PK:
            for i in range(lo,hi,2):
                e('v_pk_mul_f32 %s, %s, %s'%(v(TM+i,2),v(RC,2),v(ACC+i,2))); e('v_pk_mul_f32 %s, %s, %s'%(v(TM+16+i,2),v(RC,2),v(ACC+16+i,2)))
                e('v_pk_fma_f32 %s, %s, %s, %s neg_lo:[1,0,0] neg_hi:[1,0,0]'%(v(TM+i,2),v(60,2),v(ACC+16+i,2),v(TM+i,2))); e('v_pk_fma_f32 %s, %s, %s, %s'%(v(TM+16+i,2),v(60,2),v(ACC+i,2),v(TM+16+i,2)))
        else:
            for i in range(lo,hi):
                e('v_mul_f32 %s, %s, %s'%(v(TM+i),v(RC),v(ACC+i))); e('v_mul_f32 %s, %s, %s'%(v(TM+16+i),v(RC),v(ACC+16+i)))
                e('v_fma_f32 %s, -%s, %s, %s'%(v(TM+i),v(RC+1),v(ACC+16+i),v(TM+i))); e('v_fmac_f32 %s, %s, %s'%(v(TM+16+i),v(RC+1),v(ACC+i)))
        if mix:
            for i in range(8): e('v_mul_f32 %s, %s, %s'%(v(TM+32+i),v(RC+2),v(ACC+32+i)))
            for i in range(8): e('v_fmac_f32_dpp %s, %s, %s row_ror:8 row_mask:0xf bank_mask:0xf'%(v(TM+32+i),v(ACC+32+i),v(RC+3)))
    e('s_mov_b32 s46, 0'); e('s_mov_b32 s47, 0')
    e('s_and_b32 s45, %s, %d'%(s(sC),XSTG)); e('s_mov_b32 s53, 1'); e('s_mov_b32 s51, 0')
    if XUP==3:
        for _ in range(3): issueX(0); issueX(1)
        e('s_mov_b32 s53, 4'); e('s_add_u32 s51, s45, 4'); e('s_cmp_ge_u32 s45, 2'); e('s_cselect_b32 s51, s45, s51')
    e('s_waitcnt vmcnt(%d)'%(4*XUP))
    e('s_cmp_eq_u32 s14, 0'); e('s_cbranch_scc0 AX_L')
    e('v_mov_b32 v255, 1'); e('s_lshl_b32 s48, %s, 2'%s(sJ)); e('s_mov_b64 exec, 1')
    e('buffer_store_dword v255, %s, %s, s48 offen sc1'%(v(L0),s(sDBG,4))); e('s_mov_b64 exec, -1')
    e('AX_L:')
    for kp in range(2):
        if TRACE:
            e('s_memtime s[96:97]'); e('s_lshl_b32 s95, s46, 1'); e('s_add_u32 m0, s95, %d'%(kp+1)); e('s_waitcnt lgkmcnt(0)'); e('v_writelane_b32 v252, s96, m0'); e('v_writelane_b32 v253, s92, m0')
        e('s_barrier')
        if DIAG in (2,6) and kp==0: e('s_cmp_eq_u32 s46, %d'%(0 if DIAG==2 else 2)); e('s_cbranch_scc0 DGN'); e('s_memrealtime s[74:75]'); e('s_waitcnt lgkmcnt(0)'); e('DGN:')
        for sg in range(4): e('ds_read_b128 %s, %s offset:%d'%(v(XF+4*sg,4),v(26+kp),sg*2048))
        for sg in range(2): e('ds_read_b128 %s, %s offset:%d'%(v(XF+16+4*sg,4),v(28+kp),sg*2048))
        e('s_mov_b32 exec_lo, 0x00200020'); e('s_mov_b32 exec_hi, 0x00200020')
        e('ds_read_b128 %s, v23 offset:%d'%(v(WA+16+4*kp,4),64*kp))
        e('s_mov_b64 exec, -1')
        e('s_sub_u32 s51, s51, 1'); e('s_cbranch_scc1 AX_B%d'%kp)
        e('AX_S%d:'%kp)
        def rot(lo,hi,mix):
            L=[]
            for i in range(lo,hi):
                L+=['v_mul_f32 %s, %s, %s'%(v(TM+i),v(RC),v(ACC+i)),'v_mul_f32 %s, %s, %s'%(v(TM+16+i),v(RC),v(ACC+16+i)),
                    'v_fma_f32 %s, -%s, %s, %s'%(v(TM+i),v(RC+1),v(ACC+16+i),v(TM+i)),'v_fmac_f32 %s, %s, %s'%(v(TM+16+i),v(RC+1),v(ACC+i))]
            if mix:
                L+=['v_mul_f32 %s, %s, %s'%(v(TM+32+i),v(RC+2),v(ACC+32+i)) for i in range(8)]
                L+=['v_fmac_f32_dpp %s, %s, %s row_ror:8 row_mask:0xf bank_mask:0xf'%(v(TM+32+i),v(ACC+32+i),v(RC+3)) for i in range(8)]
            return L
        M=lambda t,sg: mf(ACC+16*t+4*sg, XF+4*sg, WA+8*t+4*kp, TM+16*t+4*sg if kp==0 else None)
        X=lambda sg: mf(ACC+32+4*sg, XF+16+4*sg, WA+16+4*kp, TM+32+4*sg if kp==0 else None)
        if kp==0:
            R=rot(8,16,False)
            for x in R[:8]: e(x)
            e('s_waitcnt lgkmcnt(0)')
            R=R[8:]
            for m in (M(0,0),M(1,0),M(0,1),M(1,1),X(0),X(1)):
                e(m)
                for x in R[:4]: e(x)
                R=R[4:]
            assert not R
            for m in (M(0,2),M(1,2),M(0,3),M(1,3)): e(m)
        else:
            A_=['s_add_u32 s47, s47, 8192','s_and_b32 s47, s47, 32767','s_add_u32 s66, s47, s69','s_add_u32 s68, s68, 128','s_cmp_eq_u32 s68, 1152','s_cselect_b32 s68, 0, s68',
                'v_add_u32 v26, s47, v20','v_add_u32 v27, s47, v21','v_add_u32 v28, s66, v20','v_add_u32 v29, s66, v21','v_add_u32 v23, s68, v22']
            for x in A_: e(x)
            e('s_waitcnt lgkmcnt(0)')
            for m in (M(0,0),M(1,0),M(0,1),M(1,1),X(0),X(1)): e(m)
            e('s_nop 3')
            R=rot(0,8,True)
            for m in (M(0,2),M(1,2),M(0,3),M(1,3)):
                for x in R[:4]: e(x)
                R=R[4:]
                e(m)
            e('s_cmp_eq_u32 s46, 8'); e('s_cbranch_scc1 AX_D')
            for x in R: e(x)
    if TRACE: e('s_memtime s[92:93]')
    e('s_lshr_b32 s66, s45, 1'); e('s_xor_b32 s66, s66, s46'); e('s_add_u32 s46, s46, 1')
    e('s_bitcmp1_b32 s66, 0'); e('s_cbranch_scc1 AX_W0')
    e('s_cmp_eq_u32 s46, 1'); e('s_cbranch_scc0 AX_L')
    e('s_waitcnt vmcnt(8)'); e('s_branch AX_L')
    e('AX_W0:')
    e('s_waitcnt vmcnt(0)'); e('s_branch AX_L')
    for kp in range(2):
        e('AX_B%d:'%kp)
        e('s_cmp_ge_u32 s46, 5'); e('s_cselect_b32 s51, 100, 3')
        e('s_add_u32 s52, s46, 3'); e('s_min_u32 s52, s52, 8')
        e('s_cmp_eq_u32 s46, 0'); e('s_cbranch_scc0 AX_C%d'%kp)
        if kp==0:
            e('s_lshr_b32 s52, s45, 1'); e('s_add_u32 s52, s52, 1')
            e('s_sub_u32 s51, s45, 1'); e('s_cmp_ge_u32 s45, 2'); e('s_cselect_b32 s51, s51, 0')
        else:
            e('s_add_u32 s51, s45, 2')
        e('AX_C%d:'%kp)
        issueX(0); issueX(1)
        e('s_add_u32 s53, s53, 1'); e('s_cmp_le_u32 s53, s52'); e('s_cbranch_scc1 AX_C%d'%kp)
        e('s_cmp_eq_u32 s46, 0'); e('s_cbranch_scc1 AX_S%d'%kp)
        e('v_add_u32 v4, %s, v62'%s(sJ)); e('v_and_b32 v4, 7, v4'); e('v_cmp_eq_u32 vcc, 0, v62'); e('v_mov_b32 v5, 8'); e('v_add_u32 v62, 3, v62')
        e('v_cndmask_b32 v4, v4, v5, vcc'); e('v_lshl_add_u32 v4, v4, 7, v24')
        e('s_mov_b32 exec_lo, 0x7ffffff'); e('s_mov_b32 exec_hi, %s'%('0x7ffffff' if T2 else '0'))
        e('buffer_load_dword v15, v4, %s, s19 offen'%s(sW2,4))
        e('s_mov_b64 exec, -1')
        e('s_branch AX_S%d'%kp)
    e('AX_D:')
    e('s_barrier')
    if DIAG==5: e('s_memrealtime s[74:75]'); e('s_waitcnt lgkmcnt(0)')
    e('s_setprio %d'%AP2); e('s_nop 3')
    st(1)
    e('v_lshlrev_b32 v12, 9, v9'); e('v_lshl_add_u32 v12, v8, 3, v12')
    e('s_lshl_b32 s16, %s, 5'%s(sJ)); e('s_add_u32 s16, s16, %s'%s(sC)); e('s_mul_i32 s16, s16, 12288'); e('s_add_u32 s16, s16, %d'%U_OFF)
    e('s_add_u32 s17, s16, 8192'); e('s_add_u32 s16, s16, s69')
    FR=16
    def pack(dst,src,n=8):
        for h in range(n): e('v_cvt_pk_bf16_f32 %s, %s, %s'%(v(dst+h),v(src+2*h),v(src+2*h+1)))
    def stageA(D,FR):
        for sh in range(2):
            for be in range(2):
                d=D+16*sh+8*be; a=FR+4*sh; b=FR+8+4*sh
                mfma(d,FC+4*be,a,'0'); mfma(d+4,FC+4*be,b,'0'); mfma(d,FS+4*be,b); mfma(d+4,FN+4*be,a)
    def ustore(D,O,so):
        for be in range(2):
            for r in range(4):
                o=O+8*be+2*r
                for sh in range(2): e('v_cvt_pk_bf16_f32 %s, %s, %s'%(v(o+sh),v(D+16*sh+8*be+r),v(D+16*sh+8*be+4+r)))
                e('buffer_store_dwordx2 %s, v12, %s, %s offen offset:%d sc1'%(v(o,2),s(sWS,4),so,be*2048+r*128))
    e('v_and_b32 v63, 7, v0'); e('v_lshlrev_b32 v63, 2, v63'); e('v_mov_b32 v255, v63')
    e('buffer_load_dword v254, v255, %s, 0 offen sc1'%s(sDBG,4))
    MF=136
    e('v_add_u32 v14, %d, v25'%MX)
    pack(MF,ACC+32,4)
    e('s_lshl_b32 s66, s7, 7'); e('s_add_u32 s66, s66, %d'%GL); e('v_lshlrev_b32 v13, 4, v9'); e('v_add_u32 v13, s66, v13')
    e('s_mov_b32 exec_lo, 0x00200020'); e('s_mov_b32 exec_hi, 0x00200020')
    for sg in range(2): e('ds_write_b128 v13, %s offset:%d'%(v(ACC+32+4*sg,4),64*sg))
    e('s_mov_b64 exec, -1')
    e('s_cmp_eq_u32 s7, 1'); e('s_cbranch_scc0 AX_A0'); e('ds_write_b128 v14, %s'%v(MF,4)); e('AX_A0:')
    pack(FR,ACC); pack(FR+8,ACC+16); e('s_nop 1')
    stageA(32,FR)
    e('s_nop 7')
    ustore(32,236,'s16')
    e('s_mov_b32 s47, 0'); e('s_waitcnt vmcnt(8)')
    e('AX_V0:')
    e('v_cmp_eq_u32 vcc, 0, v254'); e('s_cbranch_vccz AX_V1')
    e('s_add_u32 s47, s47, 1'); e('s_cmp_gt_u32 s47, %d'%SPINMAX); e('s_cbranch_scc1 AX_V1')
    e('s_sleep 8'); e('buffer_load_dword v254, v255, %s, 0 offen sc1'%s(sDBG,4)); e('s_waitcnt vmcnt(0)'); e('s_branch AX_V0')
    e('AX_V1:')
    e('s_waitcnt lgkmcnt(0)')
    e('s_barrier')
    e('s_barrier')
    if E3A: e('s_barrier')
    if DIAG==3: e('s_memrealtime s[74:75]'); e('s_waitcnt lgkmcnt(0)')
    e('s_cmp_eq_u32 s7, 0'); e('s_cbranch_scc0 AX_A2')
    e('ds_read_b128 %s, v14'%v(MF+4,4)); e('s_waitcnt lgkmcnt(0)')
    for h in range(8): e('v_mov_b32_dpp %s, %s row_ror:8 row_mask:0xf bank_mask:0xf'%(v(MF+8+h),v(MF+h)))
    e('s_nop 1')
    stageA(64,MF)
    e('s_nop 7')
    e('s_mov_b32 exec_lo, 0x00ff00ff'); e('s_mov_b32 exec_hi, 0x00ff00ff')
    ustore(64,96,'s17')
    e('s_mov_b64 exec, -1')
    e('AX_A2:')
    out.extend(parts[1])
    e('s_waitcnt vmcnt(0)'); e('v_mov_b32 v10, 1')
    e('s_mov_b64 exec, 1'); e('buffer_store_dword v10, %s, %s, s71 offen sc1'%(v(L0),s(sWS,4))); e('s_mov_b64 exec, -1')
    for k in (2,3,4,5): out.extend(parts[k])
    for i in range(4): e('ds_read_b32 %s, %s'%(v(GG+i),v(GG+i)))
    e('s_lshl_b32 s65, %s, 10'%s(sC)); e('s_add_u32 s65, s65, %d'%FLP)
    e('s_waitcnt lgkmcnt(0)')
    for i in range(4):
        g=GG+i
        e('v_mul_f32 %s, 0xbfb8aa3b, %s'%(v(g),v(g))); e('v_exp_f32 %s, %s'%(v(g),v(g))); e('s_nop 0')
        e('v_add_f32 %s, 1.0, %s'%(v(g),v(g))); e('v_rcp_f32 %s, %s'%(v(g),v(g)))
    if NORED:
        for i in range(2,7): st(i)
        st_flush(7,0); e('s_endpgm')
    e('s_mov_b32 s47, 0')
    def gpoll(load,cmp,slp):
        L=lab('GP'); e('s_branch %sf'%L); e(L+':')
        if slp: e('s_sleep %d'%slp)
        e(L+'f:')
        for x in load: e(x)
        e('s_add_u32 s47, s47, 1'); e('s_waitcnt vmcnt(0)')
        for x in cmp: e(x)
        e('s_cmp_gt_u32 s47, %d'%SPINMAX); e('s_cbranch_scc1 %sx'%L); e('s_cbranch_vccnz '+L); e(L+'x:')
    e('s_lshl_b32 s16, s7, 8'); e('s_add_u32 s16, s16, %d'%CNS)
    e('v_and_b32 v15, 1, v0'); e('v_mul_u32_u24 v15, 516, v15'); e('v_add_u32 v15, s16, v15')
    def pace(n):
        L=lab('PC'); e(L+':'); e('s_sleep 3'); e('ds_read_b32 v5, v15')
        e('s_add_u32 s99, s99, 1'); e('s_cmp_gt_u32 s99, 0x100000'); e('s_cbranch_scc1 K_END'); e('s_waitcnt lgkmcnt(0)')
        e('v_cmp_gt_u32 vcc, %s, v5'%(n if isinstance(n,str) else min(n,38))); e('s_cbranch_vccnz '+L)
    e('s_and_b32 s16, %s, %d'%(s(sC),USTG)); e('s_add_u32 s16, s16, %d'%(20+UPACE))
    pace('s16')
    e('s_mov_b32 s16, %d'%FLU)
    gpoll(['buffer_load_dwordx4 v[96:99], %s, %s, s16 offen sc1'%(v(L16),s(sWS,4)),'buffer_load_dwordx4 v[100:103], %s, %s, s16 offen offset:1024 sc1'%(v(L16),s(sWS,4))],
          ['v_min3_u32 v5, v96, v97, v98','v_min3_u32 v5, v5, v99, v100','v_min3_u32 v5, v5, v101, v102','v_min_u32 v5, v5, v103','v_cmp_eq_u32 vcc, 0, v5'],USLP)
    st(2)
    UF=16; YA=80; SP=152
    def uloads(tb,dst):
        for k in range(4):
            for u in range(2):
                e('s_mov_b32 s17, %d'%(U_OFF+(8*k+u)*12288))
                e('buffer_load_dwordx2 %s, %s, %s, s17 offen sc1'%(v(dst+4*k+2*u,2),v(UO+tb),s(sWS,4)))
    def fin(y,p,og,o,vaddr,soff):
        for tb in range(2):
            for r in range(4): e('v_fma_f32 %s, %s, %s, %s'%(v(p[tb]+r),v(og),v(p[tb]+r),v(y[tb]+r)))
        for tb in range(2):
            for h in range(2): e('v_cvt_pk_bf16_f32 %s, %s, %s'%(v(o+2*tb+h),v(p[tb]+2*h),v(p[tb]+2*h+1)))
        e('s_nop 1')
        e('v_permlane16_swap_b32 %s, %s'%(v(o),v(o+2))); e('v_permlane16_swap_b32 %s, %s'%(v(o+1),v(o+3)))
        e('buffer_store_dwordx4 %s, %s, %s, %s offen%s'%(v(o,4),v(vaddr),s(sOUT,4),soff,[' ',' sc1',' nt'][OSC]))
    for tb in range(2): uloads(tb,UF+16*tb)
    e('s_cmp_eq_u32 s7, 1'); e('s_cbranch_scc0 AX_U')
    for tb in range(2,4): uloads(tb,UF+16*tb)
    gpoll(['buffer_load_dword v5, %s, %s, s65 offen sc1'%(v(PL2),s(sWS,4))],['v_cmp_gt_u32 vcc, 1, v5'],10)
    e('s_mul_i32 s16, %s, %d'%(s(sC),8*73728)); e('s_lshl_b32 s17, %s, 10'%s(sJ)); e('s_add_u32 s16, s16, s17'); e('s_add_u32 s16, s16, 65536')
    for jj in range(8):
        e('buffer_load_dwordx4 %s, %s, %s, s16 offen sc1'%(v(80+4*jj,4),v(L16),s(sWS,4)))
        if jj<7: e('s_add_u32 s16, s16, 73728')
    for tb in range(2,4):
        for i in range(16): e('v_xor_b32 %s, %s, %s'%(v(UF+16*tb+i),v(MK+tb),v(UF+16*tb+i)))
    e('s_nop 1')
    for k in range(4):
        for tb in range(2): mfma(112+4*tb, UF+32+16*tb+4*k, GF+4*k, '0' if k==0 else None)
    e('s_waitcnt vmcnt(0)')
    for jj in range(8):
        for tb in range(2): mfma(120+4*tb, SEL+4*tb, 80+4*jj, '0' if jj==0 else None)
    for r in range(8): e('v_mul_f32 %s, %s, %s'%(v(112+r),v(GG),v(112+r)))
    e('v_sub_f32 v14, 1.0, %s'%v(GG)); e('s_lshl_b32 s16, s55, 1')
    fin((112,116),(120,124),14,248,TR,'s16')
    e('s_branch AX_U2')
    e('AX_U:')
    e('s_waitcnt vmcnt(0)')
    e('AX_U2:')
    for tb in range(2):
        for i in range(16): e('v_xor_b32 %s, %s, %s'%(v(UF+16*tb+i),v(MK+tb),v(UF+16*tb+i)))
    e('s_nop 1')
    for k in range(4):
        for tb in range(2):
            for i in range(4): mfma(YA+16*tb+4*i, UF+16*tb+4*k, GF+16*i+4*k, '0' if k==0 else None)
    st(3)
    e('s_mul_i32 s18, %s, %d'%(s(sC),8*73728)); e('s_lshl_b32 s17, s15, 13'); e('s_add_u32 s18, s18, s17'); e('s_add_u32 s18, s18, s44')
    def acc(buf,first):
        for i in range(4):
            for tb in range(2): mfma(SP+16*tb+4*i, SEL+4*tb, buf+4*i, '0' if first else None)
    BUF=lambda i: 16+16*(i%4)
    e('s_mov_b32 s66, 0')
    def addr(i,so,sm):
        e('s_sub_u32 %s, %s, %d'%(so,s(sJ),i)); e('s_and_b32 %s, %s, 7'%(so,so))
        e('s_lshl_b32 %s, %s, 1'%(sm,so)); e('s_lshl_b32 %s, 3, %s'%(sm,sm))
        e('s_mul_i32 %s, %s, 73728'%(so,so)); e('s_add_u32 %s, %s, s18'%(so,so))
    def pollbits(i,sm,sx,slp):
        e('s_branch AX_F%d'%i); e('AX_R%d:'%i)
        if slp: e('s_sleep %d'%slp)
        e('AX_F%d:'%i)
        e('buffer_load_dword v5, %s, %s, s65 offen sc1'%(v(PL1),s(sWS,4))); e('s_add_u32 s47, s47, 1'); e('s_waitcnt vmcnt(0)')
        e('v_cmp_le_u32 vcc, v254, v5'); e('s_cmp_gt_u32 s47, %d'%SPINMAX); e('s_cbranch_scc1 AX_G%d'%i)
        e('s_mov_b32 s66, vcc_lo'); e('s_mov_b32 exec_lo, %s'%sx); e('s_mov_b32 exec_hi, 0')
        e('s_and_b32 s19, s66, %s'%sm); e('s_cmp_eq_u32 s19, %s'%sm); e('s_cbranch_scc0 AX_R%d'%i)
    def loads(i,so):
        for u in range(4): e('buffer_load_dwordx4 %s, %s, %s, %s offen sc1'%(v(BUF(i)+4*u,4),v(PO+u),s(sWS,4),so))
    addr(7,'s48','s49')
    e('s_add_u32 s16, s44, %d'%QH)
    for u in range(4): e('v_add_u32 %s, s16, %s'%(v(128+u),v(PO+u)))
    for i in range(1,7):
        addr(i,'s16','s17')
        e('s_and_b32 s19, s66, s17'); e('s_cmp_eq_u32 s19, s17'); e('s_cbranch_scc1 AX_G%d'%i)
        pace(max(20+2*(i+2)+PPACE-FEARLY, LATE if i>1 else 0))
        if i==6: e('s_or_b32 s50, s17, s49'); e('s_mov_b32 exec_lo, s50'); e('s_mov_b32 exec_hi, 0')
        pollbits(i,'s17','s50' if i==6 else 's17', 0 if i==6 else PSLP)
        e('AX_G%d:'%i)
        e('s_mov_b64 exec, -1')
        loads(i,'s16')
        if 3<=i<=6: e('s_waitcnt vmcnt(8)'); acc(BUF(i-2), i==3)
        if i==1:
            for sl in range(4):
                for tb in range(2):
                    for r in range(4): e('v_mul_f32 %s, %s, %s'%(v(YA+16*tb+4*sl+r),v(GG+sl),v(YA+16*tb+4*sl+r)))
                e('v_sub_f32 %s, 1.0, %s'%(v(GG+sl),v(GG+sl)))
    e('s_and_b32 s19, s66, s49'); e('s_cmp_eq_u32 s19, s49'); e('s_cbranch_scc1 AX_G7')
    e('s_mov_b32 exec_lo, s49'); e('s_mov_b32 exec_hi, 0')
    pollbits(7,'s49','s49',0)
    e('AX_G7:')
    e('s_mov_b64 exec, -1')
    loads(7,'s48')
    e('s_waitcnt vmcnt(8)'); acc(BUF(5),False)
    lds_wait(15,5,'39')
    for u in range(4): e('ds_read_b128 %s, %s'%(v(BUF(4)+4*u,4),v(128+u)))
    e('s_waitcnt lgkmcnt(0)'); acc(BUF(4),False)
    st(4)
    e('s_waitcnt vmcnt(4)'); acc(BUF(6),False)
    st(5)
    e('s_lshl_b32 s16, s54, 1')
    for sl in range(4):
        e('s_waitcnt vmcnt(%d)'%(3-sl))
        for tb in range(2): mfma(SP+16*tb+4*sl, SEL+4*tb, BUF(7)+4*sl)
    e('s_nop 3')
    for sl in range(4): fin((YA+4*sl,YA+16+4*sl),(SP+4*sl,SP+16+4*sl),GG+sl,232+4*sl,TR+sl,'s16')
    if STAMP:
        e('s_waitcnt vmcnt(0)'); st(6); st_flush(7,0)
        if TRACE: trace_flush(252,253)
    if DIAG:
        e('s_waitcnt vmcnt(0)'); e('s_memrealtime s[76:77]'); e('s_waitcnt lgkmcnt(0)')
        if DIAG==1: e('s_mov_b32 s74, s76')
        e('s_sub_u32 s16, s74, s72')
        if DIAG in (2,6): e('s_lshl_b32 s16, s16, 2')
        if DIAG==4: e('s_lshl_b32 s16, s16, 3')
        e('DG:'); e('s_memrealtime s[78:79]'); e('s_waitcnt lgkmcnt(0)'); e('s_sub_u32 s17, s78, s76'); e('s_cmp_lt_u32 s17, s16'); e('s_cbranch_scc1 DG')
    e('s_endpgm')
    for n,k in enumerate(later):
        e('AX_SL%d:'%n); out.extend(parts[k]); e('s_branch AX_SR')

def main():
    global INMAIN
    e('K_MAIN:')
    ACC=96; AF=16; XB=56
    T=200
    e('v_lshlrev_b32 v7, 2, v0'); e('s_lshl_b32 s16, %s, 8'%s(sWV)); e('s_add_u32 s16, s16, %d'%LND); e('v_add_u32 v3, s16, v7'); e('v_mov_b32 v8, 0')
    for i in range(3): e('ds_write_b32 v3, v8 offset:%d'%(1024*i))
    e('v_add_u32 v13, 1024, v3')
    e('v_and_b32 v3, 1, v0'); e('v_mul_u32_u24 v3, 260, v3'); e('v_add_u32 v14, %d, v3'%LND)
    e('v_mov_b32 v5, 0')
    e('v_and_b32 v200, 15, v0'); e('v_lshrrev_b32 v201, 4, v0')
    e('s_movk_i32 s17, 1152')
    e('v_lshrrev_b32 v202, 2, v200'); e('v_and_b32 v203, 3, v0')
    e('v_lshl_add_u32 v204, v201, 3, v202'); e('v_mul_u32_u24 v204, s17, v204'); e('v_lshl_add_u32 v204, v203, 3, v204')
    e('v_lshrrev_b32 v205, 1, v202'); e('v_and_b32 v7, 1, v201'); e('v_lshl_add_u32 v205, v7, 1, v205')
    e('s_mul_i32 s18, %s, %d'%(s(sWV),NA)); e('s_cmp_eq_u32 %s, 3'%s(sWV)); e('s_cselect_b32 s18, %d, s18'%(36-NB))
    for i in range(4):
        e('s_add_u32 s16, s18, %d'%i); e('s_and_b32 s17, s16, 3'); e('s_lshr_b32 s16, s16, 2'); e('s_lshl_b32 s16, s16, 7')
        e('v_xor_b32 v7, s17, v205'); e('v_lshl_add_u32 v7, v7, 5, v204'); e('v_add_u32 %s, s16, v7'%v(88+i)); e('v_mov_b32 %s, %s'%(v(92+i),v(88+i)))
    e('v_lshrrev_b32 v7, 1, v200'); e('v_xor_b32 v7, v7, v201'); e('v_lshlrev_b32 v7, 4, v7')
    e('v_lshl_add_u32 v1, v200, 7, v7'); e('v_add_u32 v1, %d, v1'%XW0); e('s_lshl_b32 s16, s98, 6'); e('v_xor_b32 v1, s16, v1'); e('v_xor_b32 v2, 64, v1')
    e('v_mov_b32 v3, v1'); e('v_mov_b32 v4, v2')
    e('v_lshlrev_b32 v12, 4, v0')
    e('s_lshr_b32 s16, %s, 1'%s(sWV)); e('s_lshl_b32 s16, s16, 11'); e('s_add_u32 s16, s16, %d'%HB); e('v_add_u32 v9, s16, v12')
    e('v_lshl_add_u32 v204, v201, 2, v202'); e('v_bfe_u32 v205, v204, 1, 2'); e('v_lshlrev_b32 v204, 7, v204'); e('v_lshl_add_u32 v204, v203, 3, v204')
    e('s_and_b32 s16, %s, 1'%s(sWV)); e('s_lshl_b32 s16, s16, 1')
    for tb in range(2):
        e('s_add_u32 s17, s16, %d'%tb); e('v_xor_b32 v7, s17, v205'); e('v_lshl_add_u32 %s, v7, 5, v204'%v(10+tb))
    for i in range(16*NB): e('v_mov_b32 %s, 0'%v(ACC+i))
    for i in range(4*(NB-3),4*NA): e('v_mov_b32 %s, 0'%v(AF+i))
    for i in range(16): e('v_mov_b32 %s, 0'%v(XB+16+i))
    e('s_waitcnt lgkmcnt(0)')
    srd(sWS,62,WS_BYTES)
    e('s_lshl_b32 s16, s18, 11'); e('s_add_u32 s16, s16, %d'%HB); e('v_add_u32 v8, s16, v12')
    e('s_mov_b32 s64, 0'); e('s_mov_b32 s65, 0'); e('s_mov_b32 s66, 1')
    INMAIN=True
    if MPRIO: e('s_setprio 3')
    spins=[]
    def check(seq,thr,vaddr=109):
        L=lab('SP'); R=L+'R'
        seq.append(('need',['F'])); seq.append(('i','v_cmp_gt_u32 vcc, %s, v110'%thr)); seq.append(('i','s_cbranch_vccnz '+L)); seq.append(('i',R+':'))
        spins.append((L,R,thr,vaddr))
    def conv(u,sg):
        a=ACC+32*u+4*sg; b=a+16
        if RM==1:
            L=[]
            for d,x in ((a,a),(a+1,a+2),(a+2,b),(a+3,b+2)):
                L+=['v_max_f32 %s, 0, %s'%(v(x),v(x)),'v_max_f32 %s, 0, %s'%(v(x+1),v(x+1)),'v_cvt_pk_bf16_f32 %s, %s, %s'%(v(d),v(x),v(x+1))]
            return L+['ds_write_b128 v8, %s offset:%d'%(v(a,4),u*4096+sg*1024)]
        if RM==2:
            return ['v_cvt_pk_bf16_f32 %s, %s, %s'%(v(d),v(x),v(x+1)) for d,x in ((a,a),(a+1,a+2),(a+2,b),(a+3,b+2))]+['s_nop 0','ds_write_b128 v8, %s offset:%d'%(v(a,4),u*4096+sg*1024)]
        if RM==3:
            return ['v_cvt_pk_bf16_f32 %s, %s, %s'%(v(d),v(x),v(x+1)) for d,x in ((a,a),(a+1,a+2),(a+2,b),(a+3,b+2))]+['v_pk_max_i16 %s, %s, 0'%(v(a+k),v(a+k)) for k in range(4)]+['s_nop 0']
        return ['v_cvt_pk_bf16_f32 %s, %s, %s'%(v(a),v(a),v(a+1)),'v_cvt_pk_bf16_f32 %s, %s, %s'%(v(a+1),v(a+2),v(a+3)),
                'v_cvt_pk_bf16_f32 %s, %s, %s'%(v(a+2),v(b),v(b+1)),'v_cvt_pk_bf16_f32 %s, %s, %s'%(v(a+3),v(b+2),v(b+3))]+['v_pk_max_i16 %s, %s, 0'%(v(a+k),v(a+k)) for k in range(4)]+[
                'ds_write_b128 v8, %s offset:%d'%(v(a,4),u*4096+sg*1024)]
    def step1(NT,p,last=False):
        seq=[('i','s_barrier')]
        R=[('A',0,0),('A',0,1)]+[('X',p,sg) for sg in range(4)]+[('A',t,r) for t in range(1,NT) for r in range(2)]
        extra=[]
        if not last:
            extra=['s_add_u32 s64, s64, %d'%SLOT,'s_cmp_eq_u32 s64, %d'%(3*SLOT),'s_cselect_b32 s64, 0, s64','s_add_u32 s66, s66, 1']+['v_add_u32 %s, s64, %s'%(v(92+i),v(88+i)) for i in range(4)]
            if p==1: extra+=['s_add_u32 s65, s65, 8192','s_and_b32 s65, s65, 32767','v_add_u32 v3, s65, v1','v_add_u32 v4, s65, v2']
            else: extra+=['s_cmp_eq_u32 s66, 18']
        cv=[]; nq=0
        ng=4*(NT+3) if last else 4*NT
        eb=len(R)+5
        def pop(n,ok):
            for _ in range(n):
                if cv and (ok or not cv[0].startswith('ds_')):
                    x=cv.pop(0)
                    seq.append(('lds','H',x) if x.startswith('ds_') else ('i',x))
        for g in range(ng):
            i,sg=divmod(g,4)
            if g<len(R):
                k,a,b=R[g]
                if k=='A': seq.append(('lds',R[g],'ds_read_b64_tr_b16 %s, %s offset:%d'%(v(AF+4*a+2*b,2),v(92+a%4),128*(a//4)+4608*b)))
                else: seq.append(('lds',R[g],'ds_read_b128 %s, %s offset:%d'%(v(XB+16*p+4*b,4),v(3+p),2048*b)))
            elif extra: seq.append(('i',extra.pop(0)))
            if last:
                if g==eb: seq.append(('need',[('A',NT-1,1)])); seq.append(('i','s_barrier'))
                if sg==0 and i>=6 and i%2==0:
                    cv+=[x for q in range(4) for x in conv(nq,q)]; nq+=1
                pop(CPG,g>=eb)
            if i<3: t,xb=NT-3+i,1-p
            else: t,xb=i-3,p
            seq.append(('need',[('A',t,0),('A',t,1),('X',xb,sg)]))
            seq.append(('i',mf(ACC+16*t+4*sg, AF+4*t, XB+16*xb+4*sg)))
        assert not extra
        if not last: seq.append(('need',[('A',NT-1,1)]))
        if last:
            assert len(cv)>=9
            while nq<NT//2:
                cv+=[x for q in range(4) for x in conv(nq,q)]; nq+=1
            pop(len(cv),True)
        return seq
    def phase1(NT,nm):
        s0=step1(NT,0); s1=step1(NT,1)
        s0e=s0
        if STAMP: s0e=s0[:1]+[('i','s_cmp_eq_u32 s66, 1'),('i','s_cbranch_scc0 %sNS'%nm),('i','s_memrealtime s[74:75]'),('i','s_memtime s[88:89]'),('i','s_waitcnt lgkmcnt(0)'),('i',nm+'NS:')]+s0[1:]
        e(nm+'L:')
        stream(s0e+[('i','s_cbranch_scc1 %sX'%nm)]+s1+[('i','s_branch %sL'%nm)],True)
        e(nm+'X:')
        stream(step1(NT,1,True),False,pre=s1+s0)
    e('s_cmp_ge_u32 %s, 2'%s(sWV)); e('s_cbranch_scc1 MBL')
    for i in range(16*NB,16*NA): e('v_mov_b32 %s, 0'%v(ACC+i))
    phase1(NA,'MA')
    e('s_branch M1_J')
    phase1(NB,'MB')
    e('M1_J:'); e('s_waitcnt vmcnt(0)')
    e('s_waitcnt lgkmcnt(0)')
    st(2); stc(9)
    e('v_mov_b32 v100, v9'); e('v_add_u32 v101, 36864, v9')
    e('s_barrier')
    H=112
    for k in range(18):
        for sg in range(2): e('ds_read_b128 %s, %s offset:%d'%(v(H+8*k+4*sg,4),v(100+k//9),(k%9)*4096+sg*1024))
        if E3A and k==12: e('s_waitcnt lgkmcnt(8)'); e('s_barrier')
    e('v_mov_b32 v102, v10'); e('v_mov_b32 v103, v11'); e('v_add_u32 v104, %d, v10'%SLOT); e('v_add_u32 v105, %d, v11'%SLOT)
    e('v_mov_b32 v106, v12'); e('v_mov_b32 v108, v13'); e('v_mov_b32 v109, v14')
    if TRACE: e('v_mov_b32 v1, 0'); e('v_mov_b32 v3, 0')
    e('v_mov_b32 v107, 20')
    e('ds_read_b32 v110, v109')
    WR=16; PA=64; QA=80; PK=8
    e('s_mov_b32 s64, %d'%(2*SLOT)); e('s_mov_b32 s65, 0'); e('s_mov_b32 s66, 19')
    e('s_mul_i32 s60, s2, 73728')
    e('s_lshl_b32 s61, %s, 11'%s(sWV)); e('s_add_u32 s60, s60, s61')
    e('s_mov_b32 s67, %d'%OOB)
    e('s_lshl_b32 s19, s2, 7'); e('s_lshl_b32 s61, %s, 2'%s(sWV)); e('s_add_u32 s19, s19, s61'); e('s_add_u32 s19, s19, %d'%FLP)
    e('s_mov_b32 s63, %d'%(FMASK<<1))
    e('v_mov_b32 v6, 0'); e('s_and_b32 s62, %s, %d'%(s(sC),NSITE-1))
    e('s_waitcnt lgkmcnt(0)'); e('s_barrier')
    st(3); stc(10)
    def mm2(kg,u):
        tb,sg=divmod(u,2)
        a=WR+8*(kg%6)+4*tb; b=H+8*kg+4*sg
        if kg<9: return mf(PA+8*tb+4*sg,a,b,'0' if kg==0 else None)
        return mf(QA+8*tb+4*sg,a,b,PA+8*tb+4*sg if kg==9 else None)
    def packq(final=False):
        L=[]
        for sg in range(2):
            for tb in range(2):
                for h in range(2):
                    q=QA+8*tb+4*sg+2*h
                    L.append('v_cvt_pk_bf16_f32 %s, %s, %s'%(v(PK+4*sg+2*tb+h),v(q),v(q+1)))
            if final: L.append('ds_write_b128 v7, %s offset:%d'%(v(PK+4*sg,4),1024*sg))
            else: L.append('buffer_store_dwordx4 %s, v106, %s, s67 offen offset:%d sc1'%(v(PK+4*sg,4),s(sWS,4),1024*sg))
        return L
    body=[]
    for hc in range(2):
        check(body,'s66')
        R=[(9*hc+k,tb,r) for k in range(9) for tb in range(2) for r in range(2)]
        ex={}
        if hc==0:
            cv=[x for x in packq() if x.startswith('v_cvt')]
            for i,x in enumerate(cv): ex[16+i]=[x]
            ex[2]=['v_add_u32 v104, s64, v104']; ex[3]=['v_add_u32 v105, s64, v105']; ex[4]=['s_sub_u32 s64, 0, s64']; ex[5]=['s_add_u32 s66, s66, 1']

        else:
            L=['v_add_u32 v102, s64, v102','v_add_u32 v103, s64, v103','s_add_u32 s66, s66, 1',
               's_add_u32 s61, s65, s15','s_and_b32 s61, s61, 7','s_cmp_eq_u32 s65, 0','s_cselect_b32 s61, 8, s61',
               's_lshl_b32 s61, s61, 13']
            for i,x in enumerate(L): ex[2+i]=[x]
            ex[26]=['s_add_u32 s67, s60, s61']; ex[30]=['s_cmp_eq_u32 s65, 8','s_cselect_b32 s62, 0, s62']
            ex[27]=['v_mov_b32 v6, s65']; ex[28]=['s_add_u32 s65, s65, 1']; ex[33]=['s_cmp_lt_u32 s65, 9']
            if FEARLY: ex[32]=['s_bitcmp1_b32 s63, s65','s_cbranch_scc1 M2_FL','M2_FR:']
        sites=[(0,25),(1,1),(1,13),(1,25)][:NSITE]
        for n,(h,g) in enumerate(sites):
            if h==hc:
                ex.setdefault(g,[]); ex[g]=ex[g]+['s_cmp_eq_u32 s62, %d'%n,'s_cbranch_scc1 M2_ST%d'%n,'M2_SR%d:'%n]
        for g in range(36):
            i,u=divmod(g,4)
            k,tb,r=R[g]
            body.append(('lds',R[g],'ds_read_b64_tr_b16 %s, %s offset:%d'%(v(WR+8*(k%6)+4*tb+2*r,2),v(102+2*hc+tb),(k%9)*4096+r*2048)))
            if g==30: body.append(('lds','F','ds_read_b32 v110, v109'))
            if g==34: body.append(('i','v_add_u32 v107, 1, v107'))
            if g==35: body.append(('lds','C','ds_write_b32 v108, v107'))
            for x in ex.get(g,[]): body.append(('i',x))
            kg=(9*hc+i-3)%18
            body.append(('need',[(kg,u//2,0),(kg,u//2,1)]))
            body.append(('i',mm2(kg,u)))
    e('v_add_u32 v104, s64, v104'); e('v_add_u32 v105, s64, v105'); e('s_sub_u32 s64, 0, s64')
    e('M2_L:')
    stream(body,True)
    e('s_cbranch_scc1 M2_L')
    e('s_lshl_b32 s61, %s, 11'%s(sWV)); e('s_add_u32 s61, s61, %d'%QH); e('v_add_u32 v7, s61, v106')
    e('s_waitcnt lgkmcnt(0)')
    for kg in (15,16,17):
        for u in range(4): e(mm2(kg,u))
    if not FEARLY: e('s_waitcnt vmcnt(0)'); e('s_mov_b64 exec, 1'); e('buffer_store_dword v6, v5, %s, s19 offen sc1'%s(sWS,4)); e('s_mov_b64 exec, -1')
    e('s_nop 7')
    for x in packq(True): e(x)
    e('v_add_u32 v107, 1, v107'); e('ds_write_b32 v108, v107')
    INMAIN=False
    if STAMP:
        st(4); stc(11); st_flush(12,0)
        if TRACE: trace_flush(1,3)
    e('s_waitcnt lgkmcnt(0)')
    e('s_endpgm')
    e('M2_FL:'); e('s_waitcnt vmcnt(0)'); e('s_mov_b64 exec, 1'); e('buffer_store_dword v6, v5, %s, s19 offen sc1'%s(sWS,4)); e('s_mov_b64 exec, -1'); e('s_branch M2_FR')
    for n in range(NSITE):
        e('M2_ST%d:'%n)
        if not FEARLY: e('s_waitcnt vmcnt(0)'); e('s_mov_b64 exec, 1'); e('buffer_store_dword v6, v5, %s, s19 offen sc1'%s(sWS,4)); e('s_mov_b64 exec, -1')
        for x in packq():
            if x.startswith('buffer') and not NOST: e(x)
        e('s_branch M2_SR%d'%n)
    for (L,R,thr,va) in spins:
        e(L+':')
        tr=TRACE and thr=='s66'
        if tr:
            e('s_memtime s[96:97]'); e('s_waitcnt lgkmcnt(0)'); e('s_mov_b32 m0, s66'); e('s_nop 3'); e('v_writelane_b32 v1, s96, m0'); L=L+'b'; e(L+':')
        e('ds_read_b32 v110, %s'%v(va))
        e('s_add_u32 s99, s99, 1'); e('s_cmp_gt_u32 s99, 0x100000'); e('s_cbranch_scc1 K_END'); e('s_waitcnt lgkmcnt(0)')
        e('v_cmp_gt_u32 vcc, %s, v110'%thr); e('s_cbranch_vccnz '+L)
        if tr: e('s_memtime s[96:97]'); e('s_waitcnt lgkmcnt(0)'); e('v_writelane_b32 v3, s96, m0')
        e('s_branch '+R)

assert all((L*57)>>9==L//9 for L in range(288))
assert all((L*57)>>11==L//36 for L in range(289))
out.append('; @launch grid=(256,1,1) block=(512,1,1) lds=163840')
out.append('.amdgcn_target "amdgcn-amd-amdhsa--gfx950"')
out.append('.text'); out.append('.globl '+NAME)
kernel()
out.append('.section .rodata,"a"'); out.append('.p2align 6')
out.append('.amdhsa_kernel '+NAME)
for l in ['next_free_vgpr 256','next_free_sgpr 100','accum_offset 256','group_segment_fixed_size 0','kernarg_size 96','user_sgpr_count 2','user_sgpr_kernarg_segment_ptr 1','system_sgpr_workgroup_id_x 1']:
    out.append('  .amdhsa_'+l)
out.append('.end_amdhsa_kernel')
print('\n'.join(out))
```

```python
import sys, struct
A=sys.argv
STAMP='--stamp' in A; NODMA='--nodma' in A; NOMFMA='--nomfma' in A; NOREAD='--noread' in A; NOPRIO='--noprio' in A; NOTX='--notx' in A; NORED='--nored' in A; NOST='--nost' in A; NOU='--nou' in A; NOXW='--noxw' in A; TRACE='--trace' in A; MPRIO='--mprio' in A; SLP='--slp' in A; opt=lambda n,d: int([x for x in A if x.startswith('--'+n+'=')][0].split('=')[1]) if any(x.startswith('--'+n+'=') for x in A) else d
PRE=opt('pre',2); AP2=opt('ap2',0); USLP=opt('uslp',30); PSLP=opt('pslp',12); UPACE=opt('upace',8); PPACE=opt('ppace',1); LP=opt('lp',3); AP=opt('ap',2); LP2=opt('lp2',0); LP1=opt('lp1',3); EARLY=opt('early',0); RM=0; XUP=opt('xup',0); CROT=opt('crot',1); FMASK=opt('fmask',0x1c8); JROT=opt('jrot',1); PK=0; TAG=0; FEARLY=opt('fearly',1); T2=0; CT=opt('ct',0); IW=opt('iw',1); LAY=opt('lay',1); TW=opt('tw',1); DIAG=opt('diag',0); NA=10; NB=8; CPG=opt('cpg',2); PUB1=opt('pub1',12); OSC=opt('osc',0); LATE=opt('late',35); USTG=opt('ustg',0); NSITE=opt('nsite',1); XSTG=opt('xstg',2); E3A=opt('e3a',0)
DBGT='--dbgt' in A; NOSW='--nosw' in A; WSPLIT=0 if '--nowsplit' in A else 1
NAME='gated_mix__spectral_fnet__dense_activation_relu__prompt_kernel'
out=[]; INMAIN=False
def e(s=''):
    if NODMA and s.endswith(' lds') and ('s[20:23]' in s or 's[24:27]' in s): return
    if (NOPRIO or MPRIO) and s.startswith('s_setprio') and not INMAIN: return
    if INMAIN and NOST and s.startswith('buffer_store_dword'): return
    if NOU and s.startswith('buffer_load_dword v') and 's17 offen sc1' in s: return
    if NOXW and s.endswith(' lds') and ('s[8:11]' in s or 's[12:15]' in s): return
    if INMAIN and NOMFMA and s.startswith('v_mfma'): return
    out.append('    '+s if s and not s.endswith(':') else s)
def v(n,c=1): return 'v%d'%n if c==1 else 'v[%d:%d]'%(n,n+c-1)
def s(n,c=1): return 's%d'%n if c==1 else 's[%d:%d]'%(n,n+c-1)
def f2u(x): return struct.unpack('<I',struct.pack('<f',float(x)))[0]

SLOT=36864; XW0=110592; XWS=18432; HB=73728
MISC=147456; QH=MISC; LND=MISC+8192; CNS=LND+4*256; GL=CNS+6*256
GWL=LND+3072; MX=GWL+1152
U_OFF=0x1400000; FLP=0x1800000; FLU=0x1810000; ST_OFF=0x1900000; WS_BYTES=0x1B00000
BIG=0x7fffffff; OOB=0x40000000
sX,sWH,sW1,sW2,sGW,sWS,sOUT,sDBG=8,12,20,24,28,32,36,40
sJ,sC,sWV,sROT=3,4,5,6
SPINMAX=0x8000

def srd(d,base,nbytes):
    e('s_mov_b32 %s, %s'%(s(d),s(base))); e('s_mov_b32 %s, %s'%(s(d+1),s(base+1)))
    e('s_mov_b32 %s, %d'%(s(d+2),nbytes)); e('s_mov_b32 %s, 0x20000'%s(d+3))
def mf(d,a,b,c=None):
    return 'v_mfma_f32_16x16x32_bf16 %s, %s, %s, %s'%(v(d,4),v(a,4),v(b,4), v(d,4) if c is None else (c if isinstance(c,str) else v(c,4)))
def mfma(*a): e(mf(*a))
def st(slot):
    if STAMP: e('s_memrealtime %s'%s(72+2*slot,2))
def stc(slot):
    if STAMP: e('s_memtime %s'%s(72+2*slot,2))
def st_flush(n,base_row):
    if not STAMP: return
    e('s_waitcnt lgkmcnt(0)')
    e('s_lshl_b32 s68, s2, 3'); e('s_add_u32 s68, s68, %s'%s(sWV)); e('s_lshl_b32 s68, s68, 7'); e('s_add_u32 s68, s68, %d'%ST_OFF)
    e('v_mov_b32 v2, 0')
    for i in range(n):
        e('v_mov_b32 v4, %s'%s(72+2*i)); e('v_mov_b32 v5, %s'%s(73+2*i))
        e('buffer_store_dwordx2 v[4:5], v2, %s, s68 offen offset:%d'%(s(sWS,4),8*i)); e('s_nop 1')
def trace_flush(a,b):
    e('s_lshl_b32 s68, s2, 3'); e('s_add_u32 s68, s68, %s'%s(sWV)); e('s_lshl_b32 s68, s68, 9'); e('s_add_u32 s68, s68, %d'%(ST_OFF+0x40000))
    e('v_lshlrev_b32 v2, 2, v0')
    e('buffer_store_dword %s, v2, %s, s68 offen'%(v(a),s(sWS,4))); e('buffer_store_dword %s, v2, %s, s68 offen offset:256'%(v(b),s(sWS,4)))
_lab=[0]
def lab(p): _lab[0]+=1; return '%s%d'%(p,_lab[0])
def lds_wait(vaddr,vtmp,thr):
    L=lab('W')
    e(L+':')
    if SLP and not INMAIN: e('s_sleep 2')
    e('ds_read_b32 %s, %s'%(v(vtmp),v(vaddr)))
    e('s_add_u32 s99, s99, 1'); e('s_cmp_gt_u32 s99, 0x100000'); e('s_cbranch_scc1 K_END'); e('s_waitcnt lgkmcnt(0)')
    e('v_cmp_gt_u32 vcc, %s, %s'%(thr,v(vtmp))); e('s_cbranch_vccnz '+L)

def stream(seq, cyclic, pre=None):
    hist=[]; done=0
    def run(sq,emit):
        nonlocal done
        for it in sq:
            if it[0]=='lds':
                hist.append(it[1])
                if emit and not (NOREAD and it[2].startswith('ds_read_b64_tr')): e(it[2])
            elif it[0]=='need':
                idx=-1
                for t in it[1]:
                    k=[i for i,x in enumerate(hist) if x==t]
                    if k: idx=max(idx,k[-1])
                    else: assert not emit, t
                if idx+1>done:
                    n=min(len(hist)-1-idx,15)
                    if emit: e('s_waitcnt lgkmcnt(%d)'%(0 if NOREAD else n))
                    done=len(hist)-n
            elif emit: e(it[1])
    if cyclic: run(seq,False)
    if pre is not None: run(pre,False)
    run(seq,True)

def kernel():
    e('.p2align 8'); e('.type %s,@function'%NAME); e(NAME+':')
    e('s_cmp_ge_u32 s2, 256'); e('s_cbranch_scc1 K_END')
    st(0)
    if DBGT or DIAG: e('s_memrealtime s[72:73]')
    e('s_load_dwordx2 s[44:45], s[0:1], 0')
    e('s_load_dwordx4 s[48:51], s[0:1], 24')
    e('s_load_dwordx4 s[52:55], s[0:1], 48')
    e('s_load_dwordx8 s[56:63], s[0:1], 64')
    if IW:
        e('s_getpc_b64 s[16:17]'); e('IWP:')
        e('s_sub_u32 s16, s16, IWP-%s'%NAME); e('s_subb_u32 s17, s17, 0')
        e('s_andn2_b32 s18, s2, 7'); e('s_lshl_b32 s18, s18, 7')
        e('v_lshl_add_u32 v3, v0, 1, s18'); e('v_min_u32 v3, K_END-%s, v3'%NAME)
        e('s_mov_b64 exec, 1'); e('global_load_dword v15, v3, s[16:17]'); e('s_mov_b64 exec, -1')
    e('s_mov_b32 s99, 0')
    e('v_lshrrev_b32 v1, 6, v0')
    e('s_and_b32 %s, s2, 7'%s(sJ)); e('s_lshr_b32 %s, s2, 3'%s(sC))
    e('v_readfirstlane_b32 %s, v1'%s(sWV))
    e('v_and_b32 v0, 63, v0')
    e('s_mul_i32 s6, %s, 57'%s(sC)); e('s_lshr_b32 s6, s6, 9'); e('s_and_b32 s98, s6, %d'%(0 if NOSW else 1)); e('s_mul_i32 s6, s6, 9'); e('s_sub_u32 s6, %s, s6'%s(sC))
    if JROT: e('s_add_u32 s6, s6, %s'%s(sJ)); e('s_sub_u32 s7, s6, 9'); e('s_cmp_ge_u32 s6, 9'); e('s_cselect_b32 s6, s7, s6')
    e('s_add_u32 s15, %s, %s'%(s(sJ),s(sC) if CROT else '0')); e('s_and_b32 s15, s15, 7')
    e('s_cmp_ge_u32 %s, 6'%s(sWV)); e('s_cbranch_scc1 K_AUX')
    e('s_cmp_ge_u32 %s, 4'%s(sWV)); e('s_cbranch_scc0 K_MAIN')
    loader(); aux()
    global out
    tail=[]
    if LAY:
        k=out.index('AX_D:'); tail=out[k:]; del out[k:]
    main()
    out.extend(tail)
    e('K_END:'); e('s_endpgm')

def loader():
    e('s_setprio %d'%LP)
    e('s_sub_u32 s7, %s, 4'%s(sWV))
    e('v_lshrrev_b32 v1, 3, v0'); e('v_and_b32 v2, 7, v0')
    e('v_lshrrev_b32 v4, 1, v2')
    e('v_and_b32 v5, 1, v2'); e('v_lshlrev_b32 v5, 4, v5')
    e('s_movk_i32 s16, %d'%(9216-1152))
    for p in range(9):
        e('v_add_u32 v6, %d, v1'%(8*p))
        e('v_mul_u32_u24 v7, 57, v6'); e('v_lshrrev_b32 v7, 9, v7')
        e('v_bfe_u32 v9, v7, 1, 1'); e('v_xor_b32 v9, v9, v4')
        e('v_lshl_add_u32 v6, v6, 7, v5')
        e('v_mad_u32_u24 v6, v7, s16, v6')
        e('v_lshl_add_u32 v6, v9, 5, v6')
        e('v_xor_b32 v7, 64, v6')
        e('v_subrev_u32 %s, %d, v6'%(v(16+p),(p%4)*1024))
        e('v_add_u32 %s, %d, v7'%(v(25+p),8*9216-((p+9)%4)*1024))
    e('v_lshrrev_b32 v6, 1, v1'); e('v_and_b32 v6, 3, v6'); e('v_lshlrev_b32 v6, 1, v6'); e('v_xor_b32 v6, v6, v2')
    e('s_movk_i32 s69, 1152'); e('v_mul_u32_u24 v7, s69, v1'); e('v_lshl_add_u32 v36, v6, 4, v7')
    for i in range(1,4): e('v_add_u32 %s, %d, v36'%(v(36+i),i*8192))
    e('s_mul_i32 s64, s7, 18432')
    e('s_mul_i32 s17, %s, 1152'%s(sJ)); e('s_mul_i32 s18, s7, %d'%(16*9216)); e('s_add_u32 s17, s17, s18')
    e('s_lshl_b32 s18, s6, 1')
    e('s_xor_b32 s66, s18, s98'); e('s_mul_i32 s66, s66, %d'%(32*9216)); e('s_add_u32 s66, s66, s17')
    e('s_mov_b32 s67, s64')
    e('s_mov_b32 s68, 0'); e('s_mov_b32 s69, -2')
    e('s_mul_i32 s70, %s, 576'%s(sJ)); e('s_mul_i32 s71, s7, 144'); e('s_add_u32 s70, s70, s71'); e('s_mul_i32 s70, s70, 1152')
    e('s_lshl_b32 s19, s7, 8'); e('s_add_u32 s19, s19, %d'%LND)
    e('v_lshlrev_b32 v11, 2, v0'); e('v_add_u32 v11, s19, v11'); e('v_mov_b32 v10, 0'); e('v_mov_b32 v13, 0'); e('v_mov_b32 v40, 0'); e('v_mov_b32 v41, 0')
    e('v_and_b32 v12, 3, v0'); e('v_mul_u32_u24 v12, 260, v12'); e('v_add_u32 v12, %d, v12'%CNS)
    e('s_waitcnt lgkmcnt(0)')
    srd(sW1,52,5308416); srd(sW2,54,5308416)
    if STAMP: srd(sWS,62,WS_BYTES)
    PUB=12
    def dma(ph,p):
        if p%4==0 and p:
            e('s_add_u32 m0, s67, %d'%(p*1024))
            if ph==2: e('s_add_u32 s66, s66, %d'%(32*1152))
            else: e('s_nop 0')
        if ph==1: e('buffer_load_dwordx4 %s, %s, s66 offen offset:%d lds'%(v(16+p),s(sW1,4),(p%4)*1024))
        else: e('buffer_load_dwordx4 %s, %s, s66 offen offset:%d lds'%(v(36+p%4),s(sW2,4),(p%4)*1024))
    def grp(fill):
        groups=[]; i=0
        while i<len(fill):
            if fill[i].startswith('s_cmp'): groups.append(fill[i:i+2]); i+=2
            else: groups.append([fill[i]]); i+=1
        return groups
    def tr_top():
        if TRACE: e('s_memtime s[96:97]'); e('s_waitcnt lgkmcnt(0)'); e('s_mov_b32 m0, s68'); e('s_nop 3'); e('v_writelane_b32 v40, s96, m0'); e('v_writelane_b32 v42, s92, m0'); e('v_writelane_b32 v43, s94, m0')
    e('s_setprio %d'%LP1)
    e('LD_P:'); tr_top()
    e('s_mov_b32 m0, s67'); e('s_nop 0')
    g=grp(['s_add_u32 s18, s18, 1','s_cmp_eq_u32 s18, 18','s_cselect_b32 s18, 0, s18','s_xor_b32 s44, s18, s98','s_mul_i32 s44, s44, %d'%(32*9216),'s_add_u32 s44, s44, s17',
           's_add_u32 s45, s67, %d'%SLOT,'s_cmp_ge_u32 s45, %d'%(3*SLOT),'s_cselect_b32 s45, s64, s45'])
    for p in range(18):
        if p==PUB:
            e('s_cmp_eq_u32 s68, 0'); e('s_cbranch_scc1 LD_P0')
            if TRACE: e('s_memtime s[92:93]')
            e('s_waitcnt vmcnt(%d)'%PUB)
            if TRACE: e('s_memtime s[94:95]')
            e('s_barrier')
            e('LD_P0:')
        dma(1,p)
        if g:
            for x in g.pop(0): e(x)
    e('s_mov_b32 s66, s44'); e('s_mov_b32 s67, s45')
    e('s_add_u32 s68, s68, 1'); e('s_cmp_lt_u32 s68, 18'); e('s_cbranch_scc1 LD_P')
    e('s_add_u32 s66, s70, 1024'); e('s_mov_b32 s69, 0'); e('s_setprio %d'%LP2)
    e('LD_Q:'); tr_top()
    e('s_waitcnt lgkmcnt(1)'); e('v_cmp_gt_u32 vcc, s69, v13'); e('s_mov_b32 m0, s67'); e('s_cbranch_vccnz LD_QS')
    e('LD_QR:')
    g=grp(['s_sub_u32 s46, s68, 17','s_lshr_b32 s44, s46, 1','s_add_u32 s47, s44, s15','s_and_b32 s47, s47, 7','s_cmp_eq_u32 s44, 0','s_cselect_b32 s47, 8, s47',
           's_lshl_b32 s47, s47, 7','s_and_b32 s44, s46, 1','s_mul_i32 s44, s44, %d'%(288*1152),'s_add_u32 s44, s44, s47','s_add_u32 s44, s44, s70',
           's_add_u32 s45, s67, %d'%SLOT,'s_cmp_ge_u32 s45, %d'%(4*SLOT),'s_cselect_b32 s45, s64, s45',
           's_cmp_le_u32 s68, 20','s_cselect_b32 s69, 0, s68'])
    for p in range(18):
        if p==PUB:
            e('v_mov_b32 v10, s68')
            if TRACE: e('s_memtime s[92:93]')
            e('s_waitcnt vmcnt(%d)'%PUB)
            e('s_cmp_eq_u32 s68, 18'); e('s_cbranch_scc0 LD_Q0'); e('s_barrier'); e('LD_Q0:')
            if TRACE: e('s_memtime s[94:95]')
            e('ds_read_b32 v13, v12'); e('ds_write_b32 v11, v10')
        if E3A and p==E3A: e('s_cmp_eq_u32 s68, 20'); e('s_cbranch_scc0 LD_Q1'); e('s_barrier'); e('LD_Q1:')
        dma(2,p)
        if g:
            for x in g.pop(0): e(x)
    assert not g
    e('s_mov_b32 s66, s44'); e('s_mov_b32 s67, s45')
    e('s_add_u32 s68, s68, 1'); e('s_cmp_le_u32 s68, 20'); e('s_cbranch_scc1 LD_E')
    e('s_cmp_lt_u32 s68, 36'); e('s_cbranch_scc1 LD_Q')
    e('v_mov_b32 v10, s68'); e('s_waitcnt vmcnt(0)'); e('ds_write_b32 v11, v10')
    if STAMP: st(1); st_flush(2,0)
    if TRACE:
        e('s_cmp_eq_u32 s7, 0'); e('s_cbranch_scc1 TRX'); e('v_mov_b32 v41, v43'); e('v_mov_b32 v40, v42'); e('TRX:')
        trace_flush(40,41)
    e('s_waitcnt lgkmcnt(0)')
    e('s_endpgm')
    e('LD_E:')
    if not EARLY:
        e('s_barrier')
        e('s_cmp_eq_u32 s68, 20'); e('s_cbranch_scc1 LD_Q')
        e('v_mov_b32 v10, s68'); e('s_waitcnt vmcnt(0)'); e('ds_write_b32 v11, v10'); e('s_waitcnt lgkmcnt(0)')
        e('s_barrier'); e('s_branch LD_Q')
    else:
        e('s_cmp_eq_u32 s68, 19'); e('s_cbranch_scc1 LD_E1')
        e('v_mov_b32 v10, s68'); e('s_waitcnt vmcnt(0)'); e('ds_write_b32 v11, v10'); e('s_waitcnt lgkmcnt(0)')
        e('s_barrier')
        e('LD_E1:')
        e('s_barrier'); e('s_branch LD_Q')
    e('LD_QS:')
    e('ds_read_b32 v13, v12'); e('s_waitcnt lgkmcnt(0)'); e('v_cmp_gt_u32 vcc, s69, v13'); e('s_cbranch_vccz LD_QR')
    e('v_mov_b32 v10, s68'); e('s_waitcnt vmcnt(0)'); e('ds_write_b32 v11, v10')
    lds_wait(12,13,'s69')
    if TRACE: e('s_memtime s[96:97]'); e('s_waitcnt lgkmcnt(0)'); e('s_mov_b32 m0, s68'); e('s_nop 3'); e('v_writelane_b32 v41, s96, m0'); e('s_mov_b32 m0, s67')
    e('s_branch LD_QR')

def aux():
    e('K_AUX:')
    e('s_setprio %d'%AP)
    e('s_sub_u32 s7, %s, 6'%s(sWV))
    e('v_lshrrev_b32 v1, 3, v0'); e('v_and_b32 v2, 7, v0'); e('v_lshrrev_b32 v3, 1, v1')
    e('v_xor_b32 v4, v2, v3'); e('v_lshlrev_b32 v4, 4, v4'); e('v_xor_b32 v5, 64, v4')
    e('s_mov_b32 s16, 73728'); e('v_mul_u32_u24 v6, s16, v1')
    for p in range(4):
        e('v_add_u32 %s, v6, %s'%(v(16+p),'v5' if p%2 else 'v4'))
        if p: e('v_add_u32 %s, %d, %s'%(v(16+p),p*(8*73728-1024),v(16+p)))
    e('v_lshlrev_b32 v25, 4, v0')
    e('s_movk_i32 s17, 1152'); e('v_and_b32 v8, 31, v0'); e('v_mul_u32_u24 v7, 57, v8'); e('v_lshrrev_b32 v62, 9, v7'); e('v_mul_u32_u24 v7, 9, v62'); e('v_sub_u32 v7, v8, v7'); e('v_mul_u32_u24 v24, s17, v7'); e('v_lshrrev_b32 v7, 5, v0'); e('v_lshl_add_u32 v24, v7, 6, v24')
    e('s_lshl_b32 s18, s7, 5'); e('s_add_u32 s18, s18, %s'%s(sC)); e('s_mul_i32 s18, s18, 1152')
    e('s_mul_i32 s19, %s, 576'%s(sJ)); e('s_mul_i32 s64, %s, 18'%s(sC)); e('s_add_u32 s19, s19, s64')
    e('s_mul_i32 s64, s7, 9'); e('s_add_u32 s19, s19, s64'); e('s_mul_i32 s19, s19, 1152')
    e('s_mov_b32 s64, s6')
    e('s_lshl_b32 s69, s7, 12'); e('s_lshl_b32 s70, s7, 10'); e('s_add_u32 s65, s69, %d'%XW0)
    e('s_waitcnt lgkmcnt(0)')
    if DIAG==4: e('s_memrealtime s[74:75]')
    srd(sX,44,2359296); srd(sGW,56,1152)
    def issueX(h):
        if h==0: e('s_lshl_b32 s67, s64, 7'); e('s_add_u32 s67, s67, s18')
        e('s_mov_b32 m0, s65'); e('s_nop 0')
        for p in (2*h,2*h+1): e('buffer_load_dwordx4 %s, %s, s67 offen offset:%d lds'%(v(16+p),s(sX,4),p*1024))
        if h==1:
            e('s_add_u32 s64, s64, 1'); e('s_cmp_eq_u32 s64, 9'); e('s_cselect_b32 s64, 0, s64')
            e('s_add_u32 s65, s65, 8192'); e('s_sub_u32 s66, s65, 32768'); e('s_cmp_ge_u32 s65, %d'%(XW0+32768)); e('s_cselect_b32 s65, s66, s65')
    issueX(0); issueX(1)
    e('s_add_u32 m0, s70, %d'%GWL); e('s_cmp_eq_u32 s7, 0'); e('s_cselect_b32 exec_lo, -1, 0xff'); e('s_cselect_b32 exec_hi, -1, 0')
    e('buffer_load_dwordx4 v25, %s, s70 offen lds'%s(sGW,4))
    e('s_mov_b64 exec, -1')
    srd(sW2,54,5308416); srd(sWS,62,WS_BYTES); srd(sOUT,58,2359296); srd(sDBG,60,256)
    FC,FS,FN=112,120,128; GF=136; SEL=200; UO=208; MK=212; TR=216; PO=220; GG=224; L16=228; PL1=229; PL2=230; L0=231
    e('v_and_b32 v8, 15, v0'); e('v_lshrrev_b32 v9, 4, v0')
    e('v_mov_b32 %s, 0'%v(L0))
    e('s_lshl_b32 s71, s2, 1'); e('s_add_u32 s71, s71, s7'); e('s_lshl_b32 s71, s71, 2'); e('s_add_u32 s71, s71, %d'%FLU)
    e('s_or_b32 s14, %s, s7'%s(sC)); e('s_cmp_eq_u32 s14, 0'); e('s_cbranch_scc0 AX_NZ')
    for i in range(4): e('v_mov_b32 v%d, 0'%(56+i))
    e('v_lshlrev_b32 v12, 10, v0'); e('v_lshlrev_b32 v13, 6, v0')
    e('s_lshl_b32 s48, %s, 7'%s(sJ)); e('s_add_u32 s48, s48, %d'%FLP); e('s_lshl_b32 s49, %s, 3'%s(sJ)); e('s_add_u32 s49, s49, %d'%FLU)
    e('s_mov_b32 exec_hi, 0')
    e('buffer_store_dwordx4 v[56:59], v12, %s, s48 offen sc1'%s(sWS,4)); e('buffer_store_dwordx2 v[56:57], v13, %s, s49 offen sc1'%s(sWS,4))
    e('s_mov_b64 exec, -1')
    e('AX_NZ:')
    e('v_lshrrev_b32 v10, 1, v8'); e('v_xor_b32 v10, v10, v9'); e('v_lshlrev_b32 v10, 4, v10')
    e('v_lshl_add_u32 v20, v8, 7, v10'); e('v_add_u32 v20, %d, v20'%XW0); e('v_xor_b32 v21, 64, v20')
    e('v_mov_b32 v26, v20'); e('v_mov_b32 v27, v21'); e('v_add_u32 v28, s69, v20'); e('v_add_u32 v29, s69, v21')
    e('v_lshlrev_b32 v22, 4, v9'); e('v_add_u32 v22, %d, v22'%GWL); e('s_lshl_b32 s68, s6, 7'); e('v_add_u32 v23, s68, v22')
    e('s_lshl_b32 s44, s7, 11')
    ACC=64; TM=136; WA=176; RC=232
    for i in list(range(8))+list(range(16,24))+list(range(32,40)): e('v_mov_b32 %s, 0'%v(TM+i))
    for i in list(range(8,16))+list(range(24,32)): e('v_mov_b32 %s, 0'%v(ACC+i))
    e('s_sub_u32 s48, s6, 1'); e('s_cmp_eq_u32 s6, 0'); e('s_cselect_b32 s48, 8, s48'); e('s_lshl_b32 s48, s48, 6')
    e('v_lshlrev_b32 v11, 3, v9'); e('v_add_u32 v11, s48, v11'); e('v_cvt_f32_u32 v11, v11')
    e('s_mul_i32 s49, %s, 36'%s(sJ)); e('s_lshl_b32 s50, s7, 4'); e('s_add_u32 s50, s50, s49'); e('s_add_u32 s49, s49, 32')
    for mix in range(2):
        if mix==0: e('v_add_u32 v12, s50, v8')
        else: e('v_and_b32 v12, 7, v8'); e('v_add_u32 v12, s49, v12')
        e('v_cvt_f32_u32 v12, v12'); e('v_mul_f32 v10, 0x%08x, v12'%f2u(1/9.)); e('v_mul_f32 v12, 0x%08x, v12'%f2u(1/576.)); e('v_mul_f32 v13, v12, v11')
        e('v_cos_f32 %s, v10'%v(RC+2*mix)); e('v_sin_f32 %s, v10'%v(RC+2*mix+1))
        if mix:
            e('v_cmp_gt_u32 vcc, 8, v8'); e('v_add_f32 v4, 0x3e800000, v13'); e('v_sub_f32 v5, 0, %s'%v(RC+3))
            e('v_cndmask_b32 v13, v4, v13, vcc'); e('v_cndmask_b32 %s, %s, v5, vcc'%(v(RC+3),v(RC+3)))
            e('v_cmp_eq_u32 vcc, 5, v8'); e('v_mov_b32 v4, 1.0'); e('v_mov_b32 v5, 0')
            e('v_cndmask_b32 %s, %s, v4, vcc'%(v(RC+2),v(RC+2))); e('v_cndmask_b32 %s, %s, v5, vcc'%(v(RC+3),v(RC+3)))
        for kp in range(2):
            for jp in range(4):
                for u in range(2):
                    e('v_fmamk_f32 %s, v12, 0x%08x, v13'%(v(30+u),f2u(32*kp+2*jp+u))); e('v_fract_f32 %s, %s'%(v(30+u),v(30+u)))
                e('v_cos_f32 v32, v30'); e('v_cos_f32 v33, v31')
                if mix==0:
                    e('v_sin_f32 v34, v30'); e('v_sin_f32 v35, v31')
                    e('v_cvt_pk_bf16_f32 %s, v32, v33'%v(WA+4*kp+jp)); e('v_cvt_pk_bf16_f32 %s, -v34, -v35'%v(WA+8+4*kp+jp))
                else:
                    e('s_nop 0'); e('v_cvt_pk_bf16_f32 %s, v32, v33'%v(WA+16+4*kp+jp))
    if PK:
        e('v_mov_b32 v60, %s'%v(RC+1)); e('v_mov_b32 v61, %s'%v(RC+1)); e('v_mov_b32 %s, %s'%(v(RC+1),v(RC)))
    global out
    save=out; parts=[]
    def begin():
        global out
        out=[]
    def end(): parts.append(out)
    begin()
    e('v_lshlrev_b32 v11, 2, v9'); e('v_cvt_f32_u32 v11, v11')
    for b in range(2):
        e('v_add_u32 v12, %d, v8'%(16*b)); e('v_cvt_f32_u32 v12, v12'); e('v_mul_f32 v12, 0x3d000000, v12'); e('v_mul_f32 v13, v12, v11')
        for jp in range(4):
            o=[(2*jp+u)%4+16*((2*jp+u)//4) for u in range(2)]
            for u in range(2): e('v_fmamk_f32 %s, v12, 0x%08x, v13'%(v(30+u),f2u(o[u])))
            e('v_cos_f32 v32, v30'); e('v_cos_f32 v33, v31'); e('v_sin_f32 v34, v30'); e('v_sin_f32 v35, v31')
            e('v_cvt_pk_bf16_f32 %s, v32, v33'%v(FC+4*b+jp)); e('v_cvt_pk_bf16_f32 %s, v34, v35'%v(FS+4*b+jp))
            e('v_xor_b32 %s, 0x80008000, %s'%(v(FN+4*b+jp),v(FS+4*b+jp)))
    end()
    for i in range(4):
        begin()
        e('s_lshr_b32 s48, %s, 2'%s(sJ)); e('s_lshl_b32 s48, s48, 1'); e('s_and_b32 s49, %s, 1'%s(sJ)); e('s_add_u32 s48, s48, s49')
        e('s_add_u32 s48, s48, %d'%i); e('s_and_b32 s48, s48, 3')
        e('v_lshlrev_b32 %s, 4, v0'%v(L16)); e('v_lshlrev_b32 v11, 1, v9'); e('v_cvt_f32_u32 v11, v11')
        e('s_lshl_b32 s49, s48, 6'); e('s_add_u32 s49, s49, %d'%GL); e('v_lshlrev_b32 v13, 2, v8'); e('v_add_u32 %s, s49, v13'%v(GG+i))
        e('s_lshr_b32 s49, s48, 1'); e('s_and_b32 s50, s48, 1')
        e('s_lshl_b32 s51, s49, 12'); e('s_lshl_b32 s52, s50, 10'); e('s_add_u32 s51, s51, s52'); e('v_add_u32 %s, s51, %s'%(v(PO+i),v(L16)))
        e('s_lshl_b32 s49, s49, 5'); e('s_add_u32 s49, s49, s52'); e('s_add_u32 s49, s49, %s'%s(sC))
        e('v_lshlrev_b32 v5, 6, v8'); e('v_add_u32 v6, s49, v5')
        e('v_cvt_f32_u32 v5, v6'); e('v_mul_f32 v5, 0x3a000000, v5'); e('v_mul_f32 v13, v5, v11')
        e('s_movk_i32 s49, 1152'); e('v_and_b32 v4, 1, v9'); e('v_lshlrev_b32 v4, 5, v4'); e('v_lshrrev_b32 v7, 1, v9'); e('v_lshl_add_u32 v4, v7, 4, v4')
        e('v_mad_u32_u24 %s, v6, s49, v4'%v(TR+i))
        for k in range(4):
            for u in range(2):
                for h in range(2): e('v_fmamk_f32 %s, v5, 0x%08x, v13'%(v(30+h),f2u(8*k+u+32*h)))
                e('v_cos_f32 v32, v30'); e('v_sin_f32 v33, v30'); e('v_cos_f32 v34, v31'); e('v_sin_f32 v35, v31')
                e('v_cvt_pk_bf16_f32 %s, v32, v33'%v(GF+16*i+4*k+2*u)); e('v_cvt_pk_bf16_f32 %s, v34, v35'%v(GF+16*i+4*k+2*u+1))
        end()
    begin()
    e('v_lshrrev_b32 v4, 2, v8'); e('v_cmp_eq_u32 vcc, v4, v9'); e('v_and_b32 v5, 1, v8'); e('v_lshlrev_b32 v5, 4, v5')
    e('v_mov_b32 v6, 0x3f80'); e('v_lshlrev_b32 v6, v5, v6'); e('v_cndmask_b32 v6, 0, v6, vcc')
    e('v_and_b32 v5, 2, v8'); e('v_cmp_eq_u32 vcc, 0, v5'); e('v_mov_b32 %s, 0'%v(SEL+2)); e('v_mov_b32 %s, 0'%v(SEL+3))
    e('v_cndmask_b32 %s, 0, v6, vcc'%v(SEL)); e('v_sub_u32 %s, v6, %s'%(v(SEL+1),v(SEL)))
    e('v_mov_b32 %s, 0'%v(SEL+4)); e('v_mov_b32 %s, 0'%v(SEL+5)); e('v_mov_b32 %s, %s'%(v(SEL+6),v(SEL))); e('v_mov_b32 %s, %s'%(v(SEL+7),v(SEL+1)))
    e('v_and_b32 v4, 1, v0'); e('v_lshlrev_b32 v4, 3, v4'); e('s_lshl_b32 s49, s7, 2'); e('v_add_u32 v4, s49, v4'); e('v_bfe_u32 v5, v0, 1, 3'); e('v_lshl_add_u32 %s, v5, 7, v4'%v(PL1))
    e('v_sub_u32 v5, %s, v5'%s(sJ)); e('v_and_b32 v5, 7, v5'); e('v_add_u32 v254, 1, v5')
    e('v_and_b32 v4, 7, v0'); e('v_lshlrev_b32 v4, 7, v4'); e('s_lshr_b32 s49, %s, 1'%s(sJ)); e('s_lshl_b32 s49, s49, 2'); e('v_add_u32 %s, s49, v4'%v(PL2))
    e('s_sub_u32 s48, 32, %s'%s(sC)); e('s_and_b32 s48, s48, 31')
    e('s_mov_b32 s49, %d'%(2*12288)); e('v_mul_u32_u24 v12, s49, v9')
    e('s_mov_b32 s50, %d'%(32*12288))
    e('s_lshl_b32 s54, s15, 6'); e('s_lshl_b32 s49, s7, 5'); e('s_add_u32 s54, s54, s49')
    e('s_and_b32 s55, %s, 2'%s(sJ)); e('s_lshl_b32 s55, s55, 4'); e('s_add_u32 s55, s55, 512')
    for tb in range(4):
        e('s_add_u32 s49, %s, %d'%(('s54',16*tb) if tb<2 else ('s55',16*(tb-2)))); e('v_add_u32 v4, s49, v8')
        e('v_sub_u32 v5, 576, v4'); e('v_cmp_lt_u32 vcc, 288, v4'); e('v_mov_b32 v6, %s'%s(sC)); e('v_mov_b32 v7, s48')
        e('v_cndmask_b32 v4, v4, v5, vcc'); e('v_cndmask_b32 v6, v6, v7, vcc')
        e('v_mov_b32 v7, 0x80000000'); e('v_cndmask_b32 %s, 0, v7, vcc'%v(MK+tb))
        e('v_mul_u32_u24 v5, 57, v4'); e('v_lshrrev_b32 v5, 11, v5'); e('v_min_u32 v5, 7, v5')
        e('v_mul_u32_u24 v7, 36, v5'); e('v_sub_u32 v4, v4, v7')
        e('v_mul_u32_u24 v5, s50, v5'); e('v_lshl_add_u32 v5, v6, 7, v5'); e('v_add_u32 v5, v5, v12')
        e('v_lshrrev_b32 v6, 4, v4'); e('v_lshl_add_u32 v5, v6, 12, v5'); e('v_and_b32 v4, 15, v4'); e('v_lshl_add_u32 %s, v4, 3, v5'%v(UO+tb))
    end()
    out=save
    NPRE=PRE
    out.extend(parts[0])
    later=[]
    XF=36
    def rotate(lo,hi,mix):
        if PK:
            for i in range(lo,hi,2):
                e('v_pk_mul_f32 %s, %s, %s'%(v(TM+i,2),v(RC,2),v(ACC+i,2))); e('v_pk_mul_f32 %s, %s, %s'%(v(TM+16+i,2),v(RC,2),v(ACC+16+i,2)))
                e('v_pk_fma_f32 %s, %s, %s, %s neg_lo:[1,0,0] neg_hi:[1,0,0]'%(v(TM+i,2),v(60,2),v(ACC+16+i,2),v(TM+i,2))); e('v_pk_fma_f32 %s, %s, %s, %s'%(v(TM+16+i,2),v(60,2),v(ACC+i,2),v(TM+16+i,2)))
        else:
            for i in range(lo,hi):
                e('v_mul_f32 %s, %s, %s'%(v(TM+i),v(RC),v(ACC+i))); e('v_mul_f32 %s, %s, %s'%(v(TM+16+i),v(RC),v(ACC+16+i)))
                e('v_fma_f32 %s, -%s, %s, %s'%(v(TM+i),v(RC+1),v(ACC+16+i),v(TM+i))); e('v_fmac_f32 %s, %s, %s'%(v(TM+16+i),v(RC+1),v(ACC+i)))
        if mix:
            for i in range(8): e('v_mul_f32 %s, %s, %s'%(v(TM+32+i),v(RC+2),v(ACC+32+i)))
            for i in range(8): e('v_fmac_f32_dpp %s, %s, %s row_ror:8 row_mask:0xf bank_mask:0xf'%(v(TM+32+i),v(ACC+32+i),v(RC+3)))
    e('s_mov_b32 s46, 0'); e('s_mov_b32 s47, 0')
    e('s_and_b32 s45, %s, %d'%(s(sC),XSTG)); e('s_mov_b32 s53, 1'); e('s_mov_b32 s51, 0')
    if XUP==3:
        for _ in range(3): issueX(0); issueX(1)
        e('s_mov_b32 s53, 4'); e('s_add_u32 s51, s45, 4'); e('s_cmp_ge_u32 s45, 2'); e('s_cselect_b32 s51, s45, s51')
    e('s_waitcnt vmcnt(%d)'%(4*XUP))
    e('s_cmp_eq_u32 s14, 0'); e('s_cbranch_scc0 AX_L')
    e('v_mov_b32 v255, 1'); e('s_lshl_b32 s48, %s, 2'%s(sJ)); e('s_mov_b64 exec, 1')
    e('buffer_store_dword v255, %s, %s, s48 offen sc1'%(v(L0),s(sDBG,4))); e('s_mov_b64 exec, -1')
    e('AX_L:')
    for kp in range(2):
        if TRACE:
            e('s_memtime s[96:97]'); e('s_lshl_b32 s95, s46, 1'); e('s_add_u32 m0, s95, %d'%(kp+1)); e('s_waitcnt lgkmcnt(0)'); e('v_writelane_b32 v252, s96, m0'); e('v_writelane_b32 v253, s92, m0')
        e('s_barrier')
        if DIAG in (2,6) and kp==0: e('s_cmp_eq_u32 s46, %d'%(0 if DIAG==2 else 2)); e('s_cbranch_scc0 DGN'); e('s_memrealtime s[74:75]'); e('s_waitcnt lgkmcnt(0)'); e('DGN:')
        for sg in range(4): e('ds_read_b128 %s, %s offset:%d'%(v(XF+4*sg,4),v(26+kp),sg*2048))
        for sg in range(2): e('ds_read_b128 %s, %s offset:%d'%(v(XF+16+4*sg,4),v(28+kp),sg*2048))
        e('s_mov_b32 exec_lo, 0x00200020'); e('s_mov_b32 exec_hi, 0x00200020')
        e('ds_read_b128 %s, v23 offset:%d'%(v(WA+16+4*kp,4),64*kp))
        e('s_mov_b64 exec, -1')
        e('s_sub_u32 s51, s51, 1'); e('s_cbranch_scc1 AX_B%d'%kp)
        e('AX_S%d:'%kp)
        def rot(lo,hi,mix):
            L=[]
            for i in range(lo,hi):
                L+=['v_mul_f32 %s, %s, %s'%(v(TM+i),v(RC),v(ACC+i)),'v_mul_f32 %s, %s, %s'%(v(TM+16+i),v(RC),v(ACC+16+i)),
                    'v_fma_f32 %s, -%s, %s, %s'%(v(TM+i),v(RC+1),v(ACC+16+i),v(TM+i)),'v_fmac_f32 %s, %s, %s'%(v(TM+16+i),v(RC+1),v(ACC+i))]
            if mix:
                L+=['v_mul_f32 %s, %s, %s'%(v(TM+32+i),v(RC+2),v(ACC+32+i)) for i in range(8)]
                L+=['v_fmac_f32_dpp %s, %s, %s row_ror:8 row_mask:0xf bank_mask:0xf'%(v(TM+32+i),v(ACC+32+i),v(RC+3)) for i in range(8)]
            return L
        M=lambda t,sg: mf(ACC+16*t+4*sg, XF+4*sg, WA+8*t+4*kp, TM+16*t+4*sg if kp==0 else None)
        X=lambda sg: mf(ACC+32+4*sg, XF+16+4*sg, WA+16+4*kp, TM+32+4*sg if kp==0 else None)
        if kp==0:
            R=rot(8,16,False)
            for x in R[:8]: e(x)
            e('s_waitcnt lgkmcnt(0)')
            R=R[8:]
            for m in (M(0,0),M(1,0),M(0,1),M(1,1),X(0),X(1)):
                e(m)
                for x in R[:4]: e(x)
                R=R[4:]
            assert not R
            for m in (M(0,2),M(1,2),M(0,3),M(1,3)): e(m)
        else:
            A_=['s_add_u32 s47, s47, 8192','s_and_b32 s47, s47, 32767','s_add_u32 s66, s47, s69','s_add_u32 s68, s68, 128','s_cmp_eq_u32 s68, 1152','s_cselect_b32 s68, 0, s68',
                'v_add_u32 v26, s47, v20','v_add_u32 v27, s47, v21','v_add_u32 v28, s66, v20','v_add_u32 v29, s66, v21','v_add_u32 v23, s68, v22']
            for x in A_: e(x)
            e('s_waitcnt lgkmcnt(0)')
            for m in (M(0,0),M(1,0),M(0,1),M(1,1),X(0),X(1)): e(m)
            e('s_nop 3')
            R=rot(0,8,True)
            for m in (M(0,2),M(1,2),M(0,3),M(1,3)):
                for x in R[:4]: e(x)
                R=R[4:]
                e(m)
            e('s_cmp_eq_u32 s46, 8'); e('s_cbranch_scc1 AX_D')
            for x in R: e(x)
    if TRACE: e('s_memtime s[92:93]')
    e('s_lshr_b32 s66, s45, 1'); e('s_xor_b32 s66, s66, s46'); e('s_add_u32 s46, s46, 1')
    e('s_bitcmp1_b32 s66, 0'); e('s_cbranch_scc1 AX_W0')
    e('s_cmp_eq_u32 s46, 1'); e('s_cbranch_scc0 AX_L')
    e('s_waitcnt vmcnt(8)'); e('s_branch AX_L')
    e('AX_W0:')
    e('s_waitcnt vmcnt(0)'); e('s_branch AX_L')
    for kp in range(2):
        e('AX_B%d:'%kp)
        e('s_cmp_ge_u32 s46, 5'); e('s_cselect_b32 s51, 100, 3')
        e('s_add_u32 s52, s46, 3'); e('s_min_u32 s52, s52, 8')
        e('s_cmp_eq_u32 s46, 0'); e('s_cbranch_scc0 AX_C%d'%kp)
        if kp==0:
            e('s_lshr_b32 s52, s45, 1'); e('s_add_u32 s52, s52, 1')
            e('s_sub_u32 s51, s45, 1'); e('s_cmp_ge_u32 s45, 2'); e('s_cselect_b32 s51, s51, 0')
        else:
            e('s_add_u32 s51, s45, 2')
        e('AX_C%d:'%kp)
        issueX(0); issueX(1)
        e('s_add_u32 s53, s53, 1'); e('s_cmp_le_u32 s53, s52'); e('s_cbranch_scc1 AX_C%d'%kp)
        e('s_cmp_eq_u32 s46, 0'); e('s_cbranch_scc1 AX_S%d'%kp)
        e('v_add_u32 v4, %s, v62'%s(sJ)); e('v_and_b32 v4, 7, v4'); e('v_cmp_eq_u32 vcc, 0, v62'); e('v_mov_b32 v5, 8'); e('v_add_u32 v62, 3, v62')
        e('v_cndmask_b32 v4, v4, v5, vcc'); e('v_lshl_add_u32 v4, v4, 7, v24')
        e('s_mov_b32 exec_lo, 0x7ffffff'); e('s_mov_b32 exec_hi, %s'%('0x7ffffff' if T2 else '0'))
        e('buffer_load_dword v15, v4, %s, s19 offen'%s(sW2,4))
        e('s_mov_b64 exec, -1')
        e('s_branch AX_S%d'%kp)
    e('AX_D:')
    e('s_barrier')
    if DIAG==5: e('s_memrealtime s[74:75]'); e('s_waitcnt lgkmcnt(0)')
    e('s_setprio %d'%AP2); e('s_nop 3')
    st(1)
    e('v_lshlrev_b32 v12, 9, v9'); e('v_lshl_add_u32 v12, v8, 3, v12')
    e('s_lshl_b32 s16, %s, 5'%s(sJ)); e('s_add_u32 s16, s16, %s'%s(sC)); e('s_mul_i32 s16, s16, 12288'); e('s_add_u32 s16, s16, %d'%U_OFF)
    e('s_add_u32 s17, s16, 8192'); e('s_add_u32 s16, s16, s69')
    FR=16
    def pack(dst,src,n=8):
        for h in range(n): e('v_cvt_pk_bf16_f32 %s, %s, %s'%(v(dst+h),v(src+2*h),v(src+2*h+1)))
    def stageA(D,FR):
        for sh in range(2):
            for be in range(2):
                d=D+16*sh+8*be; a=FR+4*sh; b=FR+8+4*sh
                mfma(d,FC+4*be,a,'0'); mfma(d+4,FC+4*be,b,'0'); mfma(d,FS+4*be,b); mfma(d+4,FN+4*be,a)
    def ustore(D,O,so):
        for be in range(2):
            for r in range(4):
                o=O+8*be+2*r
                for sh in range(2): e('v_cvt_pk_bf16_f32 %s, %s, %s'%(v(o+sh),v(D+16*sh+8*be+r),v(D+16*sh+8*be+4+r)))
                e('buffer_store_dwordx2 %s, v12, %s, %s offen offset:%d sc1'%(v(o,2),s(sWS,4),so,be*2048+r*128))
    e('v_and_b32 v63, 7, v0'); e('v_lshlrev_b32 v63, 2, v63'); e('v_mov_b32 v255, v63')
    e('buffer_load_dword v254, v255, %s, 0 offen sc1'%s(sDBG,4))
    MF=136
    e('v_add_u32 v14, %d, v25'%MX)
    pack(MF,ACC+32,4)
    e('s_lshl_b32 s66, s7, 7'); e('s_add_u32 s66, s66, %d'%GL); e('v_lshlrev_b32 v13, 4, v9'); e('v_add_u32 v13, s66, v13')
    e('s_mov_b32 exec_lo, 0x00200020'); e('s_mov_b32 exec_hi, 0x00200020')
    for sg in range(2): e('ds_write_b128 v13, %s offset:%d'%(v(ACC+32+4*sg,4),64*sg))
    e('s_mov_b64 exec, -1')
    e('s_cmp_eq_u32 s7, 1'); e('s_cbranch_scc0 AX_A0'); e('ds_write_b128 v14, %s'%v(MF,4)); e('AX_A0:')
    pack(FR,ACC); pack(FR+8,ACC+16); e('s_nop 1')
    stageA(32,FR)
    e('s_nop 7')
    ustore(32,236,'s16')
    e('s_mov_b32 s47, 0'); e('s_waitcnt vmcnt(8)')
    e('AX_V0:')
    e('v_cmp_eq_u32 vcc, 0, v254'); e('s_cbranch_vccz AX_V1')
    e('s_add_u32 s47, s47, 1'); e('s_cmp_gt_u32 s47, %d'%SPINMAX); e('s_cbranch_scc1 AX_V1')
    e('s_sleep 8'); e('buffer_load_dword v254, v255, %s, 0 offen sc1'%s(sDBG,4)); e('s_waitcnt vmcnt(0)'); e('s_branch AX_V0')
    e('AX_V1:')
    e('s_waitcnt lgkmcnt(0)')
    e('s_barrier')
    e('s_barrier')
    if E3A: e('s_barrier')
    if DIAG==3: e('s_memrealtime s[74:75]'); e('s_waitcnt lgkmcnt(0)')
    e('s_cmp_eq_u32 s7, 0'); e('s_cbranch_scc0 AX_A2')
    e('ds_read_b128 %s, v14'%v(MF+4,4)); e('s_waitcnt lgkmcnt(0)')
    for h in range(8): e('v_mov_b32_dpp %s, %s row_ror:8 row_mask:0xf bank_mask:0xf'%(v(MF+8+h),v(MF+h)))
    e('s_nop 1')
    stageA(64,MF)
    e('s_nop 7')
    e('s_mov_b32 exec_lo, 0x00ff00ff'); e('s_mov_b32 exec_hi, 0x00ff00ff')
    ustore(64,96,'s17')
    e('s_mov_b64 exec, -1')
    e('AX_A2:')
    out.extend(parts[1])
    e('s_waitcnt vmcnt(0)'); e('v_mov_b32 v10, 1')
    e('s_mov_b64 exec, 1'); e('buffer_store_dword v10, %s, %s, s71 offen sc1'%(v(L0),s(sWS,4))); e('s_mov_b64 exec, -1')
    for k in (2,3,4,5): out.extend(parts[k])
    for i in range(4): e('ds_read_b32 %s, %s'%(v(GG+i),v(GG+i)))
    e('s_lshl_b32 s65, %s, 10'%s(sC)); e('s_add_u32 s65, s65, %d'%FLP)
    e('s_waitcnt lgkmcnt(0)')
    for i in range(4):
        g=GG+i
        e('v_mul_f32 %s, 0xbfb8aa3b, %s'%(v(g),v(g))); e('v_exp_f32 %s, %s'%(v(g),v(g))); e('s_nop 0')
        e('v_add_f32 %s, 1.0, %s'%(v(g),v(g))); e('v_rcp_f32 %s, %s'%(v(g),v(g)))
    if NORED:
        for i in range(2,7): st(i)
        st_flush(7,0); e('s_endpgm')
    e('s_mov_b32 s47, 0')
    def gpoll(load,cmp,slp):
        L=lab('GP'); e('s_branch %sf'%L); e(L+':')
        if slp: e('s_sleep %d'%slp)
        e(L+'f:')
        for x in load: e(x)
        e('s_add_u32 s47, s47, 1'); e('s_waitcnt vmcnt(0)')
        for x in cmp: e(x)
        e('s_cmp_gt_u32 s47, %d'%SPINMAX); e('s_cbranch_scc1 %sx'%L); e('s_cbranch_vccnz '+L); e(L+'x:')
    e('s_lshl_b32 s16, s7, 8'); e('s_add_u32 s16, s16, %d'%CNS)
    e('v_and_b32 v15, 1, v0'); e('v_mul_u32_u24 v15, 516, v15'); e('v_add_u32 v15, s16, v15')
    def pace(n):
        L=lab('PC'); e(L+':'); e('s_sleep 3'); e('ds_read_b32 v5, v15')
        e('s_add_u32 s99, s99, 1'); e('s_cmp_gt_u32 s99, 0x100000'); e('s_cbranch_scc1 K_END'); e('s_waitcnt lgkmcnt(0)')
        e('v_cmp_gt_u32 vcc, %s, v5'%(n if isinstance(n,str) else min(n,38))); e('s_cbranch_vccnz '+L)
    e('s_and_b32 s16, %s, %d'%(s(sC),USTG)); e('s_add_u32 s16, s16, %d'%(20+UPACE))
    pace('s16')
    e('s_mov_b32 s16, %d'%FLU)
    gpoll(['buffer_load_dwordx4 v[96:99], %s, %s, s16 offen sc1'%(v(L16),s(sWS,4)),'buffer_load_dwordx4 v[100:103], %s, %s, s16 offen offset:1024 sc1'%(v(L16),s(sWS,4))],
          ['v_min3_u32 v5, v96, v97, v98','v_min3_u32 v5, v5, v99, v100','v_min3_u32 v5, v5, v101, v102','v_min_u32 v5, v5, v103','v_cmp_eq_u32 vcc, 0, v5'],USLP)
    st(2)
    UF=16; YA=80; SP=152
    def uloads(tb,dst):
        for k in range(4):
            for u in range(2):
                e('s_mov_b32 s17, %d'%(U_OFF+(8*k+u)*12288))
                e('buffer_load_dwordx2 %s, %s, %s, s17 offen sc1'%(v(dst+4*k+2*u,2),v(UO+tb),s(sWS,4)))
    def fin(y,p,og,o,vaddr,soff):
        for tb in range(2):
            for r in range(4): e('v_fma_f32 %s, %s, %s, %s'%(v(p[tb]+r),v(og),v(p[tb]+r),v(y[tb]+r)))
        for tb in range(2):
            for h in range(2): e('v_cvt_pk_bf16_f32 %s, %s, %s'%(v(o+2*tb+h),v(p[tb]+2*h),v(p[tb]+2*h+1)))
        e('s_nop 1')
        e('v_permlane16_swap_b32 %s, %s'%(v(o),v(o+2))); e('v_permlane16_swap_b32 %s, %s'%(v(o+1),v(o+3)))
        e('buffer_store_dwordx4 %s, %s, %s, %s offen%s'%(v(o,4),v(vaddr),s(sOUT,4),soff,[' ',' sc1',' nt'][OSC]))
    for tb in range(2): uloads(tb,UF+16*tb)
    e('s_cmp_eq_u32 s7, 1'); e('s_cbranch_scc0 AX_U')
    for tb in range(2,4): uloads(tb,UF+16*tb)
    gpoll(['buffer_load_dword v5, %s, %s, s65 offen sc1'%(v(PL2),s(sWS,4))],['v_cmp_gt_u32 vcc, 1, v5'],10)
    e('s_mul_i32 s16, %s, %d'%(s(sC),8*73728)); e('s_lshl_b32 s17, %s, 10'%s(sJ)); e('s_add_u32 s16, s16, s17'); e('s_add_u32 s16, s16, 65536')
    for jj in range(8):
        e('buffer_load_dwordx4 %s, %s, %s, s16 offen sc1'%(v(80+4*jj,4),v(L16),s(sWS,4)))
        if jj<7: e('s_add_u32 s16, s16, 73728')
    for tb in range(2,4):
        for i in range(16): e('v_xor_b32 %s, %s, %s'%(v(UF+16*tb+i),v(MK+tb),v(UF+16*tb+i)))
    e('s_nop 1')
    for k in range(4):
        for tb in range(2): mfma(112+4*tb, UF+32+16*tb+4*k, GF+4*k, '0' if k==0 else None)
    e('s_waitcnt vmcnt(0)')
    for jj in range(8):
        for tb in range(2): mfma(120+4*tb, SEL+4*tb, 80+4*jj, '0' if jj==0 else None)
    for r in range(8): e('v_mul_f32 %s, %s, %s'%(v(112+r),v(GG),v(112+r)))
    e('v_sub_f32 v14, 1.0, %s'%v(GG)); e('s_lshl_b32 s16, s55, 1')
    fin((112,116),(120,124),14,248,TR,'s16')
    e('s_branch AX_U2')
    e('AX_U:')
    e('s_waitcnt vmcnt(0)')
    e('AX_U2:')
    for tb in range(2):
        for i in range(16): e('v_xor_b32 %s, %s, %s'%(v(UF+16*tb+i),v(MK+tb),v(UF+16*tb+i)))
    e('s_nop 1')
    for k in range(4):
        for tb in range(2):
            for i in range(4): mfma(YA+16*tb+4*i, UF+16*tb+4*k, GF+16*i+4*k, '0' if k==0 else None)
    st(3)
    e('s_mul_i32 s18, %s, %d'%(s(sC),8*73728)); e('s_lshl_b32 s17, s15, 13'); e('s_add_u32 s18, s18, s17'); e('s_add_u32 s18, s18, s44')
    def acc(buf,first):
        for i in range(4):
            for tb in range(2): mfma(SP+16*tb+4*i, SEL+4*tb, buf+4*i, '0' if first else None)
    BUF=lambda i: 16+16*(i%4)
    e('s_mov_b32 s66, 0')
    def addr(i,so,sm):
        e('s_sub_u32 %s, %s, %d'%(so,s(sJ),i)); e('s_and_b32 %s, %s, 7'%(so,so))
        e('s_lshl_b32 %s, %s, 1'%(sm,so)); e('s_lshl_b32 %s, 3, %s'%(sm,sm))
        e('s_mul_i32 %s, %s, 73728'%(so,so)); e('s_add_u32 %s, %s, s18'%(so,so))
    def pollbits(i,sm,sx,slp):
        e('s_branch AX_F%d'%i); e('AX_R%d:'%i)
        if slp: e('s_sleep %d'%slp)
        e('AX_F%d:'%i)
        e('buffer_load_dword v5, %s, %s, s65 offen sc1'%(v(PL1),s(sWS,4))); e('s_add_u32 s47, s47, 1'); e('s_waitcnt vmcnt(0)')
        e('v_cmp_le_u32 vcc, v254, v5'); e('s_cmp_gt_u32 s47, %d'%SPINMAX); e('s_cbranch_scc1 AX_G%d'%i)
        e('s_mov_b32 s66, vcc_lo'); e('s_mov_b32 exec_lo, %s'%sx); e('s_mov_b32 exec_hi, 0')
        e('s_and_b32 s19, s66, %s'%sm); e('s_cmp_eq_u32 s19, %s'%sm); e('s_cbranch_scc0 AX_R%d'%i)
    def loads(i,so):
        for u in range(4): e('buffer_load_dwordx4 %s, %s, %s, %s offen sc1'%(v(BUF(i)+4*u,4),v(PO+u),s(sWS,4),so))
    addr(7,'s48','s49')
    e('s_add_u32 s16, s44, %d'%QH)
    for u in range(4): e('v_add_u32 %s, s16, %s'%(v(128+u),v(PO+u)))
    for i in range(1,7):
        addr(i,'s16','s17')
        e('s_and_b32 s19, s66, s17'); e('s_cmp_eq_u32 s19, s17'); e('s_cbranch_scc1 AX_G%d'%i)
        pace(max(20+2*(i+2)+PPACE-FEARLY, LATE if i>1 else 0))
        if i==6: e('s_or_b32 s50, s17, s49'); e('s_mov_b32 exec_lo, s50'); e('s_mov_b32 exec_hi, 0')
        pollbits(i,'s17','s50' if i==6 else 's17', 0 if i==6 else PSLP)
        e('AX_G%d:'%i)
        e('s_mov_b64 exec, -1')
        loads(i,'s16')
        if 3<=i<=6: e('s_waitcnt vmcnt(8)'); acc(BUF(i-2), i==3)
        if i==1:
            for sl in range(4):
                for tb in range(2):
                    for r in range(4): e('v_mul_f32 %s, %s, %s'%(v(YA+16*tb+4*sl+r),v(GG+sl),v(YA+16*tb+4*sl+r)))
                e('v_sub_f32 %s, 1.0, %s'%(v(GG+sl),v(GG+sl)))
    e('s_and_b32 s19, s66, s49'); e('s_cmp_eq_u32 s19, s49'); e('s_cbranch_scc1 AX_G7')
    e('s_mov_b32 exec_lo, s49'); e('s_mov_b32 exec_hi, 0')
    pollbits(7,'s49','s49',0)
    e('AX_G7:')
    e('s_mov_b64 exec, -1')
    loads(7,'s48')
    e('s_waitcnt vmcnt(8)'); acc(BUF(5),False)
    lds_wait(15,5,'39')
    for u in range(4): e('ds_read_b128 %s, %s'%(v(BUF(4)+4*u,4),v(128+u)))
    e('s_waitcnt lgkmcnt(0)'); acc(BUF(4),False)
    st(4)
    e('s_waitcnt vmcnt(4)'); acc(BUF(6),False)
    st(5)
    e('s_lshl_b32 s16, s54, 1')
    for sl in range(4):
        e('s_waitcnt vmcnt(%d)'%(3-sl))
        for tb in range(2): mfma(SP+16*tb+4*sl, SEL+4*tb, BUF(7)+4*sl)
    e('s_nop 3')
    for sl in range(4): fin((YA+4*sl,YA+16+4*sl),(SP+4*sl,SP+16+4*sl),GG+sl,232+4*sl,TR+sl,'s16')
    if STAMP:
        e('s_waitcnt vmcnt(0)'); st(6); st_flush(7,0)
        if TRACE: trace_flush(252,253)
    if DIAG:
        e('s_waitcnt vmcnt(0)'); e('s_memrealtime s[76:77]'); e('s_waitcnt lgkmcnt(0)')
        if DIAG==1: e('s_mov_b32 s74, s76')
        e('s_sub_u32 s16, s74, s72')
        if DIAG in (2,6): e('s_lshl_b32 s16, s16, 2')
        if DIAG==4: e('s_lshl_b32 s16, s16, 3')
        e('DG:'); e('s_memrealtime s[78:79]'); e('s_waitcnt lgkmcnt(0)'); e('s_sub_u32 s17, s78, s76'); e('s_cmp_lt_u32 s17, s16'); e('s_cbranch_scc1 DG')
    e('s_endpgm')
    for n,k in enumerate(later):
        e('AX_SL%d:'%n); out.extend(parts[k]); e('s_branch AX_SR')

def main():
    global INMAIN
    e('K_MAIN:')
    ACC=96; AF=16; XB=56
    T=200
    e('v_lshlrev_b32 v7, 2, v0'); e('s_lshl_b32 s16, %s, 8'%s(sWV)); e('s_add_u32 s16, s16, %d'%LND); e('v_add_u32 v3, s16, v7'); e('v_mov_b32 v8, 0')
    for i in range(3): e('ds_write_b32 v3, v8 offset:%d'%(1024*i))
    e('v_add_u32 v13, 1024, v3')
    e('v_and_b32 v3, 1, v0'); e('v_mul_u32_u24 v3, 260, v3'); e('v_add_u32 v14, %d, v3'%LND)
    e('v_mov_b32 v5, 0')
    e('v_and_b32 v200, 15, v0'); e('v_lshrrev_b32 v201, 4, v0')
    e('s_movk_i32 s17, 1152')
    e('v_lshrrev_b32 v202, 2, v200'); e('v_and_b32 v203, 3, v0')
    e('v_lshl_add_u32 v204, v201, 3, v202'); e('v_mul_u32_u24 v204, s17, v204'); e('v_lshl_add_u32 v204, v203, 3, v204')
    e('v_lshrrev_b32 v205, 1, v202'); e('v_and_b32 v7, 1, v201'); e('v_lshl_add_u32 v205, v7, 1, v205')
    e('s_mul_i32 s18, %s, %d'%(s(sWV),NA)); e('s_cmp_eq_u32 %s, 3'%s(sWV)); e('s_cselect_b32 s18, %d, s18'%(36-NB))
    for i in range(4):
        e('s_add_u32 s16, s18, %d'%i); e('s_and_b32 s17, s16, 3'); e('s_lshr_b32 s16, s16, 2'); e('s_lshl_b32 s16, s16, 7')
        e('v_xor_b32 v7, s17, v205'); e('v_lshl_add_u32 v7, v7, 5, v204'); e('v_add_u32 %s, s16, v7'%v(88+i)); e('v_mov_b32 %s, %s'%(v(92+i),v(88+i)))
    e('v_lshrrev_b32 v7, 1, v200'); e('v_xor_b32 v7, v7, v201'); e('v_lshlrev_b32 v7, 4, v7')
    e('v_lshl_add_u32 v1, v200, 7, v7'); e('v_add_u32 v1, %d, v1'%XW0); e('s_lshl_b32 s16, s98, 6'); e('v_xor_b32 v1, s16, v1'); e('v_xor_b32 v2, 64, v1')
    e('v_mov_b32 v3, v1'); e('v_mov_b32 v4, v2')
    e('v_lshlrev_b32 v12, 4, v0')
    e('s_lshr_b32 s16, %s, 1'%s(sWV)); e('s_lshl_b32 s16, s16, 11'); e('s_add_u32 s16, s16, %d'%HB); e('v_add_u32 v9, s16, v12')
    e('v_lshl_add_u32 v204, v201, 2, v202'); e('v_bfe_u32 v205, v204, 1, 2'); e('v_lshlrev_b32 v204, 7, v204'); e('v_lshl_add_u32 v204, v203, 3, v204')
    e('s_and_b32 s16, %s, 1'%s(sWV)); e('s_lshl_b32 s16, s16, 1')
    for tb in range(2):
        e('s_add_u32 s17, s16, %d'%tb); e('v_xor_b32 v7, s17, v205'); e('v_lshl_add_u32 %s, v7, 5, v204'%v(10+tb))
    for i in range(16*NB): e('v_mov_b32 %s, 0'%v(ACC+i))
    for i in range(4*(NB-3),4*NA): e('v_mov_b32 %s, 0'%v(AF+i))
    for i in range(16): e('v_mov_b32 %s, 0'%v(XB+16+i))
    e('s_waitcnt lgkmcnt(0)')
    srd(sWS,62,WS_BYTES)
    if TW:
        srd(sOUT,58,2359296); srd(sW2,54,5308416)
        e('s_cmp_eq_u32 %s, 2'%s(sWV)); e('s_cbranch_scc0 M_TW')
        G=TW
        e('v_lshlrev_b32 v7, %d, v0'%(20 if TW==1 else 16))
        e('s_mov_b32 s16, %d'%U_OFF); e('s_mov_b64 exec, %s'%('0x1f' if TW==1 else '-1')); e('buffer_load_dword v15, v7, %s, s16 offen'%s(sWS,4))
        e('s_mov_b64 exec, %s'%('7' if TW==1 else '-1')); e('buffer_load_dword v15, v7, %s, 0 offen'%s(sOUT,4))
        e('v_lshlrev_b32 v7, %d, v0'%(19 if TW==1 else 16)); e('s_mov_b64 exec, %s'%('3' if TW==1 else '0x3ff'))
        e('s_mul_i32 s16, %s, %d'%(s(sC),8*73728)); e('buffer_load_dword v15, v7, %s, s16 offen'%s(sWS,4))
        e('s_mul_i32 s16, %s, %d'%(s(sJ),576*1152)); e('buffer_load_dword v15, v7, %s, s16 offen'%s(sW2,4))
        e('s_mov_b64 exec, -1')
        e('M_TW:')
    e('s_lshl_b32 s16, s18, 11'); e('s_add_u32 s16, s16, %d'%HB); e('v_add_u32 v8, s16, v12')
    e('s_mov_b32 s64, 0'); e('s_mov_b32 s65, 0'); e('s_mov_b32 s66, 1')
    INMAIN=True
    if MPRIO: e('s_setprio 3')
    spins=[]
    def check(seq,thr,vaddr=109):
        L=lab('SP'); R=L+'R'
        seq.append(('need',['F'])); seq.append(('i','v_cmp_gt_u32 vcc, %s, v110'%thr)); seq.append(('i','s_cbranch_vccnz '+L)); seq.append(('i',R+':'))
        spins.append((L,R,thr,vaddr))
    def conv(u,sg):
        a=ACC+32*u+4*sg; b=a+16
        if RM==1:
            L=[]
            for d,x in ((a,a),(a+1,a+2),(a+2,b),(a+3,b+2)):
                L+=['v_max_f32 %s, 0, %s'%(v(x),v(x)),'v_max_f32 %s, 0, %s'%(v(x+1),v(x+1)),'v_cvt_pk_bf16_f32 %s, %s, %s'%(v(d),v(x),v(x+1))]
            return L+['ds_write_b128 v8, %s offset:%d'%(v(a,4),u*4096+sg*1024)]
        if RM==2:
            return ['v_cvt_pk_bf16_f32 %s, %s, %s'%(v(d),v(x),v(x+1)) for d,x in ((a,a),(a+1,a+2),(a+2,b),(a+3,b+2))]+['s_nop 0','ds_write_b128 v8, %s offset:%d'%(v(a,4),u*4096+sg*1024)]
        if RM==3:
            return ['v_cvt_pk_bf16_f32 %s, %s, %s'%(v(d),v(x),v(x+1)) for d,x in ((a,a),(a+1,a+2),(a+2,b),(a+3,b+2))]+['v_pk_max_i16 %s, %s, 0'%(v(a+k),v(a+k)) for k in range(4)]+['s_nop 0']
        return ['v_cvt_pk_bf16_f32 %s, %s, %s'%(v(a),v(a),v(a+1)),'v_cvt_pk_bf16_f32 %s, %s, %s'%(v(a+1),v(a+2),v(a+3)),
                'v_cvt_pk_bf16_f32 %s, %s, %s'%(v(a+2),v(b),v(b+1)),'v_cvt_pk_bf16_f32 %s, %s, %s'%(v(a+3),v(b+2),v(b+3))]+['v_pk_max_i16 %s, %s, 0'%(v(a+k),v(a+k)) for k in range(4)]+[
                'ds_write_b128 v8, %s offset:%d'%(v(a,4),u*4096+sg*1024)]
    def step1(NT,p,last=False):
        seq=[('i','s_barrier')]
        R=[('A',0,0),('A',0,1)]+[('X',p,sg) for sg in range(4)]+[('A',t,r) for t in range(1,NT) for r in range(2)]
        extra=[]
        if not last:
            extra=['s_add_u32 s64, s64, %d'%SLOT,'s_cmp_eq_u32 s64, %d'%(3*SLOT),'s_cselect_b32 s64, 0, s64','s_add_u32 s66, s66, 1']+['v_add_u32 %s, s64, %s'%(v(92+i),v(88+i)) for i in range(4)]
            if p==1: extra+=['s_add_u32 s65, s65, 8192','s_and_b32 s65, s65, 32767','v_add_u32 v3, s65, v1','v_add_u32 v4, s65, v2']
            else: extra+=['s_cmp_eq_u32 s66, 18']
        cv=[]; nq=0
        ng=4*(NT+3) if last else 4*NT
        eb=len(R)+5
        def pop(n,ok):
            for _ in range(n):
                if cv and (ok or not cv[0].startswith('ds_')):
                    x=cv.pop(0)
                    seq.append(('lds','H',x) if x.startswith('ds_') else ('i',x))
        for g in range(ng):
            i,sg=divmod(g,4)
            if g<len(R):
                k,a,b=R[g]
                if k=='A': seq.append(('lds',R[g],'ds_read_b64_tr_b16 %s, %s offset:%d'%(v(AF+4*a+2*b,2),v(92+a%4),128*(a//4)+4608*b)))
                else: seq.append(('lds',R[g],'ds_read_b128 %s, %s offset:%d'%(v(XB+16*p+4*b,4),v(3+p),2048*b)))
            elif extra: seq.append(('i',extra.pop(0)))
            if last:
                if g==eb: seq.append(('need',[('A',NT-1,1)])); seq.append(('i','s_barrier'))
                if sg==0 and i>=6 and i%2==0:
                    cv+=[x for q in range(4) for x in conv(nq,q)]; nq+=1
                pop(CPG,g>=eb)
            if i<3: t,xb=NT-3+i,1-p
            else: t,xb=i-3,p
            seq.append(('need',[('A',t,0),('A',t,1),('X',xb,sg)]))
            seq.append(('i',mf(ACC+16*t+4*sg, AF+4*t, XB+16*xb+4*sg)))
        assert not extra
        if not last: seq.append(('need',[('A',NT-1,1)]))
        if last:
            assert len(cv)>=9
            while nq<NT//2:
                cv+=[x for q in range(4) for x in conv(nq,q)]; nq+=1
            pop(len(cv),True)
        return seq
    def phase1(NT,nm):
        s0=step1(NT,0); s1=step1(NT,1)
        s0e=s0
        if STAMP: s0e=s0[:1]+[('i','s_cmp_eq_u32 s66, 1'),('i','s_cbranch_scc0 %sNS'%nm),('i','s_memrealtime s[74:75]'),('i','s_memtime s[88:89]'),('i','s_waitcnt lgkmcnt(0)'),('i',nm+'NS:')]+s0[1:]
        e(nm+'L:')
        stream(s0e+[('i','s_cbranch_scc1 %sX'%nm)]+s1+[('i','s_branch %sL'%nm)],True)
        e(nm+'X:')
        stream(step1(NT,1,True),False,pre=s1+s0)
    e('s_cmp_ge_u32 %s, 2'%s(sWV)); e('s_cbranch_scc1 MBL')
    for i in range(16*NB,16*NA): e('v_mov_b32 %s, 0'%v(ACC+i))
    phase1(NA,'MA')
    e('s_branch M1_J')
    phase1(NB,'MB')
    e('M1_J:'); e('s_waitcnt vmcnt(0)')
    e('s_waitcnt lgkmcnt(0)')
    st(2); stc(9)
    e('v_mov_b32 v100, v9'); e('v_add_u32 v101, 36864, v9')
    e('s_barrier')
    H=112
    for k in range(18):
        for sg in range(2): e('ds_read_b128 %s, %s offset:%d'%(v(H+8*k+4*sg,4),v(100+k//9),(k%9)*4096+sg*1024))
        if E3A and k==12: e('s_waitcnt lgkmcnt(8)'); e('s_barrier')
    e('v_mov_b32 v102, v10'); e('v_mov_b32 v103, v11'); e('v_add_u32 v104, %d, v10'%SLOT); e('v_add_u32 v105, %d, v11'%SLOT)
    e('v_mov_b32 v106, v12'); e('v_mov_b32 v108, v13'); e('v_mov_b32 v109, v14')
    if TRACE: e('v_mov_b32 v1, 0'); e('v_mov_b32 v3, 0')
    e('v_mov_b32 v107, 20')
    e('ds_read_b32 v110, v109')
    WR=16; PA=64; QA=80; PK=8
    e('s_mov_b32 s64, %d'%(2*SLOT)); e('s_mov_b32 s65, 0'); e('s_mov_b32 s66, 19')
    e('s_mul_i32 s60, s2, 73728')
    e('s_lshl_b32 s61, %s, 11'%s(sWV)); e('s_add_u32 s60, s60, s61')
    e('s_mov_b32 s67, %d'%OOB)
    e('s_lshl_b32 s19, s2, 7'); e('s_lshl_b32 s61, %s, 2'%s(sWV)); e('s_add_u32 s19, s19, s61'); e('s_add_u32 s19, s19, %d'%FLP)
    e('s_mov_b32 s63, %d'%(FMASK<<1))
    e('v_mov_b32 v6, 0'); e('s_and_b32 s62, %s, %d'%(s(sC),NSITE-1))
    e('s_waitcnt lgkmcnt(0)'); e('s_barrier')
    st(3); stc(10)
    def mm2(kg,u):
        tb,sg=divmod(u,2)
        a=WR+8*(kg%6)+4*tb; b=H+8*kg+4*sg
        if kg<9: return mf(PA+8*tb+4*sg,a,b,'0' if kg==0 else None)
        return mf(QA+8*tb+4*sg,a,b,PA+8*tb+4*sg if kg==9 else None)
    def packq(final=False):
        L=[]
        for sg in range(2):
            for tb in range(2):
                for h in range(2):
                    q=QA+8*tb+4*sg+2*h
                    L.append('v_cvt_pk_bf16_f32 %s, %s, %s'%(v(PK+4*sg+2*tb+h),v(q),v(q+1)))
            if final: L.append('ds_write_b128 v7, %s offset:%d'%(v(PK+4*sg,4),1024*sg))
            else: L.append('buffer_store_dwordx4 %s, v106, %s, s67 offen offset:%d sc1'%(v(PK+4*sg,4),s(sWS,4),1024*sg))
        return L
    body=[]
    for hc in range(2):
        check(body,'s66')
        R=[(9*hc+k,tb,r) for k in range(9) for tb in range(2) for r in range(2)]
        ex={}
        if hc==0:
            cv=[x for x in packq() if x.startswith('v_cvt')]
            for i,x in enumerate(cv): ex[16+i]=[x]
            ex[2]=['v_add_u32 v104, s64, v104']; ex[3]=['v_add_u32 v105, s64, v105']; ex[4]=['s_sub_u32 s64, 0, s64']; ex[5]=['s_add_u32 s66, s66, 1']

        else:
            L=['v_add_u32 v102, s64, v102','v_add_u32 v103, s64, v103','s_add_u32 s66, s66, 1',
               's_add_u32 s61, s65, s15','s_and_b32 s61, s61, 7','s_cmp_eq_u32 s65, 0','s_cselect_b32 s61, 8, s61',
               's_lshl_b32 s61, s61, 13']
            for i,x in enumerate(L): ex[2+i]=[x]
            ex[26]=['s_add_u32 s67, s60, s61']; ex[30]=['s_cmp_eq_u32 s65, 8','s_cselect_b32 s62, 0, s62']
            ex[27]=['v_mov_b32 v6, s65']; ex[28]=['s_add_u32 s65, s65, 1']; ex[33]=['s_cmp_lt_u32 s65, 9']
            if FEARLY: ex[32]=['s_bitcmp1_b32 s63, s65','s_cbranch_scc1 M2_FL','M2_FR:']
        sites=[(0,25),(1,1),(1,13),(1,25)][:NSITE]
        for n,(h,g) in enumerate(sites):
            if h==hc:
                ex.setdefault(g,[]); ex[g]=ex[g]+['s_cmp_eq_u32 s62, %d'%n,'s_cbranch_scc1 M2_ST%d'%n,'M2_SR%d:'%n]
        for g in range(36):
            i,u=divmod(g,4)
            k,tb,r=R[g]
            body.append(('lds',R[g],'ds_read_b64_tr_b16 %s, %s offset:%d'%(v(WR+8*(k%6)+4*tb+2*r,2),v(102+2*hc+tb),(k%9)*4096+r*2048)))
            if g==30: body.append(('lds','F','ds_read_b32 v110, v109'))
            if g==34: body.append(('i','v_add_u32 v107, 1, v107'))
            if g==35: body.append(('lds','C','ds_write_b32 v108, v107'))
            for x in ex.get(g,[]): body.append(('i',x))
            kg=(9*hc+i-3)%18
            body.append(('need',[(kg,u//2,0),(kg,u//2,1)]))
            body.append(('i',mm2(kg,u)))
    e('v_add_u32 v104, s64, v104'); e('v_add_u32 v105, s64, v105'); e('s_sub_u32 s64, 0, s64')
    e('M2_L:')
    stream(body,True)
    e('s_cbranch_scc1 M2_L')
    e('s_lshl_b32 s61, %s, 11'%s(sWV)); e('s_add_u32 s61, s61, %d'%QH); e('v_add_u32 v7, s61, v106')
    e('s_waitcnt lgkmcnt(0)')
    for kg in (15,16,17):
        for u in range(4): e(mm2(kg,u))
    if not FEARLY: e('s_waitcnt vmcnt(0)'); e('s_mov_b64 exec, 1'); e('buffer_store_dword v6, v5, %s, s19 offen sc1'%s(sWS,4)); e('s_mov_b64 exec, -1')
    e('s_nop 7')
    for x in packq(True): e(x)
    e('v_add_u32 v107, 1, v107'); e('ds_write_b32 v108, v107')
    INMAIN=False
    if STAMP:
        st(4); stc(11); st_flush(12,0)
        if TRACE: trace_flush(1,3)
    e('s_waitcnt lgkmcnt(0)')
    e('s_endpgm')
    e('M2_FL:'); e('s_waitcnt vmcnt(0)'); e('s_mov_b64 exec, 1'); e('buffer_store_dword v6, v5, %s, s19 offen sc1'%s(sWS,4)); e('s_mov_b64 exec, -1'); e('s_branch M2_FR')
    for n in range(NSITE):
        e('M2_ST%d:'%n)
        if not FEARLY: e('s_waitcnt vmcnt(0)'); e('s_mov_b64 exec, 1'); e('buffer_store_dword v6, v5, %s, s19 offen sc1'%s(sWS,4)); e('s_mov_b64 exec, -1')
        for x in packq():
            if x.startswith('buffer') and not NOST: e(x)
        e('s_branch M2_SR%d'%n)
    for (L,R,thr,va) in spins:
        e(L+':')
        tr=TRACE and thr=='s66'
        if tr:
            e('s_memtime s[96:97]'); e('s_waitcnt lgkmcnt(0)'); e('s_mov_b32 m0, s66'); e('s_nop 3'); e('v_writelane_b32 v1, s96, m0'); L=L+'b'; e(L+':')
        e('ds_read_b32 v110, %s'%v(va))
        e('s_add_u32 s99, s99, 1'); e('s_cmp_gt_u32 s99, 0x100000'); e('s_cbranch_scc1 K_END'); e('s_waitcnt lgkmcnt(0)')
        e('v_cmp_gt_u32 vcc, %s, v110'%thr); e('s_cbranch_vccnz '+L)
        if tr: e('s_memtime s[96:97]'); e('s_waitcnt lgkmcnt(0)'); e('v_writelane_b32 v3, s96, m0')
        e('s_branch '+R)

assert all((L*57)>>9==L//9 for L in range(288))
assert all((L*57)>>11==L//36 for L in range(289))
out.append('; @launch grid=(256,1,1) block=(512,1,1) lds=163840')
out.append('.amdgcn_target "amdgcn-amd-amdhsa--gfx950"')
out.append('.text'); out.append('.globl '+NAME)
kernel()
out.append('.section .rodata,"a"'); out.append('.p2align 6')
out.append('.amdhsa_kernel '+NAME)
for l in ['next_free_vgpr 256','next_free_sgpr 100','accum_offset 256','group_segment_fixed_size 0','kernarg_size 96','user_sgpr_count 2','user_sgpr_kernarg_segment_ptr 1','system_sgpr_workgroup_id_x 1']:
    out.append('  .amdhsa_'+l)
out.append('.end_amdhsa_kernel')
print('\n'.join(out))
```

```python
import sys, struct
A=sys.argv
STAMP='--stamp' in A; NODMA='--nodma' in A; NOMFMA='--nomfma' in A; NOREAD='--noread' in A; NOPRIO='--noprio' in A; NOTX='--notx' in A; NORED='--nored' in A; NOST='--nost' in A; NOU='--nou' in A; NOXW='--noxw' in A; TRACE='--trace' in A; MPRIO='--mprio' in A; SLP='--slp' in A; opt=lambda n,d: int([x for x in A if x.startswith('--'+n+'=')][0].split('=')[1]) if any(x.startswith('--'+n+'=') for x in A) else d
PRE=opt('pre',2); AP2=opt('ap2',0); USLP=opt('uslp',30); PSLP=opt('pslp',12); UPACE=opt('upace',7); PPACE=opt('ppace',1); LP=opt('lp',3); AP=opt('ap',2); LP2=opt('lp2',0); LP1=opt('lp1',3); EARLY=opt('early',0); RM=0; XUP=opt('xup',0); CROT=opt('crot',1); FMASK=opt('fmask',0x1c4); JROT=opt('jrot',1); PK=0; TAG=0; FEARLY=opt('fearly',1); T2=0; CT=opt('ct',0); IW=opt('iw',1); LAY=opt('lay',1); TW=opt('tw',0); L1=opt('l1',1); UPI=12288; PR=2432; TP=32*2432; AP3=opt('ap3',0); MSP=opt('msp',0); DIAG=opt('diag',0); NA=10; NB=8; CPG=opt('cpg',2); PUB1=opt('pub1',12); OSC=opt('osc',0); LATE=opt('late',35); USTG=opt('ustg',0); NSITE=opt('nsite',1); XSTG=opt('xstg',2); E3A=opt('e3a',0)
DBGT='--dbgt' in A; NOSW='--nosw' in A; WSPLIT=0 if '--nowsplit' in A else 1
NAME='gated_mix__spectral_fnet__dense_activation_relu__prompt_kernel'
out=[]; INMAIN=False
def e(s=''):
    if NODMA and s.endswith(' lds') and ('s[20:23]' in s or 's[24:27]' in s): return
    if (NOPRIO or MPRIO) and s.startswith('s_setprio') and not INMAIN: return
    if INMAIN and NOST and s.startswith('buffer_store_dword'): return
    if NOU and s.startswith('buffer_load_dwordx2'): return
    if NOXW and s.endswith(' lds') and ('s[8:11]' in s or 's[12:15]' in s): return
    if INMAIN and NOMFMA and s.startswith('v_mfma'): return
    out.append('    '+s if s and not s.endswith(':') else s)
def v(n,c=1): return 'v%d'%n if c==1 else 'v[%d:%d]'%(n,n+c-1)
def s(n,c=1): return 's%d'%n if c==1 else 's[%d:%d]'%(n,n+c-1)
def f2u(x): return struct.unpack('<I',struct.pack('<f',float(x)))[0]

SLOT=36864; XW0=110592; XWS=18432; HB=73728
MISC=147456; QH=MISC; LND=MISC+8192; CNS=LND+4*256; GL=CNS+6*256
GWL=LND+3072; MX=GWL+1152
U_OFF=0x1400000; FLP=0x1800000; FLU=0x1810000; ST_OFF=0x1900000; WS_BYTES=0x1B00000
BIG=0x7fffffff; OOB=0x40000000
sX,sWH,sW1,sW2,sGW,sWS,sOUT,sDBG=8,12,20,24,28,32,36,40
sJ,sC,sWV,sROT=3,4,5,6
SPINMAX=0x8000

def srd(d,base,nbytes):
    e('s_mov_b32 %s, %s'%(s(d),s(base))); e('s_mov_b32 %s, %s'%(s(d+1),s(base+1)))
    e('s_mov_b32 %s, %d'%(s(d+2),nbytes)); e('s_mov_b32 %s, 0x20000'%s(d+3))
def mf(d,a,b,c=None):
    return 'v_mfma_f32_16x16x32_bf16 %s, %s, %s, %s'%(v(d,4),v(a,4),v(b,4), v(d,4) if c is None else (c if isinstance(c,str) else v(c,4)))
def mfma(*a): e(mf(*a))
def st(slot):
    if STAMP: e('s_memrealtime %s'%s(72+2*slot,2))
def stc(slot):
    if STAMP: e('s_memtime %s'%s(72+2*slot,2))
def st_flush(n,base_row):
    if not STAMP: return
    e('s_waitcnt lgkmcnt(0)')
    e('s_lshl_b32 s68, s2, 3'); e('s_add_u32 s68, s68, %s'%s(sWV)); e('s_lshl_b32 s68, s68, 7'); e('s_add_u32 s68, s68, %d'%ST_OFF)
    e('v_mov_b32 v2, 0')
    for i in range(n):
        e('v_mov_b32 v4, %s'%s(72+2*i)); e('v_mov_b32 v5, %s'%s(73+2*i))
        e('buffer_store_dwordx2 v[4:5], v2, %s, s68 offen offset:%d'%(s(sWS,4),8*i)); e('s_nop 1')
def trace_flush(a,b):
    e('s_lshl_b32 s68, s2, 3'); e('s_add_u32 s68, s68, %s'%s(sWV)); e('s_lshl_b32 s68, s68, 9'); e('s_add_u32 s68, s68, %d'%(ST_OFF+0x40000))
    e('v_lshlrev_b32 v2, 2, v0')
    e('buffer_store_dword %s, v2, %s, s68 offen'%(v(a),s(sWS,4))); e('buffer_store_dword %s, v2, %s, s68 offen offset:256'%(v(b),s(sWS,4)))
_lab=[0]
def lab(p): _lab[0]+=1; return '%s%d'%(p,_lab[0])
def lds_wait(vaddr,vtmp,thr):
    L=lab('W')
    e(L+':')
    if SLP and not INMAIN: e('s_sleep 2')
    e('ds_read_b32 %s, %s'%(v(vtmp),v(vaddr)))
    e('s_add_u32 s99, s99, 1'); e('s_cmp_gt_u32 s99, 0x100000'); e('s_cbranch_scc1 K_END'); e('s_waitcnt lgkmcnt(0)')
    e('v_cmp_gt_u32 vcc, %s, %s'%(thr,v(vtmp))); e('s_cbranch_vccnz '+L)

def stream(seq, cyclic, pre=None):
    hist=[]; done=0
    def run(sq,emit):
        nonlocal done
        for it in sq:
            if it[0]=='lds':
                hist.append(it[1])
                if emit and not (NOREAD and it[2].startswith('ds_read_b64_tr')): e(it[2])
            elif it[0]=='need':
                idx=-1
                for t in it[1]:
                    k=[i for i,x in enumerate(hist) if x==t]
                    if k: idx=max(idx,k[-1])
                    else: assert not emit, t
                if idx+1>done:
                    n=min(len(hist)-1-idx,15)
                    if emit: e('s_waitcnt lgkmcnt(%d)'%(0 if NOREAD else n))
                    done=len(hist)-n
            elif emit: e(it[1])
    if cyclic: run(seq,False)
    if pre is not None: run(pre,False)
    run(seq,True)

def kernel():
    e('.p2align 8'); e('.type %s,@function'%NAME); e(NAME+':')
    e('s_cmp_ge_u32 s2, 256'); e('s_cbranch_scc1 K_END')
    st(0)
    if DBGT or DIAG: e('s_memrealtime s[72:73]')
    e('s_load_dwordx2 s[44:45], s[0:1], 0')
    e('s_load_dwordx4 s[48:51], s[0:1], 24')
    e('s_load_dwordx4 s[52:55], s[0:1], 48')
    e('s_load_dwordx8 s[56:63], s[0:1], 64')
    if IW:
        e('s_getpc_b64 s[16:17]'); e('IWP:')
        e('s_sub_u32 s16, s16, IWP-%s'%NAME); e('s_subb_u32 s17, s17, 0')
        e('s_andn2_b32 s18, s2, 7'); e('s_lshl_b32 s18, s18, 7')
        e('v_lshl_add_u32 v3, v0, 1, s18'); e('v_min_u32 v3, K_END-%s, v3'%NAME)
        e('s_mov_b64 exec, 1'); e('global_load_dword v15, v3, s[16:17]'); e('s_mov_b64 exec, -1')
    e('s_mov_b32 s99, 0')
    e('v_lshrrev_b32 v1, 6, v0')
    e('s_and_b32 %s, s2, 7'%s(sJ)); e('s_lshr_b32 %s, s2, 3'%s(sC))
    e('v_readfirstlane_b32 %s, v1'%s(sWV))
    e('v_and_b32 v0, 63, v0')
    e('s_mul_i32 s6, %s, 57'%s(sC)); e('s_lshr_b32 s6, s6, 9'); e('s_and_b32 s98, s6, %d'%(0 if NOSW else 1)); e('s_mul_i32 s6, s6, 9'); e('s_sub_u32 s6, %s, s6'%s(sC))
    if JROT: e('s_add_u32 s6, s6, %s'%s(sJ)); e('s_sub_u32 s7, s6, 9'); e('s_cmp_ge_u32 s6, 9'); e('s_cselect_b32 s6, s7, s6')
    e('s_add_u32 s15, %s, %s'%(s(sJ),s(sC) if CROT else '0')); e('s_and_b32 s15, s15, 7')
    e('s_cmp_ge_u32 %s, 6'%s(sWV)); e('s_cbranch_scc1 K_AUX')
    e('s_cmp_ge_u32 %s, 4'%s(sWV)); e('s_cbranch_scc0 K_MAIN')
    loader(); aux()
    global out
    tail=[]
    if LAY:
        k=out.index('AX_D:'); tail=out[k:]; del out[k:]
    main()
    out.extend(tail)
    e('K_END:'); e('s_endpgm')

def loader():
    e('s_setprio %d'%LP)
    e('s_sub_u32 s7, %s, 4'%s(sWV))
    e('v_lshrrev_b32 v1, 3, v0'); e('v_and_b32 v2, 7, v0')
    e('v_lshrrev_b32 v4, 1, v2')
    e('v_and_b32 v5, 1, v2'); e('v_lshlrev_b32 v5, 4, v5')
    e('s_movk_i32 s16, %d'%(9216-1152))
    for p in range(9):
        e('v_add_u32 v6, %d, v1'%(8*p))
        e('v_mul_u32_u24 v7, 57, v6'); e('v_lshrrev_b32 v7, 9, v7')
        e('v_bfe_u32 v9, v7, 1, 1'); e('v_xor_b32 v9, v9, v4')
        e('v_lshl_add_u32 v6, v6, 7, v5')
        e('v_mad_u32_u24 v6, v7, s16, v6')
        e('v_lshl_add_u32 v6, v9, 5, v6')
        e('v_xor_b32 v7, 64, v6')
        e('v_subrev_u32 %s, %d, v6'%(v(16+p),(p%4)*1024))
        e('v_add_u32 %s, %d, v7'%(v(25+p),8*9216-((p+9)%4)*1024))
    e('v_lshrrev_b32 v6, 1, v1'); e('v_and_b32 v6, 3, v6'); e('v_lshlrev_b32 v6, 1, v6'); e('v_xor_b32 v6, v6, v2')
    e('s_movk_i32 s69, 1152'); e('v_mul_u32_u24 v7, s69, v1'); e('v_lshl_add_u32 v36, v6, 4, v7')
    for i in range(1,4): e('v_add_u32 %s, %d, v36'%(v(36+i),i*8192))
    e('s_mul_i32 s64, s7, 18432')
    e('s_mul_i32 s17, %s, 1152'%s(sJ)); e('s_mul_i32 s18, s7, %d'%(16*9216)); e('s_add_u32 s17, s17, s18')
    e('s_lshl_b32 s18, s6, 1')
    e('s_xor_b32 s66, s18, s98'); e('s_mul_i32 s66, s66, %d'%(32*9216)); e('s_add_u32 s66, s66, s17')
    e('s_mov_b32 s67, s64')
    e('s_mov_b32 s68, 0'); e('s_mov_b32 s69, -2')
    e('s_mul_i32 s70, %s, 576'%s(sJ)); e('s_mul_i32 s71, s7, 144'); e('s_add_u32 s70, s70, s71'); e('s_mul_i32 s70, s70, 1152')
    e('s_lshl_b32 s19, s7, 8'); e('s_add_u32 s19, s19, %d'%LND)
    e('v_lshlrev_b32 v11, 2, v0'); e('v_add_u32 v11, s19, v11'); e('v_mov_b32 v10, 0'); e('v_mov_b32 v13, 0'); e('v_mov_b32 v40, 0'); e('v_mov_b32 v41, 0')
    e('v_and_b32 v12, 3, v0'); e('v_mul_u32_u24 v12, 260, v12'); e('v_add_u32 v12, %d, v12'%CNS)
    e('s_waitcnt lgkmcnt(0)')
    srd(sW1,52,5308416); srd(sW2,54,5308416)
    if STAMP: srd(sWS,62,WS_BYTES)
    PUB=12
    def dma(ph,p):
        if p%4==0 and p:
            e('s_add_u32 m0, s67, %d'%(p*1024))
            if ph==2: e('s_add_u32 s66, s66, %d'%(32*1152))
            else: e('s_nop 0')
        if ph==1: e('buffer_load_dwordx4 %s, %s, s66 offen offset:%d lds'%(v(16+p),s(sW1,4),(p%4)*1024))
        else: e('buffer_load_dwordx4 %s, %s, s66 offen offset:%d lds'%(v(36+p%4),s(sW2,4),(p%4)*1024))
    def grp(fill):
        groups=[]; i=0
        while i<len(fill):
            if fill[i].startswith('s_cmp'): groups.append(fill[i:i+2]); i+=2
            else: groups.append([fill[i]]); i+=1
        return groups
    def tr_top():
        if TRACE: e('s_memtime s[96:97]'); e('s_waitcnt lgkmcnt(0)'); e('s_mov_b32 m0, s68'); e('s_nop 3'); e('v_writelane_b32 v40, s96, m0'); e('v_writelane_b32 v42, s92, m0'); e('v_writelane_b32 v43, s94, m0')
    e('s_setprio %d'%LP1)
    e('LD_P:'); tr_top()
    e('s_mov_b32 m0, s67'); e('s_nop 0')
    g=grp(['s_add_u32 s18, s18, 1','s_cmp_eq_u32 s18, 18','s_cselect_b32 s18, 0, s18','s_xor_b32 s44, s18, s98','s_mul_i32 s44, s44, %d'%(32*9216),'s_add_u32 s44, s44, s17',
           's_add_u32 s45, s67, %d'%SLOT,'s_cmp_ge_u32 s45, %d'%(3*SLOT),'s_cselect_b32 s45, s64, s45'])
    for p in range(18):
        if p==PUB:
            e('s_cmp_eq_u32 s68, 0'); e('s_cbranch_scc1 LD_P0')
            if TRACE: e('s_memtime s[92:93]')
            e('s_waitcnt vmcnt(%d)'%PUB)
            if TRACE: e('s_memtime s[94:95]')
            e('s_barrier')
            e('LD_P0:')
        dma(1,p)
        if g:
            for x in g.pop(0): e(x)
    e('s_mov_b32 s66, s44'); e('s_mov_b32 s67, s45')
    e('s_add_u32 s68, s68, 1'); e('s_cmp_lt_u32 s68, 18'); e('s_cbranch_scc1 LD_P')
    e('s_add_u32 s66, s70, 1024'); e('s_mov_b32 s69, 0'); e('s_setprio %d'%LP2)
    e('LD_Q:'); tr_top()
    e('s_waitcnt lgkmcnt(1)'); e('v_cmp_gt_u32 vcc, s69, v13'); e('s_mov_b32 m0, s67'); e('s_cbranch_vccnz LD_QS')
    e('LD_QR:')
    g=grp(['s_sub_u32 s46, s68, 17','s_lshr_b32 s44, s46, 1','s_add_u32 s47, s44, s15','s_and_b32 s47, s47, 7','s_cmp_eq_u32 s44, 0','s_cselect_b32 s47, 8, s47',
           's_lshl_b32 s47, s47, 7','s_and_b32 s44, s46, 1','s_mul_i32 s44, s44, %d'%(288*1152),'s_add_u32 s44, s44, s47','s_add_u32 s44, s44, s70',
           's_add_u32 s45, s67, %d'%SLOT,'s_cmp_ge_u32 s45, %d'%(4*SLOT),'s_cselect_b32 s45, s64, s45',
           's_cmp_le_u32 s68, 20','s_cselect_b32 s69, 0, s68'])
    for p in range(18):
        if p==PUB:
            e('v_mov_b32 v10, s68')
            if TRACE: e('s_memtime s[92:93]')
            e('s_waitcnt vmcnt(%d)'%PUB)
            e('s_cmp_eq_u32 s68, 18'); e('s_cbranch_scc0 LD_Q0'); e('s_barrier'); e('LD_Q0:')
            if TRACE: e('s_memtime s[94:95]')
            e('ds_read_b32 v13, v12'); e('ds_write_b32 v11, v10')
        if E3A and p==E3A: e('s_cmp_eq_u32 s68, 20'); e('s_cbranch_scc0 LD_Q1'); e('s_barrier'); e('LD_Q1:')
        dma(2,p)
        if g:
            for x in g.pop(0): e(x)
    assert not g
    e('s_mov_b32 s66, s44'); e('s_mov_b32 s67, s45')
    e('s_add_u32 s68, s68, 1'); e('s_cmp_le_u32 s68, 20'); e('s_cbranch_scc1 LD_E')
    e('s_cmp_lt_u32 s68, 36'); e('s_cbranch_scc1 LD_Q')
    e('v_mov_b32 v10, s68'); e('s_waitcnt vmcnt(0)'); e('ds_write_b32 v11, v10')
    if STAMP: st(1); st_flush(2,0)
    if TRACE:
        e('s_cmp_eq_u32 s7, 0'); e('s_cbranch_scc1 TRX'); e('v_mov_b32 v41, v43'); e('v_mov_b32 v40, v42'); e('TRX:')
        trace_flush(40,41)
    e('s_waitcnt lgkmcnt(0)')
    e('s_endpgm')
    e('LD_E:')
    if not EARLY:
        e('s_barrier')
        e('s_cmp_eq_u32 s68, 20'); e('s_cbranch_scc1 LD_Q')
        e('v_mov_b32 v10, s68'); e('s_waitcnt vmcnt(0)'); e('ds_write_b32 v11, v10'); e('s_waitcnt lgkmcnt(0)')
        e('s_barrier'); e('s_branch LD_Q')
    else:
        e('s_cmp_eq_u32 s68, 19'); e('s_cbranch_scc1 LD_E1')
        e('v_mov_b32 v10, s68'); e('s_waitcnt vmcnt(0)'); e('ds_write_b32 v11, v10'); e('s_waitcnt lgkmcnt(0)')
        e('s_barrier')
        e('LD_E1:')
        e('s_barrier'); e('s_branch LD_Q')
    e('LD_QS:')
    e('ds_read_b32 v13, v12'); e('s_waitcnt lgkmcnt(0)'); e('v_cmp_gt_u32 vcc, s69, v13'); e('s_cbranch_vccz LD_QR')
    e('v_mov_b32 v10, s68'); e('s_waitcnt vmcnt(0)'); e('ds_write_b32 v11, v10')
    lds_wait(12,13,'s69')
    if TRACE: e('s_memtime s[96:97]'); e('s_waitcnt lgkmcnt(0)'); e('s_mov_b32 m0, s68'); e('s_nop 3'); e('v_writelane_b32 v41, s96, m0'); e('s_mov_b32 m0, s67')
    e('s_branch LD_QR')

def aux():
    e('K_AUX:')
    e('s_setprio %d'%AP)
    e('s_sub_u32 s7, %s, 6'%s(sWV))
    e('v_lshrrev_b32 v1, 3, v0'); e('v_and_b32 v2, 7, v0'); e('v_lshrrev_b32 v3, 1, v1')
    e('v_xor_b32 v4, v2, v3'); e('v_lshlrev_b32 v4, 4, v4'); e('v_xor_b32 v5, 64, v4')
    e('s_mov_b32 s16, 73728'); e('v_mul_u32_u24 v6, s16, v1')
    for p in range(4):
        e('v_add_u32 %s, v6, %s'%(v(16+p),'v5' if p%2 else 'v4'))
        if p: e('v_add_u32 %s, %d, %s'%(v(16+p),p*(8*73728-1024),v(16+p)))
    e('v_lshlrev_b32 v25, 4, v0')
    e('s_movk_i32 s17, 1152'); e('v_and_b32 v8, 31, v0'); e('v_mul_u32_u24 v7, 57, v8'); e('v_lshrrev_b32 v62, 9, v7'); e('v_mul_u32_u24 v7, 9, v62'); e('v_sub_u32 v7, v8, v7'); e('v_mul_u32_u24 v24, s17, v7'); e('v_lshrrev_b32 v7, 5, v0'); e('v_lshl_add_u32 v24, v7, 6, v24')
    e('s_lshl_b32 s18, s7, 5'); e('s_add_u32 s18, s18, %s'%s(sC)); e('s_mul_i32 s18, s18, 1152')
    e('s_mul_i32 s19, %s, 576'%s(sJ)); e('s_mul_i32 s64, %s, 18'%s(sC)); e('s_add_u32 s19, s19, s64')
    e('s_mul_i32 s64, s7, 9'); e('s_add_u32 s19, s19, s64'); e('s_mul_i32 s19, s19, 1152')
    e('s_mov_b32 s64, s6')
    e('s_lshl_b32 s69, s7, 12'); e('s_lshl_b32 s70, s7, 10'); e('s_add_u32 s65, s69, %d'%XW0)
    e('s_waitcnt lgkmcnt(0)')
    if DIAG==4: e('s_memrealtime s[74:75]')
    srd(sX,44,2359296); srd(sGW,56,1152)
    def issueX(h):
        if h==0: e('s_lshl_b32 s67, s64, 7'); e('s_add_u32 s67, s67, s18')
        e('s_mov_b32 m0, s65'); e('s_nop 0')
        for p in (2*h,2*h+1): e('buffer_load_dwordx4 %s, %s, s67 offen offset:%d lds'%(v(16+p),s(sX,4),p*1024))
        if h==1:
            e('s_add_u32 s64, s64, 1'); e('s_cmp_eq_u32 s64, 9'); e('s_cselect_b32 s64, 0, s64')
            e('s_add_u32 s65, s65, 8192'); e('s_sub_u32 s66, s65, 32768'); e('s_cmp_ge_u32 s65, %d'%(XW0+32768)); e('s_cselect_b32 s65, s66, s65')
    issueX(0); issueX(1)
    e('s_add_u32 m0, s70, %d'%GWL); e('s_cmp_eq_u32 s7, 0'); e('s_cselect_b32 exec_lo, -1, 0xff'); e('s_cselect_b32 exec_hi, -1, 0')
    e('buffer_load_dwordx4 v25, %s, s70 offen lds'%s(sGW,4))
    e('s_mov_b64 exec, -1')
    srd(sW2,54,5308416); srd(sWS,62,WS_BYTES); srd(sOUT,58,2359296); srd(sDBG,60,256)
    FC,FS,FN=112,120,128; GF=136; SEL=200; UO=208; MK=212; TR=216; PO=220; GG=224; L16=228; PL1=229; PL2=230; L0=231
    e('v_and_b32 v8, 15, v0'); e('v_lshrrev_b32 v9, 4, v0')
    e('v_mov_b32 %s, 0'%v(L0))
    e('s_lshl_b32 s71, s2, 1'); e('s_add_u32 s71, s71, s7'); e('s_lshl_b32 s71, s71, 2'); e('s_add_u32 s71, s71, %d'%FLU)
    e('s_or_b32 s14, %s, s7'%s(sC)); e('s_cmp_eq_u32 s14, 0'); e('s_cbranch_scc0 AX_NZ')
    for i in range(4): e('v_mov_b32 v%d, 0'%(56+i))
    e('v_lshlrev_b32 v12, 10, v0'); e('v_lshlrev_b32 v13, 6, v0')
    e('s_lshl_b32 s48, %s, 7'%s(sJ)); e('s_add_u32 s48, s48, %d'%FLP); e('s_lshl_b32 s49, %s, 3'%s(sJ)); e('s_add_u32 s49, s49, %d'%FLU)
    e('s_mov_b32 exec_hi, 0')
    e('buffer_store_dwordx4 v[56:59], v12, %s, s48 offen sc1'%s(sWS,4)); e('buffer_store_dwordx2 v[56:57], v13, %s, s49 offen sc1'%s(sWS,4))
    e('s_mov_b64 exec, -1')
    e('AX_NZ:')
    e('v_and_b32 v63, 7, v0'); e('v_lshlrev_b32 v63, 2, v63'); e('v_mov_b32 v254, 0')
    e('v_lshrrev_b32 v10, 1, v8'); e('v_xor_b32 v10, v10, v9'); e('v_lshlrev_b32 v10, 4, v10')
    e('v_lshl_add_u32 v20, v8, 7, v10'); e('v_add_u32 v20, %d, v20'%XW0); e('v_xor_b32 v21, 64, v20')
    e('v_mov_b32 v26, v20'); e('v_mov_b32 v27, v21'); e('v_add_u32 v28, s69, v20'); e('v_add_u32 v29, s69, v21')
    e('v_lshlrev_b32 v22, 4, v9'); e('v_add_u32 v22, %d, v22'%GWL); e('s_lshl_b32 s68, s6, 7'); e('v_add_u32 v23, s68, v22')
    e('s_lshl_b32 s44, s7, 11')
    ACC=64; TM=136; WA=176; RC=232
    for i in list(range(8))+list(range(16,24))+list(range(32,40)): e('v_mov_b32 %s, 0'%v(TM+i))
    for i in list(range(8,16))+list(range(24,32)): e('v_mov_b32 %s, 0'%v(ACC+i))
    e('s_sub_u32 s48, s6, 1'); e('s_cmp_eq_u32 s6, 0'); e('s_cselect_b32 s48, 8, s48'); e('s_lshl_b32 s48, s48, 6')
    e('v_lshlrev_b32 v11, 3, v9'); e('v_add_u32 v11, s48, v11'); e('v_cvt_f32_u32 v11, v11')
    e('s_lshl_b32 s49, %s, 5'%s(sJ)); e('s_lshl_b32 s50, s7, 4'); e('s_add_u32 s50, s50, s49'); e('s_lshl_b32 s49, %s, 2'%s(sJ)); e('s_add_u32 s49, s49, 256')
    for mix in range(2):
        if mix==0: e('v_add_u32 v12, s50, v8')
        else: e('v_and_b32 v12, 7, v8'); e('v_add_u32 v12, s49, v12')
        e('v_cvt_f32_u32 v12, v12'); e('v_mul_f32 v10, 0x%08x, v12'%f2u(1/9.)); e('v_mul_f32 v12, 0x%08x, v12'%f2u(1/576.)); e('v_mul_f32 v13, v12, v11')
        e('v_cos_f32 %s, v10'%v(RC+2*mix)); e('v_sin_f32 %s, v10'%v(RC+2*mix+1))
        if mix:
            e('v_cmp_gt_u32 vcc, 8, v8'); e('v_add_f32 v4, 0x3e800000, v13'); e('v_sub_f32 v5, 0, %s'%v(RC+3))
            e('v_cndmask_b32 v13, v4, v13, vcc'); e('v_cndmask_b32 %s, %s, v5, vcc'%(v(RC+3),v(RC+3)))
            e('v_cmp_eq_u32 vcc, 5, v8'); e('v_mov_b32 v4, 1.0'); e('v_mov_b32 v5, 0')
            e('v_cndmask_b32 %s, %s, v4, vcc'%(v(RC+2),v(RC+2))); e('v_cndmask_b32 %s, %s, v5, vcc'%(v(RC+3),v(RC+3)))
        for kp in range(2):
            for jp in range(4):
                for u in range(2):
                    e('v_fmamk_f32 %s, v12, 0x%08x, v13'%(v(30+u),f2u(32*kp+2*jp+u))); e('v_fract_f32 %s, %s'%(v(30+u),v(30+u)))
                e('v_cos_f32 v32, v30'); e('v_cos_f32 v33, v31')
                if mix==0:
                    e('v_sin_f32 v34, v30'); e('v_sin_f32 v35, v31')
                    e('v_cvt_pk_bf16_f32 %s, v32, v33'%v(WA+4*kp+jp)); e('v_cvt_pk_bf16_f32 %s, -v34, -v35'%v(WA+8+4*kp+jp))
                else:
                    e('s_nop 0'); e('v_cvt_pk_bf16_f32 %s, v32, v33'%v(WA+16+4*kp+jp))
    if PK:
        e('v_mov_b32 v60, %s'%v(RC+1)); e('v_mov_b32 v61, %s'%v(RC+1)); e('v_mov_b32 %s, %s'%(v(RC+1),v(RC)))
    global out
    save=out; parts=[]
    def begin():
        global out
        out=[]
    def end(): parts.append(out)
    begin()
    e('v_lshlrev_b32 v11, 2, v9'); e('v_cvt_f32_u32 v11, v11')
    for b in range(2):
        e('v_add_u32 v12, %d, v8'%(16*b)); e('v_cvt_f32_u32 v12, v12'); e('v_mul_f32 v12, 0x3d000000, v12'); e('v_mul_f32 v13, v12, v11')
        for jp in range(4):
            o=[(2*jp+u)%4+16*((2*jp+u)//4) for u in range(2)]
            for u in range(2): e('v_fmamk_f32 %s, v12, 0x%08x, v13'%(v(30+u),f2u(o[u])))
            e('v_cos_f32 v32, v30'); e('v_cos_f32 v33, v31'); e('v_sin_f32 v34, v30'); e('v_sin_f32 v35, v31')
            e('v_cvt_pk_bf16_f32 %s, v32, v33'%v(FC+4*b+jp)); e('v_cvt_pk_bf16_f32 %s, v34, v35'%v(FS+4*b+jp))
            e('v_xor_b32 %s, 0x80008000, %s'%(v(FN+4*b+jp),v(FS+4*b+jp)))
    end()
    for i in range(4):
        begin()
        e('s_lshr_b32 s48, %s, 2'%s(sJ)); e('s_lshl_b32 s48, s48, 1'); e('s_and_b32 s49, %s, 1'%s(sJ)); e('s_add_u32 s48, s48, s49')
        e('s_add_u32 s48, s48, %d'%i); e('s_and_b32 s48, s48, 3')
        e('v_lshlrev_b32 %s, 4, v0'%v(L16)); e('v_cvt_f32_u32 v11, v9')
        e('s_lshl_b32 s49, s48, 6'); e('s_add_u32 s49, s49, %d'%GL); e('v_lshlrev_b32 v13, 2, v8'); e('v_add_u32 %s, s49, v13'%v(GG+i))
        e('s_lshr_b32 s49, s48, 1'); e('s_and_b32 s50, s48, 1')
        e('s_lshl_b32 s51, s49, 12'); e('s_lshl_b32 s52, s50, 10'); e('s_add_u32 s51, s51, s52'); e('v_add_u32 %s, s51, %s'%(v(PO+i),v(L16)))
        e('s_lshl_b32 s49, s49, 5'); e('s_add_u32 s49, s49, s52'); e('s_add_u32 s49, s49, %s'%s(sC))
        e('v_lshlrev_b32 v5, 6, v8'); e('v_add_u32 v6, s49, v5')
        e('v_cvt_f32_u32 v5, v6'); e('v_mul_f32 v5, 0x3a000000, v5'); e('v_mul_f32 v13, v5, v11')
        e('s_movk_i32 s49, 1152'); e('v_lshlrev_b32 v4, 4, v9')
        e('v_mad_u32_u24 %s, v6, s49, v4'%v(TR+i))
        for k in range(4):
            for u in range(2):
                for h in range(2): e('v_fmamk_f32 %s, v5, 0x%08x, v13'%(v(30+h),f2u(8*k+4*u+32*h)))
                e('v_cos_f32 v32, v30'); e('v_sin_f32 v33, v30'); e('v_cos_f32 v34, v31'); e('v_sin_f32 v35, v31')
                e('v_cvt_pk_bf16_f32 %s, v32, v33'%v(GF+16*i+4*k+2*u)); e('v_cvt_pk_bf16_f32 %s, v34, v35'%v(GF+16*i+4*k+2*u+1))
        end()
    begin()
    e('v_bfe_u32 v4, v8, 1, 2'); e('v_cmp_eq_u32 vcc, v4, v9'); e('v_and_b32 v5, 1, v8'); e('v_lshrrev_b32 v7, 3, v8')
    e('v_mov_b32 v6, 0x3f80'); e('v_lshl_add_u32 v5, v7, 1, v5'); e('v_cndmask_b32 v6, 0, v6, vcc')
    for r in range(4):
        e('v_cmp_eq_u32 vcc, %d, v5'%r); e('s_nop 1'); e('v_cndmask_b32 %s, 0, v6, vcc'%v(SEL+r)); e('v_lshlrev_b32 %s, 16, %s'%(v(SEL+4+r),v(SEL+r)))
    e('v_and_b32 v4, 1, v0'); e('v_lshlrev_b32 v4, 3, v4'); e('s_lshl_b32 s49, s7, 2'); e('v_add_u32 v4, s49, v4'); e('v_bfe_u32 v5, v0, 1, 3'); e('v_lshl_add_u32 %s, v5, 7, v4'%v(PL1))
    e('v_sub_u32 v5, %s, v5'%s(sJ)); e('v_and_b32 v5, 7, v5'); e('v_add_u32 v254, 1, v5')
    e('v_and_b32 v4, 7, v0'); e('v_lshlrev_b32 v4, 7, v4'); e('s_lshr_b32 s49, %s, 1'%s(sJ)); e('s_lshl_b32 s49, s49, 2'); e('v_add_u32 %s, s49, v4'%v(PL2))
    e('s_sub_u32 s48, 32, %s'%s(sC)); e('s_and_b32 s48, s48, 31')
    e('s_movk_i32 s49, %d'%PR); e('v_mul_u32_u24 v12, s49, v9'); e('v_lshlrev_b32 v4, 4, v8')
    e('s_lshl_b32 s54, s15, 6'); e('s_lshl_b32 s49, s7, 5'); e('s_add_u32 s54, s54, s49')
    e('s_and_b32 s55, %s, 2'%s(sJ)); e('s_lshl_b32 s55, s55, 4'); e('s_add_u32 s55, s55, 512')
    e('s_mul_i32 s48, s48, %d'%TP); e('s_mul_i32 s50, %s, %d'%(s(sC),TP))
    e('v_add_u32 v5, v12, v4'); e('v_add_u32 v6, 256, v12'); e('v_sub_u32 v6, v6, v4')
    e('s_sub_u32 s49, 543, s54'); e('s_lshl_b32 s49, s49, 3'); e('s_add_u32 s49, s49, s48')
    e('s_lshl_b32 s51, s54, 3'); e('s_add_u32 s51, s51, s50')
    e('s_cmp_ge_u32 s54, 288'); e('s_cselect_b32 s49, s49, s51'); e('s_cselect_b64 vcc, -1, 0')
    e('v_cndmask_b32 v5, v5, v6, vcc'); e('v_add_u32 %s, s49, v5'%v(UO))
    e('s_sub_u32 s49, 575, s55'); e('s_lshl_b32 s49, s49, 3'); e('s_add_u32 s49, s49, s48')
    e('v_add_u32 v6, s49, v12'); e('v_sub_u32 %s, v6, v4'%v(UO+1))
    end()
    out=save
    NPRE=PRE
    out.extend(parts[0])
    later=[]
    XF=36
    def rotate(lo,hi,mix):
        if PK:
            for i in range(lo,hi,2):
                e('v_pk_mul_f32 %s, %s, %s'%(v(TM+i,2),v(RC,2),v(ACC+i,2))); e('v_pk_mul_f32 %s, %s, %s'%(v(TM+16+i,2),v(RC,2),v(ACC+16+i,2)))
                e('v_pk_fma_f32 %s, %s, %s, %s neg_lo:[1,0,0] neg_hi:[1,0,0]'%(v(TM+i,2),v(60,2),v(ACC+16+i,2),v(TM+i,2))); e('v_pk_fma_f32 %s, %s, %s, %s'%(v(TM+16+i,2),v(60,2),v(ACC+i,2),v(TM+16+i,2)))
        else:
            for i in range(lo,hi):
                e('v_mul_f32 %s, %s, %s'%(v(TM+i),v(RC),v(ACC+i))); e('v_mul_f32 %s, %s, %s'%(v(TM+16+i),v(RC),v(ACC+16+i)))
                e('v_fma_f32 %s, -%s, %s, %s'%(v(TM+i),v(RC+1),v(ACC+16+i),v(TM+i))); e('v_fmac_f32 %s, %s, %s'%(v(TM+16+i),v(RC+1),v(ACC+i)))
        if mix:
            for i in range(8): e('v_mul_f32 %s, %s, %s'%(v(TM+32+i),v(RC+2),v(ACC+32+i)))
            for i in range(8): e('v_fmac_f32_dpp %s, %s, %s row_ror:8 row_mask:0xf bank_mask:0xf'%(v(TM+32+i),v(ACC+32+i),v(RC+3)))
    e('s_mov_b32 s46, 0'); e('s_mov_b32 s47, 0')
    e('s_and_b32 s45, %s, %d'%(s(sC),XSTG)); e('s_mov_b32 s53, 1'); e('s_mov_b32 s51, 0')
    if XUP==3:
        for _ in range(3): issueX(0); issueX(1)
        e('s_mov_b32 s53, 4'); e('s_add_u32 s51, s45, 4'); e('s_cmp_ge_u32 s45, 2'); e('s_cselect_b32 s51, s45, s51')
    e('s_waitcnt vmcnt(%d)'%(4*XUP))
    e('s_cmp_eq_u32 s14, 0'); e('s_cbranch_scc0 AX_L')
    e('v_mov_b32 v255, 1'); e('s_lshl_b32 s48, %s, 2'%s(sJ)); e('s_mov_b64 exec, 1')
    e('buffer_store_dword v255, %s, %s, s48 offen sc1'%(v(L0),s(sDBG,4))); e('s_mov_b64 exec, -1')
    e('AX_L:')
    for kp in range(2):
        if TRACE:
            e('s_memtime s[96:97]'); e('s_lshl_b32 s95, s46, 1'); e('s_add_u32 m0, s95, %d'%(kp+1)); e('s_waitcnt lgkmcnt(0)'); e('v_writelane_b32 v252, s96, m0'); e('v_writelane_b32 v253, s92, m0')
        e('s_barrier')
        if DIAG in (2,6) and kp==0: e('s_cmp_eq_u32 s46, %d'%(0 if DIAG==2 else 2)); e('s_cbranch_scc0 DGN'); e('s_memrealtime s[74:75]'); e('s_waitcnt lgkmcnt(0)'); e('DGN:')
        for sg in range(4): e('ds_read_b128 %s, %s offset:%d'%(v(XF+4*sg,4),v(26+kp),sg*2048))
        for sg in range(2): e('ds_read_b128 %s, %s offset:%d'%(v(XF+16+4*sg,4),v(28+kp),sg*2048))
        e('s_mov_b32 exec_lo, 0x00200020'); e('s_mov_b32 exec_hi, 0x00200020')
        e('ds_read_b128 %s, v23 offset:%d'%(v(WA+16+4*kp,4),64*kp))
        e('s_mov_b64 exec, -1')
        e('s_sub_u32 s51, s51, 1'); e('s_cbranch_scc1 AX_B%d'%kp)
        e('AX_S%d:'%kp)
        def rot(lo,hi,mix):
            L=[]
            for i in range(lo,hi):
                L+=['v_mul_f32 %s, %s, %s'%(v(TM+i),v(RC),v(ACC+i)),'v_mul_f32 %s, %s, %s'%(v(TM+16+i),v(RC),v(ACC+16+i)),
                    'v_fma_f32 %s, -%s, %s, %s'%(v(TM+i),v(RC+1),v(ACC+16+i),v(TM+i)),'v_fmac_f32 %s, %s, %s'%(v(TM+16+i),v(RC+1),v(ACC+i))]
            if mix:
                L+=['v_mul_f32 %s, %s, %s'%(v(TM+32+i),v(RC+2),v(ACC+32+i)) for i in range(8)]
                L+=['v_fmac_f32_dpp %s, %s, %s row_ror:8 row_mask:0xf bank_mask:0xf'%(v(TM+32+i),v(ACC+32+i),v(RC+3)) for i in range(8)]
            return L
        M=lambda t,sg: mf(ACC+16*t+4*sg, XF+4*sg, WA+8*t+4*kp, TM+16*t+4*sg if kp==0 else None)
        X=lambda sg: mf(ACC+32+4*sg, XF+16+4*sg, WA+16+4*kp, TM+32+4*sg if kp==0 else None)
        if kp==0:
            R=rot(8,16,False)
            for x in R[:8]: e(x)
            e('s_waitcnt lgkmcnt(0)')
            R=R[8:]
            for m in (M(0,0),M(1,0),M(0,1),M(1,1),X(0),X(1)):
                e(m)
                for x in R[:4]: e(x)
                R=R[4:]
            assert not R
            for m in (M(0,2),M(1,2),M(0,3),M(1,3)): e(m)
        else:
            A_=['s_add_u32 s47, s47, 8192','s_and_b32 s47, s47, 32767','s_add_u32 s66, s47, s69','s_add_u32 s68, s68, 128','s_cmp_eq_u32 s68, 1152','s_cselect_b32 s68, 0, s68',
                'v_add_u32 v26, s47, v20','v_add_u32 v27, s47, v21','v_add_u32 v28, s66, v20','v_add_u32 v29, s66, v21','v_add_u32 v23, s68, v22']
            for x in A_: e(x)
            e('s_waitcnt lgkmcnt(0)')
            for m in (M(0,0),M(1,0),M(0,1),M(1,1),X(0),X(1)): e(m)
            e('s_nop 3')
            R=rot(0,8,True)
            for m in (M(0,2),M(1,2),M(0,3),M(1,3)):
                for x in R[:4]: e(x)
                R=R[4:]
                e(m)
            e('s_cmp_eq_u32 s46, 8'); e('s_cbranch_scc1 AX_D')
            for x in R: e(x)
    if TRACE: e('s_memtime s[92:93]')
    e('s_lshr_b32 s66, s45, 1'); e('s_xor_b32 s66, s66, s46'); e('s_add_u32 s46, s46, 1')
    e('s_bitcmp1_b32 s66, 0'); e('s_cbranch_scc1 AX_W0')
    e('s_cmp_eq_u32 s46, 1'); e('s_cbranch_scc0 AX_L')
    e('s_waitcnt vmcnt(8)'); e('s_branch AX_L')
    e('AX_W0:')
    e('s_waitcnt vmcnt(0)'); e('s_branch AX_L')
    for kp in range(2):
        e('AX_B%d:'%kp)
        e('s_cmp_ge_u32 s46, 5'); e('s_cselect_b32 s51, 100, 3')
        e('s_add_u32 s52, s46, 3'); e('s_min_u32 s52, s52, 8')
        e('s_cmp_eq_u32 s46, 0'); e('s_cbranch_scc0 AX_C%d'%kp)
        if kp==0:
            e('s_lshr_b32 s52, s45, 1'); e('s_add_u32 s52, s52, 1')
            e('s_sub_u32 s51, s45, 1'); e('s_cmp_ge_u32 s45, 2'); e('s_cselect_b32 s51, s51, 0')
        else:
            e('s_add_u32 s51, s45, 2')
        e('AX_C%d:'%kp)
        issueX(0); issueX(1)
        e('s_add_u32 s53, s53, 1'); e('s_cmp_le_u32 s53, s52'); e('s_cbranch_scc1 AX_C%d'%kp)
        e('s_cmp_eq_u32 s46, 0'); e('s_cbranch_scc1 AX_S%d'%kp)
        e('v_add_u32 v4, %s, v62'%s(sJ)); e('v_and_b32 v4, 7, v4'); e('v_cmp_eq_u32 vcc, 0, v62'); e('v_mov_b32 v5, 8'); e('v_add_u32 v62, 3, v62')
        e('v_cndmask_b32 v4, v4, v5, vcc'); e('v_lshl_add_u32 v4, v4, 7, v24')
        e('s_mov_b32 exec_lo, 0x7ffffff'); e('s_mov_b32 exec_hi, %s'%('0x7ffffff' if T2 else '0'))
        e('buffer_load_dword v15, v4, %s, s19 offen'%s(sW2,4))
        e('s_mov_b64 exec, -1')
        e('s_cmp_ge_u32 s46, 5'); e('s_cbranch_scc0 AX_S%d'%kp)
        e('buffer_load_dword v254, v63, %s, 0 offen sc1'%s(sDBG,4))
        e('s_branch AX_S%d'%kp)
    e('AX_D:')
    e('s_barrier')
    if DIAG==5: e('s_memrealtime s[74:75]'); e('s_waitcnt lgkmcnt(0)')
    e('s_setprio %d'%AP2); e('s_nop 3')
    st(1)
    e('s_mov_b32 s16, %d'%(4*TP)); e('v_lshlrev_b32 v12, 3, v8'); e('v_mad_u32_u24 v12, s16, v9, v12')
    e('s_mul_i32 s16, %s, %d'%(s(sC),PR)); e('s_add_u32 s16, s16, %d'%U_OFF)
    e('s_lshl_b32 s17, %s, 5'%s(sJ)); e('s_add_u32 s17, s17, s16'); e('s_add_u32 s17, s17, 2048')
    e('s_lshl_b32 s48, %s, 8'%s(sJ)); e('s_add_u32 s16, s16, s48'); e('s_lshl_b32 s48, s7, 7'); e('s_add_u32 s16, s16, s48')
    FR=16
    def pack(dst,src,n=8):
        for h in range(n): e('v_cvt_pk_bf16_f32 %s, %s, %s'%(v(dst+h),v(src+2*h),v(src+2*h+1)))
    def stageA(D,FR):
        for sh in range(2):
            for be in range(2):
                d=D+16*sh+8*be; a=FR+4*sh; b=FR+8+4*sh
                mfma(d,FC+4*be,a,'0'); mfma(d+4,FC+4*be,b,'0'); mfma(d,FS+4*be,b); mfma(d+4,FN+4*be,a)
    def ustore(D,O,so):
        for be in range(2):
            for r in range(4):
                o=O+8*be+2*r
                for sh in range(2): e('v_cvt_pk_bf16_f32 %s, %s, %s'%(v(o+sh),v(D+16*sh+8*be+r),v(D+16*sh+8*be+4+r)))
                e('s_add_u32 s48, %s, %d'%(so,(16*be+r)*TP)); e('buffer_store_dwordx2 %s, v12, %s, s48 offen sc1'%(v(o,2),s(sWS,4)))
    MF=136
    e('v_mov_b32 v255, v63')
    e('v_add_u32 v14, %d, v25'%MX)
    pack(MF,ACC+32,4)
    e('s_lshl_b32 s66, s7, 7'); e('s_add_u32 s66, s66, %d'%GL); e('v_lshlrev_b32 v13, 4, v9'); e('v_add_u32 v13, s66, v13')
    e('s_mov_b32 exec_lo, 0x00200020'); e('s_mov_b32 exec_hi, 0x00200020')
    for sg in range(2): e('ds_write_b128 v13, %s offset:%d'%(v(ACC+32+4*sg,4),64*sg))
    e('s_mov_b64 exec, -1')
    e('s_cmp_eq_u32 s7, 1'); e('s_cbranch_scc0 AX_A0'); e('ds_write_b128 v14, %s'%v(MF,4)); e('AX_A0:')
    pack(FR,ACC); pack(FR+8,ACC+16); e('s_nop 1')
    stageA(32,FR)
    e('s_nop 7')
    ustore(32,236,'s16')
    e('s_mov_b32 s47, 0')
    e('AX_V0:')
    e('v_cmp_eq_u32 vcc, 0, v254'); e('s_cbranch_vccz AX_V1')
    e('s_add_u32 s47, s47, 1'); e('s_cmp_gt_u32 s47, %d'%SPINMAX); e('s_cbranch_scc1 AX_V1')
    e('s_sleep 8'); e('buffer_load_dword v254, v255, %s, 0 offen sc1'%s(sDBG,4)); e('s_waitcnt vmcnt(0)'); e('s_branch AX_V0')
    e('AX_V1:')
    e('s_waitcnt lgkmcnt(0)')
    e('s_barrier')
    e('s_barrier')
    if E3A: e('s_barrier')
    if DIAG==3: e('s_memrealtime s[74:75]'); e('s_waitcnt lgkmcnt(0)')
    e('s_cmp_eq_u32 s7, 0'); e('s_cbranch_scc0 AX_A2')
    e('ds_read_b128 %s, v14'%v(MF+4,4)); e('s_waitcnt lgkmcnt(0)')
    for h in range(8): e('v_mov_b32_dpp %s, %s row_ror:8 row_mask:0xf bank_mask:0xf'%(v(MF+8+h),v(MF+h)))
    e('s_nop 1')
    stageA(64,MF)
    e('s_nop 7')
    e('s_mov_b32 s49, 0x000f000f'); e('s_cmp_eq_u32 %s, 7'%s(sJ)); e('s_cselect_b32 s49, 0x001f001f, s49')
    e('s_mov_b32 exec_lo, s49'); e('s_mov_b32 exec_hi, s49')
    ustore(64,96,'s17')
    e('s_mov_b64 exec, -1')
    e('AX_A2:')
    out.extend(parts[1])
    e('s_waitcnt vmcnt(0)'); e('v_mov_b32 v10, 1')
    e('s_mov_b64 exec, 1'); e('buffer_store_dword v10, %s, %s, s71 offen sc1'%(v(L0),s(sWS,4))); e('s_mov_b64 exec, -1')
    for k in (2,3,4,5): out.extend(parts[k])
    for i in range(4): e('ds_read_b32 %s, %s'%(v(GG+i),v(GG+i)))
    e('s_lshl_b32 s65, %s, 10'%s(sC)); e('s_add_u32 s65, s65, %d'%FLP)
    e('s_waitcnt lgkmcnt(0)')
    for i in range(4):
        g=GG+i
        e('v_mul_f32 %s, 0xbfb8aa3b, %s'%(v(g),v(g))); e('v_exp_f32 %s, %s'%(v(g),v(g))); e('s_nop 0')
        e('v_add_f32 %s, 1.0, %s'%(v(g),v(g))); e('v_rcp_f32 %s, %s'%(v(g),v(g)))
    if NORED:
        for i in range(2,7): st(i)
        st_flush(7,0); e('s_endpgm')
    e('s_mov_b32 s47, 0')
    def gpoll(load,cmp,slp):
        L=lab('GP'); e('s_branch %sf'%L); e(L+':')
        if slp: e('s_sleep %d'%slp)
        e(L+'f:')
        for x in load: e(x)
        e('s_add_u32 s47, s47, 1'); e('s_waitcnt vmcnt(0)')
        for x in cmp: e(x)
        e('s_cmp_gt_u32 s47, %d'%SPINMAX); e('s_cbranch_scc1 %sx'%L); e('s_cbranch_vccnz '+L); e(L+'x:')
    e('s_lshl_b32 s16, s7, 8'); e('s_add_u32 s16, s16, %d'%CNS)
    e('v_and_b32 v15, 1, v0'); e('v_mul_u32_u24 v15, 516, v15'); e('v_add_u32 v15, s16, v15')
    def pace(n):
        L=lab('PC'); e(L+':'); e('s_sleep 3'); e('ds_read_b32 v5, v15')
        e('s_add_u32 s99, s99, 1'); e('s_cmp_gt_u32 s99, 0x100000'); e('s_cbranch_scc1 K_END'); e('s_waitcnt lgkmcnt(0)')
        e('v_cmp_gt_u32 vcc, %s, v5'%(n if isinstance(n,str) else min(n,38))); e('s_cbranch_vccnz '+L)
    e('s_and_b32 s16, %s, %d'%(s(sC),USTG)); e('s_add_u32 s16, s16, %d'%(20+UPACE))
    pace('s16')
    e('s_setprio %d'%AP3)
    e('s_mov_b32 s16, %d'%FLU)
    gpoll(['buffer_load_dwordx4 v[96:99], %s, %s, s16 offen sc1'%(v(L16),s(sWS,4)),'buffer_load_dwordx4 v[100:103], %s, %s, s16 offen offset:1024 sc1'%(v(L16),s(sWS,4))],
          ['v_min3_u32 v5, v96, v97, v98','v_min3_u32 v5, v5, v99, v100','v_min3_u32 v5, v5, v101, v102','v_min_u32 v5, v5, v103','v_cmp_eq_u32 vcc, 0, v5'],USLP)
    st(2)
    UF=16; YA=80; SP=152
    def uloads(n,dst):
        for k in range(4):
            for u in range(2):
                e('s_mov_b32 s17, %d'%(U_OFF+(8*k+4*u)*PR))
                e('buffer_load_dwordx4 %s, %s, %s, s17 offen sc1'%(v(dst+8*k+4*u,4),v(UO+n),s(sWS,4)))
    def ufix(dst):
        for k in range(4):
            for h in range(2): e('v_swap_b32 %s, %s'%(v(dst+8*k+2+h),v(dst+8*k+4+h)))
    def uneg(dst):
        for i in range(32): e('v_xor_b32 %s, 0x80000000, %s'%(v(dst+i),v(dst+i)))
    def fin(y,p,og,o,vaddr,soff):
        for tb in range(2):
            for r in range(4): e('v_fma_f32 %s, %s, %s, %s'%(v(p[tb]+r),v(og),v(p[tb]+r),v(y[tb]+r)))
        for r in range(4): e('v_cvt_pk_bf16_f32 %s, %s, %s'%(v(o+r),v(p[0]+r),v(p[1]+r)))
        e('buffer_store_dwordx4 %s, %s, %s, %s offen%s'%(v(o,4),v(vaddr),s(sOUT,4),soff,[' ',' sc1',' nt'][OSC]))
    uloads(0,UF)
    e('s_cmp_eq_u32 s7, 1'); e('s_cbranch_scc0 AX_U')
    uloads(1,UF+32)
    gpoll(['buffer_load_dword v5, %s, %s, s65 offen sc1'%(v(PL2),s(sWS,4))],['v_cmp_gt_u32 vcc, 1, v5'],10)
    e('s_mul_i32 s16, %s, %d'%(s(sC),8*73728)); e('s_lshl_b32 s17, %s, 10'%s(sJ)); e('s_add_u32 s16, s16, s17'); e('s_add_u32 s16, s16, 65536')
    for jj in range(8):
        e('buffer_load_dwordx4 %s, %s, %s, s16 offen sc1'%(v(80+4*jj,4),v(L16),s(sWS,4)))
        if jj<7: e('s_add_u32 s16, s16, 73728')
    ufix(UF+32); uneg(UF+32)
    e('s_nop 1')
    for k in range(4):
        for tb in range(2): mfma(112+4*(1-tb), UF+32+8*k+4*tb, GF+4*k, '0' if k==0 else None)
    e('s_waitcnt vmcnt(0)')
    for jj in range(8):
        for tb in range(2): mfma(120+4*tb, SEL+4*tb, 80+4*jj, '0' if jj==0 else None)
    for r in range(8): e('v_mul_f32 %s, %s, %s'%(v(112+r),v(GG),v(112+r)))
    e('v_sub_f32 v14, 1.0, %s'%v(GG)); e('s_lshl_b32 s16, s55, 1')
    fin((112,116),(120,124),14,248,TR,'s16')
    e('s_branch AX_U2')
    e('AX_U:')
    e('s_waitcnt vmcnt(0)')
    e('AX_U2:')
    ufix(UF)
    e('s_cmp_ge_u32 s54, 288'); e('s_cbranch_scc0 AX_U3')
    uneg(UF)
    for k in range(4):
        for h in range(4): e('v_swap_b32 %s, %s'%(v(UF+8*k+h),v(UF+8*k+4+h)))
    e('AX_U3:')
    e('s_nop 1')
    for k in range(4):
        for tb in range(2):
            for i in range(4): mfma(YA+16*tb+4*i, UF+8*k+4*tb, GF+16*i+4*k, '0' if k==0 else None)
    st(3)
    if '--exitc8' in A:
        for i in range(4,7): st(i)
        st_flush(7,0); e('s_endpgm')
    e('s_mul_i32 s18, %s, %d'%(s(sC),8*73728)); e('s_lshl_b32 s17, s15, 13'); e('s_add_u32 s18, s18, s17'); e('s_add_u32 s18, s18, s44')
    def acc(buf,first):
        for i in range(4):
            for tb in range(2): mfma(SP+16*tb+4*i, SEL+4*tb, buf+4*i, '0' if first else None)
    BUF=lambda i: 16+16*(i%4)
    e('s_mov_b32 s66, 0')
    def addr(i,so,sm):
        e('s_sub_u32 %s, %s, %d'%(so,s(sJ),i)); e('s_and_b32 %s, %s, 7'%(so,so))
        e('s_lshl_b32 %s, %s, 1'%(sm,so)); e('s_lshl_b32 %s, 3, %s'%(sm,sm))
        e('s_mul_i32 %s, %s, 73728'%(so,so)); e('s_add_u32 %s, %s, s18'%(so,so))
    def pollbits(i,sm,sx,slp):
        e('s_branch AX_F%d'%i); e('AX_R%d:'%i)
        if slp: e('s_sleep %d'%slp)
        e('AX_F%d:'%i)
        e('buffer_load_dword v5, %s, %s, s65 offen sc1'%(v(PL1),s(sWS,4))); e('s_add_u32 s47, s47, 1'); e('s_waitcnt vmcnt(0)')
        e('v_cmp_le_u32 vcc, v254, v5'); e('s_cmp_gt_u32 s47, %d'%SPINMAX); e('s_cbranch_scc1 AX_G%d'%i)
        e('s_mov_b32 s66, vcc_lo'); e('s_mov_b32 exec_lo, %s'%sx); e('s_mov_b32 exec_hi, 0')
        e('s_and_b32 s19, s66, %s'%sm); e('s_cmp_eq_u32 s19, %s'%sm); e('s_cbranch_scc0 AX_R%d'%i)
    def loads(i,so):
        for u in range(4): e('buffer_load_dwordx4 %s, %s, %s, %s offen sc1'%(v(BUF(i)+4*u,4),v(PO+u),s(sWS,4),so))
    addr(7,'s48','s49')
    e('s_add_u32 s16, s44, %d'%QH)
    for u in range(4): e('v_add_u32 %s, s16, %s'%(v(128+u),v(PO+u)))
    for i in range(1,7):
        addr(i,'s16','s17')
        e('s_and_b32 s19, s66, s17'); e('s_cmp_eq_u32 s19, s17'); e('s_cbranch_scc1 AX_G%d'%i)
        pace(max(20+2*(i+2)+PPACE-FEARLY, LATE if i>L1 else 0))
        if i==6: e('s_or_b32 s50, s17, s49'); e('s_mov_b32 exec_lo, s50'); e('s_mov_b32 exec_hi, 0')
        pollbits(i,'s17','s50' if i==6 else 's17', 0 if i==6 else PSLP)
        e('AX_G%d:'%i)
        e('s_mov_b64 exec, -1')
        loads(i,'s16')
        if 3<=i<=6: e('s_waitcnt vmcnt(8)'); acc(BUF(i-2), i==3)
        if i==1:
            for sl in range(4):
                for tb in range(2):
                    for r in range(4): e('v_mul_f32 %s, %s, %s'%(v(YA+16*tb+4*sl+r),v(GG+sl),v(YA+16*tb+4*sl+r)))
                e('v_sub_f32 %s, 1.0, %s'%(v(GG+sl),v(GG+sl)))
    e('s_and_b32 s19, s66, s49'); e('s_cmp_eq_u32 s19, s49'); e('s_cbranch_scc1 AX_G7')
    e('s_mov_b32 exec_lo, s49'); e('s_mov_b32 exec_hi, 0')
    pollbits(7,'s49','s49',0)
    e('AX_G7:')
    e('s_mov_b64 exec, -1')
    loads(7,'s48')
    e('s_waitcnt vmcnt(8)'); acc(BUF(5),False)
    lds_wait(15,5,'39')
    for u in range(4): e('ds_read_b128 %s, %s'%(v(BUF(4)+4*u,4),v(128+u)))
    e('s_waitcnt lgkmcnt(0)'); acc(BUF(4),False)
    st(4)
    e('s_waitcnt vmcnt(4)'); acc(BUF(6),False)
    st(5)
    e('s_lshl_b32 s16, s54, 1')
    for sl in range(4):
        e('s_waitcnt vmcnt(%d)'%(3-sl))
        for tb in range(2): mfma(SP+16*tb+4*sl, SEL+4*tb, BUF(7)+4*sl)
    e('s_nop 3')
    for sl in range(4): fin((YA+4*sl,YA+16+4*sl),(SP+4*sl,SP+16+4*sl),GG+sl,232+4*sl,TR+sl,'s16')
    if STAMP:
        e('s_waitcnt vmcnt(0)'); st(6); st_flush(7,0)
        if TRACE: trace_flush(252,253)
    if DIAG:
        e('s_waitcnt vmcnt(0)'); e('s_memrealtime s[76:77]'); e('s_waitcnt lgkmcnt(0)')
        if DIAG==1: e('s_mov_b32 s74, s76')
        e('s_sub_u32 s16, s74, s72')
        if DIAG in (2,6): e('s_lshl_b32 s16, s16, 2')
        if DIAG==4: e('s_lshl_b32 s16, s16, 3')
        e('DG:'); e('s_memrealtime s[78:79]'); e('s_waitcnt lgkmcnt(0)'); e('s_sub_u32 s17, s78, s76'); e('s_cmp_lt_u32 s17, s16'); e('s_cbranch_scc1 DG')
    e('s_endpgm')
    for n,k in enumerate(later):
        e('AX_SL%d:'%n); out.extend(parts[k]); e('s_branch AX_SR')

def main():
    global INMAIN
    e('K_MAIN:')
    ACC=96; AF=16; XB=56
    T=200
    e('v_lshlrev_b32 v7, 2, v0'); e('s_lshl_b32 s16, %s, 8'%s(sWV)); e('s_add_u32 s16, s16, %d'%LND); e('v_add_u32 v3, s16, v7'); e('v_mov_b32 v8, 0')
    for i in range(3): e('ds_write_b32 v3, v8 offset:%d'%(1024*i))
    e('v_add_u32 v13, 1024, v3')
    e('v_and_b32 v3, 1, v0'); e('v_mul_u32_u24 v3, 260, v3'); e('v_add_u32 v14, %d, v3'%LND)
    e('v_mov_b32 v5, 0')
    e('v_and_b32 v200, 15, v0'); e('v_lshrrev_b32 v201, 4, v0')
    e('s_movk_i32 s17, 1152')
    e('v_lshrrev_b32 v202, 2, v200'); e('v_and_b32 v203, 3, v0')
    e('v_lshl_add_u32 v204, v201, 3, v202'); e('v_mul_u32_u24 v204, s17, v204'); e('v_lshl_add_u32 v204, v203, 3, v204')
    e('v_lshrrev_b32 v205, 1, v202'); e('v_and_b32 v7, 1, v201'); e('v_lshl_add_u32 v205, v7, 1, v205')
    e('s_mul_i32 s18, %s, %d'%(s(sWV),NA)); e('s_cmp_eq_u32 %s, 3'%s(sWV)); e('s_cselect_b32 s18, %d, s18'%(36-NB))
    for i in range(4):
        e('s_add_u32 s16, s18, %d'%i); e('s_and_b32 s17, s16, 3'); e('s_lshr_b32 s16, s16, 2'); e('s_lshl_b32 s16, s16, 7')
        e('v_xor_b32 v7, s17, v205'); e('v_lshl_add_u32 v7, v7, 5, v204'); e('v_add_u32 %s, s16, v7'%v(88+i)); e('v_mov_b32 %s, %s'%(v(92+i),v(88+i)))
    e('v_lshrrev_b32 v7, 1, v200'); e('v_xor_b32 v7, v7, v201'); e('v_lshlrev_b32 v7, 4, v7')
    e('v_lshl_add_u32 v1, v200, 7, v7'); e('v_add_u32 v1, %d, v1'%XW0); e('s_lshl_b32 s16, s98, 6'); e('v_xor_b32 v1, s16, v1'); e('v_xor_b32 v2, 64, v1')
    e('v_mov_b32 v3, v1'); e('v_mov_b32 v4, v2')
    e('v_lshlrev_b32 v12, 4, v0')
    e('s_lshr_b32 s16, %s, 1'%s(sWV)); e('s_lshl_b32 s16, s16, 11'); e('s_add_u32 s16, s16, %d'%HB); e('v_add_u32 v9, s16, v12')
    e('v_lshl_add_u32 v204, v201, 2, v202'); e('v_bfe_u32 v205, v204, 1, 2'); e('v_lshlrev_b32 v204, 7, v204'); e('v_lshl_add_u32 v204, v203, 3, v204')
    e('s_and_b32 s16, %s, 1'%s(sWV)); e('s_lshl_b32 s16, s16, 1')
    for tb in range(2):
        e('s_add_u32 s17, s16, %d'%tb); e('v_xor_b32 v7, s17, v205'); e('v_lshl_add_u32 %s, v7, 5, v204'%v(10+tb))
    for i in range(16*NB): e('v_mov_b32 %s, 0'%v(ACC+i))
    for i in range(4*(NB-3),4*NA): e('v_mov_b32 %s, 0'%v(AF+i))
    for i in range(16): e('v_mov_b32 %s, 0'%v(XB+16+i))
    e('s_waitcnt lgkmcnt(0)')
    srd(sWS,62,WS_BYTES)
    if TW:
        srd(sOUT,58,2359296); srd(sW2,54,5308416)
        e('s_cmp_eq_u32 %s, 2'%s(sWV)); e('s_cbranch_scc0 M_TW')
        G=TW
        e('v_lshlrev_b32 v7, %d, v0'%(20 if TW==1 else 16))
        e('s_mov_b32 s16, %d'%U_OFF); e('s_mov_b64 exec, %s'%('0x1f' if TW==1 else '-1')); e('buffer_load_dword v15, v7, %s, s16 offen'%s(sWS,4))
        e('s_mov_b64 exec, %s'%('7' if TW==1 else '-1')); e('buffer_load_dword v15, v7, %s, 0 offen'%s(sOUT,4))
        e('v_lshlrev_b32 v7, %d, v0'%(19 if TW==1 else 16)); e('s_mov_b64 exec, %s'%('3' if TW==1 else '0x3ff'))
        e('s_mul_i32 s16, %s, %d'%(s(sC),8*73728)); e('buffer_load_dword v15, v7, %s, s16 offen'%s(sWS,4))
        e('s_mul_i32 s16, %s, %d'%(s(sJ),576*1152)); e('buffer_load_dword v15, v7, %s, s16 offen'%s(sW2,4))
        e('s_mov_b64 exec, -1')
        e('M_TW:')
    e('s_lshl_b32 s16, s18, 11'); e('s_add_u32 s16, s16, %d'%HB); e('v_add_u32 v8, s16, v12')
    e('s_mov_b32 s64, 0'); e('s_mov_b32 s65, 0'); e('s_mov_b32 s66, 1')
    INMAIN=True
    if MPRIO: e('s_setprio 3')
    spins=[]
    def check(seq,thr,vaddr=109):
        L=lab('SP'); R=L+'R'
        seq.append(('need',['F'])); seq.append(('i','v_cmp_gt_u32 vcc, %s, v110'%thr)); seq.append(('i','s_cbranch_vccnz '+L)); seq.append(('i',R+':'))
        spins.append((L,R,thr,vaddr))
    def conv(u,sg):
        a=ACC+32*u+4*sg; b=a+16
        if RM==1:
            L=[]
            for d,x in ((a,a),(a+1,a+2),(a+2,b),(a+3,b+2)):
                L+=['v_max_f32 %s, 0, %s'%(v(x),v(x)),'v_max_f32 %s, 0, %s'%(v(x+1),v(x+1)),'v_cvt_pk_bf16_f32 %s, %s, %s'%(v(d),v(x),v(x+1))]
            return L+['ds_write_b128 v8, %s offset:%d'%(v(a,4),u*4096+sg*1024)]
        if RM==2:
            return ['v_cvt_pk_bf16_f32 %s, %s, %s'%(v(d),v(x),v(x+1)) for d,x in ((a,a),(a+1,a+2),(a+2,b),(a+3,b+2))]+['s_nop 0','ds_write_b128 v8, %s offset:%d'%(v(a,4),u*4096+sg*1024)]
        if RM==3:
            return ['v_cvt_pk_bf16_f32 %s, %s, %s'%(v(d),v(x),v(x+1)) for d,x in ((a,a),(a+1,a+2),(a+2,b),(a+3,b+2))]+['v_pk_max_i16 %s, %s, 0'%(v(a+k),v(a+k)) for k in range(4)]+['s_nop 0']
        return ['v_cvt_pk_bf16_f32 %s, %s, %s'%(v(a),v(a),v(a+1)),'v_cvt_pk_bf16_f32 %s, %s, %s'%(v(a+1),v(a+2),v(a+3)),
                'v_cvt_pk_bf16_f32 %s, %s, %s'%(v(a+2),v(b),v(b+1)),'v_cvt_pk_bf16_f32 %s, %s, %s'%(v(a+3),v(b+2),v(b+3))]+['v_pk_max_i16 %s, %s, 0'%(v(a+k),v(a+k)) for k in range(4)]+[
                'ds_write_b128 v8, %s offset:%d'%(v(a,4),u*4096+sg*1024)]
    def step1(NT,p,last=False):
        seq=[('i','s_barrier')]
        R=[('A',0,0),('A',0,1)]+[('X',p,sg) for sg in range(4)]+[('A',t,r) for t in range(1,NT) for r in range(2)]
        extra=[]
        if not last:
            extra=['s_add_u32 s64, s64, %d'%SLOT,'s_cmp_eq_u32 s64, %d'%(3*SLOT),'s_cselect_b32 s64, 0, s64','s_add_u32 s66, s66, 1']+['v_add_u32 %s, s64, %s'%(v(92+i),v(88+i)) for i in range(4)]
            if p==1: extra+=['s_add_u32 s65, s65, 8192','s_and_b32 s65, s65, 32767','v_add_u32 v3, s65, v1','v_add_u32 v4, s65, v2']
            else: extra+=['s_cmp_eq_u32 s66, 18']
        cv=[]; nq=0
        ng=4*(NT+3) if last else 4*NT
        eb=len(R)+5
        def pop(n,ok):
            for _ in range(n):
                if cv and (ok or not cv[0].startswith('ds_')):
                    x=cv.pop(0)
                    seq.append(('lds','H',x) if x.startswith('ds_') else ('i',x))
        for g in range(ng):
            i,sg=divmod(g,4)
            if g<len(R):
                k,a,b=R[g]
                if k=='A': seq.append(('lds',R[g],'ds_read_b64_tr_b16 %s, %s offset:%d'%(v(AF+4*a+2*b,2),v(92+a%4),128*(a//4)+4608*b)))
                else: seq.append(('lds',R[g],'ds_read_b128 %s, %s offset:%d'%(v(XB+16*p+4*b,4),v(3+p),2048*b)))
            elif extra: seq.append(('i',extra.pop(0)))
            if last:
                if g==eb: seq.append(('need',[('A',NT-1,1)])); seq.append(('i','s_barrier'))
                if sg==0 and i>=6 and i%2==0:
                    cv+=[x for q in range(4) for x in conv(nq,q)]; nq+=1
                pop(CPG,g>=eb)
            if i<3: t,xb=NT-3+i,1-p
            else: t,xb=i-3,p
            seq.append(('need',[('A',t,0),('A',t,1),('X',xb,sg)]))
            seq.append(('i',mf(ACC+16*t+4*sg, AF+4*t, XB+16*xb+4*sg)))
        assert not extra
        if not last: seq.append(('need',[('A',NT-1,1)]))
        if last:
            assert len(cv)>=9
            while nq<NT//2:
                cv+=[x for q in range(4) for x in conv(nq,q)]; nq+=1
            pop(len(cv),True)
        return seq
    def phase1(NT,nm):
        s0=step1(NT,0); s1=step1(NT,1)
        s0e=s0
        if STAMP: s0e=s0[:1]+[('i','s_cmp_eq_u32 s66, 1'),('i','s_cbranch_scc0 %sNS'%nm),('i','s_memrealtime s[74:75]'),('i','s_memtime s[88:89]'),('i','s_waitcnt lgkmcnt(0)'),('i',nm+'NS:')]+s0[1:]
        e(nm+'L:')
        stream(s0e+[('i','s_cbranch_scc1 %sX'%nm)]+s1+[('i','s_branch %sL'%nm)],True)
        e(nm+'X:')
        stream(step1(NT,1,True),False,pre=s1+s0)
    e('s_cmp_ge_u32 %s, 2'%s(sWV)); e('s_cbranch_scc1 MBL')
    for i in range(16*NB,16*NA): e('v_mov_b32 %s, 0'%v(ACC+i))
    phase1(NA,'MA')
    e('s_branch M1_J')
    phase1(NB,'MB')
    e('M1_J:'); e('s_waitcnt vmcnt(0)')
    e('s_waitcnt lgkmcnt(0)')
    st(2); stc(9)
    e('v_mov_b32 v100, v9'); e('v_add_u32 v101, 36864, v9')
    e('s_barrier')
    H=112
    for k in range(18):
        for sg in range(2): e('ds_read_b128 %s, %s offset:%d'%(v(H+8*k+4*sg,4),v(100+k//9),(k%9)*4096+sg*1024))
        if E3A and k==12: e('s_waitcnt lgkmcnt(8)'); e('s_barrier')
    e('v_mov_b32 v102, v10'); e('v_mov_b32 v103, v11'); e('v_add_u32 v104, %d, v10'%SLOT); e('v_add_u32 v105, %d, v11'%SLOT)
    e('v_mov_b32 v106, v12'); e('v_mov_b32 v108, v13'); e('v_mov_b32 v109, v14')
    if TRACE: e('v_mov_b32 v1, 0'); e('v_mov_b32 v3, 0')
    e('v_mov_b32 v107, 20')
    e('ds_read_b32 v110, v109')
    WR=16; PA=64; QA=80; PK=8
    e('s_mov_b32 s64, %d'%(2*SLOT)); e('s_mov_b32 s65, 0'); e('s_mov_b32 s66, 19')
    e('s_mul_i32 s60, s2, 73728')
    e('s_lshl_b32 s61, %s, 11'%s(sWV)); e('s_add_u32 s60, s60, s61')
    e('s_mov_b32 s67, %d'%OOB)
    e('s_lshl_b32 s19, s2, 7'); e('s_lshl_b32 s61, %s, 2'%s(sWV)); e('s_add_u32 s19, s19, s61'); e('s_add_u32 s19, s19, %d'%FLP)
    e('s_mov_b32 s63, %d'%(FMASK<<1))
    e('v_mov_b32 v6, 0'); e('s_and_b32 s62, %s, %d'%(s(sC),NSITE-1))
    e('s_waitcnt lgkmcnt(0)'); e('s_barrier')
    st(3); stc(10)
    def mm2(kg,u):
        tb,sg=divmod(u,2)
        a=WR+8*(kg%6)+4*tb; b=H+8*kg+4*sg
        if kg<9: return mf(PA+8*tb+4*sg,a,b,'0' if kg==0 else None)
        return mf(QA+8*tb+4*sg,a,b,PA+8*tb+4*sg if kg==9 else None)
    def packq(final=False):
        L=[]
        for sg in range(2):
            for tb in range(2):
                for h in range(2):
                    q=QA+8*tb+4*sg+2*h
                    L.append('v_cvt_pk_bf16_f32 %s, %s, %s'%(v(PK+4*sg+2*tb+h),v(q),v(q+1)))
            if final: L.append('ds_write_b128 v7, %s offset:%d'%(v(PK+4*sg,4),1024*sg))
            else: L.append('buffer_store_dwordx4 %s, v106, %s, s67 offen offset:%d sc1'%(v(PK+4*sg,4),s(sWS,4),1024*sg))
        return L
    body=[]
    for hc in range(2):
        check(body,'s66')
        R=[(9*hc+k,tb,r) for k in range(9) for tb in range(2) for r in range(2)]
        ex={}
        if hc==0:
            cv=[x for x in packq() if x.startswith('v_cvt')]
            for i,x in enumerate(cv): ex[16+i]=[x]
            ex[2]=['v_add_u32 v104, s64, v104']; ex[3]=['v_add_u32 v105, s64, v105']; ex[4]=['s_sub_u32 s64, 0, s64']; ex[5]=['s_add_u32 s66, s66, 1']

        else:
            L=['v_add_u32 v102, s64, v102','v_add_u32 v103, s64, v103','s_add_u32 s66, s66, 1',
               's_add_u32 s61, s65, s15','s_and_b32 s61, s61, 7','s_cmp_eq_u32 s65, 0','s_cselect_b32 s61, 8, s61',
               's_lshl_b32 s61, s61, 13']
            for i,x in enumerate(L): ex[2+i]=[x]
            ex[26]=['s_add_u32 s67, s60, s61']; ex[30]=['s_cmp_eq_u32 s65, 8','s_cselect_b32 s62, 0, s62']
            ex[27]=['v_mov_b32 v6, s65']; ex[28]=['s_add_u32 s65, s65, 1']; ex[33]=['s_cmp_lt_u32 s65, 9']
            if FEARLY: ex[32]=['s_bitcmp1_b32 s63, s65','s_cbranch_scc1 M2_FL','M2_FR:']
        sites=[(0,25),(1,1),(1,13),(1,25)][:NSITE]
        for n,(h,g) in enumerate(sites):
            if h==hc:
                ex.setdefault(g,[]); ex[g]=ex[g]+['s_cmp_eq_u32 s62, %d'%n,'s_cbranch_scc1 M2_ST%d'%n,'M2_SR%d:'%n]
        for g in range(36):
            i,u=divmod(g,4)
            k,tb,r=R[g]
            body.append(('lds',R[g],'ds_read_b64_tr_b16 %s, %s offset:%d'%(v(WR+8*(k%6)+4*tb+2*r,2),v(102+2*hc+tb),(k%9)*4096+r*2048)))
            if g==30: body.append(('lds','F','ds_read_b32 v110, v109'))
            if g==34: body.append(('i','v_add_u32 v107, 1, v107'))
            if g==35: body.append(('lds','C','ds_write_b32 v108, v107'))
            for x in ex.get(g,[]): body.append(('i',x))
            kg=(9*hc+i-3)%18
            body.append(('need',[(kg,u//2,0),(kg,u//2,1)]))
            body.append(('i',mm2(kg,u)))
    e('v_add_u32 v104, s64, v104'); e('v_add_u32 v105, s64, v105'); e('s_sub_u32 s64, 0, s64')
    e('M2_L:')
    stream(body,True)
    e('s_cbranch_scc1 M2_L')
    e('s_lshl_b32 s61, %s, 11'%s(sWV)); e('s_add_u32 s61, s61, %d'%QH); e('v_add_u32 v7, s61, v106')
    e('s_waitcnt lgkmcnt(0)')
    for kg in (15,16,17):
        for u in range(4): e(mm2(kg,u))
    if not FEARLY: e('s_waitcnt vmcnt(0)'); e('s_mov_b64 exec, 1'); e('buffer_store_dword v6, v5, %s, s19 offen sc1'%s(sWS,4)); e('s_mov_b64 exec, -1')
    e('s_nop 7')
    for x in packq(True): e(x)
    e('v_add_u32 v107, 1, v107'); e('ds_write_b32 v108, v107')
    INMAIN=False
    if STAMP:
        st(4); stc(11); st_flush(12,0)
        if TRACE: trace_flush(1,3)
    e('s_waitcnt lgkmcnt(0)')
    e('s_endpgm')
    e('M2_FL:'); e('s_waitcnt vmcnt(0)'); e('s_mov_b64 exec, 1'); e('buffer_store_dword v6, v5, %s, s19 offen sc1'%s(sWS,4)); e('s_mov_b64 exec, -1'); e('s_branch M2_FR')
    for n in range(NSITE):
        e('M2_ST%d:'%n)
        if MSP: e('s_setprio %d'%MSP)
        if not FEARLY: e('s_waitcnt vmcnt(0)'); e('s_mov_b64 exec, 1'); e('buffer_store_dword v6, v5, %s, s19 offen sc1'%s(sWS,4)); e('s_mov_b64 exec, -1')
        for x in packq():
            if x.startswith('buffer') and not NOST: e(x)
        if MSP: e('s_setprio 0')
        e('s_branch M2_SR%d'%n)
    for (L,R,thr,va) in spins:
        e(L+':')
        tr=TRACE and thr=='s66'
        if tr:
            e('s_memtime s[96:97]'); e('s_waitcnt lgkmcnt(0)'); e('s_mov_b32 m0, s66'); e('s_nop 3'); e('v_writelane_b32 v1, s96, m0'); L=L+'b'; e(L+':')
        e('ds_read_b32 v110, %s'%v(va))
        e('s_add_u32 s99, s99, 1'); e('s_cmp_gt_u32 s99, 0x100000'); e('s_cbranch_scc1 K_END'); e('s_waitcnt lgkmcnt(0)')
        e('v_cmp_gt_u32 vcc, %s, v110'%thr); e('s_cbranch_vccnz '+L)
        if tr: e('s_memtime s[96:97]'); e('s_waitcnt lgkmcnt(0)'); e('v_writelane_b32 v3, s96, m0')
        e('s_branch '+R)

assert all((L*57)>>9==L//9 for L in range(288))
assert all((L*57)>>11==L//36 for L in range(289))
out.append('; @launch grid=(256,1,1) block=(512,1,1) lds=163840')
out.append('.amdgcn_target "amdgcn-amd-amdhsa--gfx950"')
out.append('.text'); out.append('.globl '+NAME)
kernel()
out.append('.section .rodata,"a"'); out.append('.p2align 6')
out.append('.amdhsa_kernel '+NAME)
for l in ['next_free_vgpr 256','next_free_sgpr 100','accum_offset 256','group_segment_fixed_size 0','kernarg_size 96','user_sgpr_count 2','user_sgpr_kernarg_segment_ptr 1','system_sgpr_workgroup_id_x 1']:
    out.append('  .amdhsa_'+l)
out.append('.end_amdhsa_kernel')
print('\n'.join(out))
```

```python
import sys, struct
A=sys.argv
STAMP='--stamp' in A; NODMA='--nodma' in A; NOMFMA='--nomfma' in A; NOREAD='--noread' in A; NOPRIO='--noprio' in A; NOTX='--notx' in A; NORED='--nored' in A; NOST='--nost' in A; NOU='--nou' in A; NOXW='--noxw' in A; TRACE='--trace' in A; MPRIO='--mprio' in A; SLP='--slp' in A; opt=lambda n,d: int([x for x in A if x.startswith('--'+n+'=')][0].split('=')[1]) if any(x.startswith('--'+n+'=') for x in A) else d
PRE=opt('pre',2); AP2=opt('ap2',0); USLP=opt('uslp',30); PSLP=opt('pslp',12); UPACE=opt('upace',7); PPACE=opt('ppace',1); LP=opt('lp',3); AP=opt('ap',2); LP2=opt('lp2',0); LP1=opt('lp1',3); EARLY=opt('early',0); RM=0; XUP=opt('xup',0); CROT=opt('crot',1); FMASK=opt('fmask',0x1c4); JROT=opt('jrot',1); PK=0; TAG=0; FEARLY=opt('fearly',1); T2=0; CT=opt('ct',0); IW=opt('iw',1); LAY=opt('lay',1); TW=opt('tw',0); L1=opt('l1',1); UPI=12288; PR=2432; TP=32*2432; AP3=opt('ap3',0); MSP=opt('msp',0); MT=opt('mt',0); DIAG=opt('diag',0); NA=10; NB=8; CPG=opt('cpg',2); PUB1=opt('pub1',12); OSC=opt('osc',0); LATE=opt('late',35); USTG=opt('ustg',0); NSITE=opt('nsite',1); XSTG=opt('xstg',2); E3A=opt('e3a',0)
DBGT='--dbgt' in A; NOSW='--nosw' in A; WSPLIT=0 if '--nowsplit' in A else 1
NAME='gated_mix__spectral_fnet__dense_activation_relu__prompt_kernel'
out=[]; INMAIN=False
def e(s=''):
    if NODMA and s.endswith(' lds') and ('s[20:23]' in s or 's[24:27]' in s): return
    if (NOPRIO or MPRIO) and s.startswith('s_setprio') and not INMAIN: return
    if INMAIN and NOST and s.startswith('buffer_store_dword'): return
    if NOU and s.startswith('buffer_load_dwordx2'): return
    if NOXW and s.endswith(' lds') and ('s[8:11]' in s or 's[12:15]' in s): return
    if INMAIN and NOMFMA and s.startswith('v_mfma'): return
    out.append('    '+s if s and not s.endswith(':') else s)
def v(n,c=1): return 'v%d'%n if c==1 else 'v[%d:%d]'%(n,n+c-1)
def s(n,c=1): return 's%d'%n if c==1 else 's[%d:%d]'%(n,n+c-1)
def f2u(x): return struct.unpack('<I',struct.pack('<f',float(x)))[0]

SLOT=36864; XW0=110592; XWS=18432; HB=73728
MISC=147456; QH=MISC; LND=MISC+8192; CNS=LND+4*256; GL=CNS+6*256
GWL=LND+3072; MX=GWL+1152
U_OFF=0x1400000; FLP=0x1800000; FLU=0x1810000; ST_OFF=0x1900000; WS_BYTES=0x1B00000
BIG=0x7fffffff; OOB=0x40000000
sX,sWH,sW1,sW2,sGW,sWS,sOUT,sDBG=8,12,20,24,28,32,36,40
sJ,sC,sWV,sROT=3,4,5,6
SPINMAX=0x8000

def srd(d,base,nbytes):
    e('s_mov_b32 %s, %s'%(s(d),s(base))); e('s_mov_b32 %s, %s'%(s(d+1),s(base+1)))
    e('s_mov_b32 %s, %d'%(s(d+2),nbytes)); e('s_mov_b32 %s, 0x20000'%s(d+3))
def mf(d,a,b,c=None):
    return 'v_mfma_f32_16x16x32_bf16 %s, %s, %s, %s'%(v(d,4),v(a,4),v(b,4), v(d,4) if c is None else (c if isinstance(c,str) else v(c,4)))
def mfma(*a): e(mf(*a))
def st(slot):
    if STAMP: e('s_memrealtime %s'%s(72+2*slot,2))
def stc(slot):
    if STAMP: e('s_memtime %s'%s(72+2*slot,2))
def st_flush(n,base_row):
    if not STAMP: return
    e('s_waitcnt lgkmcnt(0)')
    e('s_lshl_b32 s68, s2, 3'); e('s_add_u32 s68, s68, %s'%s(sWV)); e('s_lshl_b32 s68, s68, 7'); e('s_add_u32 s68, s68, %d'%ST_OFF)
    e('v_mov_b32 v2, 0')
    for i in range(n):
        e('v_mov_b32 v4, %s'%s(72+2*i)); e('v_mov_b32 v5, %s'%s(73+2*i))
        e('buffer_store_dwordx2 v[4:5], v2, %s, s68 offen offset:%d'%(s(sWS,4),8*i)); e('s_nop 1')
def trace_flush(a,b):
    e('s_lshl_b32 s68, s2, 3'); e('s_add_u32 s68, s68, %s'%s(sWV)); e('s_lshl_b32 s68, s68, 9'); e('s_add_u32 s68, s68, %d'%(ST_OFF+0x40000))
    e('v_lshlrev_b32 v2, 2, v0')
    e('buffer_store_dword %s, v2, %s, s68 offen'%(v(a),s(sWS,4))); e('buffer_store_dword %s, v2, %s, s68 offen offset:256'%(v(b),s(sWS,4)))
_lab=[0]
def lab(p): _lab[0]+=1; return '%s%d'%(p,_lab[0])
def lds_wait(vaddr,vtmp,thr):
    L=lab('W')
    e(L+':')
    if SLP and not INMAIN: e('s_sleep 2')
    e('ds_read_b32 %s, %s'%(v(vtmp),v(vaddr)))
    e('s_add_u32 s99, s99, 1'); e('s_cmp_gt_u32 s99, 0x100000'); e('s_cbranch_scc1 K_END'); e('s_waitcnt lgkmcnt(0)')
    e('v_cmp_gt_u32 vcc, %s, %s'%(thr,v(vtmp))); e('s_cbranch_vccnz '+L)

def stream(seq, cyclic, pre=None):
    hist=[]; done=0
    def run(sq,emit):
        nonlocal done
        for it in sq:
            if it[0]=='lds':
                hist.append(it[1])
                if emit and not (NOREAD and it[2].startswith('ds_read_b64_tr')): e(it[2])
            elif it[0]=='need':
                idx=-1
                for t in it[1]:
                    k=[i for i,x in enumerate(hist) if x==t]
                    if k: idx=max(idx,k[-1])
                    else: assert not emit, t
                if idx+1>done:
                    n=min(len(hist)-1-idx,15)
                    if emit: e('s_waitcnt lgkmcnt(%d)'%(0 if NOREAD else n))
                    done=len(hist)-n
            elif emit: e(it[1])
    if cyclic: run(seq,False)
    if pre is not None: run(pre,False)
    run(seq,True)

def kernel():
    e('.p2align 8'); e('.type %s,@function'%NAME); e(NAME+':')
    e('s_cmp_ge_u32 s2, 256'); e('s_cbranch_scc1 K_END')
    st(0)
    if DBGT or DIAG: e('s_memrealtime s[72:73]')
    e('s_load_dwordx2 s[44:45], s[0:1], 0')
    e('s_load_dwordx4 s[48:51], s[0:1], 24')
    e('s_load_dwordx4 s[52:55], s[0:1], 48')
    e('s_load_dwordx8 s[56:63], s[0:1], 64')
    if IW:
        e('s_getpc_b64 s[16:17]'); e('IWP:')
        e('s_sub_u32 s16, s16, IWP-%s'%NAME); e('s_subb_u32 s17, s17, 0')
        e('s_andn2_b32 s18, s2, 7'); e('s_lshl_b32 s18, s18, 7')
        e('v_lshl_add_u32 v3, v0, 1, s18'); e('v_min_u32 v3, K_END-%s, v3'%NAME)
        e('s_mov_b64 exec, 1'); e('global_load_dword v15, v3, s[16:17]'); e('s_mov_b64 exec, -1')
    e('s_mov_b32 s99, 0')
    e('v_lshrrev_b32 v1, 6, v0')
    e('s_and_b32 %s, s2, 7'%s(sJ)); e('s_lshr_b32 %s, s2, 3'%s(sC))
    e('v_readfirstlane_b32 %s, v1'%s(sWV))
    e('v_and_b32 v0, 63, v0')
    e('s_mul_i32 s6, %s, 57'%s(sC)); e('s_lshr_b32 s6, s6, 9'); e('s_and_b32 s98, s6, %d'%(0 if NOSW else 1)); e('s_mul_i32 s6, s6, 9'); e('s_sub_u32 s6, %s, s6'%s(sC))
    if JROT: e('s_add_u32 s6, s6, %s'%s(sJ)); e('s_sub_u32 s7, s6, 9'); e('s_cmp_ge_u32 s6, 9'); e('s_cselect_b32 s6, s7, s6')
    e('s_add_u32 s15, %s, %s'%(s(sJ),s(sC) if CROT else '0')); e('s_and_b32 s15, s15, 7')
    e('s_cmp_ge_u32 %s, 6'%s(sWV)); e('s_cbranch_scc1 K_AUX')
    e('s_cmp_ge_u32 %s, 4'%s(sWV)); e('s_cbranch_scc0 K_MAIN')
    loader(); aux()
    global out
    tail=[]
    if LAY:
        k=out.index('AX_D:'); tail=out[k:]; del out[k:]
    main()
    out.extend(tail)
    e('K_END:'); e('s_endpgm')

def loader():
    e('s_setprio %d'%LP)
    e('s_sub_u32 s7, %s, 4'%s(sWV))
    e('v_lshrrev_b32 v1, 3, v0'); e('v_and_b32 v2, 7, v0')
    e('v_lshrrev_b32 v4, 1, v2')
    e('v_and_b32 v5, 1, v2'); e('v_lshlrev_b32 v5, 4, v5')
    e('s_movk_i32 s16, %d'%(9216-1152))
    for p in range(9):
        e('v_add_u32 v6, %d, v1'%(8*p))
        e('v_mul_u32_u24 v7, 57, v6'); e('v_lshrrev_b32 v7, 9, v7')
        e('v_bfe_u32 v9, v7, 1, 1'); e('v_xor_b32 v9, v9, v4')
        e('v_lshl_add_u32 v6, v6, 7, v5')
        e('v_mad_u32_u24 v6, v7, s16, v6')
        e('v_lshl_add_u32 v6, v9, 5, v6')
        e('v_xor_b32 v7, 64, v6')
        e('v_subrev_u32 %s, %d, v6'%(v(16+p),(p%4)*1024))
        e('v_add_u32 %s, %d, v7'%(v(25+p),8*9216-((p+9)%4)*1024))
    e('v_lshrrev_b32 v6, 1, v1'); e('v_and_b32 v6, 3, v6'); e('v_lshlrev_b32 v6, 1, v6'); e('v_xor_b32 v6, v6, v2')
    e('s_movk_i32 s69, 1152'); e('v_mul_u32_u24 v7, s69, v1'); e('v_lshl_add_u32 v36, v6, 4, v7')
    for i in range(1,4): e('v_add_u32 %s, %d, v36'%(v(36+i),i*8192))
    e('s_mul_i32 s64, s7, 18432')
    e('s_mul_i32 s17, %s, 1152'%s(sJ)); e('s_mul_i32 s18, s7, %d'%(16*9216)); e('s_add_u32 s17, s17, s18')
    e('s_lshl_b32 s18, s6, 1')
    e('s_xor_b32 s66, s18, s98'); e('s_mul_i32 s66, s66, %d'%(32*9216)); e('s_add_u32 s66, s66, s17')
    e('s_mov_b32 s67, s64')
    e('s_mov_b32 s68, 0'); e('s_mov_b32 s69, -2')
    e('s_mul_i32 s70, %s, 576'%s(sJ)); e('s_mul_i32 s71, s7, 144'); e('s_add_u32 s70, s70, s71'); e('s_mul_i32 s70, s70, 1152')
    e('s_lshl_b32 s19, s7, 8'); e('s_add_u32 s19, s19, %d'%LND)
    e('v_lshlrev_b32 v11, 2, v0'); e('v_add_u32 v11, s19, v11'); e('v_mov_b32 v10, 0'); e('v_mov_b32 v13, 0'); e('v_mov_b32 v40, 0'); e('v_mov_b32 v41, 0')
    e('v_and_b32 v12, 3, v0'); e('v_mul_u32_u24 v12, 260, v12'); e('v_add_u32 v12, %d, v12'%CNS)
    e('s_waitcnt lgkmcnt(0)')
    srd(sW1,52,5308416); srd(sW2,54,5308416)
    if STAMP: srd(sWS,62,WS_BYTES)
    PUB=12
    def dma(ph,p):
        if p%4==0 and p:
            e('s_add_u32 m0, s67, %d'%(p*1024))
            if ph==2: e('s_add_u32 s66, s66, %d'%(32*1152))
            else: e('s_nop 0')
        if ph==1: e('buffer_load_dwordx4 %s, %s, s66 offen offset:%d lds'%(v(16+p),s(sW1,4),(p%4)*1024))
        else: e('buffer_load_dwordx4 %s, %s, s66 offen offset:%d lds'%(v(36+p%4),s(sW2,4),(p%4)*1024))
    def grp(fill):
        groups=[]; i=0
        while i<len(fill):
            if fill[i].startswith('s_cmp'): groups.append(fill[i:i+2]); i+=2
            else: groups.append([fill[i]]); i+=1
        return groups
    def tr_top():
        if TRACE: e('s_memtime s[96:97]'); e('s_waitcnt lgkmcnt(0)'); e('s_mov_b32 m0, s68'); e('s_nop 3'); e('v_writelane_b32 v40, s96, m0'); e('v_writelane_b32 v42, s92, m0'); e('v_writelane_b32 v43, s94, m0')
    e('s_setprio %d'%LP1)
    e('LD_P:'); tr_top()
    e('s_mov_b32 m0, s67'); e('s_nop 0')
    g=grp(['s_add_u32 s18, s18, 1','s_cmp_eq_u32 s18, 18','s_cselect_b32 s18, 0, s18','s_xor_b32 s44, s18, s98','s_mul_i32 s44, s44, %d'%(32*9216),'s_add_u32 s44, s44, s17',
           's_add_u32 s45, s67, %d'%SLOT,'s_cmp_ge_u32 s45, %d'%(3*SLOT),'s_cselect_b32 s45, s64, s45'])
    for p in range(18):
        if p==PUB:
            e('s_cmp_eq_u32 s68, 0'); e('s_cbranch_scc1 LD_P0')
            if TRACE: e('s_memtime s[92:93]')
            e('s_waitcnt vmcnt(%d)'%PUB)
            if TRACE: e('s_memtime s[94:95]')
            e('s_barrier')
            e('LD_P0:')
        dma(1,p)
        if g:
            for x in g.pop(0): e(x)
    e('s_mov_b32 s66, s44'); e('s_mov_b32 s67, s45')
    e('s_add_u32 s68, s68, 1'); e('s_cmp_lt_u32 s68, 18'); e('s_cbranch_scc1 LD_P')
    e('s_add_u32 s66, s70, 1024'); e('s_mov_b32 s69, 0'); e('s_setprio %d'%LP2)
    e('LD_Q:'); tr_top()
    e('s_waitcnt lgkmcnt(1)'); e('v_cmp_gt_u32 vcc, s69, v13'); e('s_mov_b32 m0, s67'); e('s_cbranch_vccnz LD_QS')
    e('LD_QR:')
    g=grp(['s_sub_u32 s46, s68, 17','s_lshr_b32 s44, s46, 1','s_add_u32 s47, s44, s15','s_and_b32 s47, s47, 7','s_cmp_eq_u32 s44, 0','s_cselect_b32 s47, 8, s47',
           's_lshl_b32 s47, s47, 7','s_and_b32 s44, s46, 1','s_mul_i32 s44, s44, %d'%(288*1152),'s_add_u32 s44, s44, s47','s_add_u32 s44, s44, s70',
           's_add_u32 s45, s67, %d'%SLOT,'s_cmp_ge_u32 s45, %d'%(4*SLOT),'s_cselect_b32 s45, s64, s45',
           's_cmp_le_u32 s68, 20','s_cselect_b32 s69, 0, s68'])
    for p in range(18):
        if p==PUB:
            e('v_mov_b32 v10, s68')
            if TRACE: e('s_memtime s[92:93]')
            e('s_waitcnt vmcnt(%d)'%PUB)
            e('s_cmp_eq_u32 s68, 18'); e('s_cbranch_scc0 LD_Q0'); e('s_barrier'); e('LD_Q0:')
            if TRACE: e('s_memtime s[94:95]')
            e('ds_read_b32 v13, v12'); e('ds_write_b32 v11, v10')
        if E3A and p==E3A: e('s_cmp_eq_u32 s68, 20'); e('s_cbranch_scc0 LD_Q1'); e('s_barrier'); e('LD_Q1:')
        dma(2,p)
        if g:
            for x in g.pop(0): e(x)
    assert not g
    e('s_mov_b32 s66, s44'); e('s_mov_b32 s67, s45')
    e('s_add_u32 s68, s68, 1'); e('s_cmp_le_u32 s68, 20'); e('s_cbranch_scc1 LD_E')
    e('s_cmp_lt_u32 s68, 36'); e('s_cbranch_scc1 LD_Q')
    e('v_mov_b32 v10, s68'); e('s_waitcnt vmcnt(0)'); e('ds_write_b32 v11, v10')
    if STAMP: st(1); st_flush(2,0)
    if TRACE:
        e('s_cmp_eq_u32 s7, 0'); e('s_cbranch_scc1 TRX'); e('v_mov_b32 v41, v43'); e('v_mov_b32 v40, v42'); e('TRX:')
        trace_flush(40,41)
    e('s_waitcnt lgkmcnt(0)')
    e('s_endpgm')
    e('LD_E:')
    if not EARLY:
        e('s_barrier')
        e('s_cmp_eq_u32 s68, 20'); e('s_cbranch_scc1 LD_Q')
        e('v_mov_b32 v10, s68'); e('s_waitcnt vmcnt(0)'); e('ds_write_b32 v11, v10'); e('s_waitcnt lgkmcnt(0)')
        e('s_barrier'); e('s_branch LD_Q')
    else:
        e('s_cmp_eq_u32 s68, 19'); e('s_cbranch_scc1 LD_E1')
        e('v_mov_b32 v10, s68'); e('s_waitcnt vmcnt(0)'); e('ds_write_b32 v11, v10'); e('s_waitcnt lgkmcnt(0)')
        e('s_barrier')
        e('LD_E1:')
        e('s_barrier'); e('s_branch LD_Q')
    e('LD_QS:')
    e('ds_read_b32 v13, v12'); e('s_waitcnt lgkmcnt(0)'); e('v_cmp_gt_u32 vcc, s69, v13'); e('s_cbranch_vccz LD_QR')
    e('v_mov_b32 v10, s68'); e('s_waitcnt vmcnt(0)'); e('ds_write_b32 v11, v10')
    lds_wait(12,13,'s69')
    if TRACE: e('s_memtime s[96:97]'); e('s_waitcnt lgkmcnt(0)'); e('s_mov_b32 m0, s68'); e('s_nop 3'); e('v_writelane_b32 v41, s96, m0'); e('s_mov_b32 m0, s67')
    e('s_branch LD_QR')

def aux():
    e('K_AUX:')
    e('s_setprio %d'%AP)
    e('s_sub_u32 s7, %s, 6'%s(sWV))
    e('v_lshrrev_b32 v1, 3, v0'); e('v_and_b32 v2, 7, v0'); e('v_lshrrev_b32 v3, 1, v1')
    e('v_xor_b32 v4, v2, v3'); e('v_lshlrev_b32 v4, 4, v4'); e('v_xor_b32 v5, 64, v4')
    e('s_mov_b32 s16, 73728'); e('v_mul_u32_u24 v6, s16, v1')
    for p in range(4):
        e('v_add_u32 %s, v6, %s'%(v(16+p),'v5' if p%2 else 'v4'))
        if p: e('v_add_u32 %s, %d, %s'%(v(16+p),p*(8*73728-1024),v(16+p)))
    e('v_lshlrev_b32 v25, 4, v0')
    e('s_movk_i32 s17, 1152'); e('v_and_b32 v8, 31, v0'); e('v_mul_u32_u24 v7, 57, v8'); e('v_lshrrev_b32 v62, 9, v7'); e('v_mul_u32_u24 v7, 9, v62'); e('v_sub_u32 v7, v8, v7'); e('v_mul_u32_u24 v24, s17, v7'); e('v_lshrrev_b32 v7, 5, v0'); e('v_lshl_add_u32 v24, v7, 6, v24')
    e('s_lshl_b32 s18, s7, 5'); e('s_add_u32 s18, s18, %s'%s(sC)); e('s_mul_i32 s18, s18, 1152')
    e('s_mul_i32 s19, %s, 576'%s(sJ)); e('s_mul_i32 s64, %s, 18'%s(sC)); e('s_add_u32 s19, s19, s64')
    e('s_mul_i32 s64, s7, 9'); e('s_add_u32 s19, s19, s64'); e('s_mul_i32 s19, s19, 1152')
    e('s_mov_b32 s64, s6')
    e('s_lshl_b32 s69, s7, 12'); e('s_lshl_b32 s70, s7, 10'); e('s_add_u32 s65, s69, %d'%XW0)
    e('s_waitcnt lgkmcnt(0)')
    if DIAG==4: e('s_memrealtime s[74:75]')
    srd(sX,44,2359296); srd(sGW,56,1152)
    def issueX(h):
        if h==0: e('s_lshl_b32 s67, s64, 7'); e('s_add_u32 s67, s67, s18')
        e('s_mov_b32 m0, s65'); e('s_nop 0')
        for p in (2*h,2*h+1): e('buffer_load_dwordx4 %s, %s, s67 offen offset:%d lds'%(v(16+p),s(sX,4),p*1024))
        if h==1:
            e('s_add_u32 s64, s64, 1'); e('s_cmp_eq_u32 s64, 9'); e('s_cselect_b32 s64, 0, s64')
            e('s_add_u32 s65, s65, 8192'); e('s_sub_u32 s66, s65, 32768'); e('s_cmp_ge_u32 s65, %d'%(XW0+32768)); e('s_cselect_b32 s65, s66, s65')
    issueX(0); issueX(1)
    e('s_add_u32 m0, s70, %d'%GWL); e('s_cmp_eq_u32 s7, 0'); e('s_cselect_b32 exec_lo, -1, 0xff'); e('s_cselect_b32 exec_hi, -1, 0')
    e('buffer_load_dwordx4 v25, %s, s70 offen lds'%s(sGW,4))
    e('s_mov_b64 exec, -1')
    srd(sW2,54,5308416); srd(sWS,62,WS_BYTES); srd(sOUT,58,2359296); srd(sDBG,60,256)
    FC,FS,FN=112,120,128; GF=136; SEL=200; UO=208; MK=212; TR=216; PO=220; GG=224; L16=228; PL1=229; PL2=230; L0=231
    e('v_and_b32 v8, 15, v0'); e('v_lshrrev_b32 v9, 4, v0')
    e('v_mov_b32 %s, 0'%v(L0))
    e('s_lshl_b32 s71, s2, 1'); e('s_add_u32 s71, s71, s7'); e('s_lshl_b32 s71, s71, 2'); e('s_add_u32 s71, s71, %d'%FLU)
    e('s_or_b32 s14, %s, s7'%s(sC)); e('s_cmp_eq_u32 s14, 0'); e('s_cbranch_scc0 AX_NZ')
    for i in range(4): e('v_mov_b32 v%d, 0'%(56+i))
    e('s_lshl_b32 s48, %s, 12'%s(sJ)); e('s_add_u32 s48, s48, %d'%FLP); e('s_lshl_b32 s49, %s, 8'%s(sJ)); e('s_add_u32 s49, s49, %d'%FLU)
    for i in range(4): e('buffer_store_dwordx4 v[56:59], v25, %s, s48 offen offset:%d sc1'%(s(sWS,4),1024*i))
    e('s_mov_b64 exec, 0xffff')
    e('buffer_store_dwordx4 v[56:59], v25, %s, s49 offen sc1'%s(sWS,4))
    e('s_mov_b64 exec, -1')
    e('AX_NZ:')
    e('v_and_b32 v63, 7, v0'); e('v_lshlrev_b32 v63, 2, v63'); e('v_mov_b32 v254, 0')
    e('v_lshrrev_b32 v10, 1, v8'); e('v_xor_b32 v10, v10, v9'); e('v_lshlrev_b32 v10, 4, v10')
    e('v_lshl_add_u32 v20, v8, 7, v10'); e('v_add_u32 v20, %d, v20'%XW0); e('v_xor_b32 v21, 64, v20')
    e('v_mov_b32 v26, v20'); e('v_mov_b32 v27, v21'); e('v_add_u32 v28, s69, v20'); e('v_add_u32 v29, s69, v21')
    e('v_lshlrev_b32 v22, 4, v9'); e('v_add_u32 v22, %d, v22'%GWL); e('s_lshl_b32 s68, s6, 7'); e('v_add_u32 v23, s68, v22')
    e('s_lshl_b32 s44, s7, 11')
    ACC=64; TM=136; WA=176; RC=232
    for i in list(range(8))+list(range(16,24))+list(range(32,40)): e('v_mov_b32 %s, 0'%v(TM+i))
    for i in list(range(8,16))+list(range(24,32)): e('v_mov_b32 %s, 0'%v(ACC+i))
    e('s_sub_u32 s48, s6, 1'); e('s_cmp_eq_u32 s6, 0'); e('s_cselect_b32 s48, 8, s48'); e('s_lshl_b32 s48, s48, 6')
    e('v_lshlrev_b32 v11, 3, v9'); e('v_add_u32 v11, s48, v11'); e('v_cvt_f32_u32 v11, v11')
    e('s_lshl_b32 s49, %s, 5'%s(sJ)); e('s_lshl_b32 s50, s7, 4'); e('s_add_u32 s50, s50, s49'); e('s_lshl_b32 s49, %s, 2'%s(sJ)); e('s_add_u32 s49, s49, 256')
    for mix in range(2):
        if mix==0: e('v_add_u32 v12, s50, v8')
        else: e('v_and_b32 v12, 7, v8'); e('v_add_u32 v12, s49, v12')
        e('v_cvt_f32_u32 v12, v12'); e('v_mul_f32 v10, 0x%08x, v12'%f2u(1/9.)); e('v_mul_f32 v12, 0x%08x, v12'%f2u(1/576.)); e('v_mul_f32 v13, v12, v11')
        e('v_cos_f32 %s, v10'%v(RC+2*mix)); e('v_sin_f32 %s, v10'%v(RC+2*mix+1))
        if mix:
            e('v_cmp_gt_u32 vcc, 8, v8'); e('v_add_f32 v4, 0x3e800000, v13'); e('v_sub_f32 v5, 0, %s'%v(RC+3))
            e('v_cndmask_b32 v13, v4, v13, vcc'); e('v_cndmask_b32 %s, %s, v5, vcc'%(v(RC+3),v(RC+3)))
            e('v_cmp_eq_u32 vcc, 5, v8'); e('v_mov_b32 v4, 1.0'); e('v_mov_b32 v5, 0')
            e('v_cndmask_b32 %s, %s, v4, vcc'%(v(RC+2),v(RC+2))); e('v_cndmask_b32 %s, %s, v5, vcc'%(v(RC+3),v(RC+3)))
        for kp in range(2):
            for jp in range(4):
                for u in range(2):
                    e('v_fmamk_f32 %s, v12, 0x%08x, v13'%(v(30+u),f2u(32*kp+2*jp+u))); e('v_fract_f32 %s, %s'%(v(30+u),v(30+u)))
                e('v_cos_f32 v32, v30'); e('v_cos_f32 v33, v31')
                if mix==0:
                    e('v_sin_f32 v34, v30'); e('v_sin_f32 v35, v31')
                    e('v_cvt_pk_bf16_f32 %s, v32, v33'%v(WA+4*kp+jp)); e('v_cvt_pk_bf16_f32 %s, -v34, -v35'%v(WA+8+4*kp+jp))
                else:
                    e('s_nop 0'); e('v_cvt_pk_bf16_f32 %s, v32, v33'%v(WA+16+4*kp+jp))
    if PK:
        e('v_mov_b32 v60, %s'%v(RC+1)); e('v_mov_b32 v61, %s'%v(RC+1)); e('v_mov_b32 %s, %s'%(v(RC+1),v(RC)))
    global out
    save=out; parts=[]
    def begin():
        global out
        out=[]
    def end(): parts.append(out)
    begin()
    e('v_lshlrev_b32 v11, 2, v9'); e('v_cvt_f32_u32 v11, v11')
    for b in range(2):
        e('v_add_u32 v12, %d, v8'%(16*b)); e('v_cvt_f32_u32 v12, v12'); e('v_mul_f32 v12, 0x3d000000, v12'); e('v_mul_f32 v13, v12, v11')
        for jp in range(4):
            o=[(2*jp+u)%4+16*((2*jp+u)//4) for u in range(2)]
            for u in range(2): e('v_fmamk_f32 %s, v12, 0x%08x, v13'%(v(30+u),f2u(o[u])))
            e('v_cos_f32 v32, v30'); e('v_cos_f32 v33, v31'); e('v_sin_f32 v34, v30'); e('v_sin_f32 v35, v31')
            e('v_cvt_pk_bf16_f32 %s, v32, v33'%v(FC+4*b+jp)); e('v_cvt_pk_bf16_f32 %s, v34, v35'%v(FS+4*b+jp))
            e('v_xor_b32 %s, 0x80008000, %s'%(v(FN+4*b+jp),v(FS+4*b+jp)))
    end()
    for i in range(4):
        begin()
        e('s_lshr_b32 s48, %s, 2'%s(sJ)); e('s_lshl_b32 s48, s48, 1'); e('s_and_b32 s49, %s, 1'%s(sJ)); e('s_add_u32 s48, s48, s49')
        e('s_add_u32 s48, s48, %d'%i); e('s_and_b32 s48, s48, 3')
        e('v_lshlrev_b32 %s, 4, v0'%v(L16)); e('v_cvt_f32_u32 v11, v9')
        e('s_lshl_b32 s49, s48, 6'); e('s_add_u32 s49, s49, %d'%GL); e('v_lshlrev_b32 v13, 2, v8'); e('v_add_u32 %s, s49, v13'%v(GG+i))
        e('s_lshr_b32 s49, s48, 1'); e('s_and_b32 s50, s48, 1')
        e('s_lshl_b32 s51, s49, 12'); e('s_lshl_b32 s52, s50, 10'); e('s_add_u32 s51, s51, s52'); e('v_add_u32 %s, s51, %s'%(v(PO+i),v(L16)))
        e('s_lshl_b32 s49, s49, 5'); e('s_add_u32 s49, s49, s52'); e('s_add_u32 s49, s49, %s'%s(sC))
        e('v_lshlrev_b32 v5, 6, v8'); e('v_add_u32 v6, s49, v5')
        e('v_cvt_f32_u32 v5, v6'); e('v_mul_f32 v5, 0x3a000000, v5'); e('v_mul_f32 v13, v5, v11')
        e('s_movk_i32 s49, 1152'); e('v_lshlrev_b32 v4, 4, v9')
        e('v_mad_u32_u24 %s, v6, s49, v4'%v(TR+i))
        for k in range(4):
            for u in range(2):
                for h in range(2): e('v_fmamk_f32 %s, v5, 0x%08x, v13'%(v(30+h),f2u(8*k+4*u+32*h)))
                e('v_cos_f32 v32, v30'); e('v_sin_f32 v33, v30'); e('v_cos_f32 v34, v31'); e('v_sin_f32 v35, v31')
                e('v_cvt_pk_bf16_f32 %s, v32, v33'%v(GF+16*i+4*k+2*u)); e('v_cvt_pk_bf16_f32 %s, v34, v35'%v(GF+16*i+4*k+2*u+1))
        end()
    begin()
    e('v_bfe_u32 v4, v8, 1, 2'); e('v_cmp_eq_u32 vcc, v4, v9'); e('v_and_b32 v5, 1, v8'); e('v_lshrrev_b32 v7, 3, v8')
    e('v_mov_b32 v6, 0x3f80'); e('v_lshl_add_u32 v5, v7, 1, v5'); e('v_cndmask_b32 v6, 0, v6, vcc')
    for r in range(4):
        e('v_cmp_eq_u32 vcc, %d, v5'%r); e('s_nop 1'); e('v_cndmask_b32 %s, 0, v6, vcc'%v(SEL+r)); e('v_lshlrev_b32 %s, 16, %s'%(v(SEL+4+r),v(SEL+r)))
    e('v_and_b32 v4, 1, v0'); e('v_lshlrev_b32 v4, 3, v4'); e('s_lshl_b32 s49, s7, 2'); e('v_add_u32 v4, s49, v4'); e('v_bfe_u32 v5, v0, 1, 3'); e('v_lshl_add_u32 %s, v5, 7, v4'%v(PL1))
    e('v_sub_u32 v5, %s, v5'%s(sJ)); e('v_and_b32 v5, 7, v5'); e('v_add_u32 v254, 1, v5')
    e('v_and_b32 v4, 7, v0'); e('v_lshlrev_b32 v4, 7, v4'); e('s_lshr_b32 s49, %s, 1'%s(sJ)); e('s_lshl_b32 s49, s49, 2'); e('v_add_u32 %s, s49, v4'%v(PL2))
    e('s_sub_u32 s48, 32, %s'%s(sC)); e('s_and_b32 s48, s48, 31')
    e('s_movk_i32 s49, %d'%PR); e('v_mul_u32_u24 v12, s49, v9'); e('v_lshlrev_b32 v4, 4, v8')
    e('s_lshl_b32 s54, s15, 6'); e('s_lshl_b32 s49, s7, 5'); e('s_add_u32 s54, s54, s49')
    e('s_and_b32 s55, %s, 2'%s(sJ)); e('s_lshl_b32 s55, s55, 4'); e('s_add_u32 s55, s55, 512')
    e('s_mul_i32 s48, s48, %d'%TP); e('s_mul_i32 s50, %s, %d'%(s(sC),TP))
    e('v_add_u32 v5, v12, v4'); e('v_add_u32 v6, 256, v12'); e('v_sub_u32 v6, v6, v4')
    e('s_sub_u32 s49, 543, s54'); e('s_lshl_b32 s49, s49, 3'); e('s_add_u32 s49, s49, s48')
    e('s_lshl_b32 s51, s54, 3'); e('s_add_u32 s51, s51, s50')
    e('s_cmp_ge_u32 s54, 288'); e('s_cselect_b32 s49, s49, s51'); e('s_cselect_b64 vcc, -1, 0')
    e('v_cndmask_b32 v5, v5, v6, vcc'); e('v_add_u32 %s, s49, v5'%v(UO))
    e('s_sub_u32 s49, 575, s55'); e('s_lshl_b32 s49, s49, 3'); e('s_add_u32 s49, s49, s48')
    e('v_add_u32 v6, s49, v12'); e('v_sub_u32 %s, v6, v4'%v(UO+1))
    end()
    out=save
    NPRE=PRE
    out.extend(parts[0])
    later=[]
    XF=36
    def rotate(lo,hi,mix):
        if PK:
            for i in range(lo,hi,2):
                e('v_pk_mul_f32 %s, %s, %s'%(v(TM+i,2),v(RC,2),v(ACC+i,2))); e('v_pk_mul_f32 %s, %s, %s'%(v(TM+16+i,2),v(RC,2),v(ACC+16+i,2)))
                e('v_pk_fma_f32 %s, %s, %s, %s neg_lo:[1,0,0] neg_hi:[1,0,0]'%(v(TM+i,2),v(60,2),v(ACC+16+i,2),v(TM+i,2))); e('v_pk_fma_f32 %s, %s, %s, %s'%(v(TM+16+i,2),v(60,2),v(ACC+i,2),v(TM+16+i,2)))
        else:
            for i in range(lo,hi):
                e('v_mul_f32 %s, %s, %s'%(v(TM+i),v(RC),v(ACC+i))); e('v_mul_f32 %s, %s, %s'%(v(TM+16+i),v(RC),v(ACC+16+i)))
                e('v_fma_f32 %s, -%s, %s, %s'%(v(TM+i),v(RC+1),v(ACC+16+i),v(TM+i))); e('v_fmac_f32 %s, %s, %s'%(v(TM+16+i),v(RC+1),v(ACC+i)))
        if mix:
            for i in range(8): e('v_mul_f32 %s, %s, %s'%(v(TM+32+i),v(RC+2),v(ACC+32+i)))
            for i in range(8): e('v_fmac_f32_dpp %s, %s, %s row_ror:8 row_mask:0xf bank_mask:0xf'%(v(TM+32+i),v(ACC+32+i),v(RC+3)))
    e('s_mov_b32 s46, 0'); e('s_mov_b32 s47, 0')
    e('s_and_b32 s45, %s, %d'%(s(sC),XSTG)); e('s_mov_b32 s53, 1'); e('s_mov_b32 s51, 0')
    if XUP==3:
        for _ in range(3): issueX(0); issueX(1)
        e('s_mov_b32 s53, 4'); e('s_add_u32 s51, s45, 4'); e('s_cmp_ge_u32 s45, 2'); e('s_cselect_b32 s51, s45, s51')
    e('s_waitcnt vmcnt(%d)'%(4*XUP))
    e('s_cmp_eq_u32 s14, 0'); e('s_cbranch_scc0 AX_L')
    e('v_mov_b32 v255, 1'); e('s_lshl_b32 s48, %s, 2'%s(sJ)); e('s_mov_b64 exec, 1')
    e('buffer_store_dword v255, %s, %s, s48 offen sc1'%(v(L0),s(sDBG,4))); e('s_mov_b64 exec, -1')
    e('AX_L:')
    for kp in range(2):
        if TRACE:
            e('s_memtime s[96:97]'); e('s_lshl_b32 s95, s46, 1'); e('s_add_u32 m0, s95, %d'%(kp+1)); e('s_waitcnt lgkmcnt(0)'); e('v_writelane_b32 v252, s96, m0'); e('v_writelane_b32 v253, s92, m0')
        e('s_barrier')
        if DIAG in (2,6) and kp==0: e('s_cmp_eq_u32 s46, %d'%(0 if DIAG==2 else 2)); e('s_cbranch_scc0 DGN'); e('s_memrealtime s[74:75]'); e('s_waitcnt lgkmcnt(0)'); e('DGN:')
        for sg in range(4): e('ds_read_b128 %s, %s offset:%d'%(v(XF+4*sg,4),v(26+kp),sg*2048))
        for sg in range(2): e('ds_read_b128 %s, %s offset:%d'%(v(XF+16+4*sg,4),v(28+kp),sg*2048))
        e('s_mov_b32 exec_lo, 0x00200020'); e('s_mov_b32 exec_hi, 0x00200020')
        e('ds_read_b128 %s, v23 offset:%d'%(v(WA+16+4*kp,4),64*kp))
        e('s_mov_b64 exec, -1')
        e('s_sub_u32 s51, s51, 1'); e('s_cbranch_scc1 AX_B%d'%kp)
        e('AX_S%d:'%kp)
        def rot(lo,hi,mix):
            L=[]
            for i in range(lo,hi):
                L+=['v_mul_f32 %s, %s, %s'%(v(TM+i),v(RC),v(ACC+i)),'v_mul_f32 %s, %s, %s'%(v(TM+16+i),v(RC),v(ACC+16+i)),
                    'v_fma_f32 %s, -%s, %s, %s'%(v(TM+i),v(RC+1),v(ACC+16+i),v(TM+i)),'v_fmac_f32 %s, %s, %s'%(v(TM+16+i),v(RC+1),v(ACC+i))]
            if mix:
                L+=['v_mul_f32 %s, %s, %s'%(v(TM+32+i),v(RC+2),v(ACC+32+i)) for i in range(8)]
                L+=['v_fmac_f32_dpp %s, %s, %s row_ror:8 row_mask:0xf bank_mask:0xf'%(v(TM+32+i),v(ACC+32+i),v(RC+3)) for i in range(8)]
            return L
        M=lambda t,sg: mf(ACC+16*t+4*sg, XF+4*sg, WA+8*t+4*kp, TM+16*t+4*sg if kp==0 else None)
        X=lambda sg: mf(ACC+32+4*sg, XF+16+4*sg, WA+16+4*kp, TM+32+4*sg if kp==0 else None)
        if kp==0:
            R=rot(8,16,False)
            for x in R[:8]: e(x)
            e('s_waitcnt lgkmcnt(0)')
            R=R[8:]
            for m in (M(0,0),M(1,0),M(0,1),M(1,1),X(0),X(1)):
                e(m)
                for x in R[:4]: e(x)
                R=R[4:]
            assert not R
            for m in (M(0,2),M(1,2),M(0,3),M(1,3)): e(m)
        else:
            A_=['s_add_u32 s47, s47, 8192','s_and_b32 s47, s47, 32767','s_add_u32 s66, s47, s69','s_add_u32 s68, s68, 128','s_cmp_eq_u32 s68, 1152','s_cselect_b32 s68, 0, s68',
                'v_add_u32 v26, s47, v20','v_add_u32 v27, s47, v21','v_add_u32 v28, s66, v20','v_add_u32 v29, s66, v21','v_add_u32 v23, s68, v22']
            for x in A_: e(x)
            e('s_waitcnt lgkmcnt(0)')
            for m in (M(0,0),M(1,0),M(0,1),M(1,1),X(0),X(1)): e(m)
            e('s_nop 3')
            R=rot(0,8,True)
            for m in (M(0,2),M(1,2),M(0,3),M(1,3)):
                for x in R[:4]: e(x)
                R=R[4:]
                e(m)
            e('s_cmp_eq_u32 s46, 8'); e('s_cbranch_scc1 AX_D')
            for x in R: e(x)
    if TRACE: e('s_memtime s[92:93]')
    e('s_lshr_b32 s66, s45, 1'); e('s_xor_b32 s66, s66, s46'); e('s_add_u32 s46, s46, 1')
    e('s_bitcmp1_b32 s66, 0'); e('s_cbranch_scc1 AX_W0')
    e('s_cmp_eq_u32 s46, 1'); e('s_cbranch_scc0 AX_L')
    e('s_waitcnt vmcnt(8)'); e('s_branch AX_L')
    e('AX_W0:')
    e('s_waitcnt vmcnt(0)'); e('s_branch AX_L')
    for kp in range(2):
        e('AX_B%d:'%kp)
        e('s_cmp_ge_u32 s46, 5'); e('s_cselect_b32 s51, 100, 3')
        e('s_add_u32 s52, s46, 3'); e('s_min_u32 s52, s52, 8')
        e('s_cmp_eq_u32 s46, 0'); e('s_cbranch_scc0 AX_C%d'%kp)
        if kp==0:
            e('s_lshr_b32 s52, s45, 1'); e('s_add_u32 s52, s52, 1')
            e('s_sub_u32 s51, s45, 1'); e('s_cmp_ge_u32 s45, 2'); e('s_cselect_b32 s51, s51, 0')
        else:
            e('s_add_u32 s51, s45, 2')
        e('AX_C%d:'%kp)
        issueX(0); issueX(1)
        e('s_add_u32 s53, s53, 1'); e('s_cmp_le_u32 s53, s52'); e('s_cbranch_scc1 AX_C%d'%kp)
        e('s_cmp_eq_u32 s46, 0'); e('s_cbranch_scc1 AX_S%d'%kp)
        e('v_add_u32 v4, %s, v62'%s(sJ)); e('v_and_b32 v4, 7, v4'); e('v_cmp_eq_u32 vcc, 0, v62'); e('v_mov_b32 v5, 8'); e('v_add_u32 v62, 3, v62')
        e('v_cndmask_b32 v4, v4, v5, vcc'); e('v_lshl_add_u32 v4, v4, 7, v24')
        e('s_mov_b32 exec_lo, 0x7ffffff'); e('s_mov_b32 exec_hi, %s'%('0x7ffffff' if T2 else '0'))
        e('buffer_load_dword v15, v4, %s, s19 offen'%s(sW2,4))
        e('s_mov_b64 exec, -1')
        e('s_cmp_ge_u32 s46, 5'); e('s_cbranch_scc0 AX_S%d'%kp)
        e('buffer_load_dword v254, v63, %s, 0 offen sc1'%s(sDBG,4))
        if MT:
            e('v_cmp_le_u32 vcc, 3, v0'); e('v_lshlrev_b32 v4, 7, v0'); e('v_add_u32 v5, %d, v4'%(TP-384)); e('v_cndmask_b32 v4, v4, v5, vcc')
            e('s_lshl_b32 s48, %s, 1'%s(sJ)); e('s_add_u32 s48, s48, s7'); e('s_mul_i32 s48, s48, %d'%(2*TP)); e('s_mul_i32 s49, %s, %d'%(s(sC),PR))
            e('s_add_u32 s48, s48, s49'); e('s_add_u32 s48, s48, %d'%(U_OFF+2048))
            e('s_mov_b64 exec, 63'); e('buffer_load_dword v15, v4, %s, s48 offen sc1'%s(sWS,4)); e('s_mov_b64 exec, -1')
        e('s_branch AX_S%d'%kp)
    e('AX_D:')
    e('s_barrier')
    if DIAG==5: e('s_memrealtime s[74:75]'); e('s_waitcnt lgkmcnt(0)')
    e('s_setprio %d'%AP2); e('s_nop 3')
    st(1)
    e('s_mov_b32 s16, %d'%(4*TP)); e('v_lshlrev_b32 v12, 3, v8'); e('v_mad_u32_u24 v12, s16, v9, v12')
    e('s_mul_i32 s16, %s, %d'%(s(sC),PR)); e('s_add_u32 s16, s16, %d'%U_OFF)
    e('s_lshl_b32 s17, %s, 5'%s(sJ)); e('s_add_u32 s17, s17, s16'); e('s_add_u32 s17, s17, 2048')
    e('s_lshl_b32 s48, %s, 8'%s(sJ)); e('s_add_u32 s16, s16, s48'); e('s_lshl_b32 s48, s7, 7'); e('s_add_u32 s16, s16, s48')
    FR=16
    def pack(dst,src,n=8):
        for h in range(n): e('v_cvt_pk_bf16_f32 %s, %s, %s'%(v(dst+h),v(src+2*h),v(src+2*h+1)))
    def stageA(D,FR):
        for sh in range(2):
            for be in range(2):
                d=D+16*sh+8*be; a=FR+4*sh; b=FR+8+4*sh
                mfma(d,FC+4*be,a,'0'); mfma(d+4,FC+4*be,b,'0'); mfma(d,FS+4*be,b); mfma(d+4,FN+4*be,a)
    def ustore(D,O,so):
        for be in range(2):
            for r in range(4):
                o=O+8*be+2*r
                for sh in range(2): e('v_cvt_pk_bf16_f32 %s, %s, %s'%(v(o+sh),v(D+16*sh+8*be+r),v(D+16*sh+8*be+4+r)))
                e('s_add_u32 s48, %s, %d'%(so,(16*be+r)*TP)); e('buffer_store_dwordx2 %s, v12, %s, s48 offen sc1'%(v(o,2),s(sWS,4)))
    MF=136
    e('v_mov_b32 v255, v63')
    e('v_add_u32 v14, %d, v25'%MX)
    pack(MF,ACC+32,4)
    e('s_lshl_b32 s66, s7, 7'); e('s_add_u32 s66, s66, %d'%GL); e('v_lshlrev_b32 v13, 4, v9'); e('v_add_u32 v13, s66, v13')
    e('s_mov_b32 exec_lo, 0x00200020'); e('s_mov_b32 exec_hi, 0x00200020')
    for sg in range(2): e('ds_write_b128 v13, %s offset:%d'%(v(ACC+32+4*sg,4),64*sg))
    e('s_mov_b64 exec, -1')
    e('s_cmp_eq_u32 s7, 1'); e('s_cbranch_scc0 AX_A0'); e('ds_write_b128 v14, %s'%v(MF,4)); e('AX_A0:')
    pack(FR,ACC); pack(FR+8,ACC+16); e('s_nop 1')
    stageA(32,FR)
    e('s_nop 7')
    ustore(32,236,'s16')
    e('s_mov_b32 s47, 0')
    e('AX_V0:')
    e('v_cmp_eq_u32 vcc, 0, v254'); e('s_cbranch_vccz AX_V1')
    e('s_add_u32 s47, s47, 1'); e('s_cmp_gt_u32 s47, %d'%SPINMAX); e('s_cbranch_scc1 AX_V1')
    e('s_sleep 8'); e('buffer_load_dword v254, v255, %s, 0 offen sc1'%s(sDBG,4)); e('s_waitcnt vmcnt(0)'); e('s_branch AX_V0')
    e('AX_V1:')
    e('s_waitcnt lgkmcnt(0)')
    e('s_barrier')
    e('s_barrier')
    if E3A: e('s_barrier')
    if DIAG==3: e('s_memrealtime s[74:75]'); e('s_waitcnt lgkmcnt(0)')
    e('s_cmp_eq_u32 s7, 0'); e('s_cbranch_scc0 AX_A2')
    e('ds_read_b128 %s, v14'%v(MF+4,4)); e('s_waitcnt lgkmcnt(0)')
    for h in range(8): e('v_mov_b32_dpp %s, %s row_ror:8 row_mask:0xf bank_mask:0xf'%(v(MF+8+h),v(MF+h)))
    e('s_nop 1')
    stageA(64,MF)
    e('s_nop 7')
    e('s_mov_b32 s49, 0x000f000f'); e('s_cmp_eq_u32 %s, 7'%s(sJ)); e('s_cselect_b32 s49, 0x001f001f, s49')
    e('s_mov_b32 exec_lo, s49'); e('s_mov_b32 exec_hi, s49')
    ustore(64,96,'s17')
    e('s_mov_b64 exec, -1')
    e('AX_A2:')
    out.extend(parts[1])
    e('s_waitcnt vmcnt(0)'); e('v_mov_b32 v10, 1')
    e('s_mov_b64 exec, 1'); e('buffer_store_dword v10, %s, %s, s71 offen sc1'%(v(L0),s(sWS,4))); e('s_mov_b64 exec, -1')
    for k in (2,3,4,5): out.extend(parts[k])
    for i in range(4): e('ds_read_b32 %s, %s'%(v(GG+i),v(GG+i)))
    e('s_lshl_b32 s65, %s, 10'%s(sC)); e('s_add_u32 s65, s65, %d'%FLP)
    e('s_waitcnt lgkmcnt(0)')
    for i in range(4):
        g=GG+i
        e('v_mul_f32 %s, 0xbfb8aa3b, %s'%(v(g),v(g))); e('v_exp_f32 %s, %s'%(v(g),v(g))); e('s_nop 0')
        e('v_add_f32 %s, 1.0, %s'%(v(g),v(g))); e('v_rcp_f32 %s, %s'%(v(g),v(g)))
    if NORED:
        for i in range(2,7): st(i)
        st_flush(7,0); e('s_endpgm')
    e('s_mov_b32 s47, 0')
    def gpoll(load,cmp,slp):
        L=lab('GP'); e('s_branch %sf'%L); e(L+':')
        if slp: e('s_sleep %d'%slp)
        e(L+'f:')
        for x in load: e(x)
        e('s_add_u32 s47, s47, 1'); e('s_waitcnt vmcnt(0)')
        for x in cmp: e(x)
        e('s_cmp_gt_u32 s47, %d'%SPINMAX); e('s_cbranch_scc1 %sx'%L); e('s_cbranch_vccnz '+L); e(L+'x:')
    e('s_lshl_b32 s16, s7, 8'); e('s_add_u32 s16, s16, %d'%CNS)
    e('v_and_b32 v15, 1, v0'); e('v_mul_u32_u24 v15, 516, v15'); e('v_add_u32 v15, s16, v15')
    def pace(n):
        L=lab('PC'); e(L+':'); e('s_sleep 3'); e('ds_read_b32 v5, v15')
        e('s_add_u32 s99, s99, 1'); e('s_cmp_gt_u32 s99, 0x100000'); e('s_cbranch_scc1 K_END'); e('s_waitcnt lgkmcnt(0)')
        e('v_cmp_gt_u32 vcc, %s, v5'%(n if isinstance(n,str) else min(n,38))); e('s_cbranch_vccnz '+L)
    e('s_and_b32 s16, %s, %d'%(s(sC),USTG)); e('s_add_u32 s16, s16, %d'%(20+UPACE))
    pace('s16')
    e('s_setprio %d'%AP3)
    e('s_mov_b32 s16, %d'%FLU)
    gpoll(['buffer_load_dwordx4 v[96:99], %s, %s, s16 offen sc1'%(v(L16),s(sWS,4)),'buffer_load_dwordx4 v[100:103], %s, %s, s16 offen offset:1024 sc1'%(v(L16),s(sWS,4))],
          ['v_min3_u32 v5, v96, v97, v98','v_min3_u32 v5, v5, v99, v100','v_min3_u32 v5, v5, v101, v102','v_min_u32 v5, v5, v103','v_cmp_eq_u32 vcc, 0, v5'],USLP)
    st(2)
    UF=16; YA=80; SP=152
    def uloads(n,dst):
        for k in range(4):
            for u in range(2):
                e('s_mov_b32 s17, %d'%(U_OFF+(8*k+4*u)*PR))
                e('buffer_load_dwordx4 %s, %s, %s, s17 offen sc1'%(v(dst+8*k+4*u,4),v(UO+n),s(sWS,4)))
    def ufix(dst):
        for k in range(4):
            for h in range(2): e('v_swap_b32 %s, %s'%(v(dst+8*k+2+h),v(dst+8*k+4+h)))
    def uneg(dst):
        for i in range(32): e('v_xor_b32 %s, 0x80000000, %s'%(v(dst+i),v(dst+i)))
    def fin(y,p,og,o,vaddr,soff):
        for tb in range(2):
            for r in range(4): e('v_fma_f32 %s, %s, %s, %s'%(v(p[tb]+r),v(og),v(p[tb]+r),v(y[tb]+r)))
        for r in range(4): e('v_cvt_pk_bf16_f32 %s, %s, %s'%(v(o+r),v(p[0]+r),v(p[1]+r)))
        e('buffer_store_dwordx4 %s, %s, %s, %s offen%s'%(v(o,4),v(vaddr),s(sOUT,4),soff,[' ',' sc1',' nt'][OSC]))
    uloads(0,UF)
    e('s_cmp_eq_u32 s7, 1'); e('s_cbranch_scc0 AX_U')
    uloads(1,UF+32)
    gpoll(['buffer_load_dword v5, %s, %s, s65 offen sc1'%(v(PL2),s(sWS,4))],['v_cmp_gt_u32 vcc, 1, v5'],10)
    e('s_mul_i32 s16, %s, %d'%(s(sC),8*73728)); e('s_lshl_b32 s17, %s, 10'%s(sJ)); e('s_add_u32 s16, s16, s17'); e('s_add_u32 s16, s16, 65536')
    for jj in range(8):
        e('buffer_load_dwordx4 %s, %s, %s, s16 offen sc1'%(v(80+4*jj,4),v(L16),s(sWS,4)))
        if jj<7: e('s_add_u32 s16, s16, 73728')
    ufix(UF+32); uneg(UF+32)
    e('s_nop 1')
    for k in range(4):
        for tb in range(2): mfma(112+4*(1-tb), UF+32+8*k+4*tb, GF+4*k, '0' if k==0 else None)
    e('s_waitcnt vmcnt(0)')
    for jj in range(8):
        for tb in range(2): mfma(120+4*tb, SEL+4*tb, 80+4*jj, '0' if jj==0 else None)
    for r in range(8): e('v_mul_f32 %s, %s, %s'%(v(112+r),v(GG),v(112+r)))
    e('v_sub_f32 v14, 1.0, %s'%v(GG)); e('s_lshl_b32 s16, s55, 1')
    fin((112,116),(120,124),14,248,TR,'s16')
    e('s_branch AX_U2')
    e('AX_U:')
    e('s_waitcnt vmcnt(0)')
    e('AX_U2:')
    ufix(UF)
    e('s_cmp_ge_u32 s54, 288'); e('s_cbranch_scc0 AX_U3')
    uneg(UF)
    for k in range(4):
        for h in range(4): e('v_swap_b32 %s, %s'%(v(UF+8*k+h),v(UF+8*k+4+h)))
    e('AX_U3:')
    e('s_nop 1')
    for k in range(4):
        for tb in range(2):
            for i in range(4): mfma(YA+16*tb+4*i, UF+8*k+4*tb, GF+16*i+4*k, '0' if k==0 else None)
    st(3)
    if '--exitc8' in A:
        for i in range(4,7): st(i)
        st_flush(7,0); e('s_endpgm')
    e('s_mul_i32 s18, %s, %d'%(s(sC),8*73728)); e('s_lshl_b32 s17, s15, 13'); e('s_add_u32 s18, s18, s17'); e('s_add_u32 s18, s18, s44')
    def acc(buf,first):
        for i in range(4):
            for tb in range(2): mfma(SP+16*tb+4*i, SEL+4*tb, buf+4*i, '0' if first else None)
    BUF=lambda i: 16+16*(i%4)
    e('s_mov_b32 s66, 0')
    def addr(i,so,sm):
        e('s_sub_u32 %s, %s, %d'%(so,s(sJ),i)); e('s_and_b32 %s, %s, 7'%(so,so))
        e('s_lshl_b32 %s, %s, 1'%(sm,so)); e('s_lshl_b32 %s, 3, %s'%(sm,sm))
        e('s_mul_i32 %s, %s, 73728'%(so,so)); e('s_add_u32 %s, %s, s18'%(so,so))
    def pollbits(i,sm,sx,slp):
        e('s_branch AX_F%d'%i); e('AX_R%d:'%i)
        if slp: e('s_sleep %d'%slp)
        e('AX_F%d:'%i)
        e('buffer_load_dword v5, %s, %s, s65 offen sc1'%(v(PL1),s(sWS,4))); e('s_add_u32 s47, s47, 1'); e('s_waitcnt vmcnt(0)')
        e('v_cmp_le_u32 vcc, v254, v5'); e('s_cmp_gt_u32 s47, %d'%SPINMAX); e('s_cbranch_scc1 AX_G%d'%i)
        e('s_mov_b32 s66, vcc_lo'); e('s_mov_b32 exec_lo, %s'%sx); e('s_mov_b32 exec_hi, 0')
        e('s_and_b32 s19, s66, %s'%sm); e('s_cmp_eq_u32 s19, %s'%sm); e('s_cbranch_scc0 AX_R%d'%i)
    def loads(i,so):
        for u in range(4): e('buffer_load_dwordx4 %s, %s, %s, %s offen sc1'%(v(BUF(i)+4*u,4),v(PO+u),s(sWS,4),so))
    addr(7,'s48','s49')
    e('s_add_u32 s16, s44, %d'%QH)
    for u in range(4): e('v_add_u32 %s, s16, %s'%(v(128+u),v(PO+u)))
    for i in range(1,7):
        addr(i,'s16','s17')
        e('s_and_b32 s19, s66, s17'); e('s_cmp_eq_u32 s19, s17'); e('s_cbranch_scc1 AX_G%d'%i)
        pace(max(20+2*(i+2)+PPACE-FEARLY, LATE if i>L1 else 0))
        if i==6: e('s_or_b32 s50, s17, s49'); e('s_mov_b32 exec_lo, s50'); e('s_mov_b32 exec_hi, 0')
        pollbits(i,'s17','s50' if i==6 else 's17', 0 if i==6 else PSLP)
        e('AX_G%d:'%i)
        e('s_mov_b64 exec, -1')
        loads(i,'s16')
        if 3<=i<=6: e('s_waitcnt vmcnt(8)'); acc(BUF(i-2), i==3)
        if i==1:
            for sl in range(4):
                for tb in range(2):
                    for r in range(4): e('v_mul_f32 %s, %s, %s'%(v(YA+16*tb+4*sl+r),v(GG+sl),v(YA+16*tb+4*sl+r)))
                e('v_sub_f32 %s, 1.0, %s'%(v(GG+sl),v(GG+sl)))
    e('s_and_b32 s19, s66, s49'); e('s_cmp_eq_u32 s19, s49'); e('s_cbranch_scc1 AX_G7')
    e('s_mov_b32 exec_lo, s49'); e('s_mov_b32 exec_hi, 0')
    pollbits(7,'s49','s49',0)
    e('AX_G7:')
    e('s_mov_b64 exec, -1')
    loads(7,'s48')
    e('s_waitcnt vmcnt(8)'); acc(BUF(5),False)
    lds_wait(15,5,'39')
    for u in range(4): e('ds_read_b128 %s, %s'%(v(BUF(4)+4*u,4),v(128+u)))
    e('s_waitcnt lgkmcnt(0)'); acc(BUF(4),False)
    st(4)
    e('s_waitcnt vmcnt(4)'); acc(BUF(6),False)
    st(5)
    e('s_lshl_b32 s16, s54, 1')
    for sl in range(4):
        e('s_waitcnt vmcnt(%d)'%(3-sl))
        for tb in range(2): mfma(SP+16*tb+4*sl, SEL+4*tb, BUF(7)+4*sl)
    e('s_nop 3')
    for sl in range(4): fin((YA+4*sl,YA+16+4*sl),(SP+4*sl,SP+16+4*sl),GG+sl,232+4*sl,TR+sl,'s16')
    if STAMP:
        e('s_waitcnt vmcnt(0)'); st(6); st_flush(7,0)
        if TRACE: trace_flush(252,253)
    if DIAG:
        e('s_waitcnt vmcnt(0)'); e('s_memrealtime s[76:77]'); e('s_waitcnt lgkmcnt(0)')
        if DIAG==1: e('s_mov_b32 s74, s76')
        e('s_sub_u32 s16, s74, s72')
        if DIAG in (2,6): e('s_lshl_b32 s16, s16, 2')
        if DIAG==4: e('s_lshl_b32 s16, s16, 3')
        e('DG:'); e('s_memrealtime s[78:79]'); e('s_waitcnt lgkmcnt(0)'); e('s_sub_u32 s17, s78, s76'); e('s_cmp_lt_u32 s17, s16'); e('s_cbranch_scc1 DG')
    e('s_endpgm')
    for n,k in enumerate(later):
        e('AX_SL%d:'%n); out.extend(parts[k]); e('s_branch AX_SR')

def main():
    global INMAIN
    e('K_MAIN:')
    ACC=96; AF=16; XB=56
    T=200
    e('v_lshlrev_b32 v7, 2, v0'); e('s_lshl_b32 s16, %s, 8'%s(sWV)); e('s_add_u32 s16, s16, %d'%LND); e('v_add_u32 v3, s16, v7'); e('v_mov_b32 v8, 0')
    for i in range(3): e('ds_write_b32 v3, v8 offset:%d'%(1024*i))
    e('v_add_u32 v13, 1024, v3')
    e('v_and_b32 v3, 1, v0'); e('v_mul_u32_u24 v3, 260, v3'); e('v_add_u32 v14, %d, v3'%LND)
    e('v_mov_b32 v5, 0')
    e('v_and_b32 v200, 15, v0'); e('v_lshrrev_b32 v201, 4, v0')
    e('s_movk_i32 s17, 1152')
    e('v_lshrrev_b32 v202, 2, v200'); e('v_and_b32 v203, 3, v0')
    e('v_lshl_add_u32 v204, v201, 3, v202'); e('v_mul_u32_u24 v204, s17, v204'); e('v_lshl_add_u32 v204, v203, 3, v204')
    e('v_lshrrev_b32 v205, 1, v202'); e('v_and_b32 v7, 1, v201'); e('v_lshl_add_u32 v205, v7, 1, v205')
    e('s_mul_i32 s18, %s, %d'%(s(sWV),NA)); e('s_cmp_eq_u32 %s, 3'%s(sWV)); e('s_cselect_b32 s18, %d, s18'%(36-NB))
    for i in range(4):
        e('s_add_u32 s16, s18, %d'%i); e('s_and_b32 s17, s16, 3'); e('s_lshr_b32 s16, s16, 2'); e('s_lshl_b32 s16, s16, 7')
        e('v_xor_b32 v7, s17, v205'); e('v_lshl_add_u32 v7, v7, 5, v204'); e('v_add_u32 %s, s16, v7'%v(88+i)); e('v_mov_b32 %s, %s'%(v(92+i),v(88+i)))
    e('v_lshrrev_b32 v7, 1, v200'); e('v_xor_b32 v7, v7, v201'); e('v_lshlrev_b32 v7, 4, v7')
    e('v_lshl_add_u32 v1, v200, 7, v7'); e('v_add_u32 v1, %d, v1'%XW0); e('s_lshl_b32 s16, s98, 6'); e('v_xor_b32 v1, s16, v1'); e('v_xor_b32 v2, 64, v1')
    e('v_mov_b32 v3, v1'); e('v_mov_b32 v4, v2')
    e('v_lshlrev_b32 v12, 4, v0')
    e('s_lshr_b32 s16, %s, 1'%s(sWV)); e('s_lshl_b32 s16, s16, 11'); e('s_add_u32 s16, s16, %d'%HB); e('v_add_u32 v9, s16, v12')
    e('v_lshl_add_u32 v204, v201, 2, v202'); e('v_bfe_u32 v205, v204, 1, 2'); e('v_lshlrev_b32 v204, 7, v204'); e('v_lshl_add_u32 v204, v203, 3, v204')
    e('s_and_b32 s16, %s, 1'%s(sWV)); e('s_lshl_b32 s16, s16, 1')
    for tb in range(2):
        e('s_add_u32 s17, s16, %d'%tb); e('v_xor_b32 v7, s17, v205'); e('v_lshl_add_u32 %s, v7, 5, v204'%v(10+tb))
    for i in range(16*NB): e('v_mov_b32 %s, 0'%v(ACC+i))
    for i in range(4*(NB-3),4*NA): e('v_mov_b32 %s, 0'%v(AF+i))
    for i in range(16): e('v_mov_b32 %s, 0'%v(XB+16+i))
    e('s_waitcnt lgkmcnt(0)')
    srd(sWS,62,WS_BYTES)
    if TW:
        srd(sOUT,58,2359296); srd(sW2,54,5308416)
        e('s_cmp_eq_u32 %s, 2'%s(sWV)); e('s_cbranch_scc0 M_TW')
        G=TW
        e('v_lshlrev_b32 v7, %d, v0'%(20 if TW==1 else 16))
        e('s_mov_b32 s16, %d'%U_OFF); e('s_mov_b64 exec, %s'%('0x1f' if TW==1 else '-1')); e('buffer_load_dword v15, v7, %s, s16 offen'%s(sWS,4))
        e('s_mov_b64 exec, %s'%('7' if TW==1 else '-1')); e('buffer_load_dword v15, v7, %s, 0 offen'%s(sOUT,4))
        e('v_lshlrev_b32 v7, %d, v0'%(19 if TW==1 else 16)); e('s_mov_b64 exec, %s'%('3' if TW==1 else '0x3ff'))
        e('s_mul_i32 s16, %s, %d'%(s(sC),8*73728)); e('buffer_load_dword v15, v7, %s, s16 offen'%s(sWS,4))
        e('s_mul_i32 s16, %s, %d'%(s(sJ),576*1152)); e('buffer_load_dword v15, v7, %s, s16 offen'%s(sW2,4))
        e('s_mov_b64 exec, -1')
        e('M_TW:')
    e('s_lshl_b32 s16, s18, 11'); e('s_add_u32 s16, s16, %d'%HB); e('v_add_u32 v8, s16, v12')
    e('s_mov_b32 s64, 0'); e('s_mov_b32 s65, 0'); e('s_mov_b32 s66, 1')
    INMAIN=True
    if MPRIO: e('s_setprio 3')
    spins=[]
    def check(seq,thr,vaddr=109):
        L=lab('SP'); R=L+'R'
        seq.append(('need',['F'])); seq.append(('i','v_cmp_gt_u32 vcc, %s, v110'%thr)); seq.append(('i','s_cbranch_vccnz '+L)); seq.append(('i',R+':'))
        spins.append((L,R,thr,vaddr))
    def conv(u,sg):
        a=ACC+32*u+4*sg; b=a+16
        if RM==1:
            L=[]
            for d,x in ((a,a),(a+1,a+2),(a+2,b),(a+3,b+2)):
                L+=['v_max_f32 %s, 0, %s'%(v(x),v(x)),'v_max_f32 %s, 0, %s'%(v(x+1),v(x+1)),'v_cvt_pk_bf16_f32 %s, %s, %s'%(v(d),v(x),v(x+1))]
            return L+['ds_write_b128 v8, %s offset:%d'%(v(a,4),u*4096+sg*1024)]
        if RM==2:
            return ['v_cvt_pk_bf16_f32 %s, %s, %s'%(v(d),v(x),v(x+1)) for d,x in ((a,a),(a+1,a+2),(a+2,b),(a+3,b+2))]+['s_nop 0','ds_write_b128 v8, %s offset:%d'%(v(a,4),u*4096+sg*1024)]
        if RM==3:
            return ['v_cvt_pk_bf16_f32 %s, %s, %s'%(v(d),v(x),v(x+1)) for d,x in ((a,a),(a+1,a+2),(a+2,b),(a+3,b+2))]+['v_pk_max_i16 %s, %s, 0'%(v(a+k),v(a+k)) for k in range(4)]+['s_nop 0']
        return ['v_cvt_pk_bf16_f32 %s, %s, %s'%(v(a),v(a),v(a+1)),'v_cvt_pk_bf16_f32 %s, %s, %s'%(v(a+1),v(a+2),v(a+3)),
                'v_cvt_pk_bf16_f32 %s, %s, %s'%(v(a+2),v(b),v(b+1)),'v_cvt_pk_bf16_f32 %s, %s, %s'%(v(a+3),v(b+2),v(b+3))]+['v_pk_max_i16 %s, %s, 0'%(v(a+k),v(a+k)) for k in range(4)]+[
                'ds_write_b128 v8, %s offset:%d'%(v(a,4),u*4096+sg*1024)]
    def step1(NT,p,last=False):
        seq=[('i','s_barrier')]
        R=[('A',0,0),('A',0,1)]+[('X',p,sg) for sg in range(4)]+[('A',t,r) for t in range(1,NT) for r in range(2)]
        extra=[]
        if not last:
            extra=['s_add_u32 s64, s64, %d'%SLOT,'s_cmp_eq_u32 s64, %d'%(3*SLOT),'s_cselect_b32 s64, 0, s64','s_add_u32 s66, s66, 1']+['v_add_u32 %s, s64, %s'%(v(92+i),v(88+i)) for i in range(4)]
            if p==1: extra+=['s_add_u32 s65, s65, 8192','s_and_b32 s65, s65, 32767','v_add_u32 v3, s65, v1','v_add_u32 v4, s65, v2']
            else: extra+=['s_cmp_eq_u32 s66, 18']
        cv=[]; nq=0
        ng=4*(NT+3) if last else 4*NT
        eb=len(R)+5
        def pop(n,ok):
            for _ in range(n):
                if cv and (ok or not cv[0].startswith('ds_')):
                    x=cv.pop(0)
                    seq.append(('lds','H',x) if x.startswith('ds_') else ('i',x))
        for g in range(ng):
            i,sg=divmod(g,4)
            if g<len(R):
                k,a,b=R[g]
                if k=='A': seq.append(('lds',R[g],'ds_read_b64_tr_b16 %s, %s offset:%d'%(v(AF+4*a+2*b,2),v(92+a%4),128*(a//4)+4608*b)))
                else: seq.append(('lds',R[g],'ds_read_b128 %s, %s offset:%d'%(v(XB+16*p+4*b,4),v(3+p),2048*b)))
            elif extra: seq.append(('i',extra.pop(0)))
            if last:
                if g==eb: seq.append(('need',[('A',NT-1,1)])); seq.append(('i','s_barrier'))
                if sg==0 and i>=6 and i%2==0:
                    cv+=[x for q in range(4) for x in conv(nq,q)]; nq+=1
                pop(CPG,g>=eb)
            if i<3: t,xb=NT-3+i,1-p
            else: t,xb=i-3,p
            seq.append(('need',[('A',t,0),('A',t,1),('X',xb,sg)]))
            seq.append(('i',mf(ACC+16*t+4*sg, AF+4*t, XB+16*xb+4*sg)))
        assert not extra
        if not last: seq.append(('need',[('A',NT-1,1)]))
        if last:
            assert len(cv)>=9
            while nq<NT//2:
                cv+=[x for q in range(4) for x in conv(nq,q)]; nq+=1
            pop(len(cv),True)
        return seq
    def phase1(NT,nm):
        s0=step1(NT,0); s1=step1(NT,1)
        s0e=s0
        if STAMP: s0e=s0[:1]+[('i','s_cmp_eq_u32 s66, 1'),('i','s_cbranch_scc0 %sNS'%nm),('i','s_memrealtime s[74:75]'),('i','s_memtime s[88:89]'),('i','s_waitcnt lgkmcnt(0)'),('i',nm+'NS:')]+s0[1:]
        e(nm+'L:')
        stream(s0e+[('i','s_cbranch_scc1 %sX'%nm)]+s1+[('i','s_branch %sL'%nm)],True)
        e(nm+'X:')
        stream(step1(NT,1,True),False,pre=s1+s0)
    e('s_cmp_ge_u32 %s, 2'%s(sWV)); e('s_cbranch_scc1 MBL')
    for i in range(16*NB,16*NA): e('v_mov_b32 %s, 0'%v(ACC+i))
    phase1(NA,'MA')
    e('s_branch M1_J')
    phase1(NB,'MB')
    e('M1_J:'); e('s_waitcnt vmcnt(0)')
    e('s_waitcnt lgkmcnt(0)')
    st(2); stc(9)
    e('v_mov_b32 v100, v9'); e('v_add_u32 v101, 36864, v9')
    e('s_barrier')
    H=112
    for k in range(18):
        for sg in range(2): e('ds_read_b128 %s, %s offset:%d'%(v(H+8*k+4*sg,4),v(100+k//9),(k%9)*4096+sg*1024))
        if E3A and k==12: e('s_waitcnt lgkmcnt(8)'); e('s_barrier')
    e('v_mov_b32 v102, v10'); e('v_mov_b32 v103, v11'); e('v_add_u32 v104, %d, v10'%SLOT); e('v_add_u32 v105, %d, v11'%SLOT)
    e('v_mov_b32 v106, v12'); e('v_mov_b32 v108, v13'); e('v_mov_b32 v109, v14')
    if TRACE: e('v_mov_b32 v1, 0'); e('v_mov_b32 v3, 0')
    e('v_mov_b32 v107, 20')
    e('ds_read_b32 v110, v109')
    WR=16; PA=64; QA=80; PK=8
    e('s_mov_b32 s64, %d'%(2*SLOT)); e('s_mov_b32 s65, 0'); e('s_mov_b32 s66, 19')
    e('s_mul_i32 s60, s2, 73728')
    e('s_lshl_b32 s61, %s, 11'%s(sWV)); e('s_add_u32 s60, s60, s61')
    e('s_mov_b32 s67, %d'%OOB)
    e('s_lshl_b32 s19, s2, 7'); e('s_lshl_b32 s61, %s, 2'%s(sWV)); e('s_add_u32 s19, s19, s61'); e('s_add_u32 s19, s19, %d'%FLP)
    e('s_mov_b32 s63, %d'%(FMASK<<1))
    e('v_mov_b32 v6, 0'); e('s_and_b32 s62, %s, %d'%(s(sC),NSITE-1))
    e('s_waitcnt lgkmcnt(0)'); e('s_barrier')
    st(3); stc(10)
    def mm2(kg,u):
        tb,sg=divmod(u,2)
        a=WR+8*(kg%6)+4*tb; b=H+8*kg+4*sg
        if kg<9: return mf(PA+8*tb+4*sg,a,b,'0' if kg==0 else None)
        return mf(QA+8*tb+4*sg,a,b,PA+8*tb+4*sg if kg==9 else None)
    def packq(final=False):
        L=[]
        for sg in range(2):
            for tb in range(2):
                for h in range(2):
                    q=QA+8*tb+4*sg+2*h
                    L.append('v_cvt_pk_bf16_f32 %s, %s, %s'%(v(PK+4*sg+2*tb+h),v(q),v(q+1)))
            if final: L.append('ds_write_b128 v7, %s offset:%d'%(v(PK+4*sg,4),1024*sg))
            else: L.append('buffer_store_dwordx4 %s, v106, %s, s67 offen offset:%d sc1'%(v(PK+4*sg,4),s(sWS,4),1024*sg))
        return L
    body=[]
    for hc in range(2):
        check(body,'s66')
        R=[(9*hc+k,tb,r) for k in range(9) for tb in range(2) for r in range(2)]
        ex={}
        if hc==0:
            cv=[x for x in packq() if x.startswith('v_cvt')]
            for i,x in enumerate(cv): ex[16+i]=[x]
            ex[2]=['v_add_u32 v104, s64, v104']; ex[3]=['v_add_u32 v105, s64, v105']; ex[4]=['s_sub_u32 s64, 0, s64']; ex[5]=['s_add_u32 s66, s66, 1']

        else:
            L=['v_add_u32 v102, s64, v102','v_add_u32 v103, s64, v103','s_add_u32 s66, s66, 1',
               's_add_u32 s61, s65, s15','s_and_b32 s61, s61, 7','s_cmp_eq_u32 s65, 0','s_cselect_b32 s61, 8, s61',
               's_lshl_b32 s61, s61, 13']
            for i,x in enumerate(L): ex[2+i]=[x]
            ex[26]=['s_add_u32 s67, s60, s61']; ex[30]=['s_cmp_eq_u32 s65, 8','s_cselect_b32 s62, 0, s62']
            ex[27]=['v_mov_b32 v6, s65']; ex[28]=['s_add_u32 s65, s65, 1']; ex[33]=['s_cmp_lt_u32 s65, 9']
            if FEARLY: ex[32]=['s_bitcmp1_b32 s63, s65','s_cbranch_scc1 M2_FL','M2_FR:']
        sites=[(0,25),(1,1),(1,13),(1,25)][:NSITE]
        for n,(h,g) in enumerate(sites):
            if h==hc:
                ex.setdefault(g,[]); ex[g]=ex[g]+['s_cmp_eq_u32 s62, %d'%n,'s_cbranch_scc1 M2_ST%d'%n,'M2_SR%d:'%n]
        for g in range(36):
            i,u=divmod(g,4)
            k,tb,r=R[g]
            body.append(('lds',R[g],'ds_read_b64_tr_b16 %s, %s offset:%d'%(v(WR+8*(k%6)+4*tb+2*r,2),v(102+2*hc+tb),(k%9)*4096+r*2048)))
            if g==30: body.append(('lds','F','ds_read_b32 v110, v109'))
            if g==34: body.append(('i','v_add_u32 v107, 1, v107'))
            if g==35: body.append(('lds','C','ds_write_b32 v108, v107'))
            for x in ex.get(g,[]): body.append(('i',x))
            kg=(9*hc+i-3)%18
            body.append(('need',[(kg,u//2,0),(kg,u//2,1)]))
            body.append(('i',mm2(kg,u)))
    e('v_add_u32 v104, s64, v104'); e('v_add_u32 v105, s64, v105'); e('s_sub_u32 s64, 0, s64')
    e('M2_L:')
    stream(body,True)
    e('s_cbranch_scc1 M2_L')
    e('s_lshl_b32 s61, %s, 11'%s(sWV)); e('s_add_u32 s61, s61, %d'%QH); e('v_add_u32 v7, s61, v106')
    e('s_waitcnt lgkmcnt(0)')
    for kg in (15,16,17):
        for u in range(4): e(mm2(kg,u))
    if not FEARLY: e('s_waitcnt vmcnt(0)'); e('s_mov_b64 exec, 1'); e('buffer_store_dword v6, v5, %s, s19 offen sc1'%s(sWS,4)); e('s_mov_b64 exec, -1')
    e('s_nop 7')
    for x in packq(True): e(x)
    e('v_add_u32 v107, 1, v107'); e('ds_write_b32 v108, v107')
    INMAIN=False
    if STAMP:
        st(4); stc(11); st_flush(12,0)
        if TRACE: trace_flush(1,3)
    e('s_waitcnt lgkmcnt(0)')
    e('s_endpgm')
    e('M2_FL:'); e('s_waitcnt vmcnt(0)'); e('s_mov_b64 exec, 1'); e('buffer_store_dword v6, v5, %s, s19 offen sc1'%s(sWS,4)); e('s_mov_b64 exec, -1'); e('s_branch M2_FR')
    for n in range(NSITE):
        e('M2_ST%d:'%n)
        if MSP: e('s_setprio %d'%MSP)
        if not FEARLY: e('s_waitcnt vmcnt(0)'); e('s_mov_b64 exec, 1'); e('buffer_store_dword v6, v5, %s, s19 offen sc1'%s(sWS,4)); e('s_mov_b64 exec, -1')
        for x in packq():
            if x.startswith('buffer') and not NOST: e(x)
        if MSP: e('s_setprio 0')
        e('s_branch M2_SR%d'%n)
    for (L,R,thr,va) in spins:
        e(L+':')
        tr=TRACE and thr=='s66'
        if tr:
            e('s_memtime s[96:97]'); e('s_waitcnt lgkmcnt(0)'); e('s_mov_b32 m0, s66'); e('s_nop 3'); e('v_writelane_b32 v1, s96, m0'); L=L+'b'; e(L+':')
        e('ds_read_b32 v110, %s'%v(va))
        e('s_add_u32 s99, s99, 1'); e('s_cmp_gt_u32 s99, 0x100000'); e('s_cbranch_scc1 K_END'); e('s_waitcnt lgkmcnt(0)')
        e('v_cmp_gt_u32 vcc, %s, v110'%thr); e('s_cbranch_vccnz '+L)
        if tr: e('s_memtime s[96:97]'); e('s_waitcnt lgkmcnt(0)'); e('v_writelane_b32 v3, s96, m0')
        e('s_branch '+R)

assert all((L*57)>>9==L//9 for L in range(288))
assert all((L*57)>>11==L//36 for L in range(289))
out.append('; @launch grid=(256,1,1) block=(512,1,1) lds=163840')
out.append('.amdgcn_target "amdgcn-amd-amdhsa--gfx950"')
out.append('.text'); out.append('.globl '+NAME)
kernel()
out.append('.section .rodata,"a"'); out.append('.p2align 6')
out.append('.amdhsa_kernel '+NAME)
for l in ['next_free_vgpr 256','next_free_sgpr 100','accum_offset 256','group_segment_fixed_size 0','kernarg_size 96','user_sgpr_count 2','user_sgpr_kernarg_segment_ptr 1','system_sgpr_workgroup_id_x 1']:
    out.append('  .amdhsa_'+l)
out.append('.end_amdhsa_kernel')
print('\n'.join(out))
```

```python
import sys, struct
A=sys.argv
STAMP='--stamp' in A; NODMA='--nodma' in A; NOMFMA='--nomfma' in A; NOREAD='--noread' in A; NOPRIO='--noprio' in A; NOTX='--notx' in A; NORED='--nored' in A; NOST='--nost' in A; NOU='--nou' in A; NOXW='--noxw' in A; TRACE='--trace' in A; MPRIO='--mprio' in A; SLP='--slp' in A; opt=lambda n,d: int([x for x in A if x.startswith('--'+n+'=')][0].split('=')[1]) if any(x.startswith('--'+n+'=') for x in A) else d
PRE=opt('pre',2); AP2=opt('ap2',0); USLP=opt('uslp',30); PSLP=opt('pslp',12); UPACE=opt('upace',7); PPACE=opt('ppace',1); LP=opt('lp',3); AP=opt('ap',2); LP2=opt('lp2',0); LP1=opt('lp1',3); EARLY=opt('early',0); RM=0; XUP=opt('xup',0); CROT=opt('crot',1); FMASK=opt('fmask',0x1c4); JROT=opt('jrot',1); PK=0; TAG=0; FEARLY=opt('fearly',1); T2=0; CT=opt('ct',0); IW=opt('iw',1); LAY=opt('lay',1); TW=opt('tw',0); L1=opt('l1',1); UPI=12288; PR=2432; TP=32*2432; AP3=opt('ap3',0); MSP=opt('msp',0); MT=opt('mt',0); DIAG=opt('diag',0); NA=10; NB=8; CPG=opt('cpg',2); PUB1=opt('pub1',12); OSC=opt('osc',0); LATE=opt('late',35); USTG=opt('ustg',0); NSITE=opt('nsite',1); XSTG=opt('xstg',2); E3A=opt('e3a',0)
DBGT='--dbgt' in A; NOSW='--nosw' in A; WSPLIT=0 if '--nowsplit' in A else 1
NAME='gated_mix__spectral_fnet__dense_activation_relu__prompt_kernel'
out=[]; INMAIN=False
def e(s=''):
    if NODMA and s.endswith(' lds') and ('s[20:23]' in s or 's[24:27]' in s): return
    if (NOPRIO or MPRIO) and s.startswith('s_setprio') and not INMAIN: return
    if INMAIN and NOST and s.startswith('buffer_store_dword'): return
    if NOU and s.startswith('buffer_load_dwordx2'): return
    if NOXW and s.endswith(' lds') and ('s[8:11]' in s or 's[12:15]' in s): return
    if INMAIN and NOMFMA and s.startswith('v_mfma'): return
    out.append('    '+s if s and not s.endswith(':') else s)
def v(n,c=1): return 'v%d'%n if c==1 else 'v[%d:%d]'%(n,n+c-1)
def s(n,c=1): return 's%d'%n if c==1 else 's[%d:%d]'%(n,n+c-1)
def f2u(x): return struct.unpack('<I',struct.pack('<f',float(x)))[0]

SLOT=36864; XW0=110592; XWS=18432; HB=73728
MISC=147456; QH=MISC; LND=MISC+8192; CNS=LND+4*256; GL=CNS+6*256
GWL=LND+3072; MX=GWL+1152
U_OFF=0x1400000; FLP=0x1800000; FLU=0x1810000; ST_OFF=0x1900000; WS_BYTES=0x1B00000
BIG=0x7fffffff; OOB=0x40000000
sX,sWH,sW1,sW2,sGW,sWS,sOUT,sDBG=8,12,20,24,28,32,36,40
sJ,sC,sWV,sROT=3,4,5,6
SPINMAX=0x8000

def srd(d,base,nbytes):
    e('s_mov_b32 %s, %s'%(s(d),s(base))); e('s_mov_b32 %s, %s'%(s(d+1),s(base+1)))
    e('s_mov_b32 %s, %d'%(s(d+2),nbytes)); e('s_mov_b32 %s, 0x20000'%s(d+3))
def mf(d,a,b,c=None):
    return 'v_mfma_f32_16x16x32_bf16 %s, %s, %s, %s'%(v(d,4),v(a,4),v(b,4), v(d,4) if c is None else (c if isinstance(c,str) else v(c,4)))
def mfma(*a): e(mf(*a))
def st(slot):
    if STAMP: e('s_memrealtime %s'%s(72+2*slot,2))
def stc(slot):
    if STAMP: e('s_memtime %s'%s(72+2*slot,2))
def st_flush(n,base_row):
    if not STAMP: return
    e('s_waitcnt lgkmcnt(0)')
    e('s_lshl_b32 s68, s2, 3'); e('s_add_u32 s68, s68, %s'%s(sWV)); e('s_lshl_b32 s68, s68, 7'); e('s_add_u32 s68, s68, %d'%ST_OFF)
    e('v_mov_b32 v2, 0')
    for i in range(n):
        e('v_mov_b32 v4, %s'%s(72+2*i)); e('v_mov_b32 v5, %s'%s(73+2*i))
        e('buffer_store_dwordx2 v[4:5], v2, %s, s68 offen offset:%d'%(s(sWS,4),8*i)); e('s_nop 1')
def trace_flush(a,b):
    e('s_lshl_b32 s68, s2, 3'); e('s_add_u32 s68, s68, %s'%s(sWV)); e('s_lshl_b32 s68, s68, 9'); e('s_add_u32 s68, s68, %d'%(ST_OFF+0x40000))
    e('v_lshlrev_b32 v2, 2, v0')
    e('buffer_store_dword %s, v2, %s, s68 offen'%(v(a),s(sWS,4))); e('buffer_store_dword %s, v2, %s, s68 offen offset:256'%(v(b),s(sWS,4)))
_lab=[0]
def lab(p): _lab[0]+=1; return '%s%d'%(p,_lab[0])
def lds_wait(vaddr,vtmp,thr):
    L=lab('W')
    e(L+':')
    if SLP and not INMAIN: e('s_sleep 2')
    e('ds_read_b32 %s, %s'%(v(vtmp),v(vaddr)))
    e('s_add_u32 s99, s99, 1'); e('s_cmp_gt_u32 s99, 0x100000'); e('s_cbranch_scc1 K_END'); e('s_waitcnt lgkmcnt(0)')
    e('v_cmp_gt_u32 vcc, %s, %s'%(thr,v(vtmp))); e('s_cbranch_vccnz '+L)

def stream(seq, cyclic, pre=None):
    hist=[]; done=0
    def run(sq,emit):
        nonlocal done
        for it in sq:
            if it[0]=='lds':
                hist.append(it[1])
                if emit and not (NOREAD and it[2].startswith('ds_read_b64_tr')): e(it[2])
            elif it[0]=='need':
                idx=-1
                for t in it[1]:
                    k=[i for i,x in enumerate(hist) if x==t]
                    if k: idx=max(idx,k[-1])
                    else: assert not emit, t
                if idx+1>done:
                    n=min(len(hist)-1-idx,15)
                    if emit: e('s_waitcnt lgkmcnt(%d)'%(0 if NOREAD else n))
                    done=len(hist)-n
            elif emit: e(it[1])
    if cyclic: run(seq,False)
    if pre is not None: run(pre,False)
    run(seq,True)

def kernel():
    e('.p2align 8'); e('.type %s,@function'%NAME); e(NAME+':')
    e('s_cmp_ge_u32 s2, 256'); e('s_cbranch_scc1 K_END')
    st(0)
    if DBGT or DIAG: e('s_memrealtime s[72:73]')
    e('s_load_dwordx2 s[44:45], s[0:1], 0')
    e('s_load_dwordx4 s[52:55], s[0:1], 48')
    e('s_load_dwordx8 s[56:63], s[0:1], 64')
    if IW:
        e('s_getpc_b64 s[16:17]'); e('IWP:')
        e('s_sub_u32 s16, s16, IWP-%s'%NAME); e('s_subb_u32 s17, s17, 0')
        e('s_andn2_b32 s18, s2, 7'); e('s_lshl_b32 s18, s18, 7')
        e('v_lshl_add_u32 v3, v0, 1, s18'); e('v_min_u32 v3, K_END-%s, v3'%NAME)
        e('s_mov_b64 exec, 1'); e('global_load_dword v15, v3, s[16:17]'); e('s_mov_b64 exec, -1')
    e('s_mov_b32 s99, 0')
    e('v_lshrrev_b32 v1, 6, v0')
    e('s_and_b32 %s, s2, 7'%s(sJ)); e('s_lshr_b32 %s, s2, 3'%s(sC))
    e('v_readfirstlane_b32 %s, v1'%s(sWV))
    e('v_and_b32 v0, 63, v0')
    e('s_mul_i32 s6, %s, 57'%s(sC)); e('s_lshr_b32 s6, s6, 9'); e('s_and_b32 s98, s6, %d'%(0 if NOSW else 1)); e('s_mul_i32 s6, s6, 9'); e('s_sub_u32 s6, %s, s6'%s(sC))
    if JROT: e('s_add_u32 s6, s6, %s'%s(sJ)); e('s_sub_u32 s7, s6, 9'); e('s_cmp_ge_u32 s6, 9'); e('s_cselect_b32 s6, s7, s6')
    e('s_add_u32 s15, %s, %s'%(s(sJ),s(sC) if CROT else '0')); e('s_and_b32 s15, s15, 7')
    e('s_cmp_ge_u32 %s, 6'%s(sWV)); e('s_cbranch_scc1 K_AUX')
    e('s_cmp_ge_u32 %s, 4'%s(sWV)); e('s_cbranch_scc0 K_MAIN')
    loader(); aux()
    global out
    tail=[]
    if LAY:
        k=out.index('AX_D:'); tail=out[k:]; del out[k:]
    main()
    out.extend(tail)
    e('K_END:'); e('s_endpgm')

def loader():
    e('s_setprio %d'%LP)
    e('s_sub_u32 s7, %s, 4'%s(sWV))
    e('v_lshrrev_b32 v1, 3, v0'); e('v_and_b32 v2, 7, v0')
    e('v_lshrrev_b32 v4, 1, v2')
    e('v_and_b32 v5, 1, v2'); e('v_lshlrev_b32 v5, 4, v5')
    e('s_movk_i32 s16, %d'%(9216-1152))
    for p in range(9):
        e('v_add_u32 v6, %d, v1'%(8*p))
        e('v_mul_u32_u24 v7, 57, v6'); e('v_lshrrev_b32 v7, 9, v7')
        e('v_bfe_u32 v9, v7, 1, 1'); e('v_xor_b32 v9, v9, v4')
        e('v_lshl_add_u32 v6, v6, 7, v5')
        e('v_mad_u32_u24 v6, v7, s16, v6')
        e('v_lshl_add_u32 v6, v9, 5, v6')
        e('v_xor_b32 v7, 64, v6')
        e('v_subrev_u32 %s, %d, v6'%(v(16+p),(p%4)*1024))
        e('v_add_u32 %s, %d, v7'%(v(25+p),8*9216-((p+9)%4)*1024))
    e('v_lshrrev_b32 v6, 1, v1'); e('v_and_b32 v6, 3, v6'); e('v_lshlrev_b32 v6, 1, v6'); e('v_xor_b32 v6, v6, v2')
    e('s_movk_i32 s69, 1152'); e('v_mul_u32_u24 v7, s69, v1'); e('v_lshl_add_u32 v36, v6, 4, v7')
    for i in range(1,4): e('v_add_u32 %s, %d, v36'%(v(36+i),i*8192))
    e('s_mul_i32 s64, s7, 18432')
    e('s_mul_i32 s17, %s, 1152'%s(sJ)); e('s_mul_i32 s18, s7, %d'%(16*9216)); e('s_add_u32 s17, s17, s18')
    e('s_lshl_b32 s18, s6, 1')
    e('s_xor_b32 s66, s18, s98'); e('s_mul_i32 s66, s66, %d'%(32*9216)); e('s_add_u32 s66, s66, s17')
    e('s_mov_b32 s67, s64')
    e('s_mov_b32 s68, 0'); e('s_mov_b32 s69, -2')
    e('s_mul_i32 s70, %s, 576'%s(sJ)); e('s_mul_i32 s71, s7, 144'); e('s_add_u32 s70, s70, s71'); e('s_mul_i32 s70, s70, 1152')
    e('s_lshl_b32 s19, s7, 8'); e('s_add_u32 s19, s19, %d'%LND)
    e('v_lshlrev_b32 v11, 2, v0'); e('v_add_u32 v11, s19, v11'); e('v_mov_b32 v10, 0'); e('v_mov_b32 v13, 0'); e('v_mov_b32 v40, 0'); e('v_mov_b32 v41, 0')
    e('v_and_b32 v12, 3, v0'); e('v_mul_u32_u24 v12, 260, v12'); e('v_add_u32 v12, %d, v12'%CNS)
    e('s_waitcnt lgkmcnt(0)')
    srd(sW1,52,5308416); srd(sW2,54,5308416)
    if STAMP: srd(sWS,62,WS_BYTES)
    PUB=opt('pub',16)
    def dma(ph,p):
        if p%4==0 and p:
            e('s_add_u32 m0, s67, %d'%(p*1024))
            if ph==2: e('s_add_u32 s66, s66, %d'%(32*1152))
            else: e('s_nop 0')
        if ph==1: e('buffer_load_dwordx4 %s, %s, s66 offen offset:%d lds'%(v(16+p),s(sW1,4),(p%4)*1024))
        else: e('buffer_load_dwordx4 %s, %s, s66 offen offset:%d lds'%(v(36+p%4),s(sW2,4),(p%4)*1024))
    def grp(fill):
        groups=[]; i=0
        while i<len(fill):
            if fill[i].startswith('s_cmp'): groups.append(fill[i:i+2]); i+=2
            else: groups.append([fill[i]]); i+=1
        return groups
    def tr_top():
        if TRACE: e('s_memtime s[96:97]'); e('s_waitcnt lgkmcnt(0)'); e('s_mov_b32 m0, s68'); e('s_nop 3'); e('v_writelane_b32 v40, s96, m0'); e('v_writelane_b32 v42, s92, m0'); e('v_writelane_b32 v43, s94, m0')
    e('s_setprio %d'%LP1)
    e('LD_P:'); tr_top()
    e('s_mov_b32 m0, s67'); e('s_nop 0')
    g=grp(['s_add_u32 s18, s18, 1','s_cmp_eq_u32 s18, 18','s_cselect_b32 s18, 0, s18','s_xor_b32 s44, s18, s98','s_mul_i32 s44, s44, %d'%(32*9216),'s_add_u32 s44, s44, s17',
           's_add_u32 s45, s67, %d'%SLOT,'s_cmp_ge_u32 s45, %d'%(3*SLOT),'s_cselect_b32 s45, s64, s45'])
    for p in range(18):
        P1=opt('p1',0)
        if P1 and p==P1:
            e('s_cmp_eq_u32 s68, 1'); e('s_cbranch_scc0 LD_P1'); e('s_waitcnt vmcnt(%d)'%P1); e('s_barrier'); e('LD_P1:')
        if p==PUB:
            e('s_cmp_le_u32 s68, %d'%(1 if P1 else 0)); e('s_cbranch_scc1 LD_P0')
            if TRACE: e('s_memtime s[92:93]')
            e('s_waitcnt vmcnt(%d)'%PUB)
            if TRACE: e('s_memtime s[94:95]')
            e('s_barrier')
            e('LD_P0:')
        dma(1,p)
        if g:
            for x in g.pop(0): e(x)
    e('s_mov_b32 s66, s44'); e('s_mov_b32 s67, s45')
    e('s_add_u32 s68, s68, 1'); e('s_cmp_lt_u32 s68, 18'); e('s_cbranch_scc1 LD_P')
    e('s_add_u32 s66, s70, 1024'); e('s_mov_b32 s69, 0'); e('s_setprio %d'%LP2)
    PUB=opt('pub2',16)
    e('LD_Q:'); tr_top()
    e('s_waitcnt lgkmcnt(%d)'%(0 if opt('deep',0) else 1)); e('v_cmp_gt_u32 vcc, s69, v13'); e('s_mov_b32 m0, s67'); e('s_cbranch_vccnz LD_QS')
    e('LD_QR:')
    g=grp(['s_sub_u32 s46, s68, 17','s_lshr_b32 s44, s46, 1','s_add_u32 s47, s44, s15','s_and_b32 s47, s47, 7','s_cmp_eq_u32 s44, 0','s_cselect_b32 s47, 8, s47',
           's_lshl_b32 s47, s47, 7','s_and_b32 s44, s46, 1','s_mul_i32 s44, s44, %d'%(288*1152),'s_add_u32 s44, s44, s47','s_add_u32 s44, s44, s70',
           's_add_u32 s45, s67, %d'%SLOT,'s_cmp_ge_u32 s45, %d'%(4*SLOT),'s_cselect_b32 s45, s64, s45',
           's_cmp_le_u32 s68, 20','s_cselect_b32 s69, 0, s68'])
    for p in range(18):
        DP=opt('deep',0)
        if DP:
            if p==14:
                e('s_cmp_eq_u32 s68, 18'); e('s_cbranch_scc0 LD_Q0'); e('s_waitcnt vmcnt(14)'); e('s_barrier'); e('LD_Q0:')
                e('ds_read_b32 v13, v12')
            if p==DP:
                e('s_sub_u32 s48, s68, 1'); e('v_max_u32 v10, s48, v10'); e('s_waitcnt vmcnt(%d)'%(18+DP)); e('ds_write_b32 v11, v10')
        if p==PUB and not DP:
            e('v_mov_b32 v10, s68')
            if TRACE: e('s_memtime s[92:93]')
            e('s_waitcnt vmcnt(%d)'%PUB)
            e('s_cmp_eq_u32 s68, 18'); e('s_cbranch_scc0 LD_Q0'); e('s_barrier'); e('LD_Q0:')
            if TRACE: e('s_memtime s[94:95]')
            e('ds_read_b32 v13, v12'); e('ds_write_b32 v11, v10')
        if E3A and p==E3A: e('s_cmp_eq_u32 s68, 20'); e('s_cbranch_scc0 LD_Q1'); e('s_barrier'); e('LD_Q1:')
        dma(2,p)
        if g:
            for x in g.pop(0): e(x)
    assert not g
    e('s_mov_b32 s66, s44'); e('s_mov_b32 s67, s45')
    e('s_add_u32 s68, s68, 1'); e('s_cmp_le_u32 s68, 20'); e('s_cbranch_scc1 LD_E')
    e('s_cmp_lt_u32 s68, 36'); e('s_cbranch_scc1 LD_Q')
    if opt('deep',0): e('v_mov_b32 v10, 35'); e('s_waitcnt vmcnt(18)'); e('ds_write_b32 v11, v10'); e('s_nop 1')
    e('v_mov_b32 v10, s68'); e('s_waitcnt vmcnt(0)'); e('ds_write_b32 v11, v10')
    if STAMP: st(1); st_flush(2,0)
    if TRACE:
        e('s_cmp_eq_u32 s7, 0'); e('s_cbranch_scc1 TRX'); e('v_mov_b32 v41, v43'); e('v_mov_b32 v40, v42'); e('TRX:')
        trace_flush(40,41)
    e('s_waitcnt lgkmcnt(0)')
    e('s_endpgm')
    e('LD_E:')
    if not EARLY:
        e('s_barrier')
        e('s_cmp_eq_u32 s68, 20'); e('s_cbranch_scc1 LD_Q')
        e('v_mov_b32 v10, s68'); e('s_waitcnt vmcnt(0)'); e('ds_write_b32 v11, v10'); e('s_waitcnt lgkmcnt(0)')
        e('s_barrier'); e('s_branch LD_Q')
    else:
        e('s_cmp_eq_u32 s68, 19'); e('s_cbranch_scc1 LD_E1')
        e('v_mov_b32 v10, s68'); e('s_waitcnt vmcnt(0)'); e('ds_write_b32 v11, v10'); e('s_waitcnt lgkmcnt(0)')
        e('s_barrier')
        e('LD_E1:')
        e('s_barrier'); e('s_branch LD_Q')
    e('LD_QS:')
    e('ds_read_b32 v13, v12'); e('s_waitcnt lgkmcnt(0)'); e('v_cmp_gt_u32 vcc, s69, v13'); e('s_cbranch_vccz LD_QR')
    e('v_mov_b32 v10, s68'); e('s_waitcnt vmcnt(0)'); e('ds_write_b32 v11, v10')
    lds_wait(12,13,'s69')
    if TRACE: e('s_memtime s[96:97]'); e('s_waitcnt lgkmcnt(0)'); e('s_mov_b32 m0, s68'); e('s_nop 3'); e('v_writelane_b32 v41, s96, m0'); e('s_mov_b32 m0, s67')
    e('s_branch LD_QR')

def aux():
    e('K_AUX:')
    e('s_setprio %d'%AP)
    e('s_sub_u32 s7, %s, 6'%s(sWV))
    e('v_lshrrev_b32 v1, 3, v0'); e('v_and_b32 v2, 7, v0'); e('v_lshrrev_b32 v3, 1, v1')
    e('v_xor_b32 v4, v2, v3'); e('v_lshlrev_b32 v4, 4, v4'); e('v_xor_b32 v5, 64, v4')
    e('s_mov_b32 s16, 73728'); e('v_mul_u32_u24 v6, s16, v1')
    for p in range(4):
        e('v_add_u32 %s, v6, %s'%(v(16+p),'v5' if p%2 else 'v4'))
        if p: e('v_add_u32 %s, %d, %s'%(v(16+p),p*(8*73728-1024),v(16+p)))
    e('v_lshlrev_b32 v25, 4, v0')
    e('s_movk_i32 s17, 1152'); e('v_and_b32 v8, 31, v0'); e('v_mul_u32_u24 v7, 57, v8'); e('v_lshrrev_b32 v62, 9, v7'); e('v_mul_u32_u24 v7, 9, v62'); e('v_sub_u32 v7, v8, v7'); e('v_mul_u32_u24 v24, s17, v7'); e('v_lshrrev_b32 v7, 5, v0'); e('v_lshl_add_u32 v24, v7, 6, v24')
    e('s_lshl_b32 s18, s7, 5'); e('s_add_u32 s18, s18, %s'%s(sC)); e('s_mul_i32 s18, s18, 1152')
    e('s_mul_i32 s19, %s, 576'%s(sJ)); e('s_mul_i32 s64, %s, 18'%s(sC)); e('s_add_u32 s19, s19, s64')
    e('s_mul_i32 s64, s7, 9'); e('s_add_u32 s19, s19, s64'); e('s_mul_i32 s19, s19, 1152')
    e('s_mov_b32 s64, s6')
    e('s_lshl_b32 s69, s7, 12'); e('s_lshl_b32 s70, s7, 10'); e('s_add_u32 s65, s69, %d'%XW0)
    e('s_waitcnt lgkmcnt(0)')
    if DIAG==4: e('s_memrealtime s[74:75]')
    srd(sX,44,2359296); srd(sGW,56,1152)
    def issueX(h):
        if h==0: e('s_lshl_b32 s67, s64, 7'); e('s_add_u32 s67, s67, s18')
        e('s_mov_b32 m0, s65'); e('s_nop 0')
        for p in (2*h,2*h+1): e('buffer_load_dwordx4 %s, %s, s67 offen offset:%d lds'%(v(16+p),s(sX,4),p*1024))
        if h==1:
            e('s_add_u32 s64, s64, 1'); e('s_cmp_eq_u32 s64, 9'); e('s_cselect_b32 s64, 0, s64')
            e('s_add_u32 s65, s65, 8192'); e('s_sub_u32 s66, s65, 32768'); e('s_cmp_ge_u32 s65, %d'%(XW0+32768)); e('s_cselect_b32 s65, s66, s65')
    issueX(0); issueX(1)
    e('s_add_u32 m0, s70, %d'%GWL); e('s_cmp_eq_u32 s7, 0'); e('s_cselect_b32 exec_lo, -1, 0xff'); e('s_cselect_b32 exec_hi, -1, 0')
    e('buffer_load_dwordx4 v25, %s, s70 offen lds'%s(sGW,4))
    e('s_mov_b64 exec, -1')
    srd(sW2,54,5308416); srd(sWS,62,WS_BYTES); srd(sOUT,58,2359296); srd(sDBG,60,256)
    FC,FS,FN=112,120,128; GF=136; SEL=200; UO=208; MK=212; TR=216; PO=220; GG=224; L16=228; PL1=229; PL2=230; L0=231
    e('v_and_b32 v8, 15, v0'); e('v_lshrrev_b32 v9, 4, v0')
    e('v_mov_b32 %s, 0'%v(L0))
    e('s_lshl_b32 s71, s2, 1'); e('s_add_u32 s71, s71, s7'); e('s_lshl_b32 s71, s71, 2'); e('s_add_u32 s71, s71, %d'%FLU)
    e('s_or_b32 s14, %s, s7'%s(sC)); e('s_cmp_eq_u32 s14, 0'); e('s_cbranch_scc0 AX_NZ')
    for i in range(4): e('v_mov_b32 v%d, 0'%(56+i))
    e('s_lshl_b32 s48, %s, 12'%s(sJ)); e('s_add_u32 s48, s48, %d'%FLP); e('s_lshl_b32 s49, %s, 8'%s(sJ)); e('s_add_u32 s49, s49, %d'%FLU)
    for i in range(4): e('buffer_store_dwordx4 v[56:59], v25, %s, s48 offen offset:%d sc1'%(s(sWS,4),1024*i))
    e('s_mov_b64 exec, 0xffff')
    e('buffer_store_dwordx4 v[56:59], v25, %s, s49 offen sc1'%s(sWS,4))
    e('s_mov_b64 exec, -1')
    e('AX_NZ:')
    e('v_and_b32 v63, 7, v0'); e('v_lshlrev_b32 v63, 2, v63'); e('v_mov_b32 v254, 0')
    e('v_lshrrev_b32 v10, 1, v8'); e('v_xor_b32 v10, v10, v9'); e('v_lshlrev_b32 v10, 4, v10')
    e('v_lshl_add_u32 v20, v8, 7, v10'); e('v_add_u32 v20, %d, v20'%XW0); e('v_xor_b32 v21, 64, v20')
    e('v_mov_b32 v26, v20'); e('v_mov_b32 v27, v21'); e('v_add_u32 v28, s69, v20'); e('v_add_u32 v29, s69, v21')
    e('v_lshlrev_b32 v22, 4, v9'); e('v_add_u32 v22, %d, v22'%GWL); e('s_lshl_b32 s68, s6, 7'); e('v_add_u32 v23, s68, v22')
    e('s_lshl_b32 s44, s7, 11')
    ACC=64; TM=136; WA=176; RC=232
    for i in list(range(8))+list(range(16,24))+list(range(32,40)): e('v_mov_b32 %s, 0'%v(TM+i))
    for i in list(range(8,16))+list(range(24,32)): e('v_mov_b32 %s, 0'%v(ACC+i))
    e('s_sub_u32 s48, s6, 1'); e('s_cmp_eq_u32 s6, 0'); e('s_cselect_b32 s48, 8, s48'); e('s_lshl_b32 s48, s48, 6')
    e('v_lshlrev_b32 v11, 3, v9'); e('v_add_u32 v11, s48, v11'); e('v_cvt_f32_u32 v11, v11')
    e('s_lshl_b32 s49, %s, 5'%s(sJ)); e('s_lshl_b32 s50, s7, 4'); e('s_add_u32 s50, s50, s49'); e('s_lshl_b32 s49, %s, 2'%s(sJ)); e('s_add_u32 s49, s49, 256')
    for mix in range(2):
        if mix==0: e('v_add_u32 v12, s50, v8')
        else: e('v_and_b32 v12, 7, v8'); e('v_add_u32 v12, s49, v12')
        e('v_cvt_f32_u32 v12, v12'); e('v_mul_f32 v10, 0x%08x, v12'%f2u(1/9.)); e('v_mul_f32 v12, 0x%08x, v12'%f2u(1/576.)); e('v_mul_f32 v13, v12, v11')
        e('v_cos_f32 %s, v10'%v(RC+2*mix)); e('v_sin_f32 %s, v10'%v(RC+2*mix+1))
        if mix:
            e('v_cmp_gt_u32 vcc, 8, v8'); e('v_add_f32 v4, 0x3e800000, v13'); e('v_sub_f32 v5, 0, %s'%v(RC+3))
            e('v_cndmask_b32 v13, v4, v13, vcc'); e('v_cndmask_b32 %s, %s, v5, vcc'%(v(RC+3),v(RC+3)))
            e('v_cmp_eq_u32 vcc, 5, v8'); e('v_mov_b32 v4, 1.0'); e('v_mov_b32 v5, 0')
            e('v_cndmask_b32 %s, %s, v4, vcc'%(v(RC+2),v(RC+2))); e('v_cndmask_b32 %s, %s, v5, vcc'%(v(RC+3),v(RC+3)))
        for kp in range(2):
            for jp in range(4):
                for u in range(2):
                    e('v_fmamk_f32 %s, v12, 0x%08x, v13'%(v(30+u),f2u(32*kp+2*jp+u))); e('v_fract_f32 %s, %s'%(v(30+u),v(30+u)))
                e('v_cos_f32 v32, v30'); e('v_cos_f32 v33, v31')
                if mix==0:
                    e('v_sin_f32 v34, v30'); e('v_sin_f32 v35, v31')
                    e('v_cvt_pk_bf16_f32 %s, v32, v33'%v(WA+4*kp+jp)); e('v_cvt_pk_bf16_f32 %s, -v34, -v35'%v(WA+8+4*kp+jp))
                else:
                    e('s_nop 0'); e('v_cvt_pk_bf16_f32 %s, v32, v33'%v(WA+16+4*kp+jp))
    if PK:
        e('v_mov_b32 v60, %s'%v(RC+1)); e('v_mov_b32 v61, %s'%v(RC+1)); e('v_mov_b32 %s, %s'%(v(RC+1),v(RC)))
    global out
    save=out; parts=[]
    def begin():
        global out
        out=[]
    def end(): parts.append(out)
    begin()
    e('v_lshlrev_b32 v11, 2, v9'); e('v_cvt_f32_u32 v11, v11')
    for b in range(2):
        e('v_add_u32 v12, %d, v8'%(16*b)); e('v_cvt_f32_u32 v12, v12'); e('v_mul_f32 v12, 0x3d000000, v12'); e('v_mul_f32 v13, v12, v11')
        for jp in range(4):
            o=[(2*jp+u)%4+16*((2*jp+u)//4) for u in range(2)]
            for u in range(2): e('v_fmamk_f32 %s, v12, 0x%08x, v13'%(v(30+u),f2u(o[u])))
            e('v_cos_f32 v32, v30'); e('v_cos_f32 v33, v31'); e('v_sin_f32 v34, v30'); e('v_sin_f32 v35, v31')
            e('v_cvt_pk_bf16_f32 %s, v32, v33'%v(FC+4*b+jp)); e('v_cvt_pk_bf16_f32 %s, v34, v35'%v(FS+4*b+jp))
            e('v_xor_b32 %s, 0x80008000, %s'%(v(FN+4*b+jp),v(FS+4*b+jp)))
    end()
    for i in range(4):
        begin()
        e('s_lshr_b32 s48, %s, 2'%s(sJ)); e('s_lshl_b32 s48, s48, 1'); e('s_and_b32 s49, %s, 1'%s(sJ)); e('s_add_u32 s48, s48, s49')
        e('s_add_u32 s48, s48, %d'%i); e('s_and_b32 s48, s48, 3')
        e('v_lshlrev_b32 %s, 4, v0'%v(L16)); e('v_cvt_f32_u32 v11, v9')
        e('s_lshl_b32 s49, s48, 6'); e('s_add_u32 s49, s49, %d'%GL); e('v_lshlrev_b32 v13, 2, v8'); e('v_add_u32 %s, s49, v13'%v(GG+i))
        e('s_lshr_b32 s49, s48, 1'); e('s_and_b32 s50, s48, 1')
        e('s_lshl_b32 s51, s49, 12'); e('s_lshl_b32 s52, s50, 10'); e('s_add_u32 s51, s51, s52'); e('v_add_u32 %s, s51, %s'%(v(PO+i),v(L16)))
        e('s_lshl_b32 s49, s49, 5'); e('s_add_u32 s49, s49, s52'); e('s_add_u32 s49, s49, %s'%s(sC))
        e('v_lshlrev_b32 v5, 6, v8'); e('v_add_u32 v6, s49, v5')
        e('v_cvt_f32_u32 v5, v6'); e('v_mul_f32 v5, 0x3a000000, v5'); e('v_mul_f32 v13, v5, v11')
        e('s_movk_i32 s49, 1152'); e('v_lshlrev_b32 v4, 4, v9')
        e('v_mad_u32_u24 %s, v6, s49, v4'%v(TR+i))
        for k in range(4):
            for u in range(2):
                for h in range(2): e('v_fmamk_f32 %s, v5, 0x%08x, v13'%(v(30+h),f2u(8*k+4*u+32*h)))
                e('v_cos_f32 v32, v30'); e('v_sin_f32 v33, v30'); e('v_cos_f32 v34, v31'); e('v_sin_f32 v35, v31')
                e('v_cvt_pk_bf16_f32 %s, v32, v33'%v(GF+16*i+4*k+2*u)); e('v_cvt_pk_bf16_f32 %s, v34, v35'%v(GF+16*i+4*k+2*u+1))
        end()
    begin()
    e('v_bfe_u32 v4, v8, 1, 2'); e('v_cmp_eq_u32 vcc, v4, v9'); e('v_and_b32 v5, 1, v8'); e('v_lshrrev_b32 v7, 3, v8')
    e('v_mov_b32 v6, 0x3f80'); e('v_lshl_add_u32 v5, v7, 1, v5'); e('v_cndmask_b32 v6, 0, v6, vcc')
    for r in range(4):
        e('v_cmp_eq_u32 vcc, %d, v5'%r); e('s_nop 1'); e('v_cndmask_b32 %s, 0, v6, vcc'%v(SEL+r)); e('v_lshlrev_b32 %s, 16, %s'%(v(SEL+4+r),v(SEL+r)))
    e('v_and_b32 v4, 1, v0'); e('v_lshlrev_b32 v4, 3, v4'); e('s_lshl_b32 s49, s7, 2'); e('v_add_u32 v4, s49, v4'); e('v_bfe_u32 v5, v0, 1, 3'); e('v_lshl_add_u32 %s, v5, 7, v4'%v(PL1))
    e('v_sub_u32 v5, %s, v5'%s(sJ)); e('v_and_b32 v5, 7, v5'); e('v_add_u32 v254, 1, v5')
    e('v_and_b32 v4, 7, v0'); e('v_lshlrev_b32 v4, 7, v4'); e('s_lshr_b32 s49, %s, 1'%s(sJ)); e('s_lshl_b32 s49, s49, 2'); e('v_add_u32 %s, s49, v4'%v(PL2))
    e('s_sub_u32 s48, 32, %s'%s(sC)); e('s_and_b32 s48, s48, 31')
    e('s_movk_i32 s49, %d'%PR); e('v_mul_u32_u24 v12, s49, v9'); e('v_lshlrev_b32 v4, 4, v8')
    e('s_lshl_b32 s54, s15, 6'); e('s_lshl_b32 s49, s7, 5'); e('s_add_u32 s54, s54, s49')
    e('s_and_b32 s55, %s, 2'%s(sJ)); e('s_lshl_b32 s55, s55, 4'); e('s_add_u32 s55, s55, 512')
    e('s_mul_i32 s48, s48, %d'%TP); e('s_mul_i32 s50, %s, %d'%(s(sC),TP))
    e('v_add_u32 v5, v12, v4'); e('v_add_u32 v6, 256, v12'); e('v_sub_u32 v6, v6, v4')
    e('s_sub_u32 s49, 543, s54'); e('s_lshl_b32 s49, s49, 3'); e('s_add_u32 s49, s49, s48')
    e('s_lshl_b32 s51, s54, 3'); e('s_add_u32 s51, s51, s50')
    e('s_cmp_ge_u32 s54, 288'); e('s_cselect_b32 s49, s49, s51'); e('s_cselect_b64 vcc, -1, 0')
    e('v_cndmask_b32 v5, v5, v6, vcc'); e('v_add_u32 %s, s49, v5'%v(UO))
    e('s_sub_u32 s49, 575, s55'); e('s_lshl_b32 s49, s49, 3'); e('s_add_u32 s49, s49, s48')
    e('v_add_u32 v6, s49, v12'); e('v_sub_u32 %s, v6, v4'%v(UO+1))
    end()
    out=save
    NPRE=PRE
    out.extend(parts[0])
    later=[]
    XF=36
    def rotate(lo,hi,mix):
        if PK:
            for i in range(lo,hi,2):
                e('v_pk_mul_f32 %s, %s, %s'%(v(TM+i,2),v(RC,2),v(ACC+i,2))); e('v_pk_mul_f32 %s, %s, %s'%(v(TM+16+i,2),v(RC,2),v(ACC+16+i,2)))
                e('v_pk_fma_f32 %s, %s, %s, %s neg_lo:[1,0,0] neg_hi:[1,0,0]'%(v(TM+i,2),v(60,2),v(ACC+16+i,2),v(TM+i,2))); e('v_pk_fma_f32 %s, %s, %s, %s'%(v(TM+16+i,2),v(60,2),v(ACC+i,2),v(TM+16+i,2)))
        else:
            for i in range(lo,hi):
                e('v_mul_f32 %s, %s, %s'%(v(TM+i),v(RC),v(ACC+i))); e('v_mul_f32 %s, %s, %s'%(v(TM+16+i),v(RC),v(ACC+16+i)))
                e('v_fma_f32 %s, -%s, %s, %s'%(v(TM+i),v(RC+1),v(ACC+16+i),v(TM+i))); e('v_fmac_f32 %s, %s, %s'%(v(TM+16+i),v(RC+1),v(ACC+i)))
        if mix:
            for i in range(8): e('v_mul_f32 %s, %s, %s'%(v(TM+32+i),v(RC+2),v(ACC+32+i)))
            for i in range(8): e('v_fmac_f32_dpp %s, %s, %s row_ror:8 row_mask:0xf bank_mask:0xf'%(v(TM+32+i),v(ACC+32+i),v(RC+3)))
    e('s_mov_b32 s46, 0'); e('s_mov_b32 s47, 0')
    e('s_and_b32 s45, %s, %d'%(s(sC),XSTG)); e('s_mov_b32 s53, 1'); e('s_mov_b32 s51, 0')
    if XUP==3:
        for _ in range(3): issueX(0); issueX(1)
        e('s_mov_b32 s53, 4'); e('s_add_u32 s51, s45, 4'); e('s_cmp_ge_u32 s45, 2'); e('s_cselect_b32 s51, s45, s51')
    e('s_waitcnt vmcnt(%d)'%(4*XUP))
    e('s_cmp_eq_u32 s14, 0'); e('s_cbranch_scc0 AX_L')
    e('v_mov_b32 v255, 1'); e('s_lshl_b32 s48, %s, 2'%s(sJ)); e('s_mov_b64 exec, 1')
    e('buffer_store_dword v255, %s, %s, s48 offen sc1'%(v(L0),s(sDBG,4))); e('s_mov_b64 exec, -1')
    e('AX_L:')
    for kp in range(2):
        if TRACE:
            e('s_memtime s[96:97]'); e('s_lshl_b32 s95, s46, 1'); e('s_add_u32 m0, s95, %d'%(kp+1)); e('s_waitcnt lgkmcnt(0)'); e('v_writelane_b32 v252, s96, m0'); e('v_writelane_b32 v253, s92, m0')
        e('s_barrier')
        if DIAG in (2,6) and kp==0: e('s_cmp_eq_u32 s46, %d'%(0 if DIAG==2 else 2)); e('s_cbranch_scc0 DGN'); e('s_memrealtime s[74:75]'); e('s_waitcnt lgkmcnt(0)'); e('DGN:')
        for sg in range(4): e('ds_read_b128 %s, %s offset:%d'%(v(XF+4*sg,4),v(26+kp),sg*2048))
        for sg in range(2): e('ds_read_b128 %s, %s offset:%d'%(v(XF+16+4*sg,4),v(28+kp),sg*2048))
        e('s_mov_b32 exec_lo, 0x00200020'); e('s_mov_b32 exec_hi, 0x00200020')
        e('ds_read_b128 %s, v23 offset:%d'%(v(WA+16+4*kp,4),64*kp))
        e('s_mov_b64 exec, -1')
        e('s_sub_u32 s51, s51, 1'); e('s_cbranch_scc1 AX_B%d'%kp)
        e('AX_S%d:'%kp)
        def rot(lo,hi,mix):
            L=[]
            for i in range(lo,hi):
                L+=['v_mul_f32 %s, %s, %s'%(v(TM+i),v(RC),v(ACC+i)),'v_mul_f32 %s, %s, %s'%(v(TM+16+i),v(RC),v(ACC+16+i)),
                    'v_fma_f32 %s, -%s, %s, %s'%(v(TM+i),v(RC+1),v(ACC+16+i),v(TM+i)),'v_fmac_f32 %s, %s, %s'%(v(TM+16+i),v(RC+1),v(ACC+i))]
            if mix:
                L+=['v_mul_f32 %s, %s, %s'%(v(TM+32+i),v(RC+2),v(ACC+32+i)) for i in range(8)]
                L+=['v_fmac_f32_dpp %s, %s, %s row_ror:8 row_mask:0xf bank_mask:0xf'%(v(TM+32+i),v(ACC+32+i),v(RC+3)) for i in range(8)]
            return L
        M=lambda t,sg: mf(ACC+16*t+4*sg, XF+4*sg, WA+8*t+4*kp, TM+16*t+4*sg if kp==0 else None)
        X=lambda sg: mf(ACC+32+4*sg, XF+16+4*sg, WA+16+4*kp, TM+32+4*sg if kp==0 else None)
        if kp==0:
            R=rot(8,16,False)
            for x in R[:8]: e(x)
            e('s_waitcnt lgkmcnt(0)')
            R=R[8:]
            for m in (M(0,0),M(1,0),M(0,1),M(1,1),X(0),X(1)):
                e(m)
                for x in R[:4]: e(x)
                R=R[4:]
            assert not R
            for m in (M(0,2),M(1,2),M(0,3),M(1,3)): e(m)
        else:
            A_=['s_add_u32 s47, s47, 8192','s_and_b32 s47, s47, 32767','s_add_u32 s66, s47, s69','s_add_u32 s68, s68, 128','s_cmp_eq_u32 s68, 1152','s_cselect_b32 s68, 0, s68',
                'v_add_u32 v26, s47, v20','v_add_u32 v27, s47, v21','v_add_u32 v28, s66, v20','v_add_u32 v29, s66, v21','v_add_u32 v23, s68, v22']
            for x in A_: e(x)
            e('s_waitcnt lgkmcnt(0)')
            for m in (M(0,0),M(1,0),M(0,1),M(1,1),X(0),X(1)): e(m)
            e('s_nop 3')
            R=rot(0,8,True)
            for m in (M(0,2),M(1,2),M(0,3),M(1,3)):
                for x in R[:4]: e(x)
                R=R[4:]
                e(m)
            e('s_cmp_eq_u32 s46, 8'); e('s_cbranch_scc1 AX_D')
            for x in R: e(x)
    if TRACE: e('s_memtime s[92:93]')
    e('s_lshr_b32 s66, s45, 1'); e('s_xor_b32 s66, s66, s46'); e('s_add_u32 s46, s46, 1')
    e('s_bitcmp1_b32 s66, 0'); e('s_cbranch_scc1 AX_W0')
    e('s_cmp_eq_u32 s46, 1'); e('s_cbranch_scc0 AX_L')
    e('s_waitcnt vmcnt(8)'); e('s_branch AX_L')
    e('AX_W0:')
    e('s_waitcnt vmcnt(0)'); e('s_branch AX_L')
    for kp in range(2):
        e('AX_B%d:'%kp)
        e('s_cmp_ge_u32 s46, 5'); e('s_cselect_b32 s51, 100, 3')
        e('s_add_u32 s52, s46, 3'); e('s_min_u32 s52, s52, 8')
        e('s_cmp_eq_u32 s46, 0'); e('s_cbranch_scc0 AX_C%d'%kp)
        if kp==0:
            e('s_lshr_b32 s52, s45, 1'); e('s_add_u32 s52, s52, 1')
            e('s_sub_u32 s51, s45, 1'); e('s_cmp_ge_u32 s45, 2'); e('s_cselect_b32 s51, s51, 0')
        else:
            e('s_add_u32 s51, s45, 2')
        e('AX_C%d:'%kp)
        issueX(0); issueX(1)
        e('s_add_u32 s53, s53, 1'); e('s_cmp_le_u32 s53, s52'); e('s_cbranch_scc1 AX_C%d'%kp)
        e('s_cmp_eq_u32 s46, 0'); e('s_cbranch_scc1 AX_S%d'%kp)
        e('v_add_u32 v4, %s, v62'%s(sJ)); e('v_and_b32 v4, 7, v4'); e('v_cmp_eq_u32 vcc, 0, v62'); e('v_mov_b32 v5, 8'); e('v_add_u32 v62, 3, v62')
        e('v_cndmask_b32 v4, v4, v5, vcc'); e('v_lshl_add_u32 v4, v4, 7, v24')
        e('s_mov_b32 exec_lo, 0x7ffffff'); e('s_mov_b32 exec_hi, %s'%('0x7ffffff' if T2 else '0'))
        e('buffer_load_dword v15, v4, %s, s19 offen'%s(sW2,4))
        e('s_mov_b64 exec, -1')
        e('s_cmp_ge_u32 s46, 5'); e('s_cbranch_scc0 AX_S%d'%kp)
        e('buffer_load_dword v254, v63, %s, 0 offen sc1'%s(sDBG,4))
        if MT:
            e('v_cmp_le_u32 vcc, 3, v0'); e('v_lshlrev_b32 v4, 7, v0'); e('v_add_u32 v5, %d, v4'%(TP-384)); e('v_cndmask_b32 v4, v4, v5, vcc')
            e('s_lshl_b32 s48, %s, 1'%s(sJ)); e('s_add_u32 s48, s48, s7'); e('s_mul_i32 s48, s48, %d'%(2*TP)); e('s_mul_i32 s49, %s, %d'%(s(sC),PR))
            e('s_add_u32 s48, s48, s49'); e('s_add_u32 s48, s48, %d'%(U_OFF+2048))
            e('s_mov_b64 exec, 63'); e('buffer_load_dword v15, v4, %s, s48 offen sc1'%s(sWS,4)); e('s_mov_b64 exec, -1')
        e('s_branch AX_S%d'%kp)
    e('AX_D:')
    e('s_barrier')
    if DIAG==5: e('s_memrealtime s[74:75]'); e('s_waitcnt lgkmcnt(0)')
    e('s_setprio %d'%AP2); e('s_nop 3')
    st(1)
    e('s_mov_b32 s16, %d'%(4*TP)); e('v_lshlrev_b32 v12, 3, v8'); e('v_mad_u32_u24 v12, s16, v9, v12')
    e('s_mul_i32 s16, %s, %d'%(s(sC),PR)); e('s_add_u32 s16, s16, %d'%U_OFF)
    e('s_lshl_b32 s17, %s, 5'%s(sJ)); e('s_add_u32 s17, s17, s16'); e('s_add_u32 s17, s17, 2048')
    e('s_lshl_b32 s48, %s, 8'%s(sJ)); e('s_add_u32 s16, s16, s48'); e('s_lshl_b32 s48, s7, 7'); e('s_add_u32 s16, s16, s48')
    FR=16
    def pack(dst,src,n=8):
        for h in range(n): e('v_cvt_pk_bf16_f32 %s, %s, %s'%(v(dst+h),v(src+2*h),v(src+2*h+1)))
    def stageA(D,FR):
        for sh in range(2):
            for be in range(2):
                d=D+16*sh+8*be; a=FR+4*sh; b=FR+8+4*sh
                mfma(d,FC+4*be,a,'0'); mfma(d+4,FC+4*be,b,'0'); mfma(d,FS+4*be,b); mfma(d+4,FN+4*be,a)
    def ustore(D,O,so):
        for be in range(2):
            for r in range(4):
                o=O+8*be+2*r
                for sh in range(2): e('v_cvt_pk_bf16_f32 %s, %s, %s'%(v(o+sh),v(D+16*sh+8*be+r),v(D+16*sh+8*be+4+r)))
                e('s_add_u32 s48, %s, %d'%(so,(16*be+r)*TP)); e('buffer_store_dwordx2 %s, v12, %s, s48 offen sc1'%(v(o,2),s(sWS,4)))
    MF=136
    e('v_mov_b32 v255, v63')
    e('v_add_u32 v14, %d, v25'%MX)
    pack(MF,ACC+32,4)
    e('s_lshl_b32 s66, s7, 7'); e('s_add_u32 s66, s66, %d'%GL); e('v_lshlrev_b32 v13, 4, v9'); e('v_add_u32 v13, s66, v13')
    e('s_mov_b32 exec_lo, 0x00200020'); e('s_mov_b32 exec_hi, 0x00200020')
    for sg in range(2): e('ds_write_b128 v13, %s offset:%d'%(v(ACC+32+4*sg,4),64*sg))
    e('s_mov_b64 exec, -1')
    e('s_cmp_eq_u32 s7, 1'); e('s_cbranch_scc0 AX_A0'); e('ds_write_b128 v14, %s'%v(MF,4)); e('AX_A0:')
    pack(FR,ACC); pack(FR+8,ACC+16); e('s_nop 1')
    stageA(32,FR)
    e('s_nop 7')
    ustore(32,236,'s16')
    e('s_mov_b32 s47, 0')
    e('AX_V0:')
    e('v_cmp_eq_u32 vcc, 0, v254'); e('s_cbranch_vccz AX_V1')
    e('s_add_u32 s47, s47, 1'); e('s_cmp_gt_u32 s47, %d'%SPINMAX); e('s_cbranch_scc1 AX_V1')
    e('s_sleep 8'); e('buffer_load_dword v254, v255, %s, 0 offen sc1'%s(sDBG,4)); e('s_waitcnt vmcnt(0)'); e('s_branch AX_V0')
    e('AX_V1:')
    e('s_waitcnt lgkmcnt(0)')
    e('s_barrier')
    e('s_barrier')
    if E3A: e('s_barrier')
    if DIAG==3: e('s_memrealtime s[74:75]'); e('s_waitcnt lgkmcnt(0)')
    e('s_cmp_eq_u32 s7, 0'); e('s_cbranch_scc0 AX_A2')
    e('ds_read_b128 %s, v14'%v(MF+4,4)); e('s_waitcnt lgkmcnt(0)')
    for h in range(8): e('v_mov_b32_dpp %s, %s row_ror:8 row_mask:0xf bank_mask:0xf'%(v(MF+8+h),v(MF+h)))
    e('s_nop 1')
    stageA(64,MF)
    e('s_nop 7')
    e('s_mov_b32 s49, 0x000f000f'); e('s_cmp_eq_u32 %s, 7'%s(sJ)); e('s_cselect_b32 s49, 0x001f001f, s49')
    e('s_mov_b32 exec_lo, s49'); e('s_mov_b32 exec_hi, s49')
    ustore(64,96,'s17')
    e('s_mov_b64 exec, -1')
    e('AX_A2:')
    out.extend(parts[1])
    e('s_waitcnt vmcnt(0)'); e('v_mov_b32 v10, 1')
    e('s_mov_b64 exec, 1'); e('buffer_store_dword v10, %s, %s, s71 offen sc1'%(v(L0),s(sWS,4))); e('s_mov_b64 exec, -1')
    for k in (2,3,4,5): out.extend(parts[k])
    for i in range(4): e('ds_read_b32 %s, %s'%(v(GG+i),v(GG+i)))
    e('s_lshl_b32 s65, %s, 10'%s(sC)); e('s_add_u32 s65, s65, %d'%FLP)
    e('s_waitcnt lgkmcnt(0)')
    for i in range(4):
        g=GG+i
        e('v_mul_f32 %s, 0xbfb8aa3b, %s'%(v(g),v(g))); e('v_exp_f32 %s, %s'%(v(g),v(g))); e('s_nop 0')
        e('v_add_f32 %s, 1.0, %s'%(v(g),v(g))); e('v_rcp_f32 %s, %s'%(v(g),v(g)))
    if NORED:
        for i in range(2,7): st(i)
        st_flush(7,0); e('s_endpgm')
    e('s_mov_b32 s47, 0')
    def gpoll(load,cmp,slp):
        L=lab('GP'); e('s_branch %sf'%L); e(L+':')
        if slp: e('s_sleep %d'%slp)
        e(L+'f:')
        for x in load: e(x)
        e('s_add_u32 s47, s47, 1'); e('s_waitcnt vmcnt(0)')
        for x in cmp: e(x)
        e('s_cmp_gt_u32 s47, %d'%SPINMAX); e('s_cbranch_scc1 %sx'%L); e('s_cbranch_vccnz '+L); e(L+'x:')
    e('s_lshl_b32 s16, s7, 8'); e('s_add_u32 s16, s16, %d'%CNS)
    e('v_and_b32 v15, 1, v0'); e('v_mul_u32_u24 v15, 516, v15'); e('v_add_u32 v15, s16, v15')
    def pace(n):
        L=lab('PC'); e(L+':'); e('s_sleep 3'); e('ds_read_b32 v5, v15')
        e('s_add_u32 s99, s99, 1'); e('s_cmp_gt_u32 s99, 0x100000'); e('s_cbranch_scc1 K_END'); e('s_waitcnt lgkmcnt(0)')
        e('v_cmp_gt_u32 vcc, %s, v5'%(n if isinstance(n,str) else min(n,38))); e('s_cbranch_vccnz '+L)
    e('s_and_b32 s16, %s, %d'%(s(sC),USTG)); e('s_add_u32 s16, s16, %d'%(20+UPACE))
    pace('s16')
    e('s_setprio %d'%AP3)
    e('s_mov_b32 s16, %d'%FLU)
    gpoll(['buffer_load_dwordx4 v[96:99], %s, %s, s16 offen sc1'%(v(L16),s(sWS,4)),'buffer_load_dwordx4 v[100:103], %s, %s, s16 offen offset:1024 sc1'%(v(L16),s(sWS,4))],
          ['v_min3_u32 v5, v96, v97, v98','v_min3_u32 v5, v5, v99, v100','v_min3_u32 v5, v5, v101, v102','v_min_u32 v5, v5, v103','v_cmp_eq_u32 vcc, 0, v5'],USLP)
    st(2)
    UF=16; YA=80; SP=152
    def uloads(n,dst):
        for k in range(4):
            for u in range(2):
                e('s_mov_b32 s17, %d'%(U_OFF+(8*k+4*u)*PR))
                e('buffer_load_dwordx4 %s, %s, %s, s17 offen sc1'%(v(dst+8*k+4*u,4),v(UO+n),s(sWS,4)))
    def ufix(dst):
        for k in range(4):
            for h in range(2): e('v_swap_b32 %s, %s'%(v(dst+8*k+2+h),v(dst+8*k+4+h)))
    def uneg(dst):
        for i in range(32): e('v_xor_b32 %s, 0x80000000, %s'%(v(dst+i),v(dst+i)))
    def fin(y,p,og,o,vaddr,soff):
        for tb in range(2):
            for r in range(4): e('v_fma_f32 %s, %s, %s, %s'%(v(p[tb]+r),v(og),v(p[tb]+r),v(y[tb]+r)))
        for r in range(4): e('v_cvt_pk_bf16_f32 %s, %s, %s'%(v(o+r),v(p[0]+r),v(p[1]+r)))
        e('buffer_store_dwordx4 %s, %s, %s, %s offen%s'%(v(o,4),v(vaddr),s(sOUT,4),soff,[' ',' sc1',' nt'][OSC]))
    uloads(0,UF)
    e('s_cmp_eq_u32 s7, 1'); e('s_cbranch_scc0 AX_U')
    uloads(1,UF+32)
    gpoll(['buffer_load_dword v5, %s, %s, s65 offen sc1'%(v(PL2),s(sWS,4))],['v_cmp_gt_u32 vcc, 1, v5'],10)
    e('s_mul_i32 s16, %s, %d'%(s(sC),8*73728)); e('s_lshl_b32 s17, %s, 10'%s(sJ)); e('s_add_u32 s16, s16, s17'); e('s_add_u32 s16, s16, 65536')
    for jj in range(8):
        e('buffer_load_dwordx4 %s, %s, %s, s16 offen sc1'%(v(80+4*jj,4),v(L16),s(sWS,4)))
        if jj<7: e('s_add_u32 s16, s16, 73728')
    ufix(UF+32); uneg(UF+32)
    e('s_nop 1')
    for k in range(4):
        for tb in range(2): mfma(112+4*(1-tb), UF+32+8*k+4*tb, GF+4*k, '0' if k==0 else None)
    e('s_waitcnt vmcnt(0)')
    for jj in range(8):
        for tb in range(2): mfma(120+4*tb, SEL+4*tb, 80+4*jj, '0' if jj==0 else None)
    for r in range(8): e('v_mul_f32 %s, %s, %s'%(v(112+r),v(GG),v(112+r)))
    e('v_sub_f32 v14, 1.0, %s'%v(GG)); e('s_lshl_b32 s16, s55, 1')
    fin((112,116),(120,124),14,248,TR,'s16')
    e('s_branch AX_U2')
    e('AX_U:')
    e('s_waitcnt vmcnt(0)')
    e('AX_U2:')
    ufix(UF)
    e('s_cmp_ge_u32 s54, 288'); e('s_cbranch_scc0 AX_U3')
    uneg(UF)
    for k in range(4):
        for h in range(4): e('v_swap_b32 %s, %s'%(v(UF+8*k+h),v(UF+8*k+4+h)))
    e('AX_U3:')
    e('s_nop 1')
    for k in range(4):
        for tb in range(2):
            for i in range(4): mfma(YA+16*tb+4*i, UF+8*k+4*tb, GF+16*i+4*k, '0' if k==0 else None)
    st(3)
    if '--exitc8' in A:
        for i in range(4,7): st(i)
        st_flush(7,0); e('s_endpgm')
    e('s_mul_i32 s18, %s, %d'%(s(sC),8*73728)); e('s_lshl_b32 s17, s15, 13'); e('s_add_u32 s18, s18, s17'); e('s_add_u32 s18, s18, s44')
    def acc(buf,first):
        for i in range(4):
            for tb in range(2): mfma(SP+16*tb+4*i, SEL+4*tb, buf+4*i, '0' if first else None)
    BUF=lambda i: 16+16*(i%4)
    e('s_mov_b32 s66, 0')
    def addr(i,so,sm):
        e('s_sub_u32 %s, %s, %d'%(so,s(sJ),i)); e('s_and_b32 %s, %s, 7'%(so,so))
        e('s_lshl_b32 %s, %s, 1'%(sm,so)); e('s_lshl_b32 %s, 3, %s'%(sm,sm))
        e('s_mul_i32 %s, %s, 73728'%(so,so)); e('s_add_u32 %s, %s, s18'%(so,so))
    def pollbits(i,sm,sx,slp):
        e('s_branch AX_F%d'%i); e('AX_R%d:'%i)
        if slp: e('s_sleep %d'%slp)
        e('AX_F%d:'%i)
        e('buffer_load_dword v5, %s, %s, s65 offen sc1'%(v(PL1),s(sWS,4))); e('s_add_u32 s47, s47, 1'); e('s_waitcnt vmcnt(0)')
        e('v_cmp_le_u32 vcc, v254, v5'); e('s_cmp_gt_u32 s47, %d'%SPINMAX); e('s_cbranch_scc1 AX_G%d'%i)
        e('s_mov_b32 s66, vcc_lo'); e('s_mov_b32 exec_lo, %s'%sx); e('s_mov_b32 exec_hi, 0')
        e('s_and_b32 s19, s66, %s'%sm); e('s_cmp_eq_u32 s19, %s'%sm); e('s_cbranch_scc0 AX_R%d'%i)
    def loads(i,so):
        for u in range(4): e('buffer_load_dwordx4 %s, %s, %s, %s offen sc1'%(v(BUF(i)+4*u,4),v(PO+u),s(sWS,4),so))
    addr(7,'s48','s49')
    e('s_add_u32 s16, s44, %d'%QH)
    for u in range(4): e('v_add_u32 %s, s16, %s'%(v(128+u),v(PO+u)))
    for i in range(1,7):
        addr(i,'s16','s17')
        e('s_and_b32 s19, s66, s17'); e('s_cmp_eq_u32 s19, s17'); e('s_cbranch_scc1 AX_G%d'%i)
        pace(max(20+2*(i+2)+PPACE-FEARLY, LATE if i>L1 else 0))
        if i==6: e('s_or_b32 s50, s17, s49'); e('s_mov_b32 exec_lo, s50'); e('s_mov_b32 exec_hi, 0')
        pollbits(i,'s17','s50' if i==6 else 's17', 0 if i==6 else PSLP)
        e('AX_G%d:'%i)
        e('s_mov_b64 exec, -1')
        loads(i,'s16')
        if 3<=i<=6: e('s_waitcnt vmcnt(8)'); acc(BUF(i-2), i==3)
        if i==1:
            for sl in range(4):
                for tb in range(2):
                    for r in range(4): e('v_mul_f32 %s, %s, %s'%(v(YA+16*tb+4*sl+r),v(GG+sl),v(YA+16*tb+4*sl+r)))
                e('v_sub_f32 %s, 1.0, %s'%(v(GG+sl),v(GG+sl)))
    e('s_and_b32 s19, s66, s49'); e('s_cmp_eq_u32 s19, s49'); e('s_cbranch_scc1 AX_G7')
    e('s_mov_b32 exec_lo, s49'); e('s_mov_b32 exec_hi, 0')
    pollbits(7,'s49','s49',0)
    e('AX_G7:')
    e('s_mov_b64 exec, -1')
    loads(7,'s48')
    e('s_waitcnt vmcnt(8)'); acc(BUF(5),False)
    lds_wait(15,5,'39')
    for u in range(4): e('ds_read_b128 %s, %s'%(v(BUF(4)+4*u,4),v(128+u)))
    e('s_waitcnt lgkmcnt(0)'); acc(BUF(4),False)
    st(4)
    e('s_waitcnt vmcnt(4)'); acc(BUF(6),False)
    st(5)
    e('s_lshl_b32 s16, s54, 1')
    for sl in range(4):
        e('s_waitcnt vmcnt(%d)'%(3-sl))
        for tb in range(2): mfma(SP+16*tb+4*sl, SEL+4*tb, BUF(7)+4*sl)
    e('s_nop 3')
    for sl in range(4): fin((YA+4*sl,YA+16+4*sl),(SP+4*sl,SP+16+4*sl),GG+sl,232+4*sl,TR+sl,'s16')
    if STAMP:
        e('s_waitcnt vmcnt(0)'); st(6); st_flush(7,0)
        if TRACE: trace_flush(252,253)
    if DIAG:
        e('s_waitcnt vmcnt(0)'); e('s_memrealtime s[76:77]'); e('s_waitcnt lgkmcnt(0)')
        if DIAG==1: e('s_mov_b32 s74, s76')
        e('s_sub_u32 s16, s74, s72')
        if DIAG in (2,6): e('s_lshl_b32 s16, s16, 2')
        if DIAG==4: e('s_lshl_b32 s16, s16, 3')
        e('DG:'); e('s_memrealtime s[78:79]'); e('s_waitcnt lgkmcnt(0)'); e('s_sub_u32 s17, s78, s76'); e('s_cmp_lt_u32 s17, s16'); e('s_cbranch_scc1 DG')
    e('s_endpgm')
    for n,k in enumerate(later):
        e('AX_SL%d:'%n); out.extend(parts[k]); e('s_branch AX_SR')

def main():
    global INMAIN
    e('K_MAIN:')
    ACC=96; AF=16; XB=56
    T=200
    e('v_lshlrev_b32 v7, 2, v0'); e('s_lshl_b32 s16, %s, 8'%s(sWV)); e('s_add_u32 s16, s16, %d'%LND); e('v_add_u32 v3, s16, v7'); e('v_mov_b32 v8, 0')
    for i in range(3): e('ds_write_b32 v3, v8 offset:%d'%(1024*i))
    e('v_add_u32 v13, 1024, v3')
    e('v_and_b32 v3, 1, v0'); e('v_mul_u32_u24 v3, 260, v3'); e('v_add_u32 v14, %d, v3'%LND)
    e('v_mov_b32 v5, 0')
    e('v_and_b32 v200, 15, v0'); e('v_lshrrev_b32 v201, 4, v0')
    e('s_movk_i32 s17, 1152')
    e('v_lshrrev_b32 v202, 2, v200'); e('v_and_b32 v203, 3, v0')
    e('v_lshl_add_u32 v204, v201, 3, v202'); e('v_mul_u32_u24 v204, s17, v204'); e('v_lshl_add_u32 v204, v203, 3, v204')
    e('v_lshrrev_b32 v205, 1, v202'); e('v_and_b32 v7, 1, v201'); e('v_lshl_add_u32 v205, v7, 1, v205')
    e('s_mul_i32 s18, %s, %d'%(s(sWV),NA)); e('s_cmp_eq_u32 %s, 3'%s(sWV)); e('s_cselect_b32 s18, %d, s18'%(36-NB))
    for i in range(4):
        e('s_add_u32 s16, s18, %d'%i); e('s_and_b32 s17, s16, 3'); e('s_lshr_b32 s16, s16, 2'); e('s_lshl_b32 s16, s16, 7')
        e('v_xor_b32 v7, s17, v205'); e('v_lshl_add_u32 v7, v7, 5, v204'); e('v_add_u32 %s, s16, v7'%v(88+i)); e('v_mov_b32 %s, %s'%(v(92+i),v(88+i)))
    e('v_lshrrev_b32 v7, 1, v200'); e('v_xor_b32 v7, v7, v201'); e('v_lshlrev_b32 v7, 4, v7')
    e('v_lshl_add_u32 v1, v200, 7, v7'); e('v_add_u32 v1, %d, v1'%XW0); e('s_lshl_b32 s16, s98, 6'); e('v_xor_b32 v1, s16, v1'); e('v_xor_b32 v2, 64, v1')
    e('v_mov_b32 v3, v1'); e('v_mov_b32 v4, v2')
    e('v_lshlrev_b32 v12, 4, v0')
    e('s_lshr_b32 s16, %s, 1'%s(sWV)); e('s_lshl_b32 s16, s16, 11'); e('s_add_u32 s16, s16, %d'%HB); e('v_add_u32 v9, s16, v12')
    e('v_lshl_add_u32 v204, v201, 2, v202'); e('v_bfe_u32 v205, v204, 1, 2'); e('v_lshlrev_b32 v204, 7, v204'); e('v_lshl_add_u32 v204, v203, 3, v204')
    e('s_and_b32 s16, %s, 1'%s(sWV)); e('s_lshl_b32 s16, s16, 1')
    for tb in range(2):
        e('s_add_u32 s17, s16, %d'%tb); e('v_xor_b32 v7, s17, v205'); e('v_lshl_add_u32 %s, v7, 5, v204'%v(10+tb))
    def zero(lo,hi):
        if opt('m64',1):
            for i in range(lo,hi,2): e('v_mov_b64 %s, 0'%v(i,2))
        else:
            for i in range(lo,hi): e('v_mov_b32 %s, 0'%v(i))
    zero(ACC,ACC+16*NB); zero(AF+4*(NB-3),AF+4*NA); zero(XB+16,XB+32)
    e('s_waitcnt lgkmcnt(0)')
    srd(sWS,62,WS_BYTES)
    if TW:
        srd(sOUT,58,2359296); srd(sW2,54,5308416)
        e('s_cmp_eq_u32 %s, 2'%s(sWV)); e('s_cbranch_scc0 M_TW')
        G=TW
        e('v_lshlrev_b32 v7, %d, v0'%(20 if TW==1 else 16))
        e('s_mov_b32 s16, %d'%U_OFF); e('s_mov_b64 exec, %s'%('0x1f' if TW==1 else '-1')); e('buffer_load_dword v15, v7, %s, s16 offen'%s(sWS,4))
        e('s_mov_b64 exec, %s'%('7' if TW==1 else '-1')); e('buffer_load_dword v15, v7, %s, 0 offen'%s(sOUT,4))
        e('v_lshlrev_b32 v7, %d, v0'%(19 if TW==1 else 16)); e('s_mov_b64 exec, %s'%('3' if TW==1 else '0x3ff'))
        e('s_mul_i32 s16, %s, %d'%(s(sC),8*73728)); e('buffer_load_dword v15, v7, %s, s16 offen'%s(sWS,4))
        e('s_mul_i32 s16, %s, %d'%(s(sJ),576*1152)); e('buffer_load_dword v15, v7, %s, s16 offen'%s(sW2,4))
        e('s_mov_b64 exec, -1')
        e('M_TW:')
    e('s_lshl_b32 s16, s18, 11'); e('s_add_u32 s16, s16, %d'%HB); e('v_add_u32 v8, s16, v12')
    e('s_mov_b32 s64, 0'); e('s_mov_b32 s65, 0'); e('s_mov_b32 s66, 1')
    INMAIN=True
    if MPRIO: e('s_setprio 3')
    spins=[]
    def check(seq,thr,vaddr=109):
        L=lab('SP'); R=L+'R'
        seq.append(('need',['F'])); seq.append(('i','v_cmp_gt_u32 vcc, %s, v110'%thr)); seq.append(('i','s_cbranch_vccnz '+L)); seq.append(('i',R+':'))
        spins.append((L,R,thr,vaddr))
    def conv(u,sg):
        a=ACC+32*u+4*sg; b=a+16
        if RM==1:
            L=[]
            for d,x in ((a,a),(a+1,a+2),(a+2,b),(a+3,b+2)):
                L+=['v_max_f32 %s, 0, %s'%(v(x),v(x)),'v_max_f32 %s, 0, %s'%(v(x+1),v(x+1)),'v_cvt_pk_bf16_f32 %s, %s, %s'%(v(d),v(x),v(x+1))]
            return L+['ds_write_b128 v8, %s offset:%d'%(v(a,4),u*4096+sg*1024)]
        if RM==2:
            return ['v_cvt_pk_bf16_f32 %s, %s, %s'%(v(d),v(x),v(x+1)) for d,x in ((a,a),(a+1,a+2),(a+2,b),(a+3,b+2))]+['s_nop 0','ds_write_b128 v8, %s offset:%d'%(v(a,4),u*4096+sg*1024)]
        if RM==3:
            return ['v_cvt_pk_bf16_f32 %s, %s, %s'%(v(d),v(x),v(x+1)) for d,x in ((a,a),(a+1,a+2),(a+2,b),(a+3,b+2))]+['v_pk_max_i16 %s, %s, 0'%(v(a+k),v(a+k)) for k in range(4)]+['s_nop 0']
        return ['v_cvt_pk_bf16_f32 %s, %s, %s'%(v(a),v(a),v(a+1)),'v_cvt_pk_bf16_f32 %s, %s, %s'%(v(a+1),v(a+2),v(a+3)),
                'v_cvt_pk_bf16_f32 %s, %s, %s'%(v(a+2),v(b),v(b+1)),'v_cvt_pk_bf16_f32 %s, %s, %s'%(v(a+3),v(b+2),v(b+3))]+['v_pk_max_i16 %s, %s, 0'%(v(a+k),v(a+k)) for k in range(4)]+[
                'ds_write_b128 v8, %s offset:%d'%(v(a,4),u*4096+sg*1024)]
    def step1(NT,p,last=False):
        seq=[('i','s_barrier')]
        R=[('A',0,0),('A',0,1)]+[('X',p,sg) for sg in range(4)]+[('A',t,r) for t in range(1,NT) for r in range(2)]
        extra=[]
        if not last:
            extra=['s_add_u32 s64, s64, %d'%SLOT,'s_cmp_eq_u32 s64, %d'%(3*SLOT),'s_cselect_b32 s64, 0, s64','s_add_u32 s66, s66, 1']+['v_add_u32 %s, s64, %s'%(v(92+i),v(88+i)) for i in range(4)]
            if p==1: extra+=['s_add_u32 s65, s65, 8192','s_and_b32 s65, s65, 32767','v_add_u32 v3, s65, v1','v_add_u32 v4, s65, v2']
            else: extra+=['s_cmp_eq_u32 s66, 18']
        cv=[]; nq=0
        ng=4*(NT+3) if last else 4*NT
        eb=len(R)+5
        def pop(n,ok):
            for _ in range(n):
                if cv and (ok or not cv[0].startswith('ds_')):
                    x=cv.pop(0)
                    seq.append(('lds','H',x) if x.startswith('ds_') else ('i',x))
        for g in range(ng):
            i,sg=divmod(g,4)
            if g<len(R):
                k,a,b=R[g]
                if k=='A': seq.append(('lds',R[g],'ds_read_b64_tr_b16 %s, %s offset:%d'%(v(AF+4*a+2*b,2),v(92+a%4),128*(a//4)+4608*b)))
                else: seq.append(('lds',R[g],'ds_read_b128 %s, %s offset:%d'%(v(XB+16*p+4*b,4),v(3+p),2048*b)))
            elif extra: seq.append(('i',extra.pop(0)))
            if last:
                if g==eb: seq.append(('need',[('A',NT-1,1)])); seq.append(('i','s_barrier'))
                if sg==0 and i>=6 and i%2==0:
                    cv+=[x for q in range(4) for x in conv(nq,q)]; nq+=1
                pop(CPG,g>=eb)
            if i<3: t,xb=NT-3+i,1-p
            else: t,xb=i-3,p
            seq.append(('need',[('A',t,0),('A',t,1),('X',xb,sg)]))
            seq.append(('i',mf(ACC+16*t+4*sg, AF+4*t, XB+16*xb+4*sg)))
        assert not extra
        if not last: seq.append(('need',[('A',NT-1,1)]))
        if last:
            assert len(cv)>=9
            while nq<NT//2:
                cv+=[x for q in range(4) for x in conv(nq,q)]; nq+=1
            pop(len(cv),True)
        return seq
    def phase1(NT,nm):
        s0=step1(NT,0); s1=step1(NT,1)
        s0e=s0
        if STAMP: s0e=s0[:1]+[('i','s_cmp_eq_u32 s66, 1'),('i','s_cbranch_scc0 %sNS'%nm),('i','s_memrealtime s[74:75]'),('i','s_memtime s[88:89]'),('i','s_waitcnt lgkmcnt(0)'),('i',nm+'NS:')]+s0[1:]
        e(nm+'L:')
        stream(s0e+[('i','s_cbranch_scc1 %sX'%nm)]+s1+[('i','s_branch %sL'%nm)],True)
        e(nm+'X:')
        stream(step1(NT,1,True),False,pre=s1+s0)
    e('s_cmp_ge_u32 %s, 2'%s(sWV)); e('s_cbranch_scc1 MBL')
    zero(ACC+16*NB,ACC+16*NA)
    phase1(NA,'MA')
    e('s_branch M1_J')
    phase1(NB,'MB')
    e('M1_J:'); e('s_waitcnt vmcnt(0)')
    e('s_waitcnt lgkmcnt(0)')
    st(2); stc(9)
    e('v_mov_b32 v100, v9'); e('v_add_u32 v101, 36864, v9')
    e('s_barrier')
    H=112
    for k in range(18):
        for sg in range(2): e('ds_read_b128 %s, %s offset:%d'%(v(H+8*k+4*sg,4),v(100+k//9),(k%9)*4096+sg*1024))
        if E3A and k==12: e('s_waitcnt lgkmcnt(8)'); e('s_barrier')
    e('v_mov_b32 v102, v10'); e('v_mov_b32 v103, v11'); e('v_add_u32 v104, %d, v10'%SLOT); e('v_add_u32 v105, %d, v11'%SLOT)
    e('v_mov_b32 v106, v12'); e('v_mov_b32 v108, v13'); e('v_mov_b32 v109, v14')
    if TRACE: e('v_mov_b32 v1, 0'); e('v_mov_b32 v3, 0')
    e('v_mov_b32 v107, 20')
    e('ds_read_b32 v110, v109')
    WR=16; PA=64; QA=80; PK=8
    e('s_mov_b32 s64, %d'%(2*SLOT)); e('s_mov_b32 s65, 0'); e('s_mov_b32 s66, 19')
    e('s_mul_i32 s60, s2, 73728')
    e('s_lshl_b32 s61, %s, 11'%s(sWV)); e('s_add_u32 s60, s60, s61')
    e('s_mov_b32 s67, %d'%OOB)
    e('s_lshl_b32 s19, s2, 7'); e('s_lshl_b32 s61, %s, 2'%s(sWV)); e('s_add_u32 s19, s19, s61'); e('s_add_u32 s19, s19, %d'%FLP)
    e('s_mov_b32 s63, %d'%(FMASK<<1))
    e('v_mov_b32 v6, 0'); e('s_and_b32 s62, %s, %d'%(s(sC),NSITE-1))
    e('s_waitcnt lgkmcnt(0)'); e('s_barrier')
    st(3); stc(10)
    def mm2(kg,u):
        tb,sg=divmod(u,2)
        a=WR+8*(kg%6)+4*tb; b=H+8*kg+4*sg
        if kg<9: return mf(PA+8*tb+4*sg,a,b,'0' if kg==0 else None)
        return mf(QA+8*tb+4*sg,a,b,PA+8*tb+4*sg if kg==9 else None)
    def packq(final=False):
        L=[]
        for sg in range(2):
            for tb in range(2):
                for h in range(2):
                    q=QA+8*tb+4*sg+2*h
                    L.append('v_cvt_pk_bf16_f32 %s, %s, %s'%(v(PK+4*sg+2*tb+h),v(q),v(q+1)))
            if final: L.append('ds_write_b128 v7, %s offset:%d'%(v(PK+4*sg,4),1024*sg))
            else: L.append('buffer_store_dwordx4 %s, v106, %s, s67 offen offset:%d sc1'%(v(PK+4*sg,4),s(sWS,4),1024*sg))
        return L
    body=[]
    for hc in range(2):
        check(body,'s66')
        R=[(9*hc+k,tb,r) for k in range(9) for tb in range(2) for r in range(2)]
        ex={}
        if hc==0:
            cv=[x for x in packq() if x.startswith('v_cvt')]
            for i,x in enumerate(cv): ex[16+i]=[x]
            ex[2]=['v_add_u32 v104, s64, v104']; ex[3]=['v_add_u32 v105, s64, v105']; ex[4]=['s_sub_u32 s64, 0, s64']; ex[5]=['s_add_u32 s66, s66, 1']

        else:
            L=['v_add_u32 v102, s64, v102','v_add_u32 v103, s64, v103','s_add_u32 s66, s66, 1',
               's_add_u32 s61, s65, s15','s_and_b32 s61, s61, 7','s_cmp_eq_u32 s65, 0','s_cselect_b32 s61, 8, s61',
               's_lshl_b32 s61, s61, 13']
            for i,x in enumerate(L): ex[2+i]=[x]
            ex[26]=['s_add_u32 s67, s60, s61']; ex[30]=['s_cmp_eq_u32 s65, 8','s_cselect_b32 s62, 0, s62']
            ex[27]=['v_mov_b32 v6, s65']; ex[28]=['s_add_u32 s65, s65, 1']; ex[33]=['s_cmp_lt_u32 s65, 9']
            if FEARLY: ex[32]=['s_bitcmp1_b32 s63, s65','s_cbranch_scc1 M2_FL','M2_FR:']
        sites=[(0,25),(1,1),(1,13),(1,25)][:NSITE]
        for n,(h,g) in enumerate(sites):
            if h==hc:
                ex.setdefault(g,[]); ex[g]=ex[g]+['s_cmp_eq_u32 s62, %d'%n,'s_cbranch_scc1 M2_ST%d'%n,'M2_SR%d:'%n]
        for g in range(36):
            i,u=divmod(g,4)
            k,tb,r=R[g]
            body.append(('lds',R[g],'ds_read_b64_tr_b16 %s, %s offset:%d'%(v(WR+8*(k%6)+4*tb+2*r,2),v(102+2*hc+tb),(k%9)*4096+r*2048)))
            if g==30: body.append(('lds','F','ds_read_b32 v110, v109'))
            if g==34: body.append(('i','v_add_u32 v107, 1, v107'))
            if g==35: body.append(('lds','C','ds_write_b32 v108, v107'))
            for x in ex.get(g,[]): body.append(('i',x))
            kg=(9*hc+i-3)%18
            body.append(('need',[(kg,u//2,0),(kg,u//2,1)]))
            body.append(('i',mm2(kg,u)))
    e('v_add_u32 v104, s64, v104'); e('v_add_u32 v105, s64, v105'); e('s_sub_u32 s64, 0, s64')
    e('M2_L:')
    stream(body,True)
    e('s_cbranch_scc1 M2_L')
    e('s_lshl_b32 s61, %s, 11'%s(sWV)); e('s_add_u32 s61, s61, %d'%QH); e('v_add_u32 v7, s61, v106')
    e('s_waitcnt lgkmcnt(0)')
    for kg in (15,16,17):
        for u in range(4): e(mm2(kg,u))
    if not FEARLY: e('s_waitcnt vmcnt(0)'); e('s_mov_b64 exec, 1'); e('buffer_store_dword v6, v5, %s, s19 offen sc1'%s(sWS,4)); e('s_mov_b64 exec, -1')
    e('s_nop 7')
    for x in packq(True): e(x)
    e('v_add_u32 v107, 1, v107'); e('ds_write_b32 v108, v107')
    INMAIN=False
    if STAMP:
        st(4); stc(11); st_flush(12,0)
        if TRACE: trace_flush(1,3)
    e('s_waitcnt lgkmcnt(0)')
    e('s_endpgm')
    e('M2_FL:'); e('s_waitcnt vmcnt(0)'); e('s_mov_b64 exec, 1'); e('buffer_store_dword v6, v5, %s, s19 offen sc1'%s(sWS,4)); e('s_mov_b64 exec, -1'); e('s_branch M2_FR')
    for n in range(NSITE):
        e('M2_ST%d:'%n)
        if MSP: e('s_setprio %d'%MSP)
        if not FEARLY: e('s_waitcnt vmcnt(0)'); e('s_mov_b64 exec, 1'); e('buffer_store_dword v6, v5, %s, s19 offen sc1'%s(sWS,4)); e('s_mov_b64 exec, -1')
        for x in packq():
            if x.startswith('buffer') and not NOST: e(x)
        if MSP: e('s_setprio 0')
        e('s_branch M2_SR%d'%n)
    for (L,R,thr,va) in spins:
        e(L+':')
        tr=TRACE and thr=='s66'
        if tr:
            e('s_memtime s[96:97]'); e('s_waitcnt lgkmcnt(0)'); e('s_mov_b32 m0, s66'); e('s_nop 3'); e('v_writelane_b32 v1, s96, m0'); L=L+'b'; e(L+':')
        if opt('msl',0): e('s_sleep %d'%opt('msl',0))
        e('ds_read_b32 v110, %s'%v(va))
        e('s_add_u32 s99, s99, 1'); e('s_cmp_gt_u32 s99, 0x100000'); e('s_cbranch_scc1 K_END'); e('s_waitcnt lgkmcnt(0)')
        e('v_cmp_gt_u32 vcc, %s, v110'%thr); e('s_cbranch_vccnz '+L)
        if tr: e('s_memtime s[96:97]'); e('s_waitcnt lgkmcnt(0)'); e('v_writelane_b32 v3, s96, m0')
        e('s_branch '+R)

HDR='''; gated mix of an FNet 2-D DFT branch and a ReLU FFN branch; one launch, 256 workgroups (one per CU), 8 waves each.
; kernarg: 0 x, 8/16 seq DFT, 24/32 hidden DFT (constants, not read), 40 B_x (unused), 48 w1, 56 w2, 64 gate_w, 72 out, 80 debug, 88 ws'''
assert all((L*57)>>9==L//9 for L in range(288))
assert all((L*57)>>11==L//36 for L in range(289))
out.append(HDR)
out.append('; @launch grid=(256,1,1) block=(512,1,1) lds=163840')
out.append('.amdgcn_target "amdgcn-amd-amdhsa--gfx950"')
out.append('.text'); out.append('.globl '+NAME)
kernel()
out.append('.section .rodata,"a"'); out.append('.p2align 6')
out.append('.amdhsa_kernel '+NAME)
for l in ['next_free_vgpr 256','next_free_sgpr 100','accum_offset 256','group_segment_fixed_size 0','kernarg_size 96','user_sgpr_count 2','user_sgpr_kernarg_segment_ptr 1','system_sgpr_workgroup_id_x 1']:
    out.append('  .amdhsa_'+l)
out.append('.end_amdhsa_kernel')
print('\n'.join(out))
```

```python
import sys, struct
A=sys.argv
STAMP='--stamp' in A; NODMA='--nodma' in A; NOMFMA='--nomfma' in A; NOREAD='--noread' in A; NOPRIO='--noprio' in A; NOTX='--notx' in A; NORED='--nored' in A; NOST='--nost' in A; NOU='--nou' in A; NOXW='--noxw' in A; TRACE='--trace' in A; MPRIO='--mprio' in A; SLP='--slp' in A; opt=lambda n,d: int([x for x in A if x.startswith('--'+n+'=')][0].split('=')[1]) if any(x.startswith('--'+n+'=') for x in A) else d
PRE=opt('pre',2); AP2=opt('ap2',0); USLP=opt('uslp',30); PSLP=opt('pslp',12); UPACE=opt('upace',7); PPACE=opt('ppace',1); LP=opt('lp',3); AP=opt('ap',2); LP2=opt('lp2',0); LP1=opt('lp1',3); EARLY=opt('early',0); RM=0; XUP=opt('xup',0); CROT=opt('crot',1); FMASK=opt('fmask',0x1c4); JROT=opt('jrot',1); PK=0; TAG=0; FEARLY=opt('fearly',1); T2=0; CT=opt('ct',0); IW=opt('iw',1); LAY=opt('lay',1); TW=opt('tw',0); L1=opt('l1',1); UPI=12288; PR=2432; TP=32*2432; AP3=opt('ap3',0); MSP=opt('msp',0); MT=opt('mt',0); DIAG=opt('diag',0); NA=10; NB=8; CPG=opt('cpg',2); PUB1=opt('pub1',12); OSC=opt('osc',0); LATE=opt('late',35); USTG=opt('ustg',0); NSITE=opt('nsite',1); XSTG=opt('xstg',2); E3A=opt('e3a',0)
DBGT='--dbgt' in A; NOSW='--nosw' in A; WSPLIT=0 if '--nowsplit' in A else 1
NAME='gated_mix__spectral_fnet__dense_activation_relu__prompt_kernel'
out=[]; INMAIN=False
def e(s=''):
    if NODMA and s.endswith(' lds') and ('s[20:23]' in s or 's[24:27]' in s): return
    if (NOPRIO or MPRIO) and s.startswith('s_setprio') and not INMAIN: return
    if INMAIN and NOST and s.startswith('buffer_store_dword'): return
    if NOU and s.startswith('buffer_load_dwordx2'): return
    if NOXW and s.endswith(' lds') and ('s[8:11]' in s or 's[12:15]' in s): return
    if INMAIN and NOMFMA and s.startswith('v_mfma'): return
    out.append('    '+s if s and not s.endswith(':') else s)
def v(n,c=1): return 'v%d'%n if c==1 else 'v[%d:%d]'%(n,n+c-1)
def s(n,c=1): return 's%d'%n if c==1 else 's[%d:%d]'%(n,n+c-1)
def f2u(x): return struct.unpack('<I',struct.pack('<f',float(x)))[0]

SLOT=36864; XW0=110592; XWS=18432; HB=73728
MISC=147456; QH=MISC; LND=MISC+8192; CNS=LND+4*256; GL=CNS+6*256
GWL=LND+3072; MX=GWL+1152
U_OFF=0x1400000; FLP=0x1800000; FLU=0x1810000; ST_OFF=0x1900000; WS_BYTES=0x1B00000
BIG=0x7fffffff; OOB=0x40000000
sX,sWH,sW1,sW2,sGW,sWS,sOUT,sDBG=8,12,20,24,28,32,36,40
sJ,sC,sWV,sROT=3,4,5,6
SPINMAX=0x8000

def srd(d,base,nbytes):
    e('s_mov_b32 %s, %s'%(s(d),s(base))); e('s_mov_b32 %s, %s'%(s(d+1),s(base+1)))
    e('s_mov_b32 %s, %d'%(s(d+2),nbytes)); e('s_mov_b32 %s, 0x20000'%s(d+3))
def mf(d,a,b,c=None):
    return 'v_mfma_f32_16x16x32_bf16 %s, %s, %s, %s'%(v(d,4),v(a,4),v(b,4), v(d,4) if c is None else (c if isinstance(c,str) else v(c,4)))
def mfma(*a): e(mf(*a))
def st(slot):
    if STAMP: e('s_memrealtime %s'%s(72+2*slot,2))
def stc(slot):
    if STAMP: e('s_memtime %s'%s(72+2*slot,2))
def st_flush(n,base_row):
    if not STAMP: return
    e('s_waitcnt lgkmcnt(0)')
    e('s_lshl_b32 s68, s2, 3'); e('s_add_u32 s68, s68, %s'%s(sWV)); e('s_lshl_b32 s68, s68, 7'); e('s_add_u32 s68, s68, %d'%ST_OFF)
    e('v_mov_b32 v2, 0')
    for i in range(n):
        e('v_mov_b32 v4, %s'%s(72+2*i)); e('v_mov_b32 v5, %s'%s(73+2*i))
        e('buffer_store_dwordx2 v[4:5], v2, %s, s68 offen offset:%d'%(s(sWS,4),8*i)); e('s_nop 1')
def trace_flush(a,b):
    e('s_lshl_b32 s68, s2, 3'); e('s_add_u32 s68, s68, %s'%s(sWV)); e('s_lshl_b32 s68, s68, 9'); e('s_add_u32 s68, s68, %d'%(ST_OFF+0x40000))
    e('v_lshlrev_b32 v2, 2, v0')
    e('buffer_store_dword %s, v2, %s, s68 offen'%(v(a),s(sWS,4))); e('buffer_store_dword %s, v2, %s, s68 offen offset:256'%(v(b),s(sWS,4)))
_lab=[0]
def lab(p): _lab[0]+=1; return '%s%d'%(p,_lab[0])
def lds_wait(vaddr,vtmp,thr):
    L=lab('W')
    e(L+':')
    if SLP and not INMAIN: e('s_sleep 2')
    e('ds_read_b32 %s, %s'%(v(vtmp),v(vaddr)))
    e('s_add_u32 s99, s99, 1'); e('s_cmp_gt_u32 s99, 0x100000'); e('s_cbranch_scc1 K_END'); e('s_waitcnt lgkmcnt(0)')
    e('v_cmp_gt_u32 vcc, %s, %s'%(thr,v(vtmp))); e('s_cbranch_vccnz '+L)

def stream(seq, cyclic, pre=None):
    hist=[]; done=0
    def run(sq,emit):
        nonlocal done
        for it in sq:
            if it[0]=='lds':
                hist.append(it[1])
                if emit and not (NOREAD and it[2].startswith('ds_read_b64_tr')): e(it[2])
            elif it[0]=='need':
                idx=-1
                for t in it[1]:
                    k=[i for i,x in enumerate(hist) if x==t]
                    if k: idx=max(idx,k[-1])
                    else: assert not emit, t
                if idx+1>done:
                    n=min(len(hist)-1-idx,15)
                    if emit: e('s_waitcnt lgkmcnt(%d)'%(0 if NOREAD else n))
                    done=len(hist)-n
            elif emit: e(it[1])
    if cyclic: run(seq,False)
    if pre is not None: run(pre,False)
    run(seq,True)

def kernel():
    e('.p2align 8'); e('.type %s,@function'%NAME); e(NAME+':')
    e('s_cmp_ge_u32 s2, 256'); e('s_cbranch_scc1 K_END')
    st(0)
    if DBGT or DIAG: e('s_memrealtime s[72:73]')
    e('s_load_dwordx2 s[44:45], s[0:1], 0')
    e('s_load_dwordx4 s[52:55], s[0:1], 48')
    e('s_load_dwordx8 s[56:63], s[0:1], 64')
    if IW:
        e('s_getpc_b64 s[16:17]'); e('IWP:')
        e('s_sub_u32 s16, s16, IWP-%s'%NAME); e('s_subb_u32 s17, s17, 0')
        e('s_andn2_b32 s18, s2, 7'); e('s_lshl_b32 s18, s18, 7')
        e('v_lshl_add_u32 v3, v0, 1, s18'); e('v_min_u32 v3, K_END-%s, v3'%NAME)
        e('s_mov_b64 exec, 1'); e('global_load_dword v15, v3, s[16:17]'); e('s_mov_b64 exec, -1')
    e('s_mov_b32 s99, 0')
    e('v_lshrrev_b32 v1, 6, v0')
    e('s_and_b32 %s, s2, 7'%s(sJ)); e('s_lshr_b32 %s, s2, 3'%s(sC))
    e('v_readfirstlane_b32 %s, v1'%s(sWV))
    e('v_and_b32 v0, 63, v0')
    e('s_mul_i32 s6, %s, 57'%s(sC)); e('s_lshr_b32 s6, s6, 9'); e('s_and_b32 s98, s6, %d'%(0 if NOSW else 1)); e('s_mul_i32 s6, s6, 9'); e('s_sub_u32 s6, %s, s6'%s(sC))
    if JROT: e('s_add_u32 s6, s6, %s'%s(sJ)); e('s_sub_u32 s7, s6, 9'); e('s_cmp_ge_u32 s6, 9'); e('s_cselect_b32 s6, s7, s6')
    e('s_add_u32 s15, %s, %s'%(s(sJ),s(sC) if CROT else '0')); e('s_and_b32 s15, s15, 7')
    e('s_cmp_ge_u32 %s, 6'%s(sWV)); e('s_cbranch_scc1 K_AUX')
    e('s_cmp_ge_u32 %s, 4'%s(sWV)); e('s_cbranch_scc0 K_MAIN')
    loader(); aux()
    global out
    tail=[]
    if LAY:
        k=out.index('AX_D:'); tail=out[k:]; del out[k:]
    main()
    out.extend(tail)
    e('K_END:'); e('s_endpgm')

def loader():
    e('s_setprio %d'%LP)
    e('s_sub_u32 s7, %s, 4'%s(sWV))
    e('v_lshrrev_b32 v1, 3, v0'); e('v_and_b32 v2, 7, v0')
    e('v_lshrrev_b32 v4, 1, v2')
    e('v_and_b32 v5, 1, v2'); e('v_lshlrev_b32 v5, 4, v5')
    e('s_movk_i32 s16, %d'%(9216-1152))
    for p in range(9):
        e('v_add_u32 v6, %d, v1'%(8*p))
        e('v_mul_u32_u24 v7, 57, v6'); e('v_lshrrev_b32 v7, 9, v7')
        e('v_bfe_u32 v9, v7, 1, 1'); e('v_xor_b32 v9, v9, v4')
        e('v_lshl_add_u32 v6, v6, 7, v5')
        e('v_mad_u32_u24 v6, v7, s16, v6')
        e('v_lshl_add_u32 v6, v9, 5, v6')
        e('v_xor_b32 v7, 64, v6')
        e('v_subrev_u32 %s, %d, v6'%(v(16+p),(p%4)*1024))
        e('v_add_u32 %s, %d, v7'%(v(25+p),8*9216-((p+9)%4)*1024))
    e('v_lshrrev_b32 v6, 1, v1'); e('v_and_b32 v6, 3, v6'); e('v_lshlrev_b32 v6, 1, v6'); e('v_xor_b32 v6, v6, v2')
    e('s_movk_i32 s69, 1152'); e('v_mul_u32_u24 v7, s69, v1'); e('v_lshl_add_u32 v36, v6, 4, v7')
    for i in range(1,4): e('v_add_u32 %s, %d, v36'%(v(36+i),i*8192))
    e('s_mul_i32 s64, s7, 18432')
    e('s_mul_i32 s17, %s, 1152'%s(sJ)); e('s_mul_i32 s18, s7, %d'%(16*9216)); e('s_add_u32 s17, s17, s18')
    e('s_lshl_b32 s18, s6, 1')
    e('s_xor_b32 s66, s18, s98'); e('s_mul_i32 s66, s66, %d'%(32*9216)); e('s_add_u32 s66, s66, s17')
    e('s_mov_b32 s67, s64')
    e('s_mov_b32 s68, 0'); e('s_mov_b32 s69, -2')
    e('s_mul_i32 s70, %s, 576'%s(sJ)); e('s_mul_i32 s71, s7, 144'); e('s_add_u32 s70, s70, s71'); e('s_mul_i32 s70, s70, 1152')
    e('s_lshl_b32 s19, s7, 8'); e('s_add_u32 s19, s19, %d'%LND)
    e('v_lshlrev_b32 v11, 2, v0'); e('v_add_u32 v11, s19, v11'); e('v_mov_b32 v10, 0'); e('v_mov_b32 v13, 0'); e('v_mov_b32 v40, 0'); e('v_mov_b32 v41, 0')
    e('v_and_b32 v12, 3, v0'); e('v_mul_u32_u24 v12, 260, v12'); e('v_add_u32 v12, %d, v12'%CNS)
    e('s_waitcnt lgkmcnt(0)')
    srd(sW1,52,5308416); srd(sW2,54,5308416)
    if STAMP: srd(sWS,62,WS_BYTES)
    PUB=opt('pub',16)
    def dma(ph,p):
        if p%4==0 and p:
            e('s_add_u32 m0, s67, %d'%(p*1024))
            if ph==2: e('s_add_u32 s66, s66, %d'%(32*1152))
            else: e('s_nop 0')
        if ph==1: e('buffer_load_dwordx4 %s, %s, s66 offen offset:%d lds'%(v(16+p),s(sW1,4),(p%4)*1024))
        else: e('buffer_load_dwordx4 %s, %s, s66 offen offset:%d lds'%(v(36+p%4),s(sW2,4),(p%4)*1024))
    def grp(fill):
        groups=[]; i=0
        while i<len(fill):
            if fill[i].startswith('s_cmp'): groups.append(fill[i:i+2]); i+=2
            else: groups.append([fill[i]]); i+=1
        return groups
    def tr_top():
        if TRACE: e('s_memtime s[96:97]'); e('s_waitcnt lgkmcnt(0)'); e('s_mov_b32 m0, s68'); e('s_nop 3'); e('v_writelane_b32 v40, s96, m0'); e('v_writelane_b32 v42, s92, m0'); e('v_writelane_b32 v43, s94, m0')
    e('s_setprio %d'%LP1)
    e('LD_P:'); tr_top()
    e('s_mov_b32 m0, s67'); e('s_nop 0')
    g=grp(['s_add_u32 s18, s18, 1','s_cmp_eq_u32 s18, 18','s_cselect_b32 s18, 0, s18','s_xor_b32 s44, s18, s98','s_mul_i32 s44, s44, %d'%(32*9216),'s_add_u32 s44, s44, s17',
           's_add_u32 s45, s67, %d'%SLOT,'s_cmp_ge_u32 s45, %d'%(3*SLOT),'s_cselect_b32 s45, s64, s45'])
    for p in range(18):
        if p==PUB:
            e('s_cmp_eq_u32 s68, 0'); e('s_cbranch_scc1 LD_P0')
            if TRACE: e('s_memtime s[92:93]')
            e('s_waitcnt vmcnt(%d)'%PUB)
            if TRACE: e('s_memtime s[94:95]')
            e('s_barrier')
            e('LD_P0:')
        dma(1,p)
        if g:
            for x in g.pop(0): e(x)
    e('s_mov_b32 s66, s44'); e('s_mov_b32 s67, s45')
    e('s_add_u32 s68, s68, 1'); e('s_cmp_lt_u32 s68, 18'); e('s_cbranch_scc1 LD_P')
    e('s_add_u32 s66, s70, 1024'); e('s_mov_b32 s69, 0'); e('s_setprio %d'%LP2)
    PUB=opt('pub2',16)
    e('LD_Q:'); tr_top()
    e('s_waitcnt lgkmcnt(%d)'%(0 if opt('deep',0) else 1)); e('v_cmp_gt_u32 vcc, s69, v13'); e('s_mov_b32 m0, s67'); e('s_cbranch_vccnz LD_QS')
    e('LD_QR:')
    g=grp(['s_sub_u32 s46, s68, 17','s_lshr_b32 s44, s46, 1','s_add_u32 s47, s44, s15','s_and_b32 s47, s47, 7','s_cmp_eq_u32 s44, 0','s_cselect_b32 s47, 8, s47',
           's_lshl_b32 s47, s47, 7','s_and_b32 s44, s46, 1','s_mul_i32 s44, s44, %d'%(288*1152),'s_add_u32 s44, s44, s47','s_add_u32 s44, s44, s70',
           's_add_u32 s45, s67, %d'%SLOT,'s_cmp_ge_u32 s45, %d'%(4*SLOT),'s_cselect_b32 s45, s64, s45',
           's_cmp_le_u32 s68, 20','s_cselect_b32 s69, 0, s68'])
    for p in range(18):
        DP=opt('deep',0)
        if DP:
            if p==14:
                e('s_cmp_eq_u32 s68, 18'); e('s_cbranch_scc0 LD_Q0'); e('s_waitcnt vmcnt(14)'); e('s_barrier'); e('LD_Q0:')
                e('ds_read_b32 v13, v12')
            if p==DP:
                e('s_sub_u32 s48, s68, 1'); e('v_max_u32 v10, s48, v10'); e('s_waitcnt vmcnt(%d)'%(18+DP)); e('ds_write_b32 v11, v10')
        if p==PUB and not DP:
            e('v_mov_b32 v10, s68')
            if TRACE: e('s_memtime s[92:93]')
            e('s_waitcnt vmcnt(%d)'%PUB)
            e('s_cmp_eq_u32 s68, 18'); e('s_cbranch_scc0 LD_Q0'); e('s_barrier'); e('LD_Q0:')
            if TRACE: e('s_memtime s[94:95]')
            e('ds_read_b32 v13, v12'); e('ds_write_b32 v11, v10')
        if E3A and p==E3A: e('s_cmp_eq_u32 s68, 20'); e('s_cbranch_scc0 LD_Q1'); e('s_barrier'); e('LD_Q1:')
        dma(2,p)
        if g:
            for x in g.pop(0): e(x)
    assert not g
    e('s_mov_b32 s66, s44'); e('s_mov_b32 s67, s45')
    e('s_add_u32 s68, s68, 1'); e('s_cmp_le_u32 s68, 20'); e('s_cbranch_scc1 LD_E')
    e('s_cmp_lt_u32 s68, 36'); e('s_cbranch_scc1 LD_Q')
    if opt('deep',0): e('v_mov_b32 v10, 35'); e('s_waitcnt vmcnt(18)'); e('ds_write_b32 v11, v10'); e('s_nop 1')
    e('v_mov_b32 v10, s68'); e('s_waitcnt vmcnt(0)'); e('ds_write_b32 v11, v10')
    if STAMP: st(1); st_flush(2,0)
    if TRACE:
        e('s_cmp_eq_u32 s7, 0'); e('s_cbranch_scc1 TRX'); e('v_mov_b32 v41, v43'); e('v_mov_b32 v40, v42'); e('TRX:')
        trace_flush(40,41)
    e('s_waitcnt lgkmcnt(0)')
    e('s_endpgm')
    e('LD_E:')
    if not EARLY:
        e('s_barrier')
        e('s_cmp_eq_u32 s68, 20'); e('s_cbranch_scc1 LD_Q')
        e('v_mov_b32 v10, s68'); e('s_waitcnt vmcnt(0)'); e('ds_write_b32 v11, v10'); e('s_waitcnt lgkmcnt(0)')
        e('s_barrier'); e('s_branch LD_Q')
    else:
        e('s_cmp_eq_u32 s68, 19'); e('s_cbranch_scc1 LD_E1')
        e('v_mov_b32 v10, s68'); e('s_waitcnt vmcnt(0)'); e('ds_write_b32 v11, v10'); e('s_waitcnt lgkmcnt(0)')
        e('s_barrier')
        e('LD_E1:')
        e('s_barrier'); e('s_branch LD_Q')
    e('LD_QS:')
    e('ds_read_b32 v13, v12'); e('s_waitcnt lgkmcnt(0)'); e('v_cmp_gt_u32 vcc, s69, v13'); e('s_cbranch_vccz LD_QR')
    e('v_mov_b32 v10, s68'); e('s_waitcnt vmcnt(0)'); e('ds_write_b32 v11, v10')
    lds_wait(12,13,'s69')
    if TRACE: e('s_memtime s[96:97]'); e('s_waitcnt lgkmcnt(0)'); e('s_mov_b32 m0, s68'); e('s_nop 3'); e('v_writelane_b32 v41, s96, m0'); e('s_mov_b32 m0, s67')
    e('s_branch LD_QR')

def aux():
    e('K_AUX:')
    e('s_setprio %d'%AP)
    e('s_sub_u32 s7, %s, 6'%s(sWV))
    e('v_lshrrev_b32 v1, 3, v0'); e('v_and_b32 v2, 7, v0'); e('v_lshrrev_b32 v3, 1, v1')
    e('v_xor_b32 v4, v2, v3'); e('v_lshlrev_b32 v4, 4, v4'); e('v_xor_b32 v5, 64, v4')
    e('s_mov_b32 s16, 73728'); e('v_mul_u32_u24 v6, s16, v1')
    for p in range(4):
        e('v_add_u32 %s, v6, %s'%(v(16+p),'v5' if p%2 else 'v4'))
        if p: e('v_add_u32 %s, %d, %s'%(v(16+p),p*(8*73728-1024),v(16+p)))
    e('v_lshlrev_b32 v25, 4, v0')
    e('s_movk_i32 s17, 1152'); e('v_and_b32 v8, 31, v0'); e('v_mul_u32_u24 v7, 57, v8'); e('v_lshrrev_b32 v62, 9, v7'); e('v_mul_u32_u24 v7, 9, v62'); e('v_sub_u32 v7, v8, v7'); e('v_mul_u32_u24 v24, s17, v7'); e('v_lshrrev_b32 v7, 5, v0'); e('v_lshl_add_u32 v24, v7, 6, v24')
    e('s_lshl_b32 s18, s7, 5'); e('s_add_u32 s18, s18, %s'%s(sC)); e('s_mul_i32 s18, s18, 1152')
    e('s_mul_i32 s19, %s, 576'%s(sJ)); e('s_mul_i32 s64, %s, 18'%s(sC)); e('s_add_u32 s19, s19, s64')
    e('s_mul_i32 s64, s7, 9'); e('s_add_u32 s19, s19, s64'); e('s_mul_i32 s19, s19, 1152')
    e('s_mov_b32 s64, s6')
    e('s_lshl_b32 s69, s7, 12'); e('s_lshl_b32 s70, s7, 10'); e('s_add_u32 s65, s69, %d'%XW0)
    e('s_waitcnt lgkmcnt(0)')
    if DIAG==4: e('s_memrealtime s[74:75]')
    srd(sX,44,2359296); srd(sGW,56,1152)
    def issueX(h):
        if h==0: e('s_lshl_b32 s67, s64, 7'); e('s_add_u32 s67, s67, s18')
        e('s_mov_b32 m0, s65'); e('s_nop 0')
        for p in (2*h,2*h+1): e('buffer_load_dwordx4 %s, %s, s67 offen offset:%d lds'%(v(16+p),s(sX,4),p*1024))
        if h==1:
            e('s_add_u32 s64, s64, 1'); e('s_cmp_eq_u32 s64, 9'); e('s_cselect_b32 s64, 0, s64')
            e('s_add_u32 s65, s65, 8192'); e('s_sub_u32 s66, s65, 32768'); e('s_cmp_ge_u32 s65, %d'%(XW0+32768)); e('s_cselect_b32 s65, s66, s65')
    issueX(0); issueX(1)
    e('s_add_u32 m0, s70, %d'%GWL); e('s_cmp_eq_u32 s7, 0'); e('s_cselect_b32 exec_lo, -1, 0xff'); e('s_cselect_b32 exec_hi, -1, 0')
    e('buffer_load_dwordx4 v25, %s, s70 offen lds'%s(sGW,4))
    e('s_mov_b64 exec, -1')
    srd(sW2,54,5308416); srd(sWS,62,WS_BYTES); srd(sOUT,58,2359296); srd(sDBG,60,256)
    FC,FS,FN=112,120,128; GF=136; SEL=200; UO=208; MK=212; TR=216; PO=220; GG=224; L16=228; PL1=229; PL2=230; L0=231
    e('v_and_b32 v8, 15, v0'); e('v_lshrrev_b32 v9, 4, v0')
    e('v_mov_b32 %s, 0'%v(L0))
    e('s_lshl_b32 s71, s2, 1'); e('s_add_u32 s71, s71, s7'); e('s_lshl_b32 s71, s71, 2'); e('s_add_u32 s71, s71, %d'%FLU)
    e('s_or_b32 s14, %s, s7'%s(sC)); e('s_cmp_eq_u32 s14, 0'); e('s_cbranch_scc0 AX_NZ')
    for i in range(4): e('v_mov_b32 v%d, 0'%(56+i))
    e('s_lshl_b32 s48, %s, 12'%s(sJ)); e('s_add_u32 s48, s48, %d'%FLP); e('s_lshl_b32 s49, %s, 8'%s(sJ)); e('s_add_u32 s49, s49, %d'%FLU)
    for i in range(4): e('buffer_store_dwordx4 v[56:59], v25, %s, s48 offen offset:%d sc1'%(s(sWS,4),1024*i))
    e('s_mov_b64 exec, 0xffff')
    e('buffer_store_dwordx4 v[56:59], v25, %s, s49 offen sc1'%s(sWS,4))
    e('s_mov_b64 exec, -1')
    e('AX_NZ:')
    e('v_and_b32 v63, 7, v0'); e('v_lshlrev_b32 v63, 2, v63'); e('v_mov_b32 v254, 0')
    e('v_lshrrev_b32 v10, 1, v8'); e('v_xor_b32 v10, v10, v9'); e('v_lshlrev_b32 v10, 4, v10')
    e('v_lshl_add_u32 v20, v8, 7, v10'); e('v_add_u32 v20, %d, v20'%XW0); e('v_xor_b32 v21, 64, v20')
    e('v_mov_b32 v26, v20'); e('v_mov_b32 v27, v21'); e('v_add_u32 v28, s69, v20'); e('v_add_u32 v29, s69, v21')
    e('v_lshlrev_b32 v22, 4, v9'); e('v_add_u32 v22, %d, v22'%GWL); e('s_lshl_b32 s68, s6, 7'); e('v_add_u32 v23, s68, v22')
    e('s_lshl_b32 s44, s7, 11')
    ACC=64; TM=136; WA=176; RC=232
    for i in list(range(8))+list(range(16,24))+list(range(32,40)): e('v_mov_b32 %s, 0'%v(TM+i))
    for i in list(range(8,16))+list(range(24,32)): e('v_mov_b32 %s, 0'%v(ACC+i))
    e('s_sub_u32 s48, s6, 1'); e('s_cmp_eq_u32 s6, 0'); e('s_cselect_b32 s48, 8, s48'); e('s_lshl_b32 s48, s48, 6')
    e('v_lshlrev_b32 v11, 3, v9'); e('v_add_u32 v11, s48, v11'); e('v_cvt_f32_u32 v11, v11')
    e('s_lshl_b32 s49, %s, 5'%s(sJ)); e('s_lshl_b32 s50, s7, 4'); e('s_add_u32 s50, s50, s49'); e('s_lshl_b32 s49, %s, 2'%s(sJ)); e('s_add_u32 s49, s49, 256')
    for mix in range(2):
        if mix==0: e('v_add_u32 v12, s50, v8')
        else: e('v_and_b32 v12, 7, v8'); e('v_add_u32 v12, s49, v12')
        e('v_cvt_f32_u32 v12, v12'); e('v_mul_f32 v10, 0x%08x, v12'%f2u(1/9.)); e('v_mul_f32 v12, 0x%08x, v12'%f2u(1/576.)); e('v_mul_f32 v13, v12, v11')
        e('v_cos_f32 %s, v10'%v(RC+2*mix)); e('v_sin_f32 %s, v10'%v(RC+2*mix+1))
        if mix:
            e('v_cmp_gt_u32 vcc, 8, v8'); e('v_add_f32 v4, 0x3e800000, v13'); e('v_sub_f32 v5, 0, %s'%v(RC+3))
            e('v_cndmask_b32 v13, v4, v13, vcc'); e('v_cndmask_b32 %s, %s, v5, vcc'%(v(RC+3),v(RC+3)))
            e('v_cmp_eq_u32 vcc, 5, v8'); e('v_mov_b32 v4, 1.0'); e('v_mov_b32 v5, 0')
            e('v_cndmask_b32 %s, %s, v4, vcc'%(v(RC+2),v(RC+2))); e('v_cndmask_b32 %s, %s, v5, vcc'%(v(RC+3),v(RC+3)))
        for kp in range(2):
            for jp in range(4):
                for u in range(2):
                    e('v_fmamk_f32 %s, v12, 0x%08x, v13'%(v(30+u),f2u(32*kp+2*jp+u))); e('v_fract_f32 %s, %s'%(v(30+u),v(30+u)))
                e('v_cos_f32 v32, v30'); e('v_cos_f32 v33, v31')
                if mix==0:
                    e('v_sin_f32 v34, v30'); e('v_sin_f32 v35, v31')
                    e('v_cvt_pk_bf16_f32 %s, v32, v33'%v(WA+4*kp+jp)); e('v_cvt_pk_bf16_f32 %s, -v34, -v35'%v(WA+8+4*kp+jp))
                else:
                    e('s_nop 0'); e('v_cvt_pk_bf16_f32 %s, v32, v33'%v(WA+16+4*kp+jp))
    if PK:
        e('v_mov_b32 v60, %s'%v(RC+1)); e('v_mov_b32 v61, %s'%v(RC+1)); e('v_mov_b32 %s, %s'%(v(RC+1),v(RC)))
    global out
    save=out; parts=[]
    def begin():
        global out
        out=[]
    def end(): parts.append(out)
    begin()
    e('v_lshlrev_b32 v11, 2, v9'); e('v_cvt_f32_u32 v11, v11')
    for b in range(2):
        e('v_add_u32 v12, %d, v8'%(16*b)); e('v_cvt_f32_u32 v12, v12'); e('v_mul_f32 v12, 0x3d000000, v12'); e('v_mul_f32 v13, v12, v11')
        for jp in range(4):
            o=[(2*jp+u)%4+16*((2*jp+u)//4) for u in range(2)]
            for u in range(2): e('v_fmamk_f32 %s, v12, 0x%08x, v13'%(v(30+u),f2u(o[u])))
            e('v_cos_f32 v32, v30'); e('v_cos_f32 v33, v31'); e('v_sin_f32 v34, v30'); e('v_sin_f32 v35, v31')
            e('v_cvt_pk_bf16_f32 %s, v32, v33'%v(FC+4*b+jp)); e('v_cvt_pk_bf16_f32 %s, v34, v35'%v(FS+4*b+jp))
            e('v_xor_b32 %s, 0x80008000, %s'%(v(FN+4*b+jp),v(FS+4*b+jp)))
    end()
    for i in range(4):
        begin()
        e('s_lshr_b32 s48, %s, 2'%s(sJ)); e('s_lshl_b32 s48, s48, 1'); e('s_and_b32 s49, %s, 1'%s(sJ)); e('s_add_u32 s48, s48, s49')
        e('s_add_u32 s48, s48, %d'%i); e('s_and_b32 s48, s48, 3')
        e('v_lshlrev_b32 %s, 4, v0'%v(L16)); e('v_cvt_f32_u32 v11, v9')
        e('s_lshl_b32 s49, s48, 6'); e('s_add_u32 s49, s49, %d'%GL); e('v_lshlrev_b32 v13, 2, v8'); e('v_add_u32 %s, s49, v13'%v(GG+i))
        e('s_lshr_b32 s49, s48, 1'); e('s_and_b32 s50, s48, 1')
        e('s_lshl_b32 s51, s49, 12'); e('s_lshl_b32 s52, s50, 10'); e('s_add_u32 s51, s51, s52'); e('v_add_u32 %s, s51, %s'%(v(PO+i),v(L16)))
        e('s_lshl_b32 s49, s49, 5'); e('s_add_u32 s49, s49, s52'); e('s_add_u32 s49, s49, %s'%s(sC))
        e('v_lshlrev_b32 v5, 6, v8'); e('v_add_u32 v6, s49, v5')
        e('v_cvt_f32_u32 v5, v6'); e('v_mul_f32 v5, 0x3a000000, v5'); e('v_mul_f32 v13, v5, v11')
        e('s_movk_i32 s49, 1152'); e('v_lshlrev_b32 v4, 4, v9')
        e('v_mad_u32_u24 %s, v6, s49, v4'%v(TR+i))
        for k in range(4):
            for u in range(2):
                for h in range(2): e('v_fmamk_f32 %s, v5, 0x%08x, v13'%(v(30+h),f2u(8*k+4*u+32*h)))
                e('v_cos_f32 v32, v30'); e('v_sin_f32 v33, v30'); e('v_cos_f32 v34, v31'); e('v_sin_f32 v35, v31')
                e('v_cvt_pk_bf16_f32 %s, v32, v33'%v(GF+16*i+4*k+2*u)); e('v_cvt_pk_bf16_f32 %s, v34, v35'%v(GF+16*i+4*k+2*u+1))
        end()
    begin()
    e('v_bfe_u32 v4, v8, 1, 2'); e('v_cmp_eq_u32 vcc, v4, v9'); e('v_and_b32 v5, 1, v8'); e('v_lshrrev_b32 v7, 3, v8')
    e('v_mov_b32 v6, 0x3f80'); e('v_lshl_add_u32 v5, v7, 1, v5'); e('v_cndmask_b32 v6, 0, v6, vcc')
    for r in range(4):
        e('v_cmp_eq_u32 vcc, %d, v5'%r); e('s_nop 1'); e('v_cndmask_b32 %s, 0, v6, vcc'%v(SEL+r)); e('v_lshlrev_b32 %s, 16, %s'%(v(SEL+4+r),v(SEL+r)))
    e('v_and_b32 v4, 1, v0'); e('v_lshlrev_b32 v4, 3, v4'); e('s_lshl_b32 s49, s7, 2'); e('v_add_u32 v4, s49, v4'); e('v_bfe_u32 v5, v0, 1, 3'); e('v_lshl_add_u32 %s, v5, 7, v4'%v(PL1))
    e('v_sub_u32 v5, %s, v5'%s(sJ)); e('v_and_b32 v5, 7, v5'); e('v_add_u32 v254, 1, v5')
    e('v_and_b32 v4, 7, v0'); e('v_lshlrev_b32 v4, 7, v4'); e('s_lshr_b32 s49, %s, 1'%s(sJ)); e('s_lshl_b32 s49, s49, 2'); e('v_add_u32 %s, s49, v4'%v(PL2))
    e('s_sub_u32 s48, 32, %s'%s(sC)); e('s_and_b32 s48, s48, 31')
    e('s_movk_i32 s49, %d'%PR); e('v_mul_u32_u24 v12, s49, v9'); e('v_lshlrev_b32 v4, 4, v8')
    e('s_lshl_b32 s54, s15, 6'); e('s_lshl_b32 s49, s7, 5'); e('s_add_u32 s54, s54, s49')
    e('s_and_b32 s55, %s, 2'%s(sJ)); e('s_lshl_b32 s55, s55, 4'); e('s_add_u32 s55, s55, 512')
    e('s_mul_i32 s48, s48, %d'%TP); e('s_mul_i32 s50, %s, %d'%(s(sC),TP))
    e('v_add_u32 v5, v12, v4'); e('v_add_u32 v6, 256, v12'); e('v_sub_u32 v6, v6, v4')
    e('s_sub_u32 s49, 543, s54'); e('s_lshl_b32 s49, s49, 3'); e('s_add_u32 s49, s49, s48')
    e('s_lshl_b32 s51, s54, 3'); e('s_add_u32 s51, s51, s50')
    e('s_cmp_ge_u32 s54, 288'); e('s_cselect_b32 s49, s49, s51'); e('s_cselect_b64 vcc, -1, 0')
    e('v_cndmask_b32 v5, v5, v6, vcc'); e('v_add_u32 %s, s49, v5'%v(UO))
    e('s_sub_u32 s49, 575, s55'); e('s_lshl_b32 s49, s49, 3'); e('s_add_u32 s49, s49, s48')
    e('v_add_u32 v6, s49, v12'); e('v_sub_u32 %s, v6, v4'%v(UO+1))
    end()
    out=save
    NPRE=PRE
    out.extend(parts[0])
    later=[]
    XF=36
    def rotate(lo,hi,mix):
        if PK:
            for i in range(lo,hi,2):
                e('v_pk_mul_f32 %s, %s, %s'%(v(TM+i,2),v(RC,2),v(ACC+i,2))); e('v_pk_mul_f32 %s, %s, %s'%(v(TM+16+i,2),v(RC,2),v(ACC+16+i,2)))
                e('v_pk_fma_f32 %s, %s, %s, %s neg_lo:[1,0,0] neg_hi:[1,0,0]'%(v(TM+i,2),v(60,2),v(ACC+16+i,2),v(TM+i,2))); e('v_pk_fma_f32 %s, %s, %s, %s'%(v(TM+16+i,2),v(60,2),v(ACC+i,2),v(TM+16+i,2)))
        else:
            for i in range(lo,hi):
                e('v_mul_f32 %s, %s, %s'%(v(TM+i),v(RC),v(ACC+i))); e('v_mul_f32 %s, %s, %s'%(v(TM+16+i),v(RC),v(ACC+16+i)))
                e('v_fma_f32 %s, -%s, %s, %s'%(v(TM+i),v(RC+1),v(ACC+16+i),v(TM+i))); e('v_fmac_f32 %s, %s, %s'%(v(TM+16+i),v(RC+1),v(ACC+i)))
        if mix:
            for i in range(8): e('v_mul_f32 %s, %s, %s'%(v(TM+32+i),v(RC+2),v(ACC+32+i)))
            for i in range(8): e('v_fmac_f32_dpp %s, %s, %s row_ror:8 row_mask:0xf bank_mask:0xf'%(v(TM+32+i),v(ACC+32+i),v(RC+3)))
    e('s_mov_b32 s46, 0'); e('s_mov_b32 s47, 0')
    e('s_and_b32 s45, %s, %d'%(s(sC),XSTG)); e('s_mov_b32 s53, 1'); e('s_mov_b32 s51, 0')
    if XUP==3:
        for _ in range(3): issueX(0); issueX(1)
        e('s_mov_b32 s53, 4'); e('s_add_u32 s51, s45, 4'); e('s_cmp_ge_u32 s45, 2'); e('s_cselect_b32 s51, s45, s51')
    e('s_waitcnt vmcnt(%d)'%(4*XUP))
    e('s_cmp_eq_u32 s14, 0'); e('s_cbranch_scc0 AX_L')
    e('v_mov_b32 v255, 1'); e('s_lshl_b32 s48, %s, 2'%s(sJ)); e('s_mov_b64 exec, 1')
    e('buffer_store_dword v255, %s, %s, s48 offen sc1'%(v(L0),s(sDBG,4))); e('s_mov_b64 exec, -1')
    e('AX_L:')
    for kp in range(2):
        if TRACE:
            e('s_memtime s[96:97]'); e('s_lshl_b32 s95, s46, 1'); e('s_add_u32 m0, s95, %d'%(kp+1)); e('s_waitcnt lgkmcnt(0)'); e('v_writelane_b32 v252, s96, m0'); e('v_writelane_b32 v253, s92, m0')
        e('s_barrier')
        if DIAG in (2,6) and kp==0: e('s_cmp_eq_u32 s46, %d'%(0 if DIAG==2 else 2)); e('s_cbranch_scc0 DGN'); e('s_memrealtime s[74:75]'); e('s_waitcnt lgkmcnt(0)'); e('DGN:')
        for sg in range(4): e('ds_read_b128 %s, %s offset:%d'%(v(XF+4*sg,4),v(26+kp),sg*2048))
        for sg in range(2): e('ds_read_b128 %s, %s offset:%d'%(v(XF+16+4*sg,4),v(28+kp),sg*2048))
        e('s_mov_b32 exec_lo, 0x00200020'); e('s_mov_b32 exec_hi, 0x00200020')
        e('ds_read_b128 %s, v23 offset:%d'%(v(WA+16+4*kp,4),64*kp))
        e('s_mov_b64 exec, -1')
        e('s_sub_u32 s51, s51, 1'); e('s_cbranch_scc1 AX_B%d'%kp)
        e('AX_S%d:'%kp)
        def rot(lo,hi,mix):
            L=[]
            for i in range(lo,hi):
                L+=['v_mul_f32 %s, %s, %s'%(v(TM+i),v(RC),v(ACC+i)),'v_mul_f32 %s, %s, %s'%(v(TM+16+i),v(RC),v(ACC+16+i)),
                    'v_fma_f32 %s, -%s, %s, %s'%(v(TM+i),v(RC+1),v(ACC+16+i),v(TM+i)),'v_fmac_f32 %s, %s, %s'%(v(TM+16+i),v(RC+1),v(ACC+i))]
            if mix:
                L+=['v_mul_f32 %s, %s, %s'%(v(TM+32+i),v(RC+2),v(ACC+32+i)) for i in range(8)]
                L+=['v_fmac_f32_dpp %s, %s, %s row_ror:8 row_mask:0xf bank_mask:0xf'%(v(TM+32+i),v(ACC+32+i),v(RC+3)) for i in range(8)]
            return L
        M=lambda t,sg: mf(ACC+16*t+4*sg, XF+4*sg, WA+8*t+4*kp, TM+16*t+4*sg if kp==0 else None)
        X=lambda sg: mf(ACC+32+4*sg, XF+16+4*sg, WA+16+4*kp, TM+32+4*sg if kp==0 else None)
        if kp==0:
            R=rot(8,16,False)
            for x in R[:8]: e(x)
            e('s_waitcnt lgkmcnt(0)')
            R=R[8:]
            for m in (M(0,0),M(1,0),M(0,1),M(1,1),X(0),X(1)):
                e(m)
                for x in R[:4]: e(x)
                R=R[4:]
            assert not R
            for m in (M(0,2),M(1,2),M(0,3),M(1,3)): e(m)
        else:
            A_=['s_add_u32 s47, s47, 8192','s_and_b32 s47, s47, 32767','s_add_u32 s66, s47, s69','s_add_u32 s68, s68, 128','s_cmp_eq_u32 s68, 1152','s_cselect_b32 s68, 0, s68',
                'v_add_u32 v26, s47, v20','v_add_u32 v27, s47, v21','v_add_u32 v28, s66, v20','v_add_u32 v29, s66, v21','v_add_u32 v23, s68, v22']
            for x in A_: e(x)
            e('s_waitcnt lgkmcnt(0)')
            for m in (M(0,0),M(1,0),M(0,1),M(1,1),X(0),X(1)): e(m)
            e('s_nop 3')
            R=rot(0,8,True)
            for m in (M(0,2),M(1,2),M(0,3),M(1,3)):
                for x in R[:4]: e(x)
                R=R[4:]
                e(m)
            e('s_cmp_eq_u32 s46, 8'); e('s_cbranch_scc1 AX_D')
            for x in R: e(x)
    if TRACE: e('s_memtime s[92:93]')
    e('s_lshr_b32 s66, s45, 1'); e('s_xor_b32 s66, s66, s46'); e('s_add_u32 s46, s46, 1')
    e('s_bitcmp1_b32 s66, 0'); e('s_cbranch_scc1 AX_W0')
    e('s_cmp_eq_u32 s46, 1'); e('s_cbranch_scc0 AX_L')
    e('s_waitcnt vmcnt(8)'); e('s_branch AX_L')
    e('AX_W0:')
    e('s_waitcnt vmcnt(0)'); e('s_branch AX_L')
    for kp in range(2):
        e('AX_B%d:'%kp)
        e('s_cmp_ge_u32 s46, 5'); e('s_cselect_b32 s51, 100, 3')
        e('s_add_u32 s52, s46, 3'); e('s_min_u32 s52, s52, 8')
        e('s_cmp_eq_u32 s46, 0'); e('s_cbranch_scc0 AX_C%d'%kp)
        if kp==0:
            e('s_lshr_b32 s52, s45, 1'); e('s_add_u32 s52, s52, 1')
            e('s_sub_u32 s51, s45, 1'); e('s_cmp_ge_u32 s45, 2'); e('s_cselect_b32 s51, s51, 0')
        else:
            e('s_add_u32 s51, s45, 2')
        e('AX_C%d:'%kp)
        issueX(0); issueX(1)
        e('s_add_u32 s53, s53, 1'); e('s_cmp_le_u32 s53, s52'); e('s_cbranch_scc1 AX_C%d'%kp)
        e('s_cmp_eq_u32 s46, 0'); e('s_cbranch_scc1 AX_S%d'%kp)
        e('v_add_u32 v4, %s, v62'%s(sJ)); e('v_and_b32 v4, 7, v4'); e('v_cmp_eq_u32 vcc, 0, v62'); e('v_mov_b32 v5, 8'); e('v_add_u32 v62, 3, v62')
        e('v_cndmask_b32 v4, v4, v5, vcc'); e('v_lshl_add_u32 v4, v4, 7, v24')
        e('s_mov_b32 exec_lo, 0x7ffffff'); e('s_mov_b32 exec_hi, %s'%('0x7ffffff' if T2 else '0'))
        e('buffer_load_dword v15, v4, %s, s19 offen'%s(sW2,4))
        e('s_mov_b64 exec, -1')
        e('s_cmp_ge_u32 s46, 5'); e('s_cbranch_scc0 AX_S%d'%kp)
        e('buffer_load_dword v254, v63, %s, 0 offen sc1'%s(sDBG,4))
        if MT:
            e('v_cmp_le_u32 vcc, 3, v0'); e('v_lshlrev_b32 v4, 7, v0'); e('v_add_u32 v5, %d, v4'%(TP-384)); e('v_cndmask_b32 v4, v4, v5, vcc')
            e('s_lshl_b32 s48, %s, 1'%s(sJ)); e('s_add_u32 s48, s48, s7'); e('s_mul_i32 s48, s48, %d'%(2*TP)); e('s_mul_i32 s49, %s, %d'%(s(sC),PR))
            e('s_add_u32 s48, s48, s49'); e('s_add_u32 s48, s48, %d'%(U_OFF+2048))
            e('s_mov_b64 exec, 63'); e('buffer_load_dword v15, v4, %s, s48 offen sc1'%s(sWS,4)); e('s_mov_b64 exec, -1')
        e('s_branch AX_S%d'%kp)
    e('AX_D:')
    e('s_barrier')
    if DIAG==5: e('s_memrealtime s[74:75]'); e('s_waitcnt lgkmcnt(0)')
    e('s_setprio %d'%AP2); e('s_nop 3')
    st(1)
    e('s_mov_b32 s16, %d'%(4*TP)); e('v_lshlrev_b32 v12, 3, v8'); e('v_mad_u32_u24 v12, s16, v9, v12')
    e('s_mul_i32 s16, %s, %d'%(s(sC),PR)); e('s_add_u32 s16, s16, %d'%U_OFF)
    e('s_lshl_b32 s17, %s, 5'%s(sJ)); e('s_add_u32 s17, s17, s16'); e('s_add_u32 s17, s17, 2048')
    e('s_lshl_b32 s48, %s, 8'%s(sJ)); e('s_add_u32 s16, s16, s48'); e('s_lshl_b32 s48, s7, 7'); e('s_add_u32 s16, s16, s48')
    FR=16
    def pack(dst,src,n=8):
        for h in range(n): e('v_cvt_pk_bf16_f32 %s, %s, %s'%(v(dst+h),v(src+2*h),v(src+2*h+1)))
    def stageA(D,FR):
        for sh in range(2):
            for be in range(2):
                d=D+16*sh+8*be; a=FR+4*sh; b=FR+8+4*sh
                mfma(d,FC+4*be,a,'0'); mfma(d+4,FC+4*be,b,'0'); mfma(d,FS+4*be,b); mfma(d+4,FN+4*be,a)
    def ustore(D,O,so):
        for be in range(2):
            for r in range(4):
                o=O+8*be+2*r
                for sh in range(2): e('v_cvt_pk_bf16_f32 %s, %s, %s'%(v(o+sh),v(D+16*sh+8*be+r),v(D+16*sh+8*be+4+r)))
                e('s_add_u32 s48, %s, %d'%(so,(16*be+r)*TP)); e('buffer_store_dwordx2 %s, v12, %s, s48 offen sc1'%(v(o,2),s(sWS,4)))
    MF=136
    e('v_mov_b32 v255, v63')
    e('v_add_u32 v14, %d, v25'%MX)
    pack(MF,ACC+32,4)
    e('s_lshl_b32 s66, s7, 7'); e('s_add_u32 s66, s66, %d'%GL); e('v_lshlrev_b32 v13, 4, v9'); e('v_add_u32 v13, s66, v13')
    e('s_mov_b32 exec_lo, 0x00200020'); e('s_mov_b32 exec_hi, 0x00200020')
    for sg in range(2): e('ds_write_b128 v13, %s offset:%d'%(v(ACC+32+4*sg,4),64*sg))
    e('s_mov_b64 exec, -1')
    e('s_cmp_eq_u32 s7, 1'); e('s_cbranch_scc0 AX_A0'); e('ds_write_b128 v14, %s'%v(MF,4)); e('AX_A0:')
    pack(FR,ACC); pack(FR+8,ACC+16); e('s_nop 1')
    stageA(32,FR)
    e('s_nop 7')
    ustore(32,236,'s16')
    e('s_mov_b32 s47, 0')
    e('AX_V0:')
    e('v_cmp_eq_u32 vcc, 0, v254'); e('s_cbranch_vccz AX_V1')
    e('s_add_u32 s47, s47, 1'); e('s_cmp_gt_u32 s47, %d'%SPINMAX); e('s_cbranch_scc1 AX_V1')
    e('s_sleep 8'); e('buffer_load_dword v254, v255, %s, 0 offen sc1'%s(sDBG,4)); e('s_waitcnt vmcnt(0)'); e('s_branch AX_V0')
    e('AX_V1:')
    e('s_waitcnt lgkmcnt(0)')
    e('s_barrier')
    e('s_barrier')
    if E3A: e('s_barrier')
    if DIAG==3: e('s_memrealtime s[74:75]'); e('s_waitcnt lgkmcnt(0)')
    e('s_cmp_eq_u32 s7, 0'); e('s_cbranch_scc0 AX_A2')
    e('ds_read_b128 %s, v14'%v(MF+4,4)); e('s_waitcnt lgkmcnt(0)')
    for h in range(8): e('v_mov_b32_dpp %s, %s row_ror:8 row_mask:0xf bank_mask:0xf'%(v(MF+8+h),v(MF+h)))
    e('s_nop 1')
    stageA(64,MF)
    e('s_nop 7')
    e('s_mov_b32 s49, 0x000f000f'); e('s_cmp_eq_u32 %s, 7'%s(sJ)); e('s_cselect_b32 s49, 0x001f001f, s49')
    e('s_mov_b32 exec_lo, s49'); e('s_mov_b32 exec_hi, s49')
    ustore(64,96,'s17')
    e('s_mov_b64 exec, -1')
    e('AX_A2:')
    out.extend(parts[1])
    e('s_waitcnt vmcnt(0)'); e('v_mov_b32 v10, 1')
    e('s_mov_b64 exec, 1'); e('buffer_store_dword v10, %s, %s, s71 offen sc1'%(v(L0),s(sWS,4))); e('s_mov_b64 exec, -1')
    for k in (2,3,4,5): out.extend(parts[k])
    for i in range(4): e('ds_read_b32 %s, %s'%(v(GG+i),v(GG+i)))
    e('s_lshl_b32 s65, %s, 10'%s(sC)); e('s_add_u32 s65, s65, %d'%FLP)
    e('s_waitcnt lgkmcnt(0)')
    for i in range(4):
        g=GG+i
        e('v_mul_f32 %s, 0xbfb8aa3b, %s'%(v(g),v(g))); e('v_exp_f32 %s, %s'%(v(g),v(g))); e('s_nop 0')
        e('v_add_f32 %s, 1.0, %s'%(v(g),v(g))); e('v_rcp_f32 %s, %s'%(v(g),v(g)))
    if NORED:
        for i in range(2,7): st(i)
        st_flush(7,0); e('s_endpgm')
    e('s_mov_b32 s47, 0')
    def gpoll(load,cmp,slp):
        L=lab('GP'); e('s_branch %sf'%L); e(L+':')
        if slp: e('s_sleep %d'%slp)
        e(L+'f:')
        for x in load: e(x)
        e('s_add_u32 s47, s47, 1'); e('s_waitcnt vmcnt(0)')
        for x in cmp: e(x)
        e('s_cmp_gt_u32 s47, %d'%SPINMAX); e('s_cbranch_scc1 %sx'%L); e('s_cbranch_vccnz '+L); e(L+'x:')
    e('s_lshl_b32 s16, s7, 8'); e('s_add_u32 s16, s16, %d'%CNS)
    e('v_and_b32 v15, 1, v0'); e('v_mul_u32_u24 v15, 516, v15'); e('v_add_u32 v15, s16, v15')
    def pace(n):
        L=lab('PC'); e(L+':'); e('s_sleep 3'); e('ds_read_b32 v5, v15')
        e('s_add_u32 s99, s99, 1'); e('s_cmp_gt_u32 s99, 0x100000'); e('s_cbranch_scc1 K_END'); e('s_waitcnt lgkmcnt(0)')
        e('v_cmp_gt_u32 vcc, %s, v5'%(n if isinstance(n,str) else min(n,38))); e('s_cbranch_vccnz '+L)
    e('s_and_b32 s16, %s, %d'%(s(sC),USTG)); e('s_add_u32 s16, s16, %d'%(20+UPACE))
    pace('s16')
    e('s_setprio %d'%AP3)
    e('s_mov_b32 s16, %d'%FLU)
    gpoll(['buffer_load_dwordx4 v[96:99], %s, %s, s16 offen sc1'%(v(L16),s(sWS,4)),'buffer_load_dwordx4 v[100:103], %s, %s, s16 offen offset:1024 sc1'%(v(L16),s(sWS,4))],
          ['v_min3_u32 v5, v96, v97, v98','v_min3_u32 v5, v5, v99, v100','v_min3_u32 v5, v5, v101, v102','v_min_u32 v5, v5, v103','v_cmp_eq_u32 vcc, 0, v5'],USLP)
    st(2)
    UF=16; YA=80; SP=152
    def uloads(n,dst):
        for k in range(4):
            for u in range(2):
                e('s_mov_b32 s17, %d'%(U_OFF+(8*k+4*u)*PR))
                e('buffer_load_dwordx4 %s, %s, %s, s17 offen sc1'%(v(dst+8*k+4*u,4),v(UO+n),s(sWS,4)))
    def ufix(dst):
        for k in range(4):
            for h in range(2): e('v_swap_b32 %s, %s'%(v(dst+8*k+2+h),v(dst+8*k+4+h)))
    def uneg(dst):
        for i in range(32): e('v_xor_b32 %s, 0x80000000, %s'%(v(dst+i),v(dst+i)))
    def fin(y,p,og,o,vaddr,soff):
        for tb in range(2):
            for r in range(4): e('v_fma_f32 %s, %s, %s, %s'%(v(p[tb]+r),v(og),v(p[tb]+r),v(y[tb]+r)))
        for r in range(4): e('v_cvt_pk_bf16_f32 %s, %s, %s'%(v(o+r),v(p[0]+r),v(p[1]+r)))
        e('buffer_store_dwordx4 %s, %s, %s, %s offen%s'%(v(o,4),v(vaddr),s(sOUT,4),soff,[' ',' sc1',' nt'][OSC]))
    uloads(0,UF)
    e('s_cmp_eq_u32 s7, 1'); e('s_cbranch_scc0 AX_U')
    uloads(1,UF+32)
    gpoll(['buffer_load_dword v5, %s, %s, s65 offen sc1'%(v(PL2),s(sWS,4))],['v_cmp_gt_u32 vcc, 1, v5'],10)
    e('s_mul_i32 s16, %s, %d'%(s(sC),8*73728)); e('s_lshl_b32 s17, %s, 10'%s(sJ)); e('s_add_u32 s16, s16, s17'); e('s_add_u32 s16, s16, 65536')
    for jj in range(8):
        e('buffer_load_dwordx4 %s, %s, %s, s16 offen sc1'%(v(80+4*jj,4),v(L16),s(sWS,4)))
        if jj<7: e('s_add_u32 s16, s16, 73728')
    ufix(UF+32); uneg(UF+32)
    e('s_nop 1')
    for k in range(4):
        for tb in range(2): mfma(112+4*(1-tb), UF+32+8*k+4*tb, GF+4*k, '0' if k==0 else None)
    e('s_waitcnt vmcnt(0)')
    for jj in range(8):
        for tb in range(2): mfma(120+4*tb, SEL+4*tb, 80+4*jj, '0' if jj==0 else None)
    for r in range(8): e('v_mul_f32 %s, %s, %s'%(v(112+r),v(GG),v(112+r)))
    e('v_sub_f32 v14, 1.0, %s'%v(GG)); e('s_lshl_b32 s16, s55, 1')
    fin((112,116),(120,124),14,248,TR,'s16')
    e('s_branch AX_U2')
    e('AX_U:')
    e('s_waitcnt vmcnt(0)')
    e('AX_U2:')
    ufix(UF)
    e('s_cmp_ge_u32 s54, 288'); e('s_cbranch_scc0 AX_U3')
    uneg(UF)
    for k in range(4):
        for h in range(4): e('v_swap_b32 %s, %s'%(v(UF+8*k+h),v(UF+8*k+4+h)))
    e('AX_U3:')
    e('s_nop 1')
    for k in range(4):
        for tb in range(2):
            for i in range(4): mfma(YA+16*tb+4*i, UF+8*k+4*tb, GF+16*i+4*k, '0' if k==0 else None)
    st(3)
    if '--exitc8' in A:
        for i in range(4,7): st(i)
        st_flush(7,0); e('s_endpgm')
    e('s_mul_i32 s18, %s, %d'%(s(sC),8*73728)); e('s_lshl_b32 s17, s15, 13'); e('s_add_u32 s18, s18, s17'); e('s_add_u32 s18, s18, s44')
    def acc(buf,first):
        for i in range(4):
            for tb in range(2): mfma(SP+16*tb+4*i, SEL+4*tb, buf+4*i, '0' if first else None)
    BUF=lambda i: 16+16*(i%4)
    e('s_mov_b32 s66, 0')
    def addr(i,so,sm):
        e('s_sub_u32 %s, %s, %d'%(so,s(sJ),i)); e('s_and_b32 %s, %s, 7'%(so,so))
        e('s_lshl_b32 %s, %s, 1'%(sm,so)); e('s_lshl_b32 %s, 3, %s'%(sm,sm))
        e('s_mul_i32 %s, %s, 73728'%(so,so)); e('s_add_u32 %s, %s, s18'%(so,so))
    def pollbits(i,sm,sx,slp):
        e('s_branch AX_F%d'%i); e('AX_R%d:'%i)
        if slp: e('s_sleep %d'%slp)
        e('AX_F%d:'%i)
        e('buffer_load_dword v5, %s, %s, s65 offen sc1'%(v(PL1),s(sWS,4))); e('s_add_u32 s47, s47, 1'); e('s_waitcnt vmcnt(0)')
        e('v_cmp_le_u32 vcc, v254, v5'); e('s_cmp_gt_u32 s47, %d'%SPINMAX); e('s_cbranch_scc1 AX_G%d'%i)
        e('s_mov_b32 s66, vcc_lo'); e('s_mov_b32 exec_lo, %s'%sx); e('s_mov_b32 exec_hi, 0')
        e('s_and_b32 s19, s66, %s'%sm); e('s_cmp_eq_u32 s19, %s'%sm); e('s_cbranch_scc0 AX_R%d'%i)
    def loads(i,so):
        for u in range(4): e('buffer_load_dwordx4 %s, %s, %s, %s offen sc1'%(v(BUF(i)+4*u,4),v(PO+u),s(sWS,4),so))
    addr(7,'s48','s49')
    e('s_add_u32 s16, s44, %d'%QH)
    for u in range(4): e('v_add_u32 %s, s16, %s'%(v(128+u),v(PO+u)))
    for i in range(1,7):
        addr(i,'s16','s17')
        e('s_and_b32 s19, s66, s17'); e('s_cmp_eq_u32 s19, s17'); e('s_cbranch_scc1 AX_G%d'%i)
        pace(max(20+2*(i+2)+PPACE-FEARLY, LATE if i>L1 else 0))
        if i==6: e('s_or_b32 s50, s17, s49'); e('s_mov_b32 exec_lo, s50'); e('s_mov_b32 exec_hi, 0')
        pollbits(i,'s17','s50' if i==6 else 's17', 0 if i==6 else PSLP)
        e('AX_G%d:'%i)
        e('s_mov_b64 exec, -1')
        loads(i,'s16')
        if 3<=i<=6: e('s_waitcnt vmcnt(8)'); acc(BUF(i-2), i==3)
        if i==1:
            for sl in range(4):
                for tb in range(2):
                    for r in range(4): e('v_mul_f32 %s, %s, %s'%(v(YA+16*tb+4*sl+r),v(GG+sl),v(YA+16*tb+4*sl+r)))
                e('v_sub_f32 %s, 1.0, %s'%(v(GG+sl),v(GG+sl)))
    e('s_and_b32 s19, s66, s49'); e('s_cmp_eq_u32 s19, s49'); e('s_cbranch_scc1 AX_G7')
    e('s_mov_b32 exec_lo, s49'); e('s_mov_b32 exec_hi, 0')
    pollbits(7,'s49','s49',0)
    e('AX_G7:')
    e('s_mov_b64 exec, -1')
    loads(7,'s48')
    e('s_waitcnt vmcnt(8)'); acc(BUF(5),False)
    lds_wait(15,5,'39')
    for u in range(4): e('ds_read_b128 %s, %s'%(v(BUF(4)+4*u,4),v(128+u)))
    e('s_waitcnt lgkmcnt(0)'); acc(BUF(4),False)
    st(4)
    e('s_waitcnt vmcnt(4)'); acc(BUF(6),False)
    st(5)
    e('s_lshl_b32 s16, s54, 1')
    for sl in range(4):
        e('s_waitcnt vmcnt(%d)'%(3-sl))
        for tb in range(2): mfma(SP+16*tb+4*sl, SEL+4*tb, BUF(7)+4*sl)
    e('s_nop 3')
    for sl in range(4): fin((YA+4*sl,YA+16+4*sl),(SP+4*sl,SP+16+4*sl),GG+sl,232+4*sl,TR+sl,'s16')
    if STAMP:
        e('s_waitcnt vmcnt(0)'); st(6); st_flush(7,0)
        if TRACE: trace_flush(252,253)
    if DIAG:
        e('s_waitcnt vmcnt(0)'); e('s_memrealtime s[76:77]'); e('s_waitcnt lgkmcnt(0)')
        if DIAG==1: e('s_mov_b32 s74, s76')
        e('s_sub_u32 s16, s74, s72')
        if DIAG in (2,6): e('s_lshl_b32 s16, s16, 2')
        if DIAG==4: e('s_lshl_b32 s16, s16, 3')
        e('DG:'); e('s_memrealtime s[78:79]'); e('s_waitcnt lgkmcnt(0)'); e('s_sub_u32 s17, s78, s76'); e('s_cmp_lt_u32 s17, s16'); e('s_cbranch_scc1 DG')
    e('s_endpgm')
    for n,k in enumerate(later):
        e('AX_SL%d:'%n); out.extend(parts[k]); e('s_branch AX_SR')

def main():
    global INMAIN
    e('K_MAIN:')
    ACC=96; AF=16; XB=56
    T=200
    e('v_lshlrev_b32 v7, 2, v0'); e('s_lshl_b32 s16, %s, 8'%s(sWV)); e('s_add_u32 s16, s16, %d'%LND); e('v_add_u32 v3, s16, v7'); e('v_mov_b32 v8, 0')
    for i in range(3): e('ds_write_b32 v3, v8 offset:%d'%(1024*i))
    e('v_add_u32 v13, 1024, v3')
    e('v_and_b32 v3, 1, v0'); e('v_mul_u32_u24 v3, 260, v3'); e('v_add_u32 v14, %d, v3'%LND)
    e('v_mov_b32 v5, 0')
    e('v_and_b32 v200, 15, v0'); e('v_lshrrev_b32 v201, 4, v0')
    e('s_movk_i32 s17, 1152')
    e('v_lshrrev_b32 v202, 2, v200'); e('v_and_b32 v203, 3, v0')
    e('v_lshl_add_u32 v204, v201, 3, v202'); e('v_mul_u32_u24 v204, s17, v204'); e('v_lshl_add_u32 v204, v203, 3, v204')
    e('v_lshrrev_b32 v205, 1, v202'); e('v_and_b32 v7, 1, v201'); e('v_lshl_add_u32 v205, v7, 1, v205')
    e('s_mul_i32 s18, %s, %d'%(s(sWV),NA)); e('s_cmp_eq_u32 %s, 3'%s(sWV)); e('s_cselect_b32 s18, %d, s18'%(36-NB))
    for i in range(4):
        e('s_add_u32 s16, s18, %d'%i); e('s_and_b32 s17, s16, 3'); e('s_lshr_b32 s16, s16, 2'); e('s_lshl_b32 s16, s16, 7')
        e('v_xor_b32 v7, s17, v205'); e('v_lshl_add_u32 v7, v7, 5, v204'); e('v_add_u32 %s, s16, v7'%v(88+i)); e('v_mov_b32 %s, %s'%(v(92+i),v(88+i)))
    e('v_lshrrev_b32 v7, 1, v200'); e('v_xor_b32 v7, v7, v201'); e('v_lshlrev_b32 v7, 4, v7')
    e('v_lshl_add_u32 v1, v200, 7, v7'); e('v_add_u32 v1, %d, v1'%XW0); e('s_lshl_b32 s16, s98, 6'); e('v_xor_b32 v1, s16, v1'); e('v_xor_b32 v2, 64, v1')
    e('v_mov_b32 v3, v1'); e('v_mov_b32 v4, v2')
    e('v_lshlrev_b32 v12, 4, v0')
    e('s_lshr_b32 s16, %s, 1'%s(sWV)); e('s_lshl_b32 s16, s16, 11'); e('s_add_u32 s16, s16, %d'%HB); e('v_add_u32 v9, s16, v12')
    e('v_lshl_add_u32 v204, v201, 2, v202'); e('v_bfe_u32 v205, v204, 1, 2'); e('v_lshlrev_b32 v204, 7, v204'); e('v_lshl_add_u32 v204, v203, 3, v204')
    e('s_and_b32 s16, %s, 1'%s(sWV)); e('s_lshl_b32 s16, s16, 1')
    for tb in range(2):
        e('s_add_u32 s17, s16, %d'%tb); e('v_xor_b32 v7, s17, v205'); e('v_lshl_add_u32 %s, v7, 5, v204'%v(10+tb))
    for i in range(16*NB): e('v_mov_b32 %s, 0'%v(ACC+i))
    for i in range(4*(NB-3),4*NA): e('v_mov_b32 %s, 0'%v(AF+i))
    for i in range(16): e('v_mov_b32 %s, 0'%v(XB+16+i))
    e('s_waitcnt lgkmcnt(0)')
    srd(sWS,62,WS_BYTES)
    if TW:
        srd(sOUT,58,2359296); srd(sW2,54,5308416)
        e('s_cmp_eq_u32 %s, 2'%s(sWV)); e('s_cbranch_scc0 M_TW')
        G=TW
        e('v_lshlrev_b32 v7, %d, v0'%(20 if TW==1 else 16))
        e('s_mov_b32 s16, %d'%U_OFF); e('s_mov_b64 exec, %s'%('0x1f' if TW==1 else '-1')); e('buffer_load_dword v15, v7, %s, s16 offen'%s(sWS,4))
        e('s_mov_b64 exec, %s'%('7' if TW==1 else '-1')); e('buffer_load_dword v15, v7, %s, 0 offen'%s(sOUT,4))
        e('v_lshlrev_b32 v7, %d, v0'%(19 if TW==1 else 16)); e('s_mov_b64 exec, %s'%('3' if TW==1 else '0x3ff'))
        e('s_mul_i32 s16, %s, %d'%(s(sC),8*73728)); e('buffer_load_dword v15, v7, %s, s16 offen'%s(sWS,4))
        e('s_mul_i32 s16, %s, %d'%(s(sJ),576*1152)); e('buffer_load_dword v15, v7, %s, s16 offen'%s(sW2,4))
        e('s_mov_b64 exec, -1')
        e('M_TW:')
    e('s_lshl_b32 s16, s18, 11'); e('s_add_u32 s16, s16, %d'%HB); e('v_add_u32 v8, s16, v12')
    e('s_mov_b32 s64, 0'); e('s_mov_b32 s65, 0'); e('s_mov_b32 s66, 1')
    INMAIN=True
    if MPRIO: e('s_setprio 3')
    spins=[]
    def check(seq,thr,vaddr=109):
        L=lab('SP'); R=L+'R'
        seq.append(('need',['F'])); seq.append(('i','v_cmp_gt_u32 vcc, %s, v110'%thr)); seq.append(('i','s_cbranch_vccnz '+L)); seq.append(('i',R+':'))
        spins.append((L,R,thr,vaddr))
    def conv(u,sg):
        a=ACC+32*u+4*sg; b=a+16
        if RM==1:
            L=[]
            for d,x in ((a,a),(a+1,a+2),(a+2,b),(a+3,b+2)):
                L+=['v_max_f32 %s, 0, %s'%(v(x),v(x)),'v_max_f32 %s, 0, %s'%(v(x+1),v(x+1)),'v_cvt_pk_bf16_f32 %s, %s, %s'%(v(d),v(x),v(x+1))]
            return L+['ds_write_b128 v8, %s offset:%d'%(v(a,4),u*4096+sg*1024)]
        if RM==2:
            return ['v_cvt_pk_bf16_f32 %s, %s, %s'%(v(d),v(x),v(x+1)) for d,x in ((a,a),(a+1,a+2),(a+2,b),(a+3,b+2))]+['s_nop 0','ds_write_b128 v8, %s offset:%d'%(v(a,4),u*4096+sg*1024)]
        if RM==3:
            return ['v_cvt_pk_bf16_f32 %s, %s, %s'%(v(d),v(x),v(x+1)) for d,x in ((a,a),(a+1,a+2),(a+2,b),(a+3,b+2))]+['v_pk_max_i16 %s, %s, 0'%(v(a+k),v(a+k)) for k in range(4)]+['s_nop 0']
        return ['v_cvt_pk_bf16_f32 %s, %s, %s'%(v(a),v(a),v(a+1)),'v_cvt_pk_bf16_f32 %s, %s, %s'%(v(a+1),v(a+2),v(a+3)),
                'v_cvt_pk_bf16_f32 %s, %s, %s'%(v(a+2),v(b),v(b+1)),'v_cvt_pk_bf16_f32 %s, %s, %s'%(v(a+3),v(b+2),v(b+3))]+['v_pk_max_i16 %s, %s, 0'%(v(a+k),v(a+k)) for k in range(4)]+[
                'ds_write_b128 v8, %s offset:%d'%(v(a,4),u*4096+sg*1024)]
    def step1(NT,p,last=False):
        seq=[('i','s_barrier')]
        R=[('A',0,0),('A',0,1)]+[('X',p,sg) for sg in range(4)]+[('A',t,r) for t in range(1,NT) for r in range(2)]
        extra=[]
        if not last:
            extra=['s_add_u32 s64, s64, %d'%SLOT,'s_cmp_eq_u32 s64, %d'%(3*SLOT),'s_cselect_b32 s64, 0, s64','s_add_u32 s66, s66, 1']+['v_add_u32 %s, s64, %s'%(v(92+i),v(88+i)) for i in range(4)]
            if p==1: extra+=['s_add_u32 s65, s65, 8192','s_and_b32 s65, s65, 32767','v_add_u32 v3, s65, v1','v_add_u32 v4, s65, v2']
            else: extra+=['s_cmp_eq_u32 s66, 18']
        cv=[]; nq=0
        ng=4*(NT+3) if last else 4*NT
        eb=len(R)+5
        def pop(n,ok):
            for _ in range(n):
                if cv and (ok or not cv[0].startswith('ds_')):
                    x=cv.pop(0)
                    seq.append(('lds','H',x) if x.startswith('ds_') else ('i',x))
        for g in range(ng):
            i,sg=divmod(g,4)
            if g<len(R):
                k,a,b=R[g]
                if k=='A': seq.append(('lds',R[g],'ds_read_b64_tr_b16 %s, %s offset:%d'%(v(AF+4*a+2*b,2),v(92+a%4),128*(a//4)+4608*b)))
                else: seq.append(('lds',R[g],'ds_read_b128 %s, %s offset:%d'%(v(XB+16*p+4*b,4),v(3+p),2048*b)))
            elif extra: seq.append(('i',extra.pop(0)))
            if last:
                if g==eb: seq.append(('need',[('A',NT-1,1)])); seq.append(('i','s_barrier'))
                if sg==0 and i>=6 and i%2==0:
                    cv+=[x for q in range(4) for x in conv(nq,q)]; nq+=1
                pop(CPG,g>=eb)
            if i<3: t,xb=NT-3+i,1-p
            else: t,xb=i-3,p
            seq.append(('need',[('A',t,0),('A',t,1),('X',xb,sg)]))
            seq.append(('i',mf(ACC+16*t+4*sg, AF+4*t, XB+16*xb+4*sg)))
        assert not extra
        if not last: seq.append(('need',[('A',NT-1,1)]))
        if last:
            assert len(cv)>=9
            while nq<NT//2:
                cv+=[x for q in range(4) for x in conv(nq,q)]; nq+=1
            pop(len(cv),True)
        return seq
    def phase1(NT,nm):
        s0=step1(NT,0); s1=step1(NT,1)
        s0e=s0
        if STAMP: s0e=s0[:1]+[('i','s_cmp_eq_u32 s66, 1'),('i','s_cbranch_scc0 %sNS'%nm),('i','s_memrealtime s[74:75]'),('i','s_memtime s[88:89]'),('i','s_waitcnt lgkmcnt(0)'),('i',nm+'NS:')]+s0[1:]
        e(nm+'L:')
        stream(s0e+[('i','s_cbranch_scc1 %sX'%nm)]+s1+[('i','s_branch %sL'%nm)],True)
        e(nm+'X:')
        stream(step1(NT,1,True),False,pre=s1+s0)
    e('s_cmp_ge_u32 %s, 2'%s(sWV)); e('s_cbranch_scc1 MBL')
    for i in range(16*NB,16*NA): e('v_mov_b32 %s, 0'%v(ACC+i))
    phase1(NA,'MA')
    e('s_branch M1_J')
    phase1(NB,'MB')
    e('M1_J:'); e('s_waitcnt vmcnt(0)')
    e('s_waitcnt lgkmcnt(0)')
    st(2); stc(9)
    e('v_mov_b32 v100, v9'); e('v_add_u32 v101, 36864, v9')
    e('s_barrier')
    H=112
    for k in range(18):
        for sg in range(2): e('ds_read_b128 %s, %s offset:%d'%(v(H+8*k+4*sg,4),v(100+k//9),(k%9)*4096+sg*1024))
        if E3A and k==12: e('s_waitcnt lgkmcnt(8)'); e('s_barrier')
    e('v_mov_b32 v102, v10'); e('v_mov_b32 v103, v11'); e('v_add_u32 v104, %d, v10'%SLOT); e('v_add_u32 v105, %d, v11'%SLOT)
    e('v_mov_b32 v106, v12'); e('v_mov_b32 v108, v13'); e('v_mov_b32 v109, v14')
    if TRACE: e('v_mov_b32 v1, 0'); e('v_mov_b32 v3, 0')
    e('v_mov_b32 v107, 20')
    e('ds_read_b32 v110, v109')
    WR=16; PA=64; QA=80; PK=8
    e('s_mov_b32 s64, %d'%(2*SLOT)); e('s_mov_b32 s65, 0'); e('s_mov_b32 s66, 19')
    e('s_mul_i32 s60, s2, 73728')
    e('s_lshl_b32 s61, %s, 11'%s(sWV)); e('s_add_u32 s60, s60, s61')
    e('s_mov_b32 s67, %d'%OOB)
    e('s_lshl_b32 s19, s2, 7'); e('s_lshl_b32 s61, %s, 2'%s(sWV)); e('s_add_u32 s19, s19, s61'); e('s_add_u32 s19, s19, %d'%FLP)
    e('s_mov_b32 s63, %d'%(FMASK<<1))
    e('v_mov_b32 v6, 0'); e('s_and_b32 s62, %s, %d'%(s(sC),NSITE-1))
    e('s_waitcnt lgkmcnt(0)'); e('s_barrier')
    st(3); stc(10)
    def mm2(kg,u):
        tb,sg=divmod(u,2)
        a=WR+8*(kg%6)+4*tb; b=H+8*kg+4*sg
        if kg<9: return mf(PA+8*tb+4*sg,a,b,'0' if kg==0 else None)
        return mf(QA+8*tb+4*sg,a,b,PA+8*tb+4*sg if kg==9 else None)
    def packq(final=False):
        L=[]
        for sg in range(2):
            for tb in range(2):
                for h in range(2):
                    q=QA+8*tb+4*sg+2*h
                    L.append('v_cvt_pk_bf16_f32 %s, %s, %s'%(v(PK+4*sg+2*tb+h),v(q),v(q+1)))
            if final: L.append('ds_write_b128 v7, %s offset:%d'%(v(PK+4*sg,4),1024*sg))
            else: L.append('buffer_store_dwordx4 %s, v106, %s, s67 offen offset:%d sc1'%(v(PK+4*sg,4),s(sWS,4),1024*sg))
        return L
    body=[]
    for hc in range(2):
        check(body,'s66')
        R=[(9*hc+k,tb,r) for k in range(9) for tb in range(2) for r in range(2)]
        ex={}
        if hc==0:
            cv=[x for x in packq() if x.startswith('v_cvt')]
            for i,x in enumerate(cv): ex[16+i]=[x]
            ex[2]=['v_add_u32 v104, s64, v104']; ex[3]=['v_add_u32 v105, s64, v105']; ex[4]=['s_sub_u32 s64, 0, s64']; ex[5]=['s_add_u32 s66, s66, 1']

        else:
            L=['v_add_u32 v102, s64, v102','v_add_u32 v103, s64, v103','s_add_u32 s66, s66, 1',
               's_add_u32 s61, s65, s15','s_and_b32 s61, s61, 7','s_cmp_eq_u32 s65, 0','s_cselect_b32 s61, 8, s61',
               's_lshl_b32 s61, s61, 13']
            for i,x in enumerate(L): ex[2+i]=[x]
            ex[26]=['s_add_u32 s67, s60, s61']; ex[30]=['s_cmp_eq_u32 s65, 8','s_cselect_b32 s62, 0, s62']
            ex[27]=['v_mov_b32 v6, s65']; ex[28]=['s_add_u32 s65, s65, 1']; ex[33]=['s_cmp_lt_u32 s65, 9']
            if FEARLY: ex[32]=['s_bitcmp1_b32 s63, s65','s_cbranch_scc1 M2_FL','M2_FR:']
        sites=[(0,25),(1,1),(1,13),(1,25)][:NSITE]
        for n,(h,g) in enumerate(sites):
            if h==hc:
                ex.setdefault(g,[]); ex[g]=ex[g]+['s_cmp_eq_u32 s62, %d'%n,'s_cbranch_scc1 M2_ST%d'%n,'M2_SR%d:'%n]
        for g in range(36):
            i,u=divmod(g,4)
            k,tb,r=R[g]
            body.append(('lds',R[g],'ds_read_b64_tr_b16 %s, %s offset:%d'%(v(WR+8*(k%6)+4*tb+2*r,2),v(102+2*hc+tb),(k%9)*4096+r*2048)))
            if g==30: body.append(('lds','F','ds_read_b32 v110, v109'))
            if g==34: body.append(('i','v_add_u32 v107, 1, v107'))
            if g==35: body.append(('lds','C','ds_write_b32 v108, v107'))
            for x in ex.get(g,[]): body.append(('i',x))
            kg=(9*hc+i-3)%18
            body.append(('need',[(kg,u//2,0),(kg,u//2,1)]))
            body.append(('i',mm2(kg,u)))
    e('v_add_u32 v104, s64, v104'); e('v_add_u32 v105, s64, v105'); e('s_sub_u32 s64, 0, s64')
    e('M2_L:')
    stream(body,True)
    e('s_cbranch_scc1 M2_L')
    e('s_lshl_b32 s61, %s, 11'%s(sWV)); e('s_add_u32 s61, s61, %d'%QH); e('v_add_u32 v7, s61, v106')
    e('s_waitcnt lgkmcnt(0)')
    for kg in (15,16,17):
        for u in range(4): e(mm2(kg,u))
    if not FEARLY: e('s_waitcnt vmcnt(0)'); e('s_mov_b64 exec, 1'); e('buffer_store_dword v6, v5, %s, s19 offen sc1'%s(sWS,4)); e('s_mov_b64 exec, -1')
    e('s_nop 7')
    for x in packq(True): e(x)
    e('v_add_u32 v107, 1, v107'); e('ds_write_b32 v108, v107')
    INMAIN=False
    if STAMP:
        st(4); stc(11); st_flush(12,0)
        if TRACE: trace_flush(1,3)
    e('s_waitcnt lgkmcnt(0)')
    e('s_endpgm')
    e('M2_FL:'); e('s_waitcnt vmcnt(0)'); e('s_mov_b64 exec, 1'); e('buffer_store_dword v6, v5, %s, s19 offen sc1'%s(sWS,4)); e('s_mov_b64 exec, -1'); e('s_branch M2_FR')
    for n in range(NSITE):
        e('M2_ST%d:'%n)
        if MSP: e('s_setprio %d'%MSP)
        if not FEARLY: e('s_waitcnt vmcnt(0)'); e('s_mov_b64 exec, 1'); e('buffer_store_dword v6, v5, %s, s19 offen sc1'%s(sWS,4)); e('s_mov_b64 exec, -1')
        for x in packq():
            if x.startswith('buffer') and not NOST: e(x)
        if MSP: e('s_setprio 0')
        e('s_branch M2_SR%d'%n)
    for (L,R,thr,va) in spins:
        e(L+':')
        tr=TRACE and thr=='s66'
        if tr:
            e('s_memtime s[96:97]'); e('s_waitcnt lgkmcnt(0)'); e('s_mov_b32 m0, s66'); e('s_nop 3'); e('v_writelane_b32 v1, s96, m0'); L=L+'b'; e(L+':')
        if opt('msl',0): e('s_sleep %d'%opt('msl',0))
        e('ds_read_b32 v110, %s'%v(va))
        e('s_add_u32 s99, s99, 1'); e('s_cmp_gt_u32 s99, 0x100000'); e('s_cbranch_scc1 K_END'); e('s_waitcnt lgkmcnt(0)')
        e('v_cmp_gt_u32 vcc, %s, v110'%thr); e('s_cbranch_vccnz '+L)
        if tr: e('s_memtime s[96:97]'); e('s_waitcnt lgkmcnt(0)'); e('v_writelane_b32 v3, s96, m0')
        e('s_branch '+R)

HDR='''; gated mix of an FNet 2-D DFT branch and a ReLU FFN branch; one launch, 256 workgroups (one per CU), 8 waves each.
; kernarg: 0 x, 8/16 seq DFT, 24/32 hidden DFT (constants, not read), 40 B_x (unused), 48 w1, 56 w2, 64 gate_w, 72 out, 80 debug, 88 ws'''
assert all((L*57)>>9==L//9 for L in range(288))
assert all((L*57)>>11==L//36 for L in range(289))
out.append(HDR)
out.append('; @launch grid=(256,1,1) block=(512,1,1) lds=163840')
out.append('.amdgcn_target "amdgcn-amd-amdhsa--gfx950"')
out.append('.text'); out.append('.globl '+NAME)
kernel()
out.append('.section .rodata,"a"'); out.append('.p2align 6')
out.append('.amdhsa_kernel '+NAME)
for l in ['next_free_vgpr 256','next_free_sgpr 100','accum_offset 256','group_segment_fixed_size 0','kernarg_size 96','user_sgpr_count 2','user_sgpr_kernarg_segment_ptr 1','system_sgpr_workgroup_id_x 1']:
    out.append('  .amdhsa_'+l)
out.append('.end_amdhsa_kernel')
print('\n'.join(out))
```
